```python
import torch

def _softmax(x, axis=-1):
    return torch.softmax(x, dim=axis)
def _gelu(x):
    return torch.nn.functional.gelu(x, approximate="tanh")
def _silu(x):
    return torch.nn.functional.silu(x)
def _sigmoid(x):
    return torch.sigmoid(x)
def _layernorm(x, axis=-1, eps=1e-5):
    m = x.mean(dim=axis, keepdim=True)
    v = x.var(dim=axis, keepdim=True, unbiased=False)
    return (x - m) / torch.sqrt(v + eps)
def _scatter_add(tgt, idx, src, axis=0):
    return tgt.clone().index_add_(axis, idx, src)
def _segment_sum(src, seg, n):
    out = torch.zeros((n,) + src.shape[1:], dtype=src.dtype)
    return out.index_add_(0, seg, src)
def _pad(x, pw):
    flat = tuple(v for pair in reversed(pw) for v in pair)
    return torch.nn.functional.pad(x, flat)

kernel_name = 'standalone__dense_activation_gelu__prompt'

def setup_inputs():

    _w = (lambda a: (lambda t: t.to(torch.bfloat16) if t.is_floating_point() else t)(torch.as_tensor(a)))
    B, S, D, F = 1, 2048, 640, 1536
    return {
        "x": _w((lambda *s: torch.randn(*s, dtype=torch.bfloat16) * 0.05)(B, S, D)),
        "w1": _w((lambda *s: torch.randn(*s, dtype=torch.bfloat16) * 3.2)(D, F) * (D ** -0.5)),
        "b1": _w((lambda *s: torch.randn(*s, dtype=torch.bfloat16) * 3.2)(F) * 0.01),
        "w2": _w((lambda *s: torch.randn(*s, dtype=torch.bfloat16) * 0.05)(F, D) * (F ** -0.5)),
        "b2": _w((lambda *s: torch.randn(*s, dtype=torch.bfloat16) * 0.1)(D) * 0.01),
    }

def reference(x, w1, b1, w2, b2):
    h = torch.einsum("bsd,df->bsf", x, w1) + b1
    h = _gelu(h)
    return torch.einsum("bsf,fd->bsd", h, w2) + b2
```

```python
import struct, sys
def f2u(x): return struct.unpack("<I", struct.pack("<f", x))[0]
C0 = -2.0 * 0.7978845608028654 * 1.4426950408889634
C1 = C0 * 0.044715
NAME = "standalone__dense_activation_gelu__prompt"
HEAD = open("cdna_kernels/%s.s.ref" % NAME).read().split("; Override launch geometry")[0]

class A:
    def __init__(self): self.L = []
    def __call__(self, s, *args):
        self.L.append("    " + (s % args if args else s))
    def label(self, s): self.L.append(s + ":")
    def text(self): return "\n".join(self.L) + "\n"

def srd(a, d, lo, nbytes):
    a("s_mov_b32 s%d, s%d", d, lo); a("s_mov_b32 s%d, s%d", d + 1, lo + 1)
    a("s_mov_b32 s%d, %d", d + 2, nbytes); a("s_mov_b32 s%d, 0x20000", d + 3)

def desc(name, vgpr, acc, sgpr=102):
    return """.amdhsa_kernel %s
  .amdhsa_next_free_vgpr %d
  .amdhsa_next_free_sgpr %d
  .amdhsa_accum_offset %d
  .amdhsa_group_segment_fixed_size 0
  .amdhsa_kernarg_size 64
  .amdhsa_user_sgpr_count 2
  .amdhsa_user_sgpr_kernarg_segment_ptr 1
  .amdhsa_system_sgpr_workgroup_id_x 1
  .amdhsa_float_denorm_mode_32 3
  .amdhsa_float_denorm_mode_16_64 3
.end_amdhsa_kernel
""" % (name, vgpr, sgpr, acc)

def gelu_tile(a, acc, tmp, outr, sC1, vC0, vONE):
    P = range(8)
    for p in P: a("v_pk_mul_f32 v[%d:%d], v[%d:%d], v[%d:%d]", tmp+2*p, tmp+2*p+1, acc+2*p, acc+2*p+1, acc+2*p, acc+2*p+1)
    for p in P: a("v_pk_fma_f32 v[%d:%d], v[%d:%d], s[%d:%d], v[%d:%d]", tmp+2*p, tmp+2*p+1, tmp+2*p, tmp+2*p+1, sC1, sC1+1, vC0, vC0+1)
    for p in P: a("v_pk_mul_f32 v[%d:%d], v[%d:%d], v[%d:%d]", tmp+2*p, tmp+2*p+1, tmp+2*p, tmp+2*p+1, acc+2*p, acc+2*p+1)
    for i in range(16): a("v_exp_f32 v%d, v%d", tmp+i, tmp+i)
    for p in P: a("v_pk_add_f32 v[%d:%d], v[%d:%d], v[%d:%d]", tmp+2*p, tmp+2*p+1, tmp+2*p, tmp+2*p+1, vONE, vONE+1)
    for i in range(16): a("v_rcp_f32 v%d, v%d", tmp+i, tmp+i)
    for p in P: a("v_pk_mul_f32 v[%d:%d], v[%d:%d], v[%d:%d]", tmp+2*p, tmp+2*p+1, tmp+2*p, tmp+2*p+1, acc+2*p, acc+2*p+1)
    for p in P: a("v_cvt_pk_bf16_f32 v%d, v%d, v%d", outr+p, tmp+2*p, tmp+2*p+1)

def k1(S=4):
    a = A()
    SLOT = 32768
    sX, sW, sH, sB = 8, 12, 16, 20
    sWave, sMT, sFT, sXoff, sWoff, sM0, sRd, sIt, sT, sT2 = 24, 25, 26, 27, 28, 29, 30, 31, 32, 33
    sC1 = 34
    vL, vHi = 1, 2
    vXd, vWd = 4, 8
    vXb, vWb = 12, 16
    vXr, vWr = 18, 22
    vC0, vONE = 24, 26
    vT = 28
    FR = 32
    ACC = 64
    TMP = 128
    OUT = 144
    a("s_cmp_ge_u32 s2, 192"); a("s_cbranch_scc1 K1_end")
    a("s_load_dwordx4 s[40:43], s[0:1], 0")
    a("s_load_dwordx2 s[44:45], s[0:1], 16")
    a("s_load_dwordx2 s[46:47], s[0:1], 56")
    a("v_and_b32 v%d, 63, v0", vL)
    a("v_lshrrev_b32 v%d, 6, v0", vT)
    a("v_lshrrev_b32 v%d, 5, v%d", vHi, vL)
    a("v_readfirstlane_b32 s%d, v%d", sWave, vT)
    a("s_and_b32 s%d, s2, 7", sT); a("s_lshr_b32 s%d, s2, 3", sT2)
    a("s_lshr_b32 s%d, s%d, 1", sMT, sT); a("s_lshl_b32 s%d, s%d, 2", sMT, sMT)
    a("s_and_b32 s%d, s%d, 3", sFT, sT2); a("s_add_u32 s%d, s%d, s%d", sMT, sMT, sFT)
    a("s_and_b32 s%d, s%d, 1", sFT, sT); a("s_mul_i32 s%d, s%d, 6", sFT, sFT)
    a("s_lshr_b32 s%d, s%d, 2", sT2, sT2); a("s_add_u32 s%d, s%d, s%d", sFT, sFT, sT2)
    a("v_lshrrev_b32 v%d, 3, v%d", vT, vL)
    a("v_and_b32 v%d, 7, v%d", vT + 1, vL)
    a("v_lshrrev_b32 v%d, 1, v%d", vT + 2, vT)
    a("v_xor_b32 v%d, v%d, v%d", vT + 3, vT + 1, vT + 2)
    a("s_lshl_b32 s%d, s%d, 5", sT, sWave)
    a("v_add_u32 v%d, s%d, v%d", vXd, sT, vT)
    a("v_mul_u32_u24 v%d, 1280, v%d", vXd, vXd)
    a("v_lshl_add_u32 v%d, v%d, 4, v%d", vXd + 1, vT + 3, vXd)
    a("v_xor_b32 v%d, 4, v%d", vT + 3, vT + 3)
    a("v_lshl_add_u32 v%d, v%d, 4, v%d", vXd + 3, vT + 3, vXd)
    a("v_mov_b32 v%d, v%d", vXd, vXd + 1)
    a("v_add_u32 v%d, %d, v%d", vXd + 2, 2 * (8 * 1280 - 1024), vXd)
    a("v_add_u32 v%d, %d, v%d", vXd + 1, 1 * (8 * 1280 - 1024), vXd + 3)
    a("v_add_u32 v%d, %d, v%d", vXd + 3, 3 * (8 * 1280 - 1024), vXd + 3)
    a("v_and_b32 v%d, 1, v%d", vT + 2, vT + 2)
    a("v_lshlrev_b32 v%d, 2, v%d", vT + 2, vT + 2)
    a("v_xor_b32 v%d, v%d, v%d", vT + 3, vT + 1, vT + 2)
    a("s_and_b32 s%d, s%d, 1", sT, sWave); a("s_lshl_b32 s%d, s%d, 5", sT, sT)
    a("v_add_u32 v%d, s%d, v%d", vWd, sT, vT)
    a("v_mul_u32_u24 v%d, 3072, v%d", vWd, vWd)
    a("v_lshl_add_u32 v%d, v%d, 4, v%d", vWd, vT + 3, vWd)
    a("s_lshr_b32 s%d, s%d, 1", sT, sWave); a("s_lshl_b32 s%d, s%d, 7", sT, sT)
    a("v_add_u32 v%d, s%d, v%d", vWd, sT, vWd)
    for i in range(1, 4): a("v_add_u32 v%d, %d, v%d", vWd + i, i * (8 * 3072 - 1024), vWd)
    a("s_mul_i32 s%d, s%d, %d", sXoff, sMT, 128 * 1280)
    a("s_lshl_b32 s%d, s%d, 8", sWoff, sFT)
    a("s_lshl_b32 s%d, s%d, 12", sM0, sWave)
    a("s_waitcnt lgkmcnt(0)")
    srd(a, sX, 40, 2048 * 640 * 2); srd(a, sW, 42, 640 * 1536 * 2); srd(a, sB, 44, 1536 * 2); srd(a, sH, 46, 2048 * 1536 * 2)
    a("s_and_b32 s%d, s%d, 1", sT, sWave); a("s_lshl_b32 s%d, s%d, 7", sT, sT); a("s_add_u32 s%d, s%d, s%d", sT, sT, sWoff)
    a("v_lshlrev_b32 v%d, 3, v%d", vT, vHi)
    for t in range(8):
        a("buffer_load_dwordx2 v[%d:%d], v%d, s[%d:%d], s%d offen offset:%d", TMP + 2 * t, TMP + 2 * t + 1, vT, sB, sB + 3, sT, 16 * t)
    def dma(i):
        if i == 0: a("s_mov_b32 m0, s%d", sM0)
        if i == 4: a("s_add_u32 m0, s%d, 16384", sM0)
        if i in (0, 4): a("s_nop 0")
        if i < 4: a("buffer_load_dwordx4 v%d, s[%d:%d], s%d offen offset:%d lds", vXd + i, sX, sX + 3, sXoff, 1024 * i)
        else: a("buffer_load_dwordx4 v%d, s[%d:%d], s%d offen offset:%d lds", vWd + i - 4, sW, sW + 3, sWoff, 1024 * (i - 4))
    def dma_adv():
        a("s_add_u32 s%d, s%d, 128", sXoff, sXoff)
        a("s_add_u32 s%d, s%d, %d", sWoff, sWoff, 64 * 3072)
        a("s_add_u32 s%d, s%d, %d", sM0, sM0, SLOT)
        a("s_cmp_ge_u32 s%d, %d", sM0, S * SLOT)
        a("s_cselect_b32 s%d, %d, 0", sT, S * SLOT)
        a("s_sub_u32 s%d, s%d, s%d", sM0, sM0, sT)
    for b in range(S):
        for i in range(8): dma(i)
        dma_adv()
    a("v_and_b32 v%d, 31, v%d", vT, vL)
    a("s_lshr_b32 s%d, s%d, 1", sT, sWave); a("s_lshl_b32 s%d, s%d, 6", sT, sT)
    a("v_add_u32 v%d, s%d, v%d", vT + 1, sT, vT)
    a("v_lshlrev_b32 v%d, 7, v%d", vT + 1, vT + 1)
    a("v_bfe_u32 v%d, v%d, 1, 3", vT + 2, vL)
    a("v_xor_b32 v%d, v%d, v%d", vT + 2, vT + 2, vHi)
    a("v_lshl_add_u32 v%d, v%d, 4, v%d", vXb, vT + 2, vT + 1)
    for s in range(1, 4): a("v_xor_b32 v%d, %d, v%d", vXb + s, 32 * s, vXb)
    a("v_bfe_u32 v%d, v%d, 2, 2", vT, vL)
    a("v_lshl_add_u32 v%d, v%d, 3, v%d", vT + 1, vHi, vT)
    a("v_lshlrev_b32 v%d, 7, v%d", vT + 1, vT + 1)
    a("v_bfe_u32 v%d, v%d, 4, 1", vT + 2, vL)
    a("v_lshlrev_b32 v%d, 5, v%d", vT + 2, vT + 2)
    a("v_add_u32 v%d, v%d, v%d", vT + 1, vT + 1, vT + 2)
    a("v_and_b32 v%d, 3, v%d", vT + 2, vL)
    a("v_lshl_add_u32 v%d, v%d, 3, v%d", vT + 1, vT + 2, vT + 1)
    a("v_bfe_u32 v%d, v%d, 3, 1", vT + 2, vL)
    a("v_lshl_add_u32 v%d, v%d, 6, v%d", vT + 1, vT + 2, vT + 1)
    a("s_and_b32 s%d, s%d, 1", sT, sWave); a("s_lshl_b32 s%d, s%d, 13", sT, sT); a("s_add_u32 s%d, s%d, 16384", sT, sT)
    a("v_add_u32 v%d, s%d, v%d", vWb, sT, vT + 1)
    a("v_xor_b32 v%d, 64, v%d", vWb + 1, vWb)
    a("v_mov_b32 v%d, 0x%x", vC0, f2u(C0)); a("v_mov_b32 v%d, 0x%x", vC0 + 1, f2u(C0))
    a("v_mov_b32 v%d, 1.0", vONE); a("v_mov_b32 v%d, 1.0", vONE + 1)
    a("s_mov_b32 s%d, 0x%x", sC1, f2u(C1)); a("s_mov_b32 s%d, 0x%x", sC1 + 1, f2u(C1))
    a("s_waitcnt vmcnt(%d)", 8 * S)
    for ft in range(2):
        for g in range(4):
            t = TMP + 2 * (ft * 4 + g)
            for mt in range(2):
                r = ACC + (ft * 2 + mt) * 16 + 4 * g
                a("v_lshlrev_b32 v%d, 16, v%d", r, t); a("v_and_b32 v%d, 0xffff0000, v%d", r + 1, t)
                a("v_lshlrev_b32 v%d, 16, v%d", r + 2, t + 1); a("v_and_b32 v%d, 0xffff0000, v%d", r + 3, t + 1)
    def setrd():
        for s in range(4): a("v_add_u32 v%d, s%d, v%d", vXr + s, sRd, vXb + s)
        for f in range(2): a("v_add_u32 v%d, s%d, v%d", vWr + f, sRd, vWb + f)
        a("s_add_u32 s%d, s%d, %d", sRd, sRd, SLOT)
        a("s_cmp_ge_u32 s%d, %d", sRd, S * SLOT)
        a("s_cselect_b32 s%d, 0, s%d", sRd, sRd)
    def reads(s, buf):
        b = FR + 16 * buf
        out = []
        for f in range(2):
            for u in range(2):
                out.append("ds_read_b64_tr_b16 v[%d:%d], v%d offset:%d" % (b + 4 * f + 2 * u, b + 4 * f + 2 * u + 1, vWr + f, s * 2048 + u * 512))
        for mt in range(2):
            out.append("ds_read_b128 v[%d:%d], v%d offset:%d" % (b + 8 + 4 * mt, b + 11 + 4 * mt, vXr + s, mt * 4096))
        return out
    def mfmas(buf):
        b = FR + 16 * buf
        out = []
        for ft in range(2):
            for mt in range(2):
                r = ACC + (ft * 2 + mt) * 16
                out.append("v_mfma_f32_32x32x16_bf16 v[%d:%d], v[%d:%d], v[%d:%d], v[%d:%d]" % (r, r + 15, b + 4 * ft, b + 4 * ft + 3, b + 8 + 4 * mt, b + 11 + 4 * mt, r, r + 15))
        return out
    a("s_mov_b32 s%d, 0", sRd)
    a("s_waitcnt vmcnt(%d)", 8 * (S - 1))
    a("s_barrier")
    setrd()
    for r in reads(0, 0): a(r)
    def block(vm, do_dma, last):
        for s in range(3):
            rd = reads(s + 1, (s + 1) & 1)
            for r in rd: a(r)
            a("s_waitcnt lgkmcnt(6)")
            for m in mfmas(s & 1): a(m)
        if not last:
            a("s_waitcnt vmcnt(%d) lgkmcnt(0)", vm)
            a("s_barrier")
            setrd()
            for r in reads(0, 0): a(r)
        else:
            a("s_waitcnt lgkmcnt(0)")
        ms = mfmas(1)
        for i, m in enumerate(ms):
            a(m)
            if do_dma: dma(2 * i); dma(2 * i + 1)
        if do_dma: dma_adv()
    NB = 10
    a("s_mov_b32 s%d, 0", sIt)
    a.label("K1_loop")
    block(8 * (S - 2), True, False)
    a("s_add_u32 s%d, s%d, 1", sIt, sIt)
    a("s_cmp_lt_u32 s%d, %d", sIt, NB - S)
    a("s_cbranch_scc1 K1_loop")
    for kb in range(NB - S, NB):
        rem = NB - 1 - (kb + 1)
        block(8 * max(rem, 0), False, kb == NB - 1)
    a("s_lshr_b32 s%d, s%d, 1", sT, sWave); a("s_lshl_b32 s%d, s%d, 1", sT2, sMT); a("s_add_u32 s%d, s%d, s%d", sT, sT, sT2)
    a("s_mul_i32 s%d, s%d, 24", sT, sT)
    a("s_lshl_b32 s%d, s%d, 1", sT2, sFT); a("s_add_u32 s%d, s%d, s%d", sT, sT, sT2)
    a("s_and_b32 s%d, s%d, 1", sT2, sWave); a("s_add_u32 s%d, s%d, s%d", sT, sT, sT2)
    a("s_lshl_b32 s%d, s%d, 13", sT, sT)
    a("s_add_u32 s%d, s%d, 4096", sT2, sT)
    a("v_lshlrev_b32 v%d, 4, v%d", vT, vL)
    a("s_nop 7")
    for ft in range(2):
        for mt in range(2):
            o = OUT + 8 * ((ft * 2 + mt) & 1)
            gelu_tile(a, ACC + (ft * 2 + mt) * 16, TMP, o, sC1, vC0, vONE)
            for i in range(2):
                a("buffer_store_dwordx4 v[%d:%d], v%d, s[%d:%d], s%d offen offset:%d", o + 4 * i, o + 4 * i + 3, vT, sH, sH + 3, sT2 if ft else sT, (i * 2 + mt) * 1024)
    a.label("K1_end")
    a("s_endpgm")
    return a.text(), 160

def k2(S=4):
    a = A()
    SLOT = 16384
    sH, sW, sO, sB = 8, 12, 16, 20
    sWave, sMT, sDT, sHoff, sWoff, sM0, sRd, sIt, sT, sT2 = 24, 25, 26, 27, 28, 29, 30, 31, 32, 33
    vL, vHi = 1, 2
    vHd, vWd = 4, 5
    vHb, vWb, vHr, vWr = 7, 8, 9, 10
    vT = 12
    FR = 16
    ACC = 48
    TMP = 64
    a("s_cmp_ge_u32 s2, 320"); a("s_cbranch_scc1 K2_end")
    a("s_load_dwordx4 s[40:43], s[0:1], 24")
    a("s_load_dwordx2 s[44:45], s[0:1], 40")
    a("s_load_dwordx2 s[46:47], s[0:1], 56")
    a("v_and_b32 v%d, 63, v0", vL)
    a("v_lshrrev_b32 v%d, 6, v0", vT)
    a("v_lshrrev_b32 v%d, 5, v%d", vHi, vL)
    a("v_readfirstlane_b32 s%d, v%d", sWave, vT)
    a("s_and_b32 s%d, s2, 7", sT); a("s_lshr_b32 s%d, s2, 3", sT2)
    a("s_lshr_b32 s%d, s%d, 1", sMT, sT); a("s_lshl_b32 s%d, s%d, 3", sMT, sMT)
    a("s_and_b32 s%d, s%d, 7", sDT, sT2); a("s_add_u32 s%d, s%d, s%d", sMT, sMT, sDT)
    a("s_and_b32 s%d, s%d, 1", sDT, sT); a("s_mul_i32 s%d, s%d, 5", sDT, sDT)
    a("s_lshr_b32 s%d, s%d, 3", sT2, sT2); a("s_add_u32 s%d, s%d, s%d", sDT, sDT, sT2)
    a("s_lshl_b32 s%d, s%d, 11", sM0, sWave)
    a("v_lshl_add_u32 v%d, v%d, 4, s%d", vHd, vL, sM0)
    a("v_lshrrev_b32 v%d, 3, v%d", vT, vL)
    a("v_and_b32 v%d, 7, v%d", vT + 1, vL)
    a("v_bfe_u32 v%d, v%d, 4, 1", vT + 2, vL)
    a("v_lshlrev_b32 v%d, 2, v%d", vT + 2, vT + 2)
    a("v_xor_b32 v%d, v%d, v%d", vT + 3, vT + 1, vT + 2)
    a("s_lshl_b32 s%d, s%d, 4", sT, sWave)
    a("v_add_u32 v%d, s%d, v%d", vWd, sT, vT)
    a("v_mul_u32_u24 v%d, 1280, v%d", vWd, vWd)
    a("v_lshl_add_u32 v%d, v%d, 4, v%d", vWd, vT + 3, vWd)
    a("v_add_u32 v%d, %d, v%d", vWd + 1, 8 * 1280 - 1024, vWd)
    a("s_mul_i32 s%d, s%d, %d", sHoff, sMT, 24 * 8192)
    a("s_lshl_b32 s%d, s%d, 7", sWoff, sDT)
    a("s_waitcnt lgkmcnt(0)")
    srd(a, sW, 40, 1536 * 640 * 2); srd(a, sB, 42, 640 * 2); srd(a, sO, 44, 2048 * 640 * 2); srd(a, sH, 46, 2048 * 1536 * 2)
    a("s_and_b32 s%d, s%d, 1", sT, sWave); a("s_lshl_b32 s%d, s%d, 6", sT, sT); a("s_add_u32 s%d, s%d, s%d", sT, sT, sWoff)
    a("v_lshlrev_b32 v%d, 3, v%d", vT, vHi)
    for t in range(4):
        a("buffer_load_dwordx2 v[%d:%d], v%d, s[%d:%d], s%d offen offset:%d", TMP + 2 * t, TMP + 2 * t + 1, vT, sB, sB + 3, sT, 16 * t)
    def dma(i):
        if i == 0: a("s_mov_b32 m0, s%d", sM0)
        if i == 2: a("s_add_u32 m0, s%d, 8192", sM0)
        if i in (0, 2): a("s_nop 0")
        if i < 2: a("buffer_load_dwordx4 v%d, s[%d:%d], s%d offen offset:%d lds", vHd, sH, sH + 3, sHoff, 1024 * i)
        else: a("buffer_load_dwordx4 v%d, s[%d:%d], s%d offen offset:%d lds", vWd + i - 2, sW, sW + 3, sWoff, 1024 * (i - 2))
    def dma_adv():
        a("s_add_u32 s%d, s%d, 8192", sHoff, sHoff)
        a("s_add_u32 s%d, s%d, %d", sWoff, sWoff, 64 * 1280)
        a("s_add_u32 s%d, s%d, %d", sM0, sM0, SLOT)
        a("s_cmp_ge_u32 s%d, %d", sM0, S * SLOT)
        a("s_cselect_b32 s%d, %d, 0", sT, S * SLOT)
        a("s_sub_u32 s%d, s%d, s%d", sM0, sM0, sT)
    for b in range(S):
        for i in range(4): dma(i)
        dma_adv()
    a("s_lshr_b32 s%d, s%d, 1", sT, sWave); a("s_lshl_b32 s%d, s%d, 10", sT, sT)
    a("v_lshl_add_u32 v%d, v%d, 4, s%d", vHb, vL, sT)
    a("v_bfe_u32 v%d, v%d, 2, 2", vT, vL)
    a("v_lshl_add_u32 v%d, v%d, 2, v%d", vT + 1, vHi, vT)
    a("v_lshlrev_b32 v%d, 7, v%d", vT + 1, vT + 1)
    a("v_bfe_u32 v%d, v%d, 4, 1", vT + 2, vL)
    a("v_lshl_add_u32 v%d, v%d, 5, v%d", vT + 1, vT + 2, vT + 1)
    a("v_and_b32 v%d, 3, v%d", vT + 2, vL)
    a("v_lshl_add_u32 v%d, v%d, 3, v%d", vT + 1, vT + 2, vT + 1)
    a("v_bfe_u32 v%d, v%d, 3, 1", vT + 2, vL)
    a("v_lshl_add_u32 v%d, v%d, 6, v%d", vT + 1, vT + 2, vT + 1)
    a("s_and_b32 s%d, s%d, 1", sT, sWave); a("s_lshl_b32 s%d, s%d, 6", sT, sT)
    a("v_xor_b32 v%d, s%d, v%d", vT + 1, sT, vT + 1)
    a("v_add_u32 v%d, 8192, v%d", vWb, vT + 1)
    a("s_waitcnt vmcnt(%d)", 4 * S)
    for g in range(4):
        t = TMP + 2 * g; r = ACC + 4 * g
        a("v_lshlrev_b32 v%d, 16, v%d", r, t); a("v_and_b32 v%d, 0xffff0000, v%d", r + 1, t)
        a("v_lshlrev_b32 v%d, 16, v%d", r + 2, t + 1); a("v_and_b32 v%d, 0xffff0000, v%d", r + 3, t + 1)
    def setrd():
        a("v_add_u32 v%d, s%d, v%d", vHr, sRd, vHb)
        a("v_add_u32 v%d, s%d, v%d", vWr, sRd, vWb)
        a("s_add_u32 s%d, s%d, %d", sRd, sRd, SLOT)
        a("s_cmp_ge_u32 s%d, %d", sRd, S * SLOT)
        a("s_cselect_b32 s%d, 0, s%d", sRd, sRd)
    def reads(s):
        b = FR + 8 * s
        return ["ds_read_b64_tr_b16 v[%d:%d], v%d offset:%d" % (b + 2 * u, b + 2 * u + 1, vWr, s * 2048 + u * 1024) for u in range(2)] + \
               ["ds_read_b128 v[%d:%d], v%d offset:%d" % (b + 4, b + 7, vHr, s * 2048)]
    def mfma(s):
        b = FR + 8 * s
        return "v_mfma_f32_32x32x16_bf16 v[%d:%d], v[%d:%d], v[%d:%d], v[%d:%d]" % (ACC, ACC + 15, b, b + 3, b + 4, b + 7, ACC, ACC + 15)
    a("s_mov_b32 s%d, 0", sRd)
    a("s_waitcnt vmcnt(%d)", 4 * (S - 1))
    a("s_barrier")
    setrd()
    for s in range(4):
        for r in reads(s): a(r)
    def block(vm, do_dma, last):
        if not last:
            a("s_waitcnt vmcnt(%d) lgkmcnt(0)", vm)
            a("s_barrier")
            setrd()
        else:
            a("s_waitcnt lgkmcnt(0)")
        for s in range(4):
            a(mfma(s))
            if not last:
                for r in reads(s): a(r)
            if do_dma: dma(s)
        if do_dma: dma_adv()
    NB = 24
    a("s_mov_b32 s%d, 0", sIt)
    a.label("K2_loop")
    block(4 * (S - 2), True, False)
    a("s_add_u32 s%d, s%d, 1", sIt, sIt)
    a("s_cmp_lt_u32 s%d, %d", sIt, NB - S)
    a("s_cbranch_scc1 K2_loop")
    for kb in range(NB - S, NB):
        rem = NB - 1 - (kb + 1)
        block(4 * max(rem, 0), False, kb == NB - 1)
    a("v_and_b32 v%d, 31, v%d", vT, vL)
    a("s_lshl_b32 s%d, s%d, 6", sT, sMT); a("s_lshr_b32 s%d, s%d, 1", sT2, sWave); a("s_lshl_b32 s%d, s%d, 5", sT2, sT2); a("s_add_u32 s%d, s%d, s%d", sT, sT, sT2)
    a("v_add_u32 v%d, s%d, v%d", vT, sT, vT)
    a("v_mul_u32_u24 v%d, 1280, v%d", vT, vT)
    a("v_lshl_add_u32 v%d, v%d, 4, v%d", vT, vHi, vT)
    a("s_lshl_b32 s%d, s%d, 7", sT, sDT); a("s_and_b32 s%d, s%d, 1", sT2, sWave); a("s_lshl_b32 s%d, s%d, 6", sT2, sT2); a("s_add_u32 s%d, s%d, s%d", sT, sT, sT2)
    a("s_nop 7")
    for p in range(8): a("v_cvt_pk_bf16_f32 v%d, v%d, v%d", TMP + p, ACC + 2 * p, ACC + 2 * p + 1)
    a("s_nop 1")
    for h in range(2):
        a("v_permlane32_swap_b32 v%d, v%d", TMP + 4 * h, TMP + 4 * h + 2)
        a("v_permlane32_swap_b32 v%d, v%d", TMP + 4 * h + 1, TMP + 4 * h + 3)
    for h in range(2):
        a("buffer_store_dwordx4 v[%d:%d], v%d, s[%d:%d], s%d offen offset:%d", TMP + 4 * h, TMP + 4 * h + 3, vT, sO, sO + 3, sT, 32 * h)
    a.label("K2_end")
    a("s_endpgm")
    return a.text(), 72

def build():
    t1, v1 = k1(); t2, v2 = k2()
    s = HEAD
    s += "; @launch kernel=mlp1_kernel grid=(192,1,1) block=(256,1,1) lds=131072\n"
    s += "; @launch kernel=mlp2_kernel grid=(320,1,1) block=(256,1,1) lds=65536\n"
    s += '.amdgcn_target "amdgcn-amd-amdhsa--gfx950"\n.text\n'
    for n, t in (("mlp1_kernel", t1), ("mlp2_kernel", t2)):
        s += ".globl %s\n.p2align 8\n.type %s,@function\n%s:\n%s" % (n, n, n, t)
    s += '.section .rodata,"a"\n.p2align 6\n' + desc("mlp1_kernel", v1, v1) + ".p2align 6\n" + desc("mlp2_kernel", v2, v2)
    return s
if __name__ == "__main__":
    open(sys.argv[1], "w").write(build())
```

```python
import struct, sys
def f2u(x): return struct.unpack("<I", struct.pack("<f", x))[0]
C0 = -2.0 * 0.7978845608028654 * 1.4426950408889634
C1 = C0 * 0.044715
NAME = "standalone__dense_activation_gelu__prompt"
HEAD = open("cdna_kernels/%s.s.ref" % NAME).read().split("; Override launch geometry")[0]

class A:
    def __init__(self): self.L = []
    def __call__(self, s, *args):
        self.L.append("    " + (s % args if args else s))
    def label(self, s): self.L.append(s + ":")
    def text(self): return "\n".join(self.L) + "\n"

PROF = False
def stamp(a, i):
    if not PROF: return
    a("s_memtime s[%d:%d]", 64 + 2 * i, 65 + 2 * i)
    a("s_waitcnt lgkmcnt(0)")
def prof_begin(a):
    if not PROF: return
    a("s_memrealtime s[60:61]")
    a("s_memtime s[64:65]")
def prof_end(a, n, kidx, sWave, wslo):
    if not PROF: return
    a("s_waitcnt vmcnt(0)")
    a("s_memtime s[%d:%d]", 64 + 2 * n, 65 + 2 * n)
    a("s_memrealtime s[62:63]")
    a("s_waitcnt lgkmcnt(0)")
    a("s_add_u32 s56, s%d, %d", wslo, (128 << 20) + (kidx << 20)); a("s_addc_u32 s57, s%d, 0", wslo + 1)
    a("s_mov_b32 s58, 0x100000"); a("s_mov_b32 s59, 0x20000")
    a("s_lshl_b32 s54, s2, 3"); a("s_add_u32 s54, s54, s%d", sWave); a("s_lshl_b32 s54, s54, 6")
    a("v_mov_b32 v0, s54")
    a("s_getreg_b32 s55, hwreg(HW_REG_XCC_ID)")
    vals = ["s60", "s62", "s55"] + ["s%d" % (64 + 2 * i) for i in range(n + 1)]
    vals += ["0"] * (16 - len(vals))
    for i, v in enumerate(vals): a("v_mov_b32 v%d, %s", 4 + i, v)
    a("s_mov_b64 exec, 1")
    for i in range(4): a("buffer_store_dwordx4 v[%d:%d], v0, s[56:59], 0 offen offset:%d", 4 + 4 * i, 7 + 4 * i, 16 * i)
def srd(a, d, lo, nbytes):
    a("s_mov_b32 s%d, s%d", d, lo); a("s_mov_b32 s%d, s%d", d + 1, lo + 1)
    a("s_mov_b32 s%d, %d", d + 2, nbytes); a("s_mov_b32 s%d, 0x20000", d + 3)

def desc(name, vgpr, acc, sgpr=102):
    return """.amdhsa_kernel %s
  .amdhsa_next_free_vgpr %d
  .amdhsa_next_free_sgpr %d
  .amdhsa_accum_offset %d
  .amdhsa_group_segment_fixed_size 0
  .amdhsa_kernarg_size 64
  .amdhsa_user_sgpr_count 2
  .amdhsa_user_sgpr_kernarg_segment_ptr 1
  .amdhsa_system_sgpr_workgroup_id_x 1
  .amdhsa_float_denorm_mode_32 3
  .amdhsa_float_denorm_mode_16_64 3
.end_amdhsa_kernel
""" % (name, vgpr, sgpr, acc)

def gelu_tile(a, acc, tmp, outr, sC1, vC0, vONE):
    P = range(8)
    for p in P: a("v_pk_mul_f32 v[%d:%d], v[%d:%d], v[%d:%d]", tmp+2*p, tmp+2*p+1, acc+2*p, acc+2*p+1, acc+2*p, acc+2*p+1)
    for p in P: a("v_pk_fma_f32 v[%d:%d], v[%d:%d], s[%d:%d], v[%d:%d]", tmp+2*p, tmp+2*p+1, tmp+2*p, tmp+2*p+1, sC1, sC1+1, vC0, vC0+1)
    for p in P: a("v_pk_mul_f32 v[%d:%d], v[%d:%d], v[%d:%d]", tmp+2*p, tmp+2*p+1, tmp+2*p, tmp+2*p+1, acc+2*p, acc+2*p+1)
    for i in range(16): a("v_exp_f32 v%d, v%d", tmp+i, tmp+i)
    for p in P: a("v_pk_add_f32 v[%d:%d], v[%d:%d], v[%d:%d]", tmp+2*p, tmp+2*p+1, tmp+2*p, tmp+2*p+1, vONE, vONE+1)
    for i in range(16): a("v_rcp_f32 v%d, v%d", tmp+i, tmp+i)
    for p in P: a("v_pk_mul_f32 v[%d:%d], v[%d:%d], v[%d:%d]", tmp+2*p, tmp+2*p+1, tmp+2*p, tmp+2*p+1, acc+2*p, acc+2*p+1)
    for p in P: a("v_cvt_pk_bf16_f32 v%d, v%d, v%d", outr+p, tmp+2*p, tmp+2*p+1)

def k1(S=4):
    a = A()
    SLOT = 32768
    sX, sW, sH, sB = 8, 12, 16, 20
    sWave, sMT, sFT, sXoff, sWoff, sM0, sRd, sIt, sT, sT2 = 24, 25, 26, 27, 28, 29, 30, 31, 32, 33
    sC1 = 34
    vL, vHi = 1, 2
    vXd, vWd = 4, 8
    vXb, vWb = 12, 16
    vXr, vWr = 18, 22
    vC0, vONE = 24, 26
    vT = 28
    FR = 32
    ACC = 64
    TMP = 128
    OUT = 144
    a("s_cmp_ge_u32 s2, 192"); a("s_cbranch_scc1 K1_end")
    prof_begin(a)
    a("s_load_dwordx4 s[40:43], s[0:1], 0")
    a("s_load_dwordx2 s[44:45], s[0:1], 16")
    a("s_load_dwordx2 s[46:47], s[0:1], 56")
    a("v_and_b32 v%d, 63, v0", vL)
    a("v_lshrrev_b32 v%d, 6, v0", vT)
    a("v_lshrrev_b32 v%d, 5, v%d", vHi, vL)
    a("v_readfirstlane_b32 s%d, v%d", sWave, vT)
    a("s_and_b32 s%d, s2, 7", sT); a("s_lshr_b32 s%d, s2, 3", sT2)
    a("s_lshr_b32 s%d, s%d, 1", sMT, sT); a("s_lshl_b32 s%d, s%d, 2", sMT, sMT)
    a("s_and_b32 s%d, s%d, 3", sFT, sT2); a("s_add_u32 s%d, s%d, s%d", sMT, sMT, sFT)
    a("s_and_b32 s%d, s%d, 1", sFT, sT); a("s_mul_i32 s%d, s%d, 6", sFT, sFT)
    a("s_lshr_b32 s%d, s%d, 2", sT2, sT2); a("s_add_u32 s%d, s%d, s%d", sFT, sFT, sT2)
    a("v_lshrrev_b32 v%d, 3, v%d", vT, vL)
    a("v_and_b32 v%d, 7, v%d", vT + 1, vL)
    a("v_lshrrev_b32 v%d, 1, v%d", vT + 2, vT)
    a("v_xor_b32 v%d, v%d, v%d", vT + 3, vT + 1, vT + 2)
    a("s_lshl_b32 s%d, s%d, 5", sT, sWave)
    a("v_add_u32 v%d, s%d, v%d", vXd, sT, vT)
    a("v_mul_u32_u24 v%d, 1280, v%d", vXd, vXd)
    a("v_lshl_add_u32 v%d, v%d, 4, v%d", vXd + 1, vT + 3, vXd)
    a("v_xor_b32 v%d, 4, v%d", vT + 3, vT + 3)
    a("v_lshl_add_u32 v%d, v%d, 4, v%d", vXd + 3, vT + 3, vXd)
    a("v_mov_b32 v%d, v%d", vXd, vXd + 1)
    a("v_add_u32 v%d, %d, v%d", vXd + 2, 2 * (8 * 1280 - 1024), vXd)
    a("v_add_u32 v%d, %d, v%d", vXd + 1, 1 * (8 * 1280 - 1024), vXd + 3)
    a("v_add_u32 v%d, %d, v%d", vXd + 3, 3 * (8 * 1280 - 1024), vXd + 3)
    a("v_and_b32 v%d, 1, v%d", vT + 2, vT + 2)
    a("v_lshlrev_b32 v%d, 2, v%d", vT + 2, vT + 2)
    a("v_xor_b32 v%d, v%d, v%d", vT + 3, vT + 1, vT + 2)
    a("s_and_b32 s%d, s%d, 1", sT, sWave); a("s_lshl_b32 s%d, s%d, 5", sT, sT)
    a("v_add_u32 v%d, s%d, v%d", vWd, sT, vT)
    a("v_mul_u32_u24 v%d, 3072, v%d", vWd, vWd)
    a("v_lshl_add_u32 v%d, v%d, 4, v%d", vWd, vT + 3, vWd)
    a("s_lshr_b32 s%d, s%d, 1", sT, sWave); a("s_lshl_b32 s%d, s%d, 7", sT, sT)
    a("v_add_u32 v%d, s%d, v%d", vWd, sT, vWd)
    for i in range(1, 4): a("v_add_u32 v%d, %d, v%d", vWd + i, i * (8 * 3072 - 1024), vWd)
    a("s_mul_i32 s%d, s%d, %d", sXoff, sMT, 128 * 1280)
    a("s_lshl_b32 s%d, s%d, 8", sWoff, sFT)
    a("s_lshl_b32 s%d, s%d, 12", sM0, sWave)
    a("s_waitcnt lgkmcnt(0)")
    stamp(a, 1)
    srd(a, sX, 40, 2048 * 640 * 2); srd(a, sW, 42, 640 * 1536 * 2); srd(a, sB, 44, 1536 * 2); srd(a, sH, 46, 2048 * 1536 * 2)
    a("s_and_b32 s%d, s%d, 1", sT, sWave); a("s_lshl_b32 s%d, s%d, 7", sT, sT); a("s_add_u32 s%d, s%d, s%d", sT, sT, sWoff)
    a("v_lshlrev_b32 v%d, 3, v%d", vT, vHi)
    for t in range(8):
        a("buffer_load_dwordx2 v[%d:%d], v%d, s[%d:%d], s%d offen offset:%d", TMP + 2 * t, TMP + 2 * t + 1, vT, sB, sB + 3, sT, 16 * t)
    def dma(i):
        if i == 0: a("s_mov_b32 m0, s%d", sM0)
        if i == 4: a("s_add_u32 m0, s%d, 16384", sM0)
        if i in (0, 4): a("s_nop 0")
        if i < 4: a("buffer_load_dwordx4 v%d, s[%d:%d], s%d offen offset:%d lds", vXd + i, sX, sX + 3, sXoff, 1024 * i)
        else: a("buffer_load_dwordx4 v%d, s[%d:%d], s%d offen offset:%d lds", vWd + i - 4, sW, sW + 3, sWoff, 1024 * (i - 4))
    def dma_adv():
        a("s_add_u32 s%d, s%d, 128", sXoff, sXoff)
        a("s_add_u32 s%d, s%d, %d", sWoff, sWoff, 64 * 3072)
        a("s_add_u32 s%d, s%d, %d", sM0, sM0, SLOT)
        a("s_cmp_ge_u32 s%d, %d", sM0, S * SLOT)
        a("s_cselect_b32 s%d, %d, 0", sT, S * SLOT)
        a("s_sub_u32 s%d, s%d, s%d", sM0, sM0, sT)
    for b in range(S):
        for i in range(8): dma(i)
        dma_adv()
    stamp(a, 2)
    a("v_and_b32 v%d, 31, v%d", vT, vL)
    a("s_lshr_b32 s%d, s%d, 1", sT, sWave); a("s_lshl_b32 s%d, s%d, 6", sT, sT)
    a("v_add_u32 v%d, s%d, v%d", vT + 1, sT, vT)
    a("v_lshlrev_b32 v%d, 7, v%d", vT + 1, vT + 1)
    a("v_bfe_u32 v%d, v%d, 1, 3", vT + 2, vL)
    a("v_xor_b32 v%d, v%d, v%d", vT + 2, vT + 2, vHi)
    a("v_lshl_add_u32 v%d, v%d, 4, v%d", vXb, vT + 2, vT + 1)
    for s in range(1, 4): a("v_xor_b32 v%d, %d, v%d", vXb + s, 32 * s, vXb)
    a("v_bfe_u32 v%d, v%d, 2, 2", vT, vL)
    a("v_lshl_add_u32 v%d, v%d, 3, v%d", vT + 1, vHi, vT)
    a("v_lshlrev_b32 v%d, 7, v%d", vT + 1, vT + 1)
    a("v_bfe_u32 v%d, v%d, 4, 1", vT + 2, vL)
    a("v_lshlrev_b32 v%d, 5, v%d", vT + 2, vT + 2)
    a("v_add_u32 v%d, v%d, v%d", vT + 1, vT + 1, vT + 2)
    a("v_and_b32 v%d, 3, v%d", vT + 2, vL)
    a("v_lshl_add_u32 v%d, v%d, 3, v%d", vT + 1, vT + 2, vT + 1)
    a("v_bfe_u32 v%d, v%d, 3, 1", vT + 2, vL)
    a("v_lshl_add_u32 v%d, v%d, 6, v%d", vT + 1, vT + 2, vT + 1)
    a("s_and_b32 s%d, s%d, 1", sT, sWave); a("s_lshl_b32 s%d, s%d, 13", sT, sT); a("s_add_u32 s%d, s%d, 16384", sT, sT)
    a("v_add_u32 v%d, s%d, v%d", vWb, sT, vT + 1)
    a("v_xor_b32 v%d, 64, v%d", vWb + 1, vWb)
    a("v_mov_b32 v%d, 0x%x", vC0, f2u(C0)); a("v_mov_b32 v%d, 0x%x", vC0 + 1, f2u(C0))
    a("v_mov_b32 v%d, 1.0", vONE); a("v_mov_b32 v%d, 1.0", vONE + 1)
    a("s_mov_b32 s%d, 0x%x", sC1, f2u(C1)); a("s_mov_b32 s%d, 0x%x", sC1 + 1, f2u(C1))
    a("s_waitcnt vmcnt(%d)", 8 * S)
    for ft in range(2):
        for g in range(4):
            t = TMP + 2 * (ft * 4 + g)
            for mt in range(2):
                r = ACC + (ft * 2 + mt) * 16 + 4 * g
                a("v_lshlrev_b32 v%d, 16, v%d", r, t); a("v_and_b32 v%d, 0xffff0000, v%d", r + 1, t)
                a("v_lshlrev_b32 v%d, 16, v%d", r + 2, t + 1); a("v_and_b32 v%d, 0xffff0000, v%d", r + 3, t + 1)
    def setrd():
        for s in range(4): a("v_add_u32 v%d, s%d, v%d", vXr + s, sRd, vXb + s)
        for f in range(2): a("v_add_u32 v%d, s%d, v%d", vWr + f, sRd, vWb + f)
        a("s_add_u32 s%d, s%d, %d", sRd, sRd, SLOT)
        a("s_cmp_ge_u32 s%d, %d", sRd, S * SLOT)
        a("s_cselect_b32 s%d, 0, s%d", sRd, sRd)
    def reads(s, buf):
        b = FR + 16 * buf
        out = []
        for f in range(2):
            for u in range(2):
                out.append("ds_read_b64_tr_b16 v[%d:%d], v%d offset:%d" % (b + 4 * f + 2 * u, b + 4 * f + 2 * u + 1, vWr + f, s * 2048 + u * 512))
        for mt in range(2):
            out.append("ds_read_b128 v[%d:%d], v%d offset:%d" % (b + 8 + 4 * mt, b + 11 + 4 * mt, vXr + s, mt * 4096))
        return out
    def mfmas(buf):
        b = FR + 16 * buf
        out = []
        for ft in range(2):
            for mt in range(2):
                r = ACC + (ft * 2 + mt) * 16
                out.append("v_mfma_f32_32x32x16_bf16 v[%d:%d], v[%d:%d], v[%d:%d], v[%d:%d]" % (r, r + 15, b + 4 * ft, b + 4 * ft + 3, b + 8 + 4 * mt, b + 11 + 4 * mt, r, r + 15))
        return out
    a("s_mov_b32 s%d, 0", sRd)
    a("s_waitcnt vmcnt(%d)", 8 * (S - 1))
    a("s_barrier")
    stamp(a, 3)
    setrd()
    for r in reads(0, 0): a(r)
    def block(vm, do_dma, last):
        for s in range(3):
            rd = reads(s + 1, (s + 1) & 1)
            for r in rd: a(r)
            a("s_waitcnt lgkmcnt(6)")
            for m in mfmas(s & 1): a(m)
        if not last:
            a("s_waitcnt vmcnt(%d) lgkmcnt(0)", vm)
            a("s_barrier")
            setrd()
            for r in reads(0, 0): a(r)
        else:
            a("s_waitcnt lgkmcnt(0)")
        ms = mfmas(1)
        for i, m in enumerate(ms):
            a(m)
            if do_dma: dma(2 * i); dma(2 * i + 1)
        if do_dma: dma_adv()
    NB = 10
    a("s_mov_b32 s%d, 0", sIt)
    a.label("K1_loop")
    block(8 * (S - 2), True, False)
    a("s_add_u32 s%d, s%d, 1", sIt, sIt)
    a("s_cmp_lt_u32 s%d, %d", sIt, NB - S)
    a("s_cbranch_scc1 K1_loop")
    for kb in range(NB - S, NB):
        rem = NB - 1 - (kb + 1)
        block(8 * max(rem, 0), False, kb == NB - 1)
    stamp(a, 4)
    a("s_lshr_b32 s%d, s%d, 1", sT, sWave); a("s_lshl_b32 s%d, s%d, 1", sT2, sMT); a("s_add_u32 s%d, s%d, s%d", sT, sT, sT2)
    a("s_mul_i32 s%d, s%d, 24", sT, sT)
    a("s_lshl_b32 s%d, s%d, 1", sT2, sFT); a("s_add_u32 s%d, s%d, s%d", sT, sT, sT2)
    a("s_and_b32 s%d, s%d, 1", sT2, sWave); a("s_add_u32 s%d, s%d, s%d", sT, sT, sT2)
    a("s_lshl_b32 s%d, s%d, 13", sT, sT)
    a("s_add_u32 s%d, s%d, 4096", sT2, sT)
    a("v_lshlrev_b32 v%d, 4, v%d", vT, vL)
    a("s_nop 7")
    for ft in range(2):
        for mt in range(2):
            o = OUT + 8 * ((ft * 2 + mt) & 1)
            gelu_tile(a, ACC + (ft * 2 + mt) * 16, TMP, o, sC1, vC0, vONE)
            for i in range(2):
                a("buffer_store_dwordx4 v[%d:%d], v%d, s[%d:%d], s%d offen offset:%d", o + 4 * i, o + 4 * i + 3, vT, sH, sH + 3, sT2 if ft else sT, (i * 2 + mt) * 1024)
    stamp(a, 5)
    prof_end(a, 6, 0, sWave, 46)
    a.label("K1_end")
    a("s_endpgm")
    return a.text(), 160

def k2(S=4):
    a = A()
    SLOT = 16384
    sH, sW, sO, sB = 8, 12, 16, 20
    sWave, sMT, sDT, sHoff, sWoff, sM0, sRd, sIt, sT, sT2 = 24, 25, 26, 27, 28, 29, 30, 31, 32, 33
    vL, vHi = 1, 2
    vHd, vWd = 4, 5
    vHb, vWb, vHr, vWr = 7, 8, 9, 10
    vT = 12
    FR = 16
    ACC = 48
    TMP = 64
    a("s_cmp_ge_u32 s2, 320"); a("s_cbranch_scc1 K2_end")
    prof_begin(a)
    a("s_load_dwordx4 s[40:43], s[0:1], 24")
    a("s_load_dwordx2 s[44:45], s[0:1], 40")
    a("s_load_dwordx2 s[46:47], s[0:1], 56")
    a("v_and_b32 v%d, 63, v0", vL)
    a("v_lshrrev_b32 v%d, 6, v0", vT)
    a("v_lshrrev_b32 v%d, 5, v%d", vHi, vL)
    a("v_readfirstlane_b32 s%d, v%d", sWave, vT)
    a("s_and_b32 s%d, s2, 7", sT); a("s_lshr_b32 s%d, s2, 3", sT2)
    a("s_lshr_b32 s%d, s%d, 1", sMT, sT); a("s_lshl_b32 s%d, s%d, 3", sMT, sMT)
    a("s_and_b32 s%d, s%d, 7", sDT, sT2); a("s_add_u32 s%d, s%d, s%d", sMT, sMT, sDT)
    a("s_and_b32 s%d, s%d, 1", sDT, sT); a("s_mul_i32 s%d, s%d, 5", sDT, sDT)
    a("s_lshr_b32 s%d, s%d, 3", sT2, sT2); a("s_add_u32 s%d, s%d, s%d", sDT, sDT, sT2)
    a("s_lshl_b32 s%d, s%d, 11", sM0, sWave)
    a("v_lshl_add_u32 v%d, v%d, 4, s%d", vHd, vL, sM0)
    a("v_lshrrev_b32 v%d, 3, v%d", vT, vL)
    a("v_and_b32 v%d, 7, v%d", vT + 1, vL)
    a("v_bfe_u32 v%d, v%d, 4, 1", vT + 2, vL)
    a("v_lshlrev_b32 v%d, 2, v%d", vT + 2, vT + 2)
    a("v_xor_b32 v%d, v%d, v%d", vT + 3, vT + 1, vT + 2)
    a("s_lshl_b32 s%d, s%d, 4", sT, sWave)
    a("v_add_u32 v%d, s%d, v%d", vWd, sT, vT)
    a("v_mul_u32_u24 v%d, 1280, v%d", vWd, vWd)
    a("v_lshl_add_u32 v%d, v%d, 4, v%d", vWd, vT + 3, vWd)
    a("v_add_u32 v%d, %d, v%d", vWd + 1, 8 * 1280 - 1024, vWd)
    a("s_mul_i32 s%d, s%d, %d", sHoff, sMT, 24 * 8192)
    a("s_lshl_b32 s%d, s%d, 7", sWoff, sDT)
    a("s_waitcnt lgkmcnt(0)")
    stamp(a, 1)
    srd(a, sW, 40, 1536 * 640 * 2); srd(a, sB, 42, 640 * 2); srd(a, sO, 44, 2048 * 640 * 2); srd(a, sH, 46, 2048 * 1536 * 2)
    a("s_and_b32 s%d, s%d, 1", sT, sWave); a("s_lshl_b32 s%d, s%d, 6", sT, sT); a("s_add_u32 s%d, s%d, s%d", sT, sT, sWoff)
    a("v_lshlrev_b32 v%d, 3, v%d", vT, vHi)
    for t in range(4):
        a("buffer_load_dwordx2 v[%d:%d], v%d, s[%d:%d], s%d offen offset:%d", TMP + 2 * t, TMP + 2 * t + 1, vT, sB, sB + 3, sT, 16 * t)
    def dma(i):
        if i == 0: a("s_mov_b32 m0, s%d", sM0)
        if i == 2: a("s_add_u32 m0, s%d, 8192", sM0)
        if i in (0, 2): a("s_nop 0")
        if i < 2: a("buffer_load_dwordx4 v%d, s[%d:%d], s%d offen offset:%d lds", vHd, sH, sH + 3, sHoff, 1024 * i)
        else: a("buffer_load_dwordx4 v%d, s[%d:%d], s%d offen offset:%d lds", vWd + i - 2, sW, sW + 3, sWoff, 1024 * (i - 2))
    def dma_adv():
        a("s_add_u32 s%d, s%d, 8192", sHoff, sHoff)
        a("s_add_u32 s%d, s%d, %d", sWoff, sWoff, 64 * 1280)
        a("s_add_u32 s%d, s%d, %d", sM0, sM0, SLOT)
        a("s_cmp_ge_u32 s%d, %d", sM0, S * SLOT)
        a("s_cselect_b32 s%d, %d, 0", sT, S * SLOT)
        a("s_sub_u32 s%d, s%d, s%d", sM0, sM0, sT)
    for b in range(S):
        for i in range(4): dma(i)
        dma_adv()
    stamp(a, 2)
    a("s_lshr_b32 s%d, s%d, 1", sT, sWave); a("s_lshl_b32 s%d, s%d, 10", sT, sT)
    a("v_lshl_add_u32 v%d, v%d, 4, s%d", vHb, vL, sT)
    a("v_bfe_u32 v%d, v%d, 2, 2", vT, vL)
    a("v_lshl_add_u32 v%d, v%d, 2, v%d", vT + 1, vHi, vT)
    a("v_lshlrev_b32 v%d, 7, v%d", vT + 1, vT + 1)
    a("v_bfe_u32 v%d, v%d, 4, 1", vT + 2, vL)
    a("v_lshl_add_u32 v%d, v%d, 5, v%d", vT + 1, vT + 2, vT + 1)
    a("v_and_b32 v%d, 3, v%d", vT + 2, vL)
    a("v_lshl_add_u32 v%d, v%d, 3, v%d", vT + 1, vT + 2, vT + 1)
    a("v_bfe_u32 v%d, v%d, 3, 1", vT + 2, vL)
    a("v_lshl_add_u32 v%d, v%d, 6, v%d", vT + 1, vT + 2, vT + 1)
    a("s_and_b32 s%d, s%d, 1", sT, sWave); a("s_lshl_b32 s%d, s%d, 6", sT, sT)
    a("v_xor_b32 v%d, s%d, v%d", vT + 1, sT, vT + 1)
    a("v_add_u32 v%d, 8192, v%d", vWb, vT + 1)
    a("s_waitcnt vmcnt(%d)", 4 * S)
    for g in range(4):
        t = TMP + 2 * g; r = ACC + 4 * g
        a("v_lshlrev_b32 v%d, 16, v%d", r, t); a("v_and_b32 v%d, 0xffff0000, v%d", r + 1, t)
        a("v_lshlrev_b32 v%d, 16, v%d", r + 2, t + 1); a("v_and_b32 v%d, 0xffff0000, v%d", r + 3, t + 1)
    def setrd():
        a("v_add_u32 v%d, s%d, v%d", vHr, sRd, vHb)
        a("v_add_u32 v%d, s%d, v%d", vWr, sRd, vWb)
        a("s_add_u32 s%d, s%d, %d", sRd, sRd, SLOT)
        a("s_cmp_ge_u32 s%d, %d", sRd, S * SLOT)
        a("s_cselect_b32 s%d, 0, s%d", sRd, sRd)
    def reads(s):
        b = FR + 8 * s
        return ["ds_read_b64_tr_b16 v[%d:%d], v%d offset:%d" % (b + 2 * u, b + 2 * u + 1, vWr, s * 2048 + u * 1024) for u in range(2)] + \
               ["ds_read_b128 v[%d:%d], v%d offset:%d" % (b + 4, b + 7, vHr, s * 2048)]
    def mfma(s):
        b = FR + 8 * s
        return "v_mfma_f32_32x32x16_bf16 v[%d:%d], v[%d:%d], v[%d:%d], v[%d:%d]" % (ACC, ACC + 15, b, b + 3, b + 4, b + 7, ACC, ACC + 15)
    a("s_mov_b32 s%d, 0", sRd)
    a("s_waitcnt vmcnt(%d)", 4 * (S - 1))
    a("s_barrier")
    stamp(a, 3)
    setrd()
    for s in range(4):
        for r in reads(s): a(r)
    def block(vm, do_dma, last):
        if not last:
            a("s_waitcnt vmcnt(%d) lgkmcnt(0)", vm)
            a("s_barrier")
            setrd()
        else:
            a("s_waitcnt lgkmcnt(0)")
        for s in range(4):
            a(mfma(s))
            if not last:
                for r in reads(s): a(r)
            if do_dma: dma(s)
        if do_dma: dma_adv()
    NB = 24
    a("s_mov_b32 s%d, 0", sIt)
    a.label("K2_loop")
    block(4 * (S - 2), True, False)
    a("s_add_u32 s%d, s%d, 1", sIt, sIt)
    a("s_cmp_lt_u32 s%d, %d", sIt, NB - S)
    a("s_cbranch_scc1 K2_loop")
    for kb in range(NB - S, NB):
        rem = NB - 1 - (kb + 1)
        block(4 * max(rem, 0), False, kb == NB - 1)
    stamp(a, 4)
    a("v_and_b32 v%d, 31, v%d", vT, vL)
    a("s_lshl_b32 s%d, s%d, 6", sT, sMT); a("s_lshr_b32 s%d, s%d, 1", sT2, sWave); a("s_lshl_b32 s%d, s%d, 5", sT2, sT2); a("s_add_u32 s%d, s%d, s%d", sT, sT, sT2)
    a("v_add_u32 v%d, s%d, v%d", vT, sT, vT)
    a("v_mul_u32_u24 v%d, 1280, v%d", vT, vT)
    a("v_lshl_add_u32 v%d, v%d, 4, v%d", vT, vHi, vT)
    a("s_lshl_b32 s%d, s%d, 7", sT, sDT); a("s_and_b32 s%d, s%d, 1", sT2, sWave); a("s_lshl_b32 s%d, s%d, 6", sT2, sT2); a("s_add_u32 s%d, s%d, s%d", sT, sT, sT2)
    a("s_nop 7")
    for p in range(8): a("v_cvt_pk_bf16_f32 v%d, v%d, v%d", TMP + p, ACC + 2 * p, ACC + 2 * p + 1)
    a("s_nop 1")
    for h in range(2):
        a("v_permlane32_swap_b32 v%d, v%d", TMP + 4 * h, TMP + 4 * h + 2)
        a("v_permlane32_swap_b32 v%d, v%d", TMP + 4 * h + 1, TMP + 4 * h + 3)
    for h in range(2):
        a("buffer_store_dwordx4 v[%d:%d], v%d, s[%d:%d], s%d offen offset:%d", TMP + 4 * h, TMP + 4 * h + 3, vT, sO, sO + 3, sT, 32 * h)
    stamp(a, 5)
    prof_end(a, 6, 1, sWave, 46)
    a.label("K2_end")
    a("s_endpgm")
    return a.text(), 72

def build():
    t1, v1 = k1(); t2, v2 = k2()
    s = HEAD
    s += "; @launch kernel=mlp1_kernel grid=(192,1,1) block=(256,1,1) lds=131072\n"
    s += "; @launch kernel=mlp2_kernel grid=(320,1,1) block=(256,1,1) lds=65536\n"
    s += '.amdgcn_target "amdgcn-amd-amdhsa--gfx950"\n.text\n'
    for n, t in (("mlp1_kernel", t1), ("mlp2_kernel", t2)):
        s += ".globl %s\n.p2align 8\n.type %s,@function\n%s:\n%s" % (n, n, n, t)
    s += '.section .rodata,"a"\n.p2align 6\n' + desc("mlp1_kernel", v1, v1) + ".p2align 6\n" + desc("mlp2_kernel", v2, v2)
    return s
if __name__ == "__main__":
    PROF = len(sys.argv) > 2
    open(sys.argv[1], "w").write(build())
```

```python
import sys
sys.path.insert(0, "dev")
import gen_v1 as g
def probe(kind):
    a = g.A()
    a("s_cmp_ge_u32 s2, 1"); a("s_cbranch_scc1 P_end")
    if kind == "base":
        a.label("P_end"); a("s_endpgm"); return a.text()
    a("s_memtime s[30:31]")
    a("s_load_dwordx4 s[4:7], s[0:1], 0")
    a("s_load_dwordx2 s[16:17], s[0:1], 24")
    a("s_load_dwordx2 s[18:19], s[0:1], 56")
    a("s_load_dwordx2 s[28:29], s[0:1], 40")
    a("s_waitcnt lgkmcnt(0)")
    a("s_memtime s[32:33]")
    a("s_waitcnt lgkmcnt(0)")
    a("v_mov_b32 v1, 0"); a("v_mov_b32 v2, 1024"); a("v_mov_b32 v3, 0x10000")
    base = {"x": 4, "w1": 6, "w2": 16, "ws": 18, "out": 28}
    if kind == "karg":
        pass
    elif kind == "fixed":
        a("s_add_u32 s32, s30, 1000")
    elif kind.startswith("first_"):
        b = base[kind[6:]]
        a("s_memtime s[30:31]"); a("s_waitcnt lgkmcnt(0)")
        a("global_load_dword v4, v1, s[%d:%d]", b, b + 1); a("s_waitcnt vmcnt(0)")
        a("s_memtime s[32:33]"); a("s_waitcnt lgkmcnt(0)")
    elif kind.startswith("second_") or kind.startswith("far_"):
        b = base[kind.split("_")[1]]
        a("global_load_dword v4, v1, s[%d:%d]", b, b + 1); a("s_waitcnt vmcnt(0)")
        a("s_memtime s[30:31]"); a("s_waitcnt lgkmcnt(0)")
        a("global_load_dword v4, v%d, s[%d:%d]", 2 if kind[0] == "s" else 3, b, b + 1); a("s_waitcnt vmcnt(0)")
        a("s_memtime s[32:33]"); a("s_waitcnt lgkmcnt(0)")
    elif kind == "icache":
        a("s_memtime s[30:31]"); a("s_waitcnt lgkmcnt(0)")
        for i in range(256): a("v_fma_f32 v%d, v1, v2, v3", 8 + i % 16)
        a("s_memtime s[32:33]"); a("s_waitcnt lgkmcnt(0)")
    elif kind == "clock":
        a("s_memrealtime s[34:35]"); a("s_memtime s[30:31]"); a("s_waitcnt lgkmcnt(0)")
        a.label("P_c")
        a("s_memrealtime s[36:37]"); a("s_waitcnt lgkmcnt(0)")
        a("s_sub_u32 s36, s36, s34"); a("s_cmp_lt_u32 s36, 50"); a("s_cbranch_scc1 P_c")
        a("s_memtime s[32:33]"); a("s_waitcnt lgkmcnt(0)")
    a("s_sub_u32 s32, s32, s30")
    a("s_min_u32 s32, s32, 20000")
    a("s_memrealtime s[34:35]"); a("s_waitcnt lgkmcnt(0)")
    a.label("P_spin")
    a("s_memrealtime s[36:37]"); a("s_waitcnt lgkmcnt(0)")
    a("s_sub_u32 s36, s36, s34"); a("s_cmp_lt_u32 s36, s32"); a("s_cbranch_scc1 P_spin")
    a.label("P_end"); a("s_endpgm")
    return a.text()
def build(kind):
    t1, v1 = g.k1(); t2, v2 = g.k2()
    s = g.HEAD
    s += "; @launch kernel=probe_kernel grid=(1,1,1) block=(64,1,1) lds=0\n"
    s += "; @launch kernel=mlp1_kernel grid=(192,1,1) block=(256,1,1) lds=131072\n"
    s += "; @launch kernel=mlp2_kernel grid=(320,1,1) block=(256,1,1) lds=65536\n"
    s += '.amdgcn_target "amdgcn-amd-amdhsa--gfx950"\n.text\n'
    for n, t in (("probe_kernel", probe(kind)), ("mlp1_kernel", t1), ("mlp2_kernel", t2)):
        s += ".globl %s\n.p2align 8\n.type %s,@function\n%s:\n%s" % (n, n, n, t)
    s += '.section .rodata,"a"\n.p2align 6\n' + g.desc("probe_kernel", 32, 32) + ".p2align 6\n" + g.desc("mlp1_kernel", v1, v1) + ".p2align 6\n" + g.desc("mlp2_kernel", v2, v2)
    return s
for k in sys.argv[1:]:
    open("probe_%s.s" % k, "w").write(build(k))
```

```python
import sys
sys.path.insert(0, "dev")
import gen_v1 as g
def probe(n, off_mb):
    a = g.A()
    a("s_cmp_ge_u32 s2, 256"); a("s_cbranch_scc1 P_end")
    a("s_load_dwordx2 s[18:19], s[0:1], 56")
    a("v_lshlrev_b32 v1, 4, v0")
    a("s_mul_i32 s20, s2, %d", max(n, 1) * 4096)
    a("s_add_u32 s20, s20, %d", off_mb << 20)
    a("s_waitcnt lgkmcnt(0)")
    g.srd(a, 8, 18, 1 << 28)
    if n:
        a("s_mov_b32 s21, 0")
        a.label("P_l")
        a("buffer_load_dwordx4 v[4:7], v1, s[8:11], s20 offen")
        a("s_add_u32 s20, s20, 4096")
        a("s_add_u32 s21, s21, 1")
        a("s_cmp_lt_u32 s21, %d", n)
        a("s_cbranch_scc1 P_l")
        a("s_waitcnt vmcnt(0)")
    a.label("P_end"); a("s_endpgm")
    return a.text()
def build(n, off):
    t1, v1 = g.k1(); t2, v2 = g.k2()
    s = g.HEAD
    s += "; @launch kernel=probe_kernel grid=(256,1,1) block=(256,1,1) lds=163840\n"
    s += "; @launch kernel=mlp1_kernel grid=(192,1,1) block=(256,1,1) lds=131072\n"
    s += "; @launch kernel=mlp2_kernel grid=(320,1,1) block=(256,1,1) lds=65536\n"
    s += '.amdgcn_target "amdgcn-amd-amdhsa--gfx950"\n.text\n'
    for nm, t in (("probe_kernel", probe(n, off)), ("mlp1_kernel", t1), ("mlp2_kernel", t2)):
        s += ".globl %s\n.p2align 8\n.type %s,@function\n%s:\n%s" % (nm, nm, nm, t)
    s += '.section .rodata,"a"\n.p2align 6\n' + g.desc("probe_kernel", 32, 32) + ".p2align 6\n" + g.desc("mlp1_kernel", v1, v1) + ".p2align 6\n" + g.desc("mlp2_kernel", v2, v2)
    return s
for k in sys.argv[1:]:
    n, off = map(int, k.split("_"))
    open("pbw_%s.s" % k, "w").write(build(n, off))
```

```python
import struct, sys, json
def f2u(x): return struct.unpack("<I", struct.pack("<f", x))[0]
C0 = -2.0 * 0.7978845608028654 * 1.4426950408889634
C1 = C0 * 0.044715
NAME = "standalone__dense_activation_gelu__prompt"
HEAD = open("cdna_kernels/%s.s.ref" % NAME).read().split("; Override launch geometry")[0]
FLAGOFF = 8 << 20
OOB = 0x7f000000
DEF = dict(prof=False, a1=4, a2=4, rot1="x", pf=(2, 10), w2pf=True, hst="sc1", ost="", dist=8, spin=200000, codepf=True, gel_dma=True)

class A:
    def __init__(self): self.L = []
    def __call__(self, s, *args): self.L.append("    " + (s % args if args else s))
    def label(self, s): self.L.append(s + ":")
    def text(self): return "\n".join(self.L) + "\n"

def weave(a, main, extra):
    for i, m in enumerate(main):
        a(m)
        for e in extra.get(i, []): a(e)

def gen(**kw):
    o = dict(DEF); o.update(kw)
    a = A()
    PROF = o["prof"]
    nst = [1]
    def stamp(wait=True):
        if not PROF: return
        a("s_memtime s[%d:%d]", 64 + 2 * nst[0], 65 + 2 * nst[0]); nst[0] += 1
        if wait: a("s_waitcnt lgkmcnt(0)")
    sX, sW1, sW2, sH, sO = 8, 12, 16, 20, 24
    sP = 40
    sWave, sXcd, sI, sMT, sFT = 3, 4, 5, 6, 7
    sXoff, sWoff, sM0, sKb, sDelta, sIt, sT, sT2, sT3 = 28, 29, 30, 31, 32, 33, 34, 35, 36
    sRd = 37
    sC1 = 38
    sNonce = 56
    sRb, sNb, sDl = 58, 59, 92
    sG, sGm = 93, 94
    sHcur, sHnext, sOst = 95, 96, 97
    sB1 = 64 if not PROF else None
    vL, vHi, vT = 1, 2, 4
    vXd, vWd = 10, 14
    vXr, vWr = 18, 22
    vC0, vONE = 24, 26
    vGd, vGr = 28, 32
    vHst, vL16, vRw, vRr, vOst, vFl = 36, 37, 38, 39, 40, 41
    vB2 = 42
    vPl = 46
    FR = 48
    ACC = 80
    TMP = 144
    OUT = 160
    RING = 48
    A2, B2 = 96, 112
    RD = 128
    def srd(d, lo, nbytes):
        a("s_mov_b32 s%d, s%d", d, lo); a("s_mov_b32 s%d, s%d", d + 1, lo + 1)
        a("s_mov_b32 s%d, %d", d + 2, nbytes); a("s_mov_b32 s%d, 0x20000", d + 3)

    a("s_cmp_ge_u32 s2, 256"); a("s_cbranch_scc1 L_end")
    a("s_load_dwordx16 s[40:55], s[0:1], 0")
    if PROF:
        a("s_memrealtime s[60:61]"); a("s_memtime s[64:65]")
    a("v_lshrrev_b32 v%d, 6, v0", vT)
    a("v_and_b32 v%d, 63, v0", vL)
    a("v_readfirstlane_b32 s%d, v%d", sWave, vT)
    a("s_and_b32 s%d, s2, 7", sXcd); a("s_lshr_b32 s%d, s2, 3", sI)
    a("v_lshrrev_b32 v%d, 3, v%d", vT, vL)
    a("v_and_b32 v%d, 7, v%d", vT + 1, vL)
    a("v_lshrrev_b32 v%d, 1, v%d", vT + 2, vT)
    a("s_cmp_ge_u32 s%d, 24", sI); a("s_cbranch_scc1 L_helper")
    if o["a1"] == 4:
        a("s_lshr_b32 s%d, s%d, 1", sMT, sXcd); a("s_lshl_b32 s%d, s%d, 2", sMT, sMT)
        a("s_and_b32 s%d, s%d, 3", sT, sI); a("s_add_u32 s%d, s%d, s%d", sMT, sMT, sT)
        a("s_and_b32 s%d, s%d, 1", sFT, sXcd); a("s_mul_i32 s%d, s%d, 6", sFT, sFT)
        a("s_lshr_b32 s%d, s%d, 2", sT2, sI); a("s_add_u32 s%d, s%d, s%d", sFT, sFT, sT2)
    else:
        a("s_lshl_b32 s%d, s%d, 1", sMT, sXcd); a("s_and_b32 s%d, s%d, 1", sT, sI); a("s_add_u32 s%d, s%d, s%d", sMT, sMT, sT)
        a("s_lshr_b32 s%d, s%d, 1", sT2, sI); a("s_mov_b32 s%d, s%d", sFT, sT2)
    if o["rot1"] == "x":
        a("s_mul_i32 s%d, s%d, 10", sKb, sXcd); a("s_lshr_b32 s%d, s%d, 3", sKb, sKb)
    elif o["rot1"] == "3":
        a("s_add_u32 s%d, s%d, s%d", sT, sT, sT2)
        a("s_mul_i32 s%d, s%d, 86", sT2, sT); a("s_lshr_b32 s%d, s%d, 8", sT2, sT2); a("s_mul_i32 s%d, s%d, 3", sT2, sT2)
        a("s_sub_u32 s%d, s%d, s%d", sT, sT, sT2); a("s_mul_i32 s%d, s%d, 3", sT, sT); a("s_add_u32 s%d, s%d, s%d", sKb, sT, sXcd)
        a("s_cmp_ge_u32 s%d, 10", sKb); a("s_cselect_b32 s%d, 10, 0", sT); a("s_sub_u32 s%d, s%d, s%d", sKb, sKb, sT)
    else:
        a("s_mov_b32 s%d, 0", sKb)
    a("v_xor_b32 v%d, v%d, v%d", vT + 3, vT + 1, vT + 2)
    a("s_lshl_b32 s%d, s%d, 5", sT, sWave)
    a("v_add_u32 v%d, s%d, v%d", vT + 4, sT, vT)
    a("v_mul_u32_u24 v%d, 1280, v%d", vT + 4, vT + 4)
    a("v_lshl_add_u32 v%d, v%d, 4, v%d", vXd, vT + 3, vT + 4)
    a("v_xor_b32 v%d, 64, v%d", vXd + 3, vXd)
    a("v_add_u32 v%d, %d, v%d", vXd + 2, 2 * (8 * 1280 - 1024), vXd)
    a("v_add_u32 v%d, %d, v%d", vXd + 1, 1 * (8 * 1280 - 1024), vXd + 3)
    a("v_add_u32 v%d, %d, v%d", vXd + 3, 3 * (8 * 1280 - 1024), vXd + 3)
    a("v_and_b32 v%d, 1, v%d", vT + 3, vT + 2)
    a("v_lshlrev_b32 v%d, 2, v%d", vT + 3, vT + 3)
    a("v_xor_b32 v%d, v%d, v%d", vT + 3, vT + 1, vT + 3)
    a("s_and_b32 s%d, s%d, 1", sT, sWave); a("s_lshl_b32 s%d, s%d, 5", sT, sT)
    a("v_add_u32 v%d, s%d, v%d", vWd, sT, vT)
    a("v_mul_u32_u24 v%d, 3072, v%d", vWd, vWd)
    a("v_lshl_add_u32 v%d, v%d, 4, v%d", vWd, vT + 3, vWd)
    a("s_lshr_b32 s%d, s%d, 1", sT, sWave); a("s_lshl_b32 s%d, s%d, 7", sT, sT)
    a("v_add_u32 v%d, s%d, v%d", vWd, sT, vWd)
    for i in range(1, 4): a("v_add_u32 v%d, %d, v%d", vWd + i, i * (8 * 3072 - 1024), vWd)
    a("s_mul_i32 s%d, s%d, %d", sXoff, sMT, 128 * 1280); a("s_lshl_b32 s%d, s%d, 7", sT, sKb); a("s_add_u32 s%d, s%d, s%d", sXoff, sXoff, sT)
    a("s_lshl_b32 s%d, s%d, 8", sWoff, sFT); a("s_mul_i32 s%d, s%d, %d", sT, sKb, 64 * 3072); a("s_add_u32 s%d, s%d, s%d", sWoff, sWoff, sT)
    a("s_lshl_b32 s%d, s%d, 12", sM0, sWave)
    a("s_mov_b32 m0, s%d", sM0)
    a("s_mov_b32 s%d, %d", sX + 2, 2048 * 640 * 2); a("s_mov_b32 s%d, 0x20000", sX + 3)
    a("s_mov_b32 s%d, %d", sW1 + 2, 640 * 1536 * 2); a("s_mov_b32 s%d, 0x20000", sW1 + 3)
    a("s_waitcnt lgkmcnt(0)")
    a("s_mov_b64 s[%d:%d], s[40:41]", sX, sX + 1); a("s_mov_b64 s[%d:%d], s[42:43]", sW1, sW1 + 1)
    SLOT = 32768; S = 3
    def dma(i):
        if i < 4: return "buffer_load_dwordx4 v%d, s[%d:%d], s%d offen offset:%d lds" % (vXd + i, sX, sX + 3, sXoff, 1024 * i)
        return "buffer_load_dwordx4 v%d, s[%d:%d], s%d offen offset:%d lds" % (vWd + i - 4, sW1, sW1 + 3, sWoff, 1024 * (i - 4))
    m0w = "s_add_u32 m0, s%d, 16384" % sM0
    adv_x = ["s_add_u32 s%d, s%d, 1" % (sKb, sKb), "s_cmp_eq_u32 s%d, 10" % sKb, "s_cselect_b32 s%d, %d, 128" % (sT, (128 - 1280) & 0xffffffff),
             "s_cselect_b32 s%d, %d, %d" % (sT2, 0, 0), ]
    sNx, sNw, sPw = 98, 99, 100
    a("s_mov_b32 s%d, %d", sNx, (128 - 1280) & 0xffffffff)
    a("s_mov_b32 s%d, %d", sNw, (-9 * 64 * 3072) & 0xffffffff)
    adv1 = ["s_add_u32 s%d, s%d, 1" % (sKb, sKb), "s_cmp_eq_u32 s%d, 10" % sKb,
            "s_cselect_b32 s%d, s%d, 128" % (sT, sNx), "s_cselect_b32 s%d, s%d, %d" % (sT2, sNw, 64 * 3072), "s_cselect_b32 s%d, 0, s%d" % (sKb, sKb),
            "s_add_u32 s%d, s%d, s%d" % (sXoff, sXoff, sT)]
    adv2 = ["s_add_u32 s%d, s%d, s%d" % (sWoff, sWoff, sT2), "s_add_u32 s%d, s%d, %d" % (sM0, sM0, SLOT), "s_cmp_ge_u32 s%d, %d" % (sM0, S * SLOT),
            "s_cselect_b32 s%d, %d, 0" % (sT, S * SLOT), "s_sub_u32 s%d, s%d, s%d" % (sM0, sM0, sT), "s_mov_b32 m0, s%d" % sM0]
    def issue_block():
        for i in range(4): a(dma(i))
        a(m0w)
        for s in adv1: a(s)
        for i in range(4, 8): a(dma(i))
        for s in adv2: a(s)
        a("s_nop 0")
    issue_block()
    a("v_lshrrev_b32 v%d, 5, v%d", vHi, vL)
    srd(sO, 44, 1536 * 2)
    a("s_and_b32 s%d, s%d, 1", sT, sWave); a("s_lshl_b32 s%d, s%d, 7", sT, sT); a("s_lshl_b32 s%d, s%d, 8", sT3, sFT); a("s_add_u32 s%d, s%d, s%d", sT3, sT3, sT)
    a("v_lshlrev_b32 v%d, 3, v%d", vT + 5, vHi)
    for t in range(8):
        a("buffer_load_dwordx2 v[%d:%d], v%d, s[%d:%d], s%d offen offset:%d", TMP + 2 * t, TMP + 2 * t + 1, vT + 5, sO, sO + 3, sT3, 16 * t)
    issue_block()
    stamp()
    a("v_and_b32 v%d, 31, v%d", vT + 3, vL)
    a("s_lshr_b32 s%d, s%d, 1", sT, sWave); a("s_lshl_b32 s%d, s%d, 6", sT, sT)
    a("v_add_u32 v%d, s%d, v%d", vT + 3, sT, vT + 3)
    a("v_lshlrev_b32 v%d, 7, v%d", vT + 3, vT + 3)
    a("v_bfe_u32 v%d, v%d, 1, 3", vT + 4, vL)
    a("v_xor_b32 v%d, v%d, v%d", vT + 4, vT + 4, vHi)
    a("v_lshl_add_u32 v%d, v%d, 4, v%d", vXr, vT + 4, vT + 3)
    for s in range(1, 4): a("v_xor_b32 v%d, %d, v%d", vXr + s, 32 * s, vXr)
    a("v_bfe_u32 v%d, v%d, 2, 2", vT + 3, vL)
    a("v_lshl_add_u32 v%d, v%d, 3, v%d", vT + 3, vHi, vT + 3)
    a("v_lshlrev_b32 v%d, 7, v%d", vT + 3, vT + 3)
    a("v_bfe_u32 v%d, v%d, 4, 1", vT + 4, vL)
    a("v_lshl_add_u32 v%d, v%d, 5, v%d", vT + 3, vT + 4, vT + 3)
    a("v_and_b32 v%d, 3, v%d", vT + 4, vL)
    a("v_lshl_add_u32 v%d, v%d, 3, v%d", vT + 3, vT + 4, vT + 3)
    a("v_bfe_u32 v%d, v%d, 3, 1", vT + 4, vL)
    a("v_lshl_add_u32 v%d, v%d, 6, v%d", vT + 3, vT + 4, vT + 3)
    a("s_and_b32 s%d, s%d, 1", sT, sWave); a("s_lshl_b32 s%d, s%d, 13", sT, sT); a("s_add_u32 s%d, s%d, 16384", sT, sT)
    a("v_add_u32 v%d, s%d, v%d", vWr, sT, vT + 3)
    a("v_xor_b32 v%d, 64, v%d", vWr + 1, vWr)
    a("v_mov_b32 v%d, 0x%x", vC0, f2u(C0)); a("v_mov_b32 v%d, 0x%x", vC0 + 1, f2u(C0))
    a("v_mov_b32 v%d, 1.0", vONE); a("v_mov_b32 v%d, 1.0", vONE + 1)
    a("s_mov_b32 s%d, 0x%x", sC1, f2u(C1)); a("s_mov_b32 s%d, 0x%x", sC1 + 1, f2u(C1))
    for r in range(16): a("v_mov_b32 v%d, 0", FR + 16 + r)
    a("v_bfe_u32 v%d, v%d, 4, 1", vT + 3, vL)
    a("v_mul_u32_u24 v%d, 49152, v%d", vT + 3, vT + 3)
    a("v_lshl_add_u32 v%d, v%d, 8, v%d", vT + 3, vHi, vT + 3)
    a("v_and_b32 v%d, 15, v%d", vT + 4, vL)
    a("v_lshl_add_u32 v%d, v%d, 4, v%d", vHst, vT + 4, vT + 3)

    def p2_setup():
        if o["a2"] == 8:
            a("s_lshr_b32 s%d, s%d, 1", sDl, sI); a("s_and_b32 s%d, s%d, 1", sRb, sI); a("s_mul_i32 s%d, s%d, 5", sRb, sRb); a("s_add_u32 s%d, s%d, 6", sRb, sRb); a("s_mov_b32 s%d, 5", sNb)
            a("s_lshr_b32 s%d, s%d, 2", sT, sI); a("s_add_u32 s%d, s%d, 4", sT, sT); a("s_and_b32 s%d, s%d, 3", sT2, sI); a("s_lshl_b32 s%d, s%d, 2", sT2, sT2)
            a("s_cmp_ge_u32 s%d, 16", sI); a("s_cselect_b32 s%d, s%d, s%d", sDl, sT, sDl); a("s_cselect_b32 s%d, s%d, s%d", sRb, sT2, sRb); a("s_cselect_b32 s%d, 4, s%d", sNb, sNb)
            a("s_sub_u32 s%d, s%d, 24", sT, sI)
            a("s_cmp_ge_u32 s%d, 24", sI); a("s_cselect_b32 s%d, s%d, s%d", sDl, sT, sDl); a("s_cselect_b32 s%d, 0, s%d", sRb, sRb); a("s_cselect_b32 s%d, 6, s%d", sNb, sNb)
            a("s_lshl_b32 s%d, s%d, 4", sT, sXcd); a("s_add_u32 s%d, s%d, s%d", sRb, sRb, sT)
        else:
            a("s_lshr_b32 s%d, s%d, 2", sDl, sI); a("s_and_b32 s%d, s%d, 3", sRb, sI); a("s_mul_i32 s%d, s%d, 5", sRb, sRb); a("s_add_u32 s%d, s%d, 12", sRb, sRb); a("s_mov_b32 s%d, 5", sNb)
            a("s_and_b32 s%d, s%d, 1", sT, sI); a("s_add_u32 s%d, s%d, 3", sT, sT)
            a("s_sub_u32 s%d, s%d, 20", sT2, sI); a("s_lshr_b32 s%d, s%d, 1", sT2, sT2); a("s_lshl_b32 s%d, s%d, 2", sT2, sT2)
            a("s_cmp_ge_u32 s%d, 20", sI); a("s_cselect_b32 s%d, s%d, s%d", sDl, sT, sDl); a("s_cselect_b32 s%d, s%d, s%d", sRb, sT2, sRb); a("s_cselect_b32 s%d, 4, s%d", sNb, sNb)
            a("s_sub_u32 s%d, s%d, 26", sT, sI); a("s_lshr_b32 s%d, s%d, 1", sT, sT); a("s_and_b32 s%d, s%d, 1", sT2, sI); a("s_mul_i32 s%d, s%d, 6", sT2, sT2)
            a("s_cmp_ge_u32 s%d, 26", sI); a("s_cselect_b32 s%d, s%d, s%d", sDl, sT, sDl); a("s_cselect_b32 s%d, s%d, s%d", sRb, sT2, sRb); a("s_cselect_b32 s%d, 6, s%d", sNb, sNb)
            a("s_lshr_b32 s%d, s%d, 1", sT, sXcd); a("s_lshl_b32 s%d, s%d, 5", sT, sT); a("s_add_u32 s%d, s%d, s%d", sRb, sRb, sT)
            a("s_and_b32 s%d, s%d, 1", sT, sXcd); a("s_mul_i32 s%d, s%d, 5", sT, sT); a("s_add_u32 s%d, s%d, s%d", sDl, sDl, sT)
        srd(sW2, 46, 1536 * 640 * 2); srd(sH, 54, FLAGOFF + 65536)
        a("v_lshlrev_b32 v%d, 1, v%d", vT + 3, vT + 2)
        a("v_xor_b32 v%d, v%d, v%d", vT + 3, vT + 1, vT + 3)
        a("v_mul_u32_u24 v%d, 1280, v%d", vGd, vT)
        a("v_lshl_add_u32 v%d, v%d, 4, v%d", vGd, vT + 3, vGd)
        for i in range(1, 4): a("v_add_u32 v%d, %d, v%d", vGd + i, i * (8 * 1280 - 1024), vGd)
        a("s_mul_i32 s%d, s%d, %d", sG, sWave, 384 * 1280); a("s_lshl_b32 s%d, s%d, 7", sT, sDl); a("s_add_u32 s%d, s%d, s%d", sG, sG, sT)
        a("s_lshl_b32 s%d, s%d, 14", sGm, sWave); a("s_add_u32 s%d, s%d, 98304", sGm, sGm)
        a("v_lshrrev_b32 v%d, 5, v%d", vT + 3, vL)
        a("v_bfe_u32 v%d, v%d, 2, 3", vT + 4, vL)
        a("v_lshl_add_u32 v%d, v%d, 4, v%d", vT + 3, vT + 3, vT + 4)
        a("v_lshlrev_b32 v%d, 7, v%d", vT + 3, vT + 3)
        a("v_bfe_u32 v%d, v%d, 3, 2", vT + 4, vL)
        a("v_lshl_add_u32 v%d, v%d, 5, v%d", vT + 3, vT + 4, vT + 3)
        a("v_and_b32 v%d, 3, v%d", vT + 4, vL)
        a("v_lshl_add_u32 v%d, v%d, 3, v%d", vT + 3, vT + 4, vT + 3)
        a("v_add_u32 v%d, s%d, v%d", vGr, sGm, vT + 3)
        for t in range(1, 4): a("v_xor_b32 v%d, %d, v%d", vGr + t, 32 * t, vGr)
        a("v_lshlrev_b32 v%d, 4, v%d", vL16, vL)
        a("v_and_b32 v%d, 15, v%d", vT + 3, vL); a("v_lshrrev_b32 v%d, 4, v%d", vT + 4, vL)
        a("v_mul_u32_u24 v%d, 272, v%d", vRw, vT + 3)
        a("v_lshl_add_u32 v%d, v%d, 4, v%d", vRw, vT + 4, vRw)
        a("s_mul_i32 s%d, s%d, 4352", sT, sWave); a("v_add_u32 v%d, s%d, v%d", vRw, sT, vRw)
        a("s_lshl_b32 s%d, s%d, 2", sT, sWave); a("v_add_u32 v%d, s%d, v%d", vT + 4, sT, vT + 4)
        a("v_mul_u32_u24 v%d, 272, v%d", vRr, vT + 4)
        a("v_lshl_add_u32 v%d, v%d, 4, v%d", vRr, vT + 3, vRr)
        a("v_mul_u32_u24 v%d, 1280, v%d", vOst, vT + 4)
        a("v_lshl_add_u32 v%d, v%d, 3, v%d", vOst, vT + 3, vOst)
        a("s_lshr_b32 s%d, s%d, 3", sT, sRb); a("s_add_u32 s%d, s%d, s%d", sT2, sRb, sNb); a("s_sub_u32 s%d, s%d, 1", sT2, sT2); a("s_lshr_b32 s%d, s%d, 3", sT2, sT2)
        a("s_sub_u32 s%d, s%d, s%d", sT2, sT2, sT); a("s_mul_i32 s%d, s%d, 12", sT2, sT2); a("s_sub_u32 s%d, s%d, 3", sT2, sT2)
        a("s_mul_i32 s%d, s%d, 12", sT, sT); a("s_mul_i32 s%d, s%d, 3", sT3, sWave); a("s_add_u32 s%d, s%d, s%d", sT, sT, sT3)
        a("v_mov_b32 v%d, s%d", vT + 3, sT2)
        a("v_cmp_lt_u32 vcc, 2, v%d", vL)
        a("v_add_u32 v%d, s%d, v%d", vFl, sT, vL)
        a("s_nop 0")
        a("v_cndmask_b32 v%d, 0, v%d, vcc", vT + 3, vT + 3)
        a("v_add_u32 v%d, v%d, v%d", vFl, vFl, vT + 3)
        a("v_lshlrev_b32 v%d, 8, v%d", vFl, vFl)
        a("v_add_u32 v%d, %d, v%d", vFl, FLAGOFF, vFl)
        a("s_mul_i32 s%d, s%d, 49152", sHcur, sRb); a("s_mul_i32 s%d, s%d, 12288", sT, sWave); a("s_add_u32 s%d, s%d, s%d", sHcur, sHcur, sT)
    p2_setup()
    a("s_waitcnt vmcnt(8)")
    for ft in range(2):
        for g in range(4):
            t = TMP + 2 * (ft * 4 + g)
            for mt in range(2):
                r = ACC + (ft * 2 + mt) * 16 + 4 * g
                a("v_lshlrev_b32 v%d, 16, v%d", r, t); a("v_and_b32 v%d, 0xffff0000, v%d", r + 1, t)
                a("v_lshlrev_b32 v%d, 16, v%d", r + 2, t + 1); a("v_and_b32 v%d, 0xffff0000, v%d", r + 3, t + 1)
    a("s_mov_b32 s%d, 0", sRd); a("s_mov_b32 s%d, 0", sIt)
    a("s_barrier")
    stamp()
    def reads(s):
        b = FR + 16 * (s & 1)
        w = lambda f, u: "ds_read_b64_tr_b16 v[%d:%d], v%d offset:%d" % (b + 4 * f + 2 * u, b + 4 * f + 2 * u + 1, vWr + f, s * 2048 + u * 512)
        x = lambda mt: "ds_read_b128 v[%d:%d], v%d offset:%d" % (b + 8 + 4 * mt, b + 11 + 4 * mt, vXr + s, mt * 4096)
        return [w(0, 0), w(0, 1), x(0), x(1), w(1, 0), w(1, 1)]
    def mfmas(buf):
        b = FR + 16 * buf
        out = []
        for ft in range(2):
            for mt in range(2):
                r = ACC + (ft * 2 + mt) * 16
                out.append("v_mfma_f32_32x32x16_bf16 v[%d:%d], v[%d:%d], v[%d:%d], v[%d:%d]" % (r, r + 15, b + 4 * ft, b + 4 * ft + 3, b + 8 + 4 * mt, b + 11 + 4 * mt, r, r + 15))
        return out
    def gdma(g, i): return "buffer_load_dwordx4 v%d, s[%d:%d], s%d offen offset:%d lds" % (vGd + i, sW2, sW2 + 3, sG, 1024 * i)
    def gm0(g): return "s_add_u32 m0, s%d, %d" % (sGm, (g & 3) * 4096)
    gadv = "s_add_u32 s%d, s%d, %d" % (sG, sG, 32 * 1280)
    def greads(g): return ["ds_read_b64_tr_b16 a[%d:%d], v%d offset:%d" % ((g * 4 + t) * 4 + 2 * u, (g * 4 + t) * 4 + 2 * u + 1, vGr + t, (g & 3) * 4096 + u * 1024) for t in range(4) for u in range(2)]
    def body(vm_ops, vm, last=False):
        upd = lambda r: "v_add_u32 v%d, s%d, v%d" % (r, sDelta, r)
        for s in range(4):
            M = mfmas((s + 1) & 1); R = reads(s)
            if s > 0: a("s_waitcnt lgkmcnt(3)")
            a(M[0]); a(R[0]); a(R[1])
            if s == 0:
                a("s_add_u32 s%d, s%d, %d", sRd, sRd, SLOT); a("s_cmp_ge_u32 s%d, %d", sRd, S * SLOT)
                a("s_cselect_b32 s%d, s%d, %d", sDelta, sPw, SLOT); a("s_cselect_b32 s%d, 0, s%d", sRd, sRd)
            else: a("s_waitcnt lgkmcnt(4)")
            a(M[1]); a(R[2]); a(R[3])
            for e in vm_ops[2 * s]: a(e)
            if s > 0: a("s_waitcnt lgkmcnt(4)")
            a(M[2]); a(R[4]); a(R[5])
            if not last:
                a(upd(vXr + s))
                if s == 3: a(upd(vWr)); a(upd(vWr + 1))
            a(M[3])
            for e in vm_ops[2 * s + 1]: a(e)
        if not last:
            a("s_waitcnt vmcnt(%d) lgkmcnt(0)", vm); a("s_barrier")
        else:
            a("s_waitcnt lgkmcnt(0)"); a("s_barrier")
    a("s_mov_b32 s%d, %d", sPw, (-(S - 1) * SLOT) & 0xffffffff)
    a(".p2align 3")
    a.label("L_p1")
    ops = [[dma(0)], [dma(1)], [dma(2)], [dma(3), m0w] + adv1[:3], [dma(4)] + adv1[3:], [dma(5)], [dma(6)], [dma(7)] + adv2 + ["s_add_u32 s%d, s%d, 1" % (sIt, sIt), "s_cmp_lt_u32 s%d, 8" % sIt]]
    body(ops, 8)
    a("s_cbranch_scc1 L_p1")
    stamp()
    srd_dbg = ["s_mov_b64 s[%d:%d], s[52:53]" % (sO, sO + 1), "s_mov_b32 s%d, 256" % (sO + 2), "v_mov_b32 v%d, 0" % (vT + 5)]
    nload = "buffer_load_dwordx2 v[%d:%d], v%d, s[%d:%d], 0 offen sc1" % (vPl, vPl + 1, vT + 5, sO, sO + 3)
    body([srd_dbg + [gm0(0)], [nload], [gdma(0, 0)], [gdma(0, 1)], [gdma(0, 2)], [gdma(0, 3), gadv, gm0(1)], [gdma(1, 0)], [gdma(1, 1)]], 7)
    body([[gdma(1, 2)], [gdma(1, 3), gadv, gm0(2)], [gdma(2, 0)], [gdma(2, 1)], [gdma(2, 2)], [gdma(2, 3), gadv, gm0(3)], [gdma(3, 0)], [gdma(3, 1)]], 0, last=True)
    M = mfmas(1)
    a(M[0]); a(gdma(3, 2)); a(M[1]); a(gdma(3, 3)); a(gadv); a(M[2])
    a("s_lshl_b32 s%d, s%d, 1", sT, sMT); a("s_lshr_b32 s%d, s%d, 1", sT2, sWave); a("s_add_u32 s%d, s%d, s%d", sT, sT, sT2); a("s_mul_i32 s%d, s%d, 196608", sT, sT)
    a(M[3])
    a("s_lshl_b32 s%d, s%d, 1", sT2, sFT); a("s_and_b32 s%d, s%d, 1", sT3, sWave); a("s_add_u32 s%d, s%d, s%d", sT2, sT2, sT3); a("s_lshl_b32 s%d, s%d, 11", sT2, sT2)
    a("s_add_u32 s%d, s%d, s%d", sXoff, sT, sT2); a("s_add_u32 s%d, s%d, 98304", sWoff, sXoff)
    stamp()
    log = ["n"] + ["g0"] * 4 + ["g1"] * 4 + ["g2"] * 4 + ["g3"] * 4
    def vmwait(tag):
        idx = max(i for i, t in enumerate(log) if t == tag)
        return "s_waitcnt vmcnt(%d)" % (len(log) - 1 - idx)
    def gelu_list(acc, tmp, outr):
        L = []; P = range(8)
        pk = lambda op, d, x, y: "%s v[%d:%d], v[%d:%d], v[%d:%d]" % (op, d, d + 1, x, x + 1, y, y + 1)
        for p in P: L.append(pk("v_pk_mul_f32", tmp + 2 * p, acc + 2 * p, acc + 2 * p))
        for p in P: L.append("v_pk_fma_f32 v[%d:%d], v[%d:%d], s[%d:%d], v[%d:%d]" % (tmp + 2 * p, tmp + 2 * p + 1, tmp + 2 * p, tmp + 2 * p + 1, sC1, sC1 + 1, vC0, vC0 + 1))
        for p in P: L.append(pk("v_pk_mul_f32", tmp + 2 * p, tmp + 2 * p, acc + 2 * p))
        for i in range(16): L.append("v_exp_f32 v%d, v%d" % (tmp + i, tmp + i))
        for p in P: L.append(pk("v_pk_add_f32", tmp + 2 * p, tmp + 2 * p, vONE))
        for i in range(16): L.append("v_rcp_f32 v%d, v%d" % (tmp + i, tmp + i))
        for p in P: L.append(pk("v_pk_mul_f32", tmp + 2 * p, tmp + 2 * p, acc + 2 * p))
        for p in P: L.append("v_cvt_pk_bf16_f32 v%d, v%d, v%d" % (outr + p, tmp + 2 * p, tmp + 2 * p + 1))
        return L
    nextg = 4; readg = 0
    for ti, (ft, mt) in enumerate(((0, 0), (0, 1), (1, 0), (1, 1))):
        ob = OUT + 8 * (ti & 1)
        G = gelu_list(ACC + (ft * 2 + mt) * 16, TMP, ob)
        ex = {}
        a(vmwait("g%d" % readg))
        gr = greads(readg)
        for k, r in enumerate(gr): ex.setdefault(k * 2, []).append(r)
        readg += 1
        if o["gel_dma"]:
            ex.setdefault(30, []).extend(["s_waitcnt lgkmcnt(0)", gm0(nextg)])
            for i in range(4):
                ex.setdefault(32 + 12 * i, []).append(gdma(nextg, i)); log.append("g%d" % nextg)
            ex.setdefault(72, []).append(gadv)
            nextg += 1
        weave(a, G, ex)
        for i in range(2):
            a("buffer_store_dwordx4 v[%d:%d], v%d, s[%d:%d], s%d offen offset:%d %s", ob + 4 * i, ob + 4 * i + 3, vHst, sH, sH + 3, sWoff if mt else sXoff, i * 512 + ft * 1024, o["hst"])
            log.append("st")
    stamp()
    def consume_and_refill():
        nonlocal nextg, readg
        a(vmwait("g%d" % readg))
        for r in greads(readg): a(r)
        readg += 1
    def refill():
        nonlocal nextg
        assert nextg - 4 < readg
        a("s_waitcnt lgkmcnt(0)"); a(gm0(nextg)); a("s_nop 0")
        for i in range(4): a(gdma(nextg, i)); log.append("g%d" % nextg)
        a(gadv); nextg += 1
    def get_nonce(lab):
        a("s_mov_b32 s%d, 0", sIt)
        a.label(lab)
        a("v_readfirstlane_b32 s%d, v%d", sNonce, vPl); a("v_readfirstlane_b32 s%d, v%d", sNonce + 1, vPl + 1)
        a("s_add_u32 s%d, s%d, 1", sIt, sIt); a("s_nop 1")
        a("s_cmp_lg_u32 s%d, 0", sNonce + 1); a("s_cbranch_scc1 %s_ok", lab)
        a("s_cmp_gt_u32 s%d, %d", sIt, o["spin"]); a("s_cbranch_scc1 %s_ok", lab)
        a(nload); a("s_waitcnt vmcnt(0)"); a("s_branch %s", lab)
        a.label(lab + "_ok")
    get_nonce("L_n1")
    while nextg < min(12, readg + 4): refill()
    for _ in range(2):
        if nextg < 12: consume_and_refill(); refill()
    a(vmwait("st")); a("s_barrier")
    a("s_cmp_lg_u32 s%d, 0", sWave); a("s_cbranch_scc1 L_noflag")
    a("s_mul_i32 s%d, s%d, 12", sT, sMT); a("s_add_u32 s%d, s%d, s%d", sT, sT, sFT); a("s_lshl_b32 s%d, s%d, 8", sT, sT); a("s_add_u32 s%d, s%d, %d", sT, sT, FLAGOFF)
    a("s_mov_b64 exec, 1")
    a("buffer_store_dwordx2 v[%d:%d], v%d, s[%d:%d], s%d offen sc1", vPl, vPl + 1, vT + 5, sH, sH + 3, sT)
    a("s_mov_b64 exec, -1")
    a.label("L_noflag")
    stamp()
    while nextg < 12:
        consume_and_refill(); refill()
    busy_readg = readg
    a("s_branch L_join")
    a.label("L_helper")
    nst_save = nst[0]; nst[0] = 1
    if o["codepf"]:
        a("s_getpc_b64 s[%d:%d]", sT, sT + 1)
        a("s_sub_u32 s%d, s%d, L_helper-%s_kernel+4", sT, sT, NAME); a("s_subb_u32 s%d, s%d, 0", sT + 1, sT + 1)
        a("v_lshlrev_b32 v%d, 7, v0", vT + 3)
        a("v_cmp_gt_u32 vcc, L_codeend-%s_kernel, v%d", NAME, vT + 3)
        a("s_and_saveexec_b64 s[%d:%d], vcc", sC1, sC1 + 1)
        a("s_cbranch_execz L_nocode")
        a("global_load_dword v%d, v%d, s[%d:%d]", RD, vT + 3, sT, sT + 1)
        a.label("L_nocode")
        a("s_mov_b64 exec, -1")
    a("s_memrealtime s[%d:%d]", sNonce, sNonce + 1)
    a("v_mul_u32_u24 v%d, 1280, v%d", vXd, vL); a("v_mul_u32_u24 v%d, 3072, v%d", vWd, vL)
    a("s_sub_u32 s%d, s%d, 24", sKb, sI); a("s_lshl_b32 s%d, s%d, 2", sKb, sKb); a("s_add_u32 s%d, s%d, s%d", sKb, sKb, sWave)
    a("s_waitcnt lgkmcnt(0)")
    srd(sX, 40, 2048 * 640 * 2); srd(sW1, 42, 640 * 1536 * 2); srd(sO, 52, 256)
    a("v_mov_b32 v%d, 0", vT + 5)
    a("s_cmp_lg_u32 s2, 255"); a("s_cbranch_scc1 L_nolead")
    a("s_cmp_lg_u32 s%d, 0", sWave); a("s_cbranch_scc1 L_nolead")
    a("s_or_b32 s%d, s%d, 0x80000000", sNonce + 1, sNonce + 1)
    a("v_mov_b32 v%d, s%d", vPl, sNonce); a("v_mov_b32 v%d, s%d", vPl + 1, sNonce + 1)
    a("s_mov_b64 exec, 1")
    a("buffer_store_dwordx2 v[%d:%d], v%d, s[%d:%d], 0 offen sc1", vPl, vPl + 1, vT + 5, sO, sO + 3)
    a("s_mov_b64 exec, -1")
    a.label("L_nolead")
    k0, k1 = o["pf"]
    if k1 > k0:
        nx, nw = (8, 12) if o["a1"] == 4 else (4, 24)
        per = nx + nw; tot = per * (k1 - k0)
        magic = (65536 + per - 1) // per
        assert all((n * magic) >> 16 == n // per for n in range(tot + 32))
        a("s_mov_b32 s%d, s%d", sIt, sKb)
        a("s_mul_i32 s%d, s%d, 10", sRd, sXcd); a("s_lshr_b32 s%d, s%d, 3", sRd, sRd); a("s_add_u32 s%d, s%d, %d", sRd, sRd, k0)
        if o["a1"] == 4:
            a("s_lshr_b32 s%d, s%d, 1", sXoff, sXcd); a("s_mul_i32 s%d, s%d, %d", sXoff, sXoff, 512 * 1280)
            a("s_and_b32 s%d, s%d, 1", sWoff, sXcd); a("s_mul_i32 s%d, s%d, 1536", sWoff, sWoff)
        else:
            a("s_mul_i32 s%d, s%d, %d", sXoff, sXcd, 256 * 1280); a("s_mov_b32 s%d, 0", sWoff)
        a.label("L_pf")
        a("s_mul_i32 s%d, s%d, %d", sT, sIt, magic); a("s_lshr_b32 s%d, s%d, 16", sT, sT)
        a("s_mul_i32 s%d, s%d, %d", sT2, sT, per); a("s_sub_u32 s%d, s%d, s%d", sT2, sIt, sT2)
        a("s_add_u32 s%d, s%d, s%d", sT, sT, sRd)
        a("s_cmp_ge_u32 s%d, 10", sT); a("s_cselect_b32 s%d, 10, 0", sT3); a("s_sub_u32 s%d, s%d, s%d", sT, sT, sT3)
        a("s_cmp_ge_u32 s%d, %d", sT2, nx); a("s_cbranch_scc1 L_pfw")
        a("s_mul_i32 s%d, s%d, %d", sT2, sT2, 64 * 1280); a("s_lshl_b32 s%d, s%d, 7", sT, sT); a("s_add_u32 s%d, s%d, s%d", sT, sT, sT2); a("s_add_u32 s%d, s%d, s%d", sT, sT, sXoff)
        a("buffer_load_dword v%d, v%d, s[%d:%d], s%d offen", RD, vXd, sX, sX + 3, sT)
        a("s_branch L_pfn")
        a.label("L_pfw")
        a("s_sub_u32 s%d, s%d, %d", sT2, sT2, nx); a("s_lshl_b32 s%d, s%d, 7", sT2, sT2); a("s_mul_i32 s%d, s%d, %d", sT, sT, 64 * 3072); a("s_add_u32 s%d, s%d, s%d", sT, sT, sT2); a("s_add_u32 s%d, s%d, s%d", sT, sT, sWoff)
        a("buffer_load_dword v%d, v%d, s[%d:%d], s%d offen", RD, vWd, sW1, sW1 + 3, sT)
        a.label("L_pfn")
        a("s_add_u32 s%d, s%d, 32", sIt, sIt); a("s_cmp_lt_u32 s%d, %d", sIt, tot); a("s_cbranch_scc1 L_pf")
    stamp()
    p2_setup()
    if o["w2pf"]:
        nl = 5 if o["a2"] == 4 else 10
        per = 4 * nl; tot = 6 * per
        magic = (65536 + per - 1) // per
        assert all((n * magic) >> 16 == n // per for n in range(tot + 32))
        a("s_mov_b32 s%d, s%d", sIt, sKb)
        if o["a2"] == 4: a("s_and_b32 s%d, s%d, 1", sWoff, sXcd); a("s_mul_i32 s%d, s%d, 640", sWoff, sWoff)
        else: a("s_mov_b32 s%d, 0", sWoff)
        a.label("L_pf2")
        a("s_mul_i32 s%d, s%d, %d", sT, sIt, magic); a("s_lshr_b32 s%d, s%d, 16", sT, sT)
        a("s_mul_i32 s%d, s%d, %d", sT2, sT, per); a("s_sub_u32 s%d, s%d, s%d", sT2, sIt, sT2)
        a("s_and_b32 s%d, s%d, 3", sT3, sT2); a("s_mul_i32 s%d, s%d, 6", sT3, sT3); a("s_add_u32 s%d, s%d, s%d", sT, sT, sT3)
        a("s_mul_i32 s%d, s%d, %d", sT, sT, 64 * 1280); a("s_lshr_b32 s%d, s%d, 2", sT2, sT2); a("s_lshl_b32 s%d, s%d, 7", sT2, sT2)
        a("s_add_u32 s%d, s%d, s%d", sT, sT, sT2); a("s_add_u32 s%d, s%d, s%d", sT, sT, sWoff)
        a("buffer_load_dword v%d, v%d, s[%d:%d], s%d offen", RD, vXd, sW2, sW2 + 3, sT)
        a("s_add_u32 s%d, s%d, 32", sIt, sIt); a("s_cmp_lt_u32 s%d, %d", sIt, tot); a("s_cbranch_scc1 L_pf2")
    stamp()
    a(nload)
    log = ["n"]; nextg = 0; readg = 0
    for g in range(4): refill()
    while readg < busy_readg:
        consume_and_refill(); refill()
    assert nextg == 12
    get_nonce("L_n2")
    while PROF and nst[0] < nst_save: stamp()
    a.label("L_join")
    srd(sO, 48, 640 * 2)
    a("v_and_b32 v%d, 15, v%d", vT + 3, vL); a("v_lshlrev_b32 v%d, 3, v%d", vT + 3, vT + 3); a("s_lshl_b32 s%d, s%d, 7", sT, sDl)
    a("buffer_load_dwordx2 v[%d:%d], v%d, s[%d:%d], s%d offen", vB2 + 2, vB2 + 3, vT + 3, sO, sO + 3, sT)
    a("s_mov_b32 s%d, 0", sIt)
    a("s_mov_b64 exec, 63")
    a.label("L_poll")
    a("buffer_load_dwordx2 v[%d:%d], v%d, s[%d:%d], 0 offen sc1", vPl, vPl + 1, vFl, sH, sH + 3)
    a("s_add_u32 s%d, s%d, 1", sIt, sIt)
    a("s_cmp_gt_u32 s%d, %d", sIt, o["spin"])
    a("s_waitcnt vmcnt(0)")
    a("s_cbranch_scc1 L_pollok")
    a("v_cmp_ne_u64 vcc, s[%d:%d], v[%d:%d]", sNonce, sNonce + 1, vPl, vPl + 1)
    a("s_cbranch_vccnz L_poll")
    a.label("L_pollok")
    a("s_mov_b64 exec, -1")
    stamp()
    D = o["dist"]
    def hload(k, reg):
        return "buffer_load_dwordx4 v[%d:%d], v%d, s[%d:%d], s%d offen offset:%d sc1" % (RING + 4 * k, RING + 4 * k + 3, vL16, sH, sH + 3, reg, (k & 3) * 1024)
    STK = 9
    ostore = "buffer_store_dwordx2 v[%d:%d], v%d, s[%d:%d], s%d offen %s" % (vPl, vPl + 1, vOst, sO, sO + 3, sOst, o["ost"])
    for k in range(D):
        a(hload(k, sHcur))
        if k == 0:
            srd(sO, 50, 2048 * 640 * 2)
            a("s_mov_b32 s%d, 0x%x", sOst, OOB)
        if k & 3 == 3: a("s_add_u32 s%d, s%d, 4096", sHcur, sHcur)
        if k == (STK + D) % 12: a(ostore)
    for g in range(busy_readg, 12):
        for r in greads(g): a(r)
    a("v_lshlrev_b32 v%d, 16, v%d", vB2, vB2 + 2); a("v_and_b32 v%d, 0xffff0000, v%d", vB2 + 1, vB2 + 2)
    a("v_lshlrev_b32 v%d, 16, v%d", vB2 + 2, vB2 + 3); a("v_and_b32 v%d, 0xffff0000, v%d", vB2 + 3, vB2 + 3)
    a("s_mul_i32 s%d, s%d, %d", sHnext, sRb, 16 * 1280); a("s_lshl_b32 s%d, s%d, 7", sT, sDl); a("s_add_u32 s%d, s%d, s%d", sHnext, sHnext, sT)
    a("s_mov_b32 s%d, 1", sIt)
    a("s_waitcnt lgkmcnt(0)")
    def red_writes(): return ["ds_write_b128 v%d, v[%d:%d] offset:%d" % (vRw, B2 + 4 * t, B2 + 4 * t + 3, 64 * t) for t in range(4)]
    def red_reads(): return ["ds_read_b128 v[%d:%d], v%d offset:%d" % (RD + 4 * p, RD + 4 * p + 3, vRr, 4352 * p) for p in range(4)]
    def red_adds():
        L = []
        for j in range(4): L.append("v_add_f32 v%d, v%d, v%d" % (RD + j, RD + j, RD + 4 + j))
        for j in range(4): L.append("v_add_f32 v%d, v%d, v%d" % (RD + 8 + j, RD + 8 + j, RD + 12 + j))
        for j in range(4): L.append("v_add_f32 v%d, v%d, v%d" % (RD + j, RD + j, vB2 + j))
        for j in range(4): L.append("v_add_f32 v%d, v%d, v%d" % (RD + j, RD + j, RD + 8 + j))
        L += ["v_cvt_pk_bf16_f32 v%d, v%d, v%d" % (vPl, RD, RD + 1), "v_cvt_pk_bf16_f32 v%d, v%d, v%d" % (vPl + 1, RD + 2, RD + 3)]
        return L
    a(".p2align 3")
    a.label("L_p2")
    W = red_writes(); R = red_reads(); AD = red_adds()
    for ks in range(12):
        between = any(((ks - D + d) % 12) == STK for d in range(D))
        a("s_waitcnt vmcnt(%d)", D - 1 + (1 if between else 0))
        ex = {}
        if ks == 2: ex = {0: [W[0]], 1: [W[1]], 2: [W[2]], 3: [W[3]]}
        if ks == 4: ex = {3: ["s_waitcnt lgkmcnt(0)", "s_barrier"]}
        if ks == 5: ex = {0: [R[0]], 1: [R[1]], 2: [R[2]], 3: [R[3], "v_xor_b32 v%d, 32768, v%d" % (vRw, vRw)]}
        if ks == 6: ex = {3: ["v_xor_b32 v%d, 32768, v%d" % (vRr, vRr)]}
        if ks == 7: ex = {0: ["s_waitcnt lgkmcnt(0)", AD[0]], 1: AD[1:3], 2: AD[3:5], 3: AD[5:6]}
        if ks == 8: ex = {0: AD[6:8], 1: AD[8:10], 2: AD[10:12], 3: AD[12:13]}
        if ks == 9: ex = {0: AD[13:15], 1: AD[15:17], 2: AD[17:18]}
        M = []
        for t in range(4):
            d = B2 if ks == 11 else A2
            c = "0" if ks == 0 else "v[%d:%d]" % (A2 + 4 * t, A2 + 4 * t + 3)
            w = (ks * 4 + t) * 4
            M.append("v_mfma_f32_16x16x32_bf16 v[%d:%d], a[%d:%d], v[%d:%d], %s" % (d + 4 * t, d + 4 * t + 3, w, w + 3, RING + 4 * ks, RING + 4 * ks + 3, c))
        weave(a, M, ex)
        k2 = (ks + D) % 12
        a(hload(k2, sHcur))
        if k2 == 11:
            a("s_add_u32 s%d, s%d, %d", sHcur, sHcur, 49152 - 8192)
            a("s_cmp_ge_u32 s%d, s%d", sIt, sNb); a("s_cselect_b32 s%d, 0x%x, s%d", sHcur, OOB, sHcur)
        elif k2 & 3 == 3: a("s_add_u32 s%d, s%d, 4096", sHcur, sHcur)
        if ks == STK:
            a(ostore); a("s_mov_b32 s%d, s%d", sOst, sHnext); a("s_add_u32 s%d, s%d, %d", sHnext, sHnext, 16 * 1280)
    a("s_add_u32 s%d, s%d, 1", sIt, sIt); a("s_cmp_le_u32 s%d, s%d", sIt, sNb)
    a("s_cbranch_scc1 L_p2")
    stamp()
    a("s_nop 3")
    for w in W: a(w)
    a("s_waitcnt lgkmcnt(0)"); a("s_barrier")
    for r in R: a(r)
    a("s_waitcnt lgkmcnt(0)")
    for x in AD: a(x)
    a(ostore)
    if PROF:
        n = nst[0]
        a("s_waitcnt vmcnt(0)")
        a("s_memtime s[%d:%d]", 64 + 2 * n, 65 + 2 * n); a("s_memrealtime s[62:63]"); a("s_waitcnt lgkmcnt(0)")
        a("s_add_u32 s8, s54, %d", 128 << 20); a("s_addc_u32 s9, s55, 0"); a("s_mov_b32 s10, 0x100000"); a("s_mov_b32 s11, 0x20000")
        a("s_lshl_b32 s28, s2, 3"); a("s_add_u32 s28, s28, s%d", sWave); a("s_lshl_b32 s28, s28, 6")
        a("v_mov_b32 v0, s28")
        a("s_getreg_b32 s29, hwreg(HW_REG_XCC_ID)")
        vals = ["s60", "s62", "s29"] + ["s%d" % (64 + 2 * i) for i in range(n + 1)]
        assert len(vals) <= 16 and 64 + 2 * n + 1 < 92
        vals += ["0"] * (16 - len(vals))
        for i, v in enumerate(vals): a("v_mov_b32 v%d, %s", 4 + i, v)
        a("s_mov_b64 exec, 1")
        for i in range(4): a("buffer_store_dwordx4 v[%d:%d], v0, s[8:11], 0 offen offset:%d", 4 + 4 * i, 7 + 4 * i, 16 * i)
        print("stamps:", n, file=sys.stderr)
    a.label("L_end")
    a("s_endpgm")
    a.label("L_codeend")
    s = HEAD + "; @launch grid=(256,1,1) block=(256,1,1) lds=163840\n"
    s += '.amdgcn_target "amdgcn-amd-amdhsa--gfx950"\n.text\n'
    n = NAME + "_kernel"
    s += ".globl %s\n.p2align 8\n.type %s,@function\n%s:\n%s" % (n, n, n, a.text())
    s += '''.section .rodata,"a"
.p2align 6
.amdhsa_kernel %s
  .amdhsa_next_free_vgpr 368
  .amdhsa_next_free_sgpr 102
  .amdhsa_accum_offset 176
  .amdhsa_group_segment_fixed_size 0
  .amdhsa_kernarg_size 64
  .amdhsa_user_sgpr_count 2
  .amdhsa_user_sgpr_kernarg_segment_ptr 1
  .amdhsa_system_sgpr_workgroup_id_x 1
  .amdhsa_float_denorm_mode_32 3
  .amdhsa_float_denorm_mode_16_64 3
.end_amdhsa_kernel
''' % n
    return s
if __name__ == "__main__":
    kw = json.loads(sys.argv[2]) if len(sys.argv) > 2 else {}
    open(sys.argv[1], "w").write(gen(**kw))
```

```python
import struct, sys, json
def f2u(x): return struct.unpack("<I", struct.pack("<f", x))[0]
C0 = -2.0 * 0.7978845608028654 * 1.4426950408889634
C1 = C0 * 0.044715
NAME = "standalone__dense_activation_gelu__prompt"
HEAD = open("cdna_kernels/%s.s.ref" % NAME).read().split("; Override launch geometry")[0]
FLAGOFF = 8 << 20
OOB = 0x7f000000
DEF = dict(prof=False, a1=4, a2=4, rot1="x", pf=(1, 10), w2pf=True, hst="sc1", ost="", dist=7, spin=200000, codepf=True,
           out=8, prio=1, hsame=False, psleep=0, dbg="", gpace=1, gpend=7, rsleep=1, p2prio=1, swap46=False, krot=True, hdelay=0,
           pollg=11, puba=8, nsl=3, hs=49152, lprio=2, ng=4)

class A:
    def __init__(self): self.L = []
    def __call__(self, s, *args): self.L.append("    " + (s % args if args else s))
    def label(self, s): self.L.append(s + ":")
    def text(self): return "\n".join(self.L) + "\n"

def weave(a, main, extra):
    for i, m in enumerate(main):
        a(m)
        for e in extra.get(i, []): a(e)

def gen(**kw):
    o = dict(DEF); o.update(kw)
    a = A()
    PROF = o["prof"]
    nst = [1]
    def stamp():
        if not PROF: return
        a("s_memtime s[%d:%d]", 64 + 2 * nst[0], 65 + 2 * nst[0]); nst[0] += 1
        a("s_waitcnt lgkmcnt(0)")
    def pad_to(n):
        assert nst[0] <= n, nst[0]
        while PROF and nst[0] < n: stamp()
    NSTAMP = 8
    sX, sW1, sW2, sH, sO = 8, 12, 16, 20, 24
    sWv, sXcd, sI, sMT, sFT = 3, 4, 5, 6, 7
    sXoff, sWoff, sM0, sKb, sDelta, sIt, sT, sT2, sT3, sRd = 28, 29, 30, 31, 32, 33, 34, 35, 36, 37
    sC1 = 38
    sNonce = 56
    sRb, sNb, sDl, sG, sGm, sHcur, sCnt, sOst, sNx, sNw, sPw, sW = 58, 59, 92, 93, 94, 95, 96, 97, 98, 99, 100, 101
    sCur, sEnd, sLate, sBase, sO0, sO1, sO2, sInc = 28, 29, 30, 31, 88, 89, 90, 91
    vL, vZ = 1, 2
    vT = 8
    vPl = 4
    vH, vFl, vRw, vCa = 0, 3, 6, 7
    vXd, vWd, vGd, vGr = 16, 20, 24, 56
    RING, A2, B2 = 8, 40, 56
    def w2reg(i): return ("a", 4 * i) if i < 32 else ("v", 64 + 4 * (i - 32))
    vHi, vXr, vWr, vC0, vONE, vHst = 3, 16, 20, 22, 24, 26
    vRr, vOst, vB2 = 6, 7, 28
    ACC, TMP, OUT = 32, 96, 112
    RD = 32
    NSL = o["nsl"]; REDSZ = 17408; SYNC = 9 * REDSZ
    SLO = [REDSZ, 2 * REDSZ, 3 * REDSZ, 0]
    SLOT = 32768; S = 3
    def srd(d, lo, nbytes):
        a("s_mov_b64 s[%d:%d], s[%d:%d]", d, d + 1, lo, lo + 1)
        a("s_mov_b32 s%d, %d", d + 2, nbytes); a("s_mov_b32 s%d, 0x20000", d + 3)
    def mod3(dst, src):
        a("s_mul_i32 s%d, s%d, 86", sT, src); a("s_lshr_b32 s%d, s%d, 8", sT, sT); a("s_mul_i32 s%d, s%d, 3", sT, sT); a("s_sub_u32 s%d, s%d, s%d", dst, src, sT)
    def krot(dst):
        if o["krot"]:
            if o["a2"] == 4: a("s_lshr_b32 s%d, s%d, 1", dst, sXcd); a("s_cmp_eq_u32 s%d, 3", dst); a("s_cselect_b32 s%d, 0, s%d", dst, dst)
            else: mod3(dst, sXcd)
        else: a("s_mov_b32 s%d, 0", dst)

    a("s_load_dwordx16 s[40:55], s[0:1], 0")
    a("s_cmp_ge_u32 s2, 256"); a("s_cbranch_scc1 L_end")
    if PROF:
        a("s_memrealtime s[60:61]"); a("s_memtime s[64:65]")
    a("v_lshrrev_b32 v%d, 6, v0", vT)
    a("v_and_b32 v%d, 63, v0", vL)
    a("v_readfirstlane_b32 s%d, v%d", sWv, vT)
    a("s_and_b32 s%d, s2, 7", sXcd); a("s_lshr_b32 s%d, s2, 3", sI)
    a("v_lshrrev_b32 v%d, 3, v%d", vT, vL)
    a("v_and_b32 v%d, 7, v%d", vT + 1, vL)
    a("v_lshrrev_b32 v%d, 1, v%d", vT + 2, vT)
    a("v_mov_b32 v%d, 0", vZ)
    a("s_and_b32 s%d, s%d, 3", sW, sWv)
    a("s_mul_i32 s%d, s%d, 10", sKb, sXcd); a("s_lshr_b32 s%d, s%d, 3", sKb, sKb)
    a("s_mov_b32 s%d, %d", sX + 2, 2048 * 640 * 2); a("s_mov_b32 s%d, 0x20000", sX + 3)
    a("s_mov_b32 s%d, %d", sW1 + 2, 640 * 1536 * 2); a("s_mov_b32 s%d, 0x20000", sW1 + 3)
    a("s_cmp_ge_u32 s%d, 24", sI); a("s_cbranch_scc1 L_helper")
    if o["a1"] == 4:
        a("s_lshr_b32 s%d, s%d, 1", sMT, sXcd); a("s_lshl_b32 s%d, s%d, 2", sMT, sMT)
        a("s_and_b32 s%d, s%d, 3", sT, sI); a("s_add_u32 s%d, s%d, s%d", sMT, sMT, sT)
        a("s_and_b32 s%d, s%d, 1", sFT, sXcd); a("s_mul_i32 s%d, s%d, 6", sFT, sFT)
        a("s_lshr_b32 s%d, s%d, 2", sT2, sI); a("s_add_u32 s%d, s%d, s%d", sFT, sFT, sT2)
    else:
        a("s_lshl_b32 s%d, s%d, 1", sMT, sXcd); a("s_and_b32 s%d, s%d, 1", sT, sI); a("s_add_u32 s%d, s%d, s%d", sMT, sMT, sT)
        a("s_lshr_b32 s%d, s%d, 1", sT2, sI); a("s_mov_b32 s%d, s%d", sFT, sT2)
    a("s_cmp_lt_u32 s%d, 4", sWv); a("s_cbranch_scc1 L_comp")

    def tile_assign():
        sI = sNx
        if o["swap46"]: a("s_add_u32 s%d, s5, %d", sI, 26 if o["a2"] == 4 else 24); a("s_and_b32 s%d, s%d, 31", sI, sI)
        else: a("s_mov_b32 s%d, s5", sI)
        if o["a2"] == 8:
            a("s_lshr_b32 s%d, s%d, 1", sDl, sI); a("s_and_b32 s%d, s%d, 1", sRb, sI); a("s_mul_i32 s%d, s%d, 5", sRb, sRb); a("s_add_u32 s%d, s%d, 6", sRb, sRb); a("s_mov_b32 s%d, 5", sNb)
            a("s_lshr_b32 s%d, s%d, 2", sT, sI); a("s_add_u32 s%d, s%d, 4", sT, sT); a("s_and_b32 s%d, s%d, 3", sT2, sI); a("s_lshl_b32 s%d, s%d, 2", sT2, sT2)
            a("s_cmp_ge_u32 s%d, 16", sI); a("s_cselect_b32 s%d, s%d, s%d", sDl, sT, sDl); a("s_cselect_b32 s%d, s%d, s%d", sRb, sT2, sRb); a("s_cselect_b32 s%d, 4, s%d", sNb, sNb)
            a("s_sub_u32 s%d, s%d, 24", sT, sI)
            a("s_cmp_ge_u32 s%d, 24", sI); a("s_cselect_b32 s%d, s%d, s%d", sDl, sT, sDl); a("s_cselect_b32 s%d, 0, s%d", sRb, sRb); a("s_cselect_b32 s%d, 6, s%d", sNb, sNb)
            a("s_lshl_b32 s%d, s%d, 4", sT, sXcd); a("s_add_u32 s%d, s%d, s%d", sRb, sRb, sT)
        else:
            a("s_lshr_b32 s%d, s%d, 2", sDl, sI); a("s_and_b32 s%d, s%d, 3", sRb, sI); a("s_mul_i32 s%d, s%d, 5", sRb, sRb); a("s_add_u32 s%d, s%d, 12", sRb, sRb); a("s_mov_b32 s%d, 5", sNb)
            a("s_and_b32 s%d, s%d, 1", sT, sI); a("s_add_u32 s%d, s%d, 3", sT, sT)
            a("s_sub_u32 s%d, s%d, 20", sT2, sI); a("s_lshr_b32 s%d, s%d, 1", sT2, sT2); a("s_lshl_b32 s%d, s%d, 2", sT2, sT2)
            a("s_cmp_ge_u32 s%d, 20", sI); a("s_cselect_b32 s%d, s%d, s%d", sDl, sT, sDl); a("s_cselect_b32 s%d, s%d, s%d", sRb, sT2, sRb); a("s_cselect_b32 s%d, 4, s%d", sNb, sNb)
            a("s_sub_u32 s%d, s%d, 26", sT, sI); a("s_lshr_b32 s%d, s%d, 1", sT, sT); a("s_and_b32 s%d, s%d, 1", sT2, sI); a("s_mul_i32 s%d, s%d, 6", sT2, sT2)
            a("s_cmp_ge_u32 s%d, 26", sI); a("s_cselect_b32 s%d, s%d, s%d", sDl, sT, sDl); a("s_cselect_b32 s%d, s%d, s%d", sRb, sT2, sRb); a("s_cselect_b32 s%d, 6, s%d", sNb, sNb)
            a("s_lshr_b32 s%d, s%d, 1", sT, sXcd); a("s_lshl_b32 s%d, s%d, 5", sT, sT); a("s_add_u32 s%d, s%d, s%d", sRb, sRb, sT)
            a("s_and_b32 s%d, s%d, 1", sT, sXcd); a("s_mul_i32 s%d, s%d, 5", sT, sT); a("s_add_u32 s%d, s%d, s%d", sDl, sDl, sT)
    def order_init():
        a("s_add_u32 s%d, s%d, s%d", sEnd, sRb, sNb)
        a("s_or_b32 s%d, s%d, 1", sT, sRb); a("s_add_u32 s%d, s%d, 1", sT, sT)
        a("s_bitcmp1_b32 s%d, 1", sRb)
        a("s_cselect_b32 s%d, s%d, s%d", sCur, sT, sRb); a("s_cselect_b32 s%d, s%d, s%d", sLate, sRb, sT)
    order_next = ["s_and_b32 s%d, s%d, 1" % (sT, sCur), "s_lshl_b32 s%d, s%d, 1" % (sT, sT), "s_add_u32 s%d, s%d, s%d" % (sCur, sCur, sT), "s_add_u32 s%d, s%d, 1" % (sCur, sCur),
                  "s_cmp_ge_u32 s%d, s%d" % (sCur, sEnd), "s_cselect_b32 s%d, s%d, s%d" % (sCur, sLate, sCur)]
    log = []
    def vmcount(tag):
        idx = max(i for i, t in enumerate(log) if t == tag)
        return len(log) - 1 - idx
    def vmwait(tag): return "s_waitcnt vmcnt(%d)" % vmcount(tag)
    nload = "buffer_load_dwordx2 v[%d:%d], v%d, s[%d:%d], 0 offen sc1" % (vPl, vPl + 1, vZ, sO, sO + 3)
    def get_nonce(lab):
        a("s_mov_b32 s%d, 0", sIt)
        a.label(lab)
        a("v_readfirstlane_b32 s%d, v%d", sNonce, vPl); a("v_readfirstlane_b32 s%d, v%d", sNonce + 1, vPl + 1)
        a("s_add_u32 s%d, s%d, 1", sIt, sIt); a("s_nop 1")
        a("s_cmp_lg_u32 s%d, 0", sNonce + 1); a("s_cbranch_scc1 %s_ok", lab)
        a("s_cmp_gt_u32 s%d, %d", sIt, o["spin"]); a("s_cbranch_scc1 %s_ok", lab)
        a(nload); a("s_waitcnt vmcnt(0)"); a("s_branch %s", lab)
        a.label(lab + "_ok")

    if o["rot1"] == "3":
        a("s_add_u32 s%d, s%d, s%d", sKb, sT, sT2); mod3(sKb, sKb)
        a("s_mul_i32 s%d, s%d, 3", sKb, sKb); a("s_add_u32 s%d, s%d, s%d", sKb, sKb, sXcd)
        a("s_cmp_ge_u32 s%d, 10", sKb); a("s_cselect_b32 s%d, 10, 0", sT); a("s_sub_u32 s%d, s%d, s%d", sKb, sKb, sT)
    a("v_xor_b32 v%d, v%d, v%d", vT + 3, vT + 1, vT + 2)
    a("v_mul_u32_u24 v%d, 1280, v%d", vT + 4, vT)
    a("v_lshl_add_u32 v%d, v%d, 4, v%d", vXd, vT + 3, vT + 4)
    a("v_xor_b32 v%d, 64, v%d", vXd + 3, vXd)
    a("v_add_u32 v%d, %d, v%d", vXd + 2, 2 * (8 * 1280 - 1024), vXd)
    a("v_add_u32 v%d, %d, v%d", vXd + 1, 1 * (8 * 1280 - 1024), vXd + 3)
    a("v_add_u32 v%d, %d, v%d", vXd + 3, 3 * (8 * 1280 - 1024), vXd + 3)
    a("s_lshl_b32 s%d, s%d, 2", sXoff, sMT); a("s_add_u32 s%d, s%d, s%d", sXoff, sXoff, sW)
    a("s_mul_i32 s%d, s%d, %d", sXoff, sXoff, 32 * 1280); a("s_lshl_b32 s%d, s%d, 7", sT, sKb); a("s_add_u32 s%d, s%d, s%d", sXoff, sXoff, sT)
    a("s_lshl_b32 s%d, s%d, 12", sM0, sW)
    a("s_mov_b32 m0, s%d", sM0)
    a("v_and_b32 v%d, 1, v%d", vT + 3, vT + 2)
    a("v_lshlrev_b32 v%d, 2, v%d", vT + 3, vT + 3)
    a("v_xor_b32 v%d, v%d, v%d", vT + 3, vT + 1, vT + 3)
    a("v_mul_u32_u24 v%d, 3072, v%d", vWd, vT)
    a("v_lshl_add_u32 v%d, v%d, 4, v%d", vWd, vT + 3, vWd)
    for i in range(1, 4): a("v_add_u32 v%d, %d, v%d", vWd + i, i * (8 * 3072 - 1024), vWd)
    a("s_lshl_b32 s%d, s%d, 1", sWoff, sFT); a("s_lshr_b32 s%d, s%d, 1", sT, sW); a("s_add_u32 s%d, s%d, s%d", sWoff, sWoff, sT); a("s_lshl_b32 s%d, s%d, 7", sWoff, sWoff)
    a("s_lshl_b32 s%d, s%d, 1", sT, sKb); a("s_and_b32 s%d, s%d, 1", sT2, sW); a("s_add_u32 s%d, s%d, s%d", sT, sT, sT2)
    a("s_mul_i32 s%d, s%d, %d", sT, sT, 32 * 3072); a("s_add_u32 s%d, s%d, s%d", sWoff, sWoff, sT)
    a("s_mov_b32 s%d, %d", sNx, (128 - 1280) & 0xffffffff)
    a("s_mov_b32 s%d, %d", sNw, (-9 * 64 * 3072) & 0xffffffff)
    a("s_mov_b32 s%d, -1", sIt)
    a("s_waitcnt lgkmcnt(0)")
    a("s_mov_b64 s[%d:%d], s[40:41]", sX, sX + 1); a("s_mov_b64 s[%d:%d], s[42:43]", sW1, sW1 + 1)
    def dma(i):
        if i < 4: return "buffer_load_dwordx4 v%d, s[%d:%d], s%d offen offset:%d lds" % (vXd + i, sX, sX + 3, sXoff, 1024 * i)
        return "buffer_load_dwordx4 v%d, s[%d:%d], s%d offen offset:%d lds" % (vWd + i - 4, sW1, sW1 + 3, sWoff, 1024 * (i - 4))
    adv1 = ["s_add_u32 m0, s%d, 16384" % sM0, "s_add_u32 s%d, s%d, 1" % (sKb, sKb), "s_cmp_eq_u32 s%d, 10" % sKb,
            "s_cselect_b32 s%d, s%d, 128" % (sDelta, sNx), "s_cselect_b32 s%d, s%d, %d" % (sPw, sNw, 64 * 3072), "s_cselect_b32 s%d, 0, s%d" % (sKb, sKb),
            "s_add_u32 s%d, s%d, s%d" % (sXoff, sXoff, sDelta)]
    adv2 = ["s_add_u32 s%d, s%d, s%d" % (sWoff, sWoff, sPw), "s_add_u32 s%d, s%d, %d" % (sM0, sM0, SLOT), "s_cmp_ge_u32 s%d, %d" % (sM0, S * SLOT),
            "s_cselect_b32 s%d, %d, 0" % (sDelta, S * SLOT), "s_sub_u32 s%d, s%d, s%d" % (sM0, sM0, sDelta), "s_mov_b32 m0, s%d" % sM0]
    blk = [[dma(0)], [dma(1)], [dma(2)], [dma(3)] + adv1, [dma(4)], [dma(5)], [dma(6)], [dma(7)] + adv2]
    def emit(gs):
        for g in gs:
            for e in g: a(e)
    stamp()
    a.label("L_ld")
    emit(blk)
    a("s_add_u32 s%d, s%d, 1", sIt, sIt)
    a("s_cbranch_scc1 L_ld")
    a("s_cmp_lt_u32 s%d, 9", sIt)
    a("s_waitcnt vmcnt(8)"); a("s_barrier")
    if PROF and "p1st" in o["dbg"]:
        a("s_cselect_b32 s%d, 1, 0", sT)
        for b, r in ((1, 3), (5, 4)):
            a("s_cmp_lg_u32 s%d, %d", sIt, b); a("s_cbranch_scc1 L_p1s%d", b); a("s_memtime s[%d:%d]", 78 + 2 * r, 79 + 2 * r); a.label("L_p1s%d" % b)
        a("s_cmp_eq_u32 s%d, 1", sT)
    a("s_cbranch_scc1 L_ld")
    a("s_mov_b32 s%d, 1", sCnt)
    a("s_branch L_lw")
    nst[0] = 1

    a.label("L_helper")
    a("s_cmp_lt_u32 s%d, 4", sWv); a("s_cbranch_scc0 L_hl")
    a("v_mul_u32_u24 v%d, 1280, v%d", vXd, vL); a("v_mul_u32_u24 v%d, 3072, v%d", vWd, vL)
    a("s_sub_u32 s%d, s%d, 24", sM0, sI); a("s_lshl_b32 s%d, s%d, 2", sM0, sM0); a("s_add_u32 s%d, s%d, s%d", sM0, sM0, sWv)
    k0, k1 = o["pf"]
    if k1 > k0:
        nx, nw = (8, 12) if o["a1"] == 4 else (4, 24)
        per = nx + nw; tot = per * (k1 - k0)
        magic = (65536 + per - 1) // per
        assert all((n * magic) >> 16 == n // per for n in range(tot + 64)) and tot >= 32
        a("s_mov_b32 s%d, s%d", sIt, sM0)
        a("s_add_u32 s%d, s%d, %d", sKb, sKb, k0)
        if o["a1"] == 4:
            a("s_lshr_b32 s%d, s%d, 1", sXoff, sXcd); a("s_mul_i32 s%d, s%d, %d", sXoff, sXoff, 512 * 1280)
            a("s_and_b32 s%d, s%d, 1", sWoff, sXcd); a("s_mul_i32 s%d, s%d, 1536", sWoff, sWoff)
        else:
            a("s_mul_i32 s%d, s%d, %d", sXoff, sXcd, 256 * 1280); a("s_mov_b32 s%d, 0", sWoff)
        a("s_sub_u32 s%d, s%d, %d", sWoff, sWoff, nx * 128)
    a("s_waitcnt lgkmcnt(0)")
    a("s_mov_b64 s[%d:%d], s[40:41]", sX, sX + 1); a("s_mov_b64 s[%d:%d], s[42:43]", sW1, sW1 + 1)
    if k1 > k0:
        a.label("L_pf")
        a("s_mul_i32 s%d, s%d, %d", sT, sIt, magic); a("s_lshr_b32 s%d, s%d, 16", sT, sT)
        a("s_mul_i32 s%d, s%d, %d", sT2, sT, per); a("s_sub_u32 s%d, s%d, s%d", sT2, sIt, sT2)
        a("s_add_u32 s%d, s%d, s%d", sT, sT, sKb)
        a("s_cmp_ge_u32 s%d, 10", sT); a("s_cselect_b32 s%d, 10, 0", sT3); a("s_sub_u32 s%d, s%d, s%d", sT, sT, sT3)
        a("s_cmp_ge_u32 s%d, %d", sT2, nx); a("s_cbranch_scc1 L_pfw")
        a("s_mul_i32 s%d, s%d, %d", sT2, sT2, 64 * 1280); a("s_lshl_b32 s%d, s%d, 7", sT, sT); a("s_add_u32 s%d, s%d, s%d", sT, sT, sT2); a("s_add_u32 s%d, s%d, s%d", sT, sT, sXoff)
        a("buffer_load_dword v%d, v%d, s[%d:%d], s%d offen", TMP, vXd, sX, sX + 3, sT)
        a("s_branch L_pfn")
        a.label("L_pfw")
        a("s_lshl_b32 s%d, s%d, 7", sT2, sT2); a("s_mul_i32 s%d, s%d, %d", sT, sT, 64 * 3072); a("s_add_u32 s%d, s%d, s%d", sT, sT, sT2); a("s_add_u32 s%d, s%d, s%d", sT, sT, sWoff)
        a("buffer_load_dword v%d, v%d, s[%d:%d], s%d offen", TMP, vWd, sW1, sW1 + 3, sT)
        a.label("L_pfn")
        a("s_add_u32 s%d, s%d, 32", sIt, sIt); a("s_cmp_lt_u32 s%d, %d", sIt, tot); a("s_cbranch_scc1 L_pf")
    stamp()
    a("s_branch L_hc2")
    a.label("L_hl")
    if o["codepf"]:
        a("s_getpc_b64 s[%d:%d]", sT, sT + 1)
        a("s_sub_u32 s%d, s%d, L_hl-%s_kernel+4", sT, sT, NAME); a("s_subb_u32 s%d, s%d, 0", sT + 1, sT + 1)
        a("v_and_b32 v%d, 255, v0", vT + 3)
        a("v_lshlrev_b32 v%d, 7, v%d", vT + 3, vT + 3)
        a("v_cmp_gt_u32 vcc, L_codeend-%s_kernel, v%d", NAME, vT + 3)
        a("s_and_saveexec_b64 s[%d:%d], vcc", sC1, sC1 + 1)
        a("s_cbranch_execz L_nocode")
        a("s_cmp_lg_u32 s%d, 24", sI); a("s_cbranch_scc1 L_nocode")
        a("global_load_dword v%d, v%d, s[%d:%d]", A2, vT + 3, sT, sT + 1)
        a.label("L_nocode")
        a("s_mov_b64 exec, -1")
    a("s_memrealtime s[%d:%d]", sNonce, sNonce + 1)
    a("v_lshlrev_b32 v%d, 2, v%d", vT + 4, vL)
    a("v_add_u32 v%d, %d, v%d", vT + 4, SYNC, vT + 4)
    for r in range(5): a("ds_write_b32 v%d, v%d offset:%d", vT + 4, vZ, 256 * r)
    a("s_mov_b32 s%d, 0", sCnt)
    a("s_waitcnt lgkmcnt(0)")
    a("s_cmp_lg_u32 s2, 255"); a("s_cbranch_scc1 L_nolead")
    a("s_cmp_lg_u32 s%d, 4", sWv); a("s_cbranch_scc1 L_nolead")
    srd(sO, 52, 256)
    a("s_or_b32 s%d, s%d, 0x80000000", sNonce + 1, sNonce + 1)
    a("v_mov_b32 v%d, s%d", vPl, sNonce); a("v_mov_b32 v%d, s%d", vPl + 1, sNonce + 1)
    a("s_mov_b64 exec, 1")
    a("buffer_store_dwordx2 v[%d:%d], v%d, s[%d:%d], 0 offen sc1", vPl, vPl + 1, vZ, sO, sO + 3)
    a("s_mov_b64 exec, -1")
    a.label("L_nolead")
    a("s_barrier")
    nst[0] = 1; stamp()
    a("s_branch L_lw")

    nst[0] = 1
    a.label("L_comp")
    FR = 0
    for r in range(4): a("v_mov_b32 v%d, 0", vB2 + r)
    a("v_and_b32 v%d, 31, v%d", vT + 3, vL)
    a("v_lshlrev_b32 v%d, 1, v%d", vT + 5, vT + 3)
    zz = "v[%d:%d], v[%d:%d], 0" % (vB2, vB2 + 3, vB2, vB2 + 3)
    a("v_mfma_f32_32x32x16_bf16 a[16:31], %s", zz)
    for t in range(4): a("v_mfma_f32_32x32x16_bf16 v[%d:%d], %s", ACC + 16 * t, ACC + 16 * t + 15, zz)
    a("s_and_b32 s%d, s%d, 1", sT, sW); a("s_lshl_b32 s%d, s%d, 7", sT, sT); a("s_lshl_b32 s%d, s%d, 8", sT3, sFT); a("s_add_u32 s%d, s%d, s%d", sT3, sT3, sT)
    a("v_lshrrev_b32 v%d, 5, v%d", vHi, vL)
    a("v_mov_b32 v%d, 0x3f80", vT + 4)
    a("v_cmp_eq_u32 vcc, 0, v%d", vHi)
    a("s_waitcnt lgkmcnt(0)")
    srd(sO, 44, 1536 * 2)
    a("v_cndmask_b32 v%d, 0, v%d, vcc", vT + 4, vT + 4)
    a("buffer_load_ushort a%d, v%d, s[%d:%d], s%d offen", FR + 16, vT + 5, sO, sO + 3, sT3)
    a("buffer_load_ushort a%d, v%d, s[%d:%d], s%d offen offset:64", FR + 20, vT + 5, sO, sO + 3, sT3)
    a("v_accvgpr_write_b32 a%d, v%d", FR + 24, vT + 4); a("v_accvgpr_write_b32 a%d, v%d", FR + 28, vT + 4)
    a("s_lshr_b32 s%d, s%d, 1", sT, sW); a("s_lshl_b32 s%d, s%d, 6", sT, sT)
    a("v_add_u32 v%d, s%d, v%d", vT + 3, sT, vT + 3)
    a("v_lshlrev_b32 v%d, 7, v%d", vT + 3, vT + 3)
    a("v_bfe_u32 v%d, v%d, 1, 3", vT + 4, vL)
    a("v_xor_b32 v%d, v%d, v%d", vT + 4, vT + 4, vHi)
    a("v_lshl_add_u32 v%d, v%d, 4, v%d", vXr, vT + 4, vT + 3)
    for s in range(1, 4): a("v_xor_b32 v%d, %d, v%d", vXr + s, 32 * s, vXr)
    a("v_bfe_u32 v%d, v%d, 2, 2", vT + 3, vL)
    a("v_lshl_add_u32 v%d, v%d, 3, v%d", vT + 3, vHi, vT + 3)
    a("v_lshlrev_b32 v%d, 7, v%d", vT + 3, vT + 3)
    a("v_bfe_u32 v%d, v%d, 4, 1", vT + 4, vL)
    a("v_lshl_add_u32 v%d, v%d, 5, v%d", vT + 3, vT + 4, vT + 3)
    a("v_mul_u32_u24 v%d, %d, v%d", vHst, o["hs"], vT + 4)
    a("v_and_b32 v%d, 3, v%d", vT + 4, vL)
    a("v_lshl_add_u32 v%d, v%d, 3, v%d", vT + 3, vT + 4, vT + 3)
    a("v_bfe_u32 v%d, v%d, 3, 1", vT + 4, vL)
    a("v_lshl_add_u32 v%d, v%d, 6, v%d", vT + 3, vT + 4, vT + 3)
    a("s_and_b32 s%d, s%d, 1", sT, sW); a("s_lshl_b32 s%d, s%d, 13", sT, sT); a("s_add_u32 s%d, s%d, 16384", sT, sT)
    a("v_add_u32 v%d, s%d, v%d", vWr, sT, vT + 3)
    a("v_xor_b32 v%d, 64, v%d", vWr + 1, vWr)
    a("v_lshlrev_b32 v%d, 2, v%d", vT + 4, vL)
    a("v_add_u32 v%d, %d, v%d", vT + 4, SYNC, vT + 4)
    for r in range(5): a("ds_write_b32 v%d, v%d offset:%d", vT + 4, vZ, 256 * r)
    a("v_mov_b32 v%d, 0x%x", vC0, f2u(C0)); a("v_mov_b32 v%d, v%d", vC0 + 1, vC0)
    a("v_mov_b32 v%d, 1.0", vONE); a("v_mov_b32 v%d, 1.0", vONE + 1)
    a("s_mov_b32 s%d, 0x%x", sC1, f2u(C1)); a("s_mov_b32 s%d, s%d", sC1 + 1, sC1)
    srd(sH, 54, FLAGOFF + 131072)
    a("s_lshl_b32 s%d, s%d, 1", sT, sMT); a("s_lshr_b32 s%d, s%d, 1", sT2, sW); a("s_add_u32 s%d, s%d, s%d", sT, sT, sT2); a("s_mul_i32 s%d, s%d, %d", sT, sT, 4 * o["hs"])
    a("s_lshl_b32 s%d, s%d, 4", sT3, sT3)
    a("s_add_u32 s%d, s%d, s%d", sXoff, sT, sT3); a("s_add_u32 s%d, s%d, %d", sWoff, sXoff, 2 * o["hs"])
    a("v_lshl_add_u32 v%d, v%d, 8, v%d", vHst, vHi, vHst)
    a("v_and_b32 v%d, 15, v%d", vT + 4, vL)
    a("v_lshl_add_u32 v%d, v%d, 4, v%d", vHst, vT + 4, vHst)
    a("s_mul_i32 s%d, s%d, 12", sG, sMT); a("s_add_u32 s%d, s%d, s%d", sG, sG, sFT); a("s_lshl_b32 s%d, s%d, 9", sG, sG); a("s_add_u32 s%d, s%d, %d", sG, sG, FLAGOFF)
    a("v_mov_b32 v%d, 1", vT); a("v_mov_b32 v%d, %d", vT + 1, SYNC); a("v_lshlrev_b32 v%d, 3, v%d", vT + 2, vL)
    a("s_mov_b32 s%d, 0", sRd); a("s_mov_b32 s%d, 0", sIt)
    a("s_mov_b32 s%d, %d", sPw, (-(S - 1) * SLOT) & 0xffffffff)
    if o["prio"]: a("s_setprio %d", o["prio"])
    a("s_waitcnt vmcnt(0) lgkmcnt(0)")
    srd(sO, 52, 256)
    stamp()
    a("s_barrier")
    stamp()
    def reads(s):
        b = FR + 16 * (s & 1)
        w = lambda f, u: "ds_read_b64_tr_b16 a[%d:%d], v%d offset:%d" % (b + 4 * f + 2 * u, b + 4 * f + 2 * u + 1, vWr + f, s * 2048 + u * 512)
        x = lambda mt: "ds_read_b128 a[%d:%d], v%d offset:%d" % (b + 8 + 4 * mt, b + 11 + 4 * mt, vXr + s, mt * 4096)
        return [w(0, 0), w(0, 1), x(0), x(1), w(1, 0), w(1, 1)]
    def mfmas(buf):
        b = FR + 16 * buf
        out = []
        for ft in range(2):
            for mt in range(2):
                r = ACC + (mt * 2 + ft) * 16
                out.append("v_mfma_f32_32x32x16_bf16 v[%d:%d], a[%d:%d], a[%d:%d], v[%d:%d]" % (r, r + 15, b + 4 * ft, b + 4 * ft + 3, b + 8 + 4 * mt, b + 11 + 4 * mt, r, r + 15))
        return out
    a(".p2align 3")
    a.label("L_p1")
    upd = lambda r: "v_add_u32 v%d, s%d, v%d" % (r, sDelta, r)
    for s in range(4):
        M = mfmas((s + 1) & 1); R = reads(s)
        if s > 0: a("s_waitcnt lgkmcnt(3)")
        a(M[0]); a(R[0]); a(R[1]); a(R[2])
        if s > 0: a("s_waitcnt lgkmcnt(5)")
        a(M[1]); a(R[3]); a(R[4]); a(R[5])
        if s > 0: a("s_waitcnt lgkmcnt(6)")
        a(M[2])
        if s == 0:
            a("s_add_u32 s%d, s%d, %d", sRd, sRd, SLOT); a("s_cmp_ge_u32 s%d, %d", sRd, S * SLOT)
            a("s_cselect_b32 s%d, s%d, %d", sDelta, sPw, SLOT); a("s_cselect_b32 s%d, 0, s%d", sRd, sRd)
        else: a(upd(vXr + s - 1))
        if s == 3:
            a(upd(vXr + 3)); a(upd(vWr)); a(upd(vWr + 1))
        if s == 2: a("s_add_u32 s%d, s%d, 1", sIt, sIt); a("s_cmp_lt_u32 s%d, 10", sIt)
        a(M[3])
    a("s_waitcnt lgkmcnt(0)"); a("s_barrier")
    a("s_cbranch_scc1 L_p1")
    M = mfmas(1)
    a(M[0]); a(nload); a(M[2]); a(M[1]); a(M[3])
    log[:] = ["n"]
    a("s_nop 7")
    stamp()
    def gelu_list(acc, tmp, outr, n):
        L = []; P = range(n // 2)
        pk = lambda op, d, x, y: "%s v[%d:%d], v[%d:%d], v[%d:%d]" % (op, d, d + 1, x, x + 1, y, y + 1)
        for p in P: L.append(pk("v_pk_mul_f32", tmp + 2 * p, acc + 2 * p, acc + 2 * p))
        for p in P: L.append("v_pk_fma_f32 v[%d:%d], v[%d:%d], s[%d:%d], v[%d:%d]" % (tmp + 2 * p, tmp + 2 * p + 1, tmp + 2 * p, tmp + 2 * p + 1, sC1, sC1 + 1, vC0, vC0 + 1))
        for p in P: L.append(pk("v_pk_mul_f32", tmp + 2 * p, tmp + 2 * p, acc + 2 * p))
        for i in range(n): L.append("v_exp_f32 v%d, v%d" % (tmp + i, tmp + i))
        for p in P: L.append(pk("v_pk_add_f32", tmp + 2 * p, tmp + 2 * p, vONE))
        for i in range(n): L.append("v_rcp_f32 v%d, v%d" % (tmp + i, tmp + i))
        for p in P: L.append(pk("v_pk_mul_f32", tmp + 2 * p, tmp + 2 * p, acc + 2 * p))
        for p in P: L.append("v_cvt_pk_bf16_f32 v%d, v%d, v%d" % (outr + p, tmp + 2 * p, tmp + 2 * p + 1))
        return L
    def publish(part):
        a(vmwait("st%d" % part))
        a("s_mov_b64 exec, 1")
        a("ds_add_rtn_u32 v%d, v%d, v%d offset:%d", vT + 5, vT + 1, vT, 4 * part)
        a("s_waitcnt lgkmcnt(0)")
        a("v_readfirstlane_b32 s%d, v%d", sT2, vT + 5)
        a("s_mov_b64 exec, 0xffff")
        a("s_nop 0")
        a("s_cmp_lg_u32 s%d, 3", sT2); a("s_cbranch_scc1 L_nopub%d", part)
        a("buffer_store_dwordx2 v[%d:%d], v%d, s[%d:%d], s%d offen offset:%d sc1", vPl, vPl + 1, vT + 2, sH, sH + 3, sG, 256 * part)
        a.label("L_nopub%d" % part)
        a("s_mov_b64 exec, -1")
    a(".p2align 3")
    for hh in range(8):
        ob = OUT + 4 * (hh & 3)
        for e in gelu_list(ACC + 8 * hh, TMP, ob, 8): a(e)
        mt, ft, i = hh >> 2, (hh >> 1) & 1, hh & 1
        if "nohst" in o["dbg"]: a("s_mov_b64 exec, 1")
        a("buffer_store_dwordx4 v[%d:%d], v%d, s[%d:%d], s%d offen offset:%d %s", ob, ob + 3, vHst, sH, sH + 3, sWoff if mt else sXoff, i * 512 + ft * 1024, o["hst"])
        if "nohst" in o["dbg"]: a("s_mov_b64 exec, -1")
        log.append("st%d" % mt)
        if hh + 1 == o["puba"]:
            if hh == 7: stamp(); a("s_setprio 0")
            a(vmwait("n")); get_nonce("L_n0")
            publish(0)
            if hh == 7: stamp()
            else: a(".p2align 3")
    if o["puba"] < 8: stamp(); a("s_setprio 0"); stamp()
    if o["puba"] == 8:
        a("s_cmp_lg_u32 s%d, 3", sT2); a("s_cbranch_scc1 L_pw0"); a("s_waitcnt vmcnt(1)"); a("s_branch L_pw1"); a.label("L_pw0"); a("s_waitcnt vmcnt(0)"); a.label("L_pw1")
        log.extend(["x"] * 60)
    publish(1)
    stamp()
    a.label("L_red")
    tile_assign(); order_init()
    srd(sO, 48, 640 * 2)
    a("v_and_b32 v%d, 15, v%d", vT + 3, vL); a("v_lshrrev_b32 v%d, 4, v%d", vT + 4, vL)
    a("v_lshlrev_b32 v%d, 3, v%d", vT + 5, vT + 3); a("s_lshl_b32 s%d, s%d, 7", sDl, sDl)
    a("buffer_load_dwordx2 v[%d:%d], v%d, s[%d:%d], s%d offen", vB2 + 2, vB2 + 3, vT + 5, sO, sO + 3, sDl)
    a("s_lshl_b32 s%d, s%d, 2", sT, sW); a("v_add_u32 v%d, s%d, v%d", vT + 4, sT, vT + 4)
    a("v_mul_u32_u24 v%d, 272, v%d", vRr, vT + 4)
    a("v_lshl_add_u32 v%d, v%d, 4, v%d", vRr, vT + 3, vRr)
    a("v_mul_u32_u24 v%d, 1280, v%d", vOst, vT + 4)
    a("v_add3_u32 v%d, v%d, v%d, s%d", vOst, vOst, vT + 5, sDl)
    a("v_and_b32 v%d, 3, v%d", vT + 2, vL); a("v_lshlrev_b32 v%d, 8, v%d", vT + 2, vT + 2); a("v_lshl_add_u32 v%d, v%d, 2, v%d", vT + 2, vL, vT + 2)
    a("v_add_u32 v%d, %d, v%d", vT + 2, SYNC + 256, vT + 2)
    a("s_mov_b32 s%d, %d", sCnt, REDSZ); a("s_mul_i32 s%d, s%d, %d", sNb, sNb, REDSZ); a("s_mov_b32 s%d, 0", sIt)
    a("s_waitcnt vmcnt(0)")
    srd(sO, 50, 2048 * 640 * 2)
    a("v_lshlrev_b32 v%d, 16, v%d", vB2, vB2 + 2); a("v_and_b32 v%d, 0xffff0000, v%d", vB2 + 1, vB2 + 2)
    a("v_lshlrev_b32 v%d, 16, v%d", vB2 + 2, vB2 + 3); a("v_and_b32 v%d, 0xffff0000, v%d", vB2 + 3, vB2 + 3)
    a.label("L_rw")
    a("ds_read_b32 v%d, v%d", vT + 3, vT + 2)
    a("s_add_u32 s%d, s%d, 1", sIt, sIt); a("s_cmp_gt_u32 s%d, %d", sIt, o["spin"] * 8)
    a("s_waitcnt lgkmcnt(0)")
    a("s_cbranch_scc1 L_rgo")
    a("v_cmp_gt_u32 vcc, s%d, v%d", sCnt, vT + 3)
    a("s_cbranch_vccz L_rgo")
    if o["rsleep"]: a("s_sleep %d", o["rsleep"])
    a("s_branch L_rw")
    a.label("L_rgo")
    for p in range(4): a("ds_read_b128 v[%d:%d], v%d offset:%d", RD + 4 * p, RD + 4 * p + 3, vRr, 4352 * p)
    a("v_add_u32 v%d, %d, v%d", vRr, REDSZ, vRr)
    a("s_mul_i32 s%d, s%d, %d", sOst, sCur, 16 * 1280)
    for e in order_next: a(e)
    a("s_add_u32 s%d, s%d, %d", sCnt, sCnt, REDSZ)
    pk = lambda d, x, y: a("v_pk_add_f32 v[%d:%d], v[%d:%d], v[%d:%d]", d, d + 1, x, x + 1, y, y + 1)
    a("s_waitcnt lgkmcnt(3)")
    pk(RD, RD, vB2); pk(RD + 2, RD + 2, vB2 + 2)
    a("s_waitcnt lgkmcnt(1)")
    pk(RD + 4, RD + 4, RD + 8); pk(RD + 6, RD + 6, RD + 10)
    a("s_waitcnt lgkmcnt(0)")
    pk(RD, RD, RD + 12); pk(RD + 2, RD + 2, RD + 14)
    pk(RD, RD, RD + 4); pk(RD + 2, RD + 2, RD + 6)
    a("v_cvt_pk_bf16_f32 v%d, v%d, v%d", vPl, RD, RD + 1); a("v_cvt_pk_bf16_f32 v%d, v%d, v%d", vPl + 1, RD + 2, RD + 3)
    a("s_cmp_le_u32 s%d, s%d", sCnt, sNb)
    a("buffer_store_dwordx2 v[%d:%d], v%d, s[%d:%d], s%d offen %s", vPl, vPl + 1, vOst, sO, sO + 3, sOst, o["ost"])
    a("s_cbranch_scc1 L_rw")
    pad_to(NSTAMP)
    if PROF: a("s_branch L_fin")
    else: a("s_endpgm")

    nst[0] = 2
    a.label("L_hc2")
    if o["w2pf"]:
        srd(sW2, 46, 1536 * 640 * 2)
        nl = 5 if o["a2"] == 4 else 10
        per = 4 * nl; tot = 6 * per
        magic = (65536 + per - 1) // per
        assert all((n * magic) >> 16 == n // per for n in range(tot + 64))
        a("s_mov_b32 s%d, s%d", sIt, sM0)
        if o["a2"] == 4: a("s_and_b32 s%d, s%d, 1", sWoff, sXcd); a("s_mul_i32 s%d, s%d, 640", sWoff, sWoff)
        else: a("s_mov_b32 s%d, 0", sWoff)
        krot(sRd); a("s_lshl_b32 s%d, s%d, 1", sRd, sRd)
        for _ in range(o["hdelay"]): a("s_sleep 8")
        a.label("L_pf2")
        a("s_mul_i32 s%d, s%d, %d", sT, sIt, magic); a("s_lshr_b32 s%d, s%d, 16", sT, sT)
        a("s_mul_i32 s%d, s%d, %d", sT2, sT, per); a("s_sub_u32 s%d, s%d, s%d", sT2, sIt, sT2)
        a("s_add_u32 s%d, s%d, s%d", sT, sT, sRd); a("s_cmp_ge_u32 s%d, 6", sT); a("s_cselect_b32 s%d, 6, 0", sT3); a("s_sub_u32 s%d, s%d, s%d", sT, sT, sT3)
        a("s_and_b32 s%d, s%d, 3", sT3, sT2); a("s_mul_i32 s%d, s%d, 6", sT3, sT3); a("s_add_u32 s%d, s%d, s%d", sT, sT, sT3)
        a("s_mul_i32 s%d, s%d, %d", sT, sT, 64 * 1280); a("s_lshr_b32 s%d, s%d, 2", sT2, sT2); a("s_lshl_b32 s%d, s%d, 7", sT2, sT2)
        a("s_add_u32 s%d, s%d, s%d", sT, sT, sT2); a("s_add_u32 s%d, s%d, s%d", sT, sT, sWoff)
        a("buffer_load_dword v%d, v%d, s[%d:%d], s%d offen", TMP, vXd, sW2, sW2 + 3, sT)
        a("s_add_u32 s%d, s%d, 32", sIt, sIt); a("s_cmp_lt_u32 s%d, %d", sIt, tot); a("s_cbranch_scc1 L_pf2")
    a("s_barrier")
    stamp()
    if PROF: a("s_waitcnt vmcnt(0)")
    pad_to(7)
    a("s_branch L_red")

    nst[0] = 2
    a.label("L_lw")
    tile_assign()
    srd(sW2, 46, 1536 * 640 * 2); srd(sH, 54, FLAGOFF + 131072); srd(sO, 52, 256)
    a("v_lshlrev_b32 v%d, 1, v%d", vT + 3, vT + 2)
    a("v_xor_b32 v%d, v%d, v%d", vT + 3, vT + 1, vT + 3)
    a("v_mul_u32_u24 v%d, 1280, v%d", vGd, vT)
    a("v_lshl_add_u32 v%d, v%d, 4, v%d", vGd, vT + 3, vGd)
    for i in range(1, 4): a("v_add_u32 v%d, %d, v%d", vGd + i, i * (8 * 1280 - 1024), vGd)
    a("s_mul_i32 s%d, s%d, %d", sNw, sW, 384 * 1280); a("s_lshl_b32 s%d, s%d, 7", sT, sDl); a("s_add_u32 s%d, s%d, s%d", sNw, sNw, sT)
    krot(sRd)
    a("s_mul_i32 s%d, s%d, %d", sT, sRd, 128 * 1280); a("s_add_u32 s%d, s%d, s%d", sG, sNw, sT)
    a("s_mul_i32 s%d, s%d, 4352", sGm, sW); a("s_add_u32 s%d, s%d, %d", sGm, sGm, 5 * REDSZ)
    def gissue(g):
        a("s_add_u32 m0, s%d, %d", sGm, SLO[g % NSL]); a("s_nop 0")
        for i in range(4):
            a("buffer_load_dwordx4 v%d, s[%d:%d], s%d offen offset:%d lds", vGd + i, sW2, sW2 + 3, sG, 1024 * i); log.append("g%d" % g)
        a("s_add_u32 s%d, s%d, %d", sG, sG, 32 * 1280)
        if g in (3, 7):
            a("s_cmp_eq_u32 s%d, %d", sRd, 2 if g == 3 else 1); a("s_cselect_b32 s%d, s%d, s%d", sG, sNw, sG)
    def greads(g):
        L = []
        for t in range(4):
            k, r = w2reg(g * 4 + t)
            for u in range(2): L.append("ds_read_b64_tr_b16 %s[%d:%d], v%d offset:%d" % (k, r + 2 * u, r + 2 * u + 1, vGr + t, SLO[g % NSL] + u * 1024))
        return L
    log[:] = ["p1"]
    gissue(0)
    def condbar(lab):
        a("s_cmp_eq_u32 s%d, 0", sCnt); a("s_cbranch_scc1 %s", lab); a("s_barrier"); a.label(lab)
    a(vmwait("p1")); condbar("L_cb1")
    stamp()
    a(nload); log.append("n")
    gissue(1)
    a("v_lshrrev_b32 v%d, 5, v%d", vT + 3, vL)
    a("v_bfe_u32 v%d, v%d, 2, 3", vT + 4, vL)
    a("v_lshl_add_u32 v%d, v%d, 4, v%d", vT + 3, vT + 3, vT + 4)
    a("v_lshlrev_b32 v%d, 7, v%d", vT + 3, vT + 3)
    a("v_bfe_u32 v%d, v%d, 3, 2", vT + 4, vL)
    a("v_lshl_add_u32 v%d, v%d, 5, v%d", vT + 3, vT + 4, vT + 3)
    a("v_and_b32 v%d, 3, v%d", vT + 4, vL)
    a("v_lshl_add_u32 v%d, v%d, 3, v%d", vT + 3, vT + 4, vT + 3)
    a("v_add_u32 v%d, s%d, v%d", vGr, sGm, vT + 3)
    for t in range(1, 4): a("v_xor_b32 v%d, %d, v%d", vGr + t, 32 * t, vGr)
    a("s_mul_i32 s%d, s%d, 12288", sT, sW); a("v_lshl_add_u32 v%d, v%d, 4, s%d", vH, vL, sT)
    a("s_lshl_b32 s%d, s%d, 12", sO0, sRd)
    a("s_add_u32 s%d, s%d, 4096", sO1, sO0); a("s_cmp_eq_u32 s%d, 2", sRd); a("s_cselect_b32 s%d, 0, s%d", sO1, sO1)
    a("s_add_u32 s%d, s%d, 4096", sO2, sO1); a("s_cmp_eq_u32 s%d, 1", sRd); a("s_cselect_b32 s%d, 0, s%d", sO2, sO2)
    a("v_and_b32 v%d, 15, v%d", vT + 3, vL); a("v_lshrrev_b32 v%d, 4, v%d", vT + 4, vL)
    a("v_mul_u32_u24 v%d, 272, v%d", vRw, vT + 3)
    a("v_lshl_add_u32 v%d, v%d, 4, v%d", vRw, vT + 4, vRw)
    a("s_mul_i32 s%d, s%d, 4352", sT, sW); a("v_add_u32 v%d, s%d, v%d", vRw, sT, vRw)
    a("s_lshl_b32 s%d, s%d, 8", sT, sW); a("s_add_u32 s%d, s%d, %d", sT, sT, SYNC + 256)
    a("v_lshl_add_u32 v%d, v%d, 2, s%d", vCa, vL, sT)
    order_init()
    a("s_lshr_b32 s%d, s%d, 3", sT, sRb); a("s_sub_u32 s%d, s%d, 1", sT2, sEnd); a("s_lshr_b32 s%d, s%d, 3", sT2, sT2)
    a("s_sub_u32 s%d, s%d, s%d", sT2, sT2, sT); a("s_mul_i32 s%d, s%d, 12", sT2, sT2)
    a("s_mul_i32 s%d, s%d, 12", sT, sT); a("s_mul_i32 s%d, s%d, 3", sT3, sW); a("s_add_u32 s%d, s%d, s%d", sT, sT, sT3)
    a("v_lshrrev_b32 v%d, 5, v%d", vT + 3, vL); a("v_mul_u32_u24 v%d, s%d, v%d", vT + 3, sT2, vT + 3)
    a("v_bfe_u32 v%d, v%d, 3, 2", vT + 4, vL); a("v_min_u32 v%d, 2, v%d", vT + 4, vT + 4)
    a("v_add3_u32 v%d, v%d, v%d, s%d", vFl, vT + 3, vT + 4, sT)
    a("v_lshlrev_b32 v%d, 9, v%d", vFl, vFl)
    a("v_add_u32 v%d, %d, v%d", vFl, FLAGOFF, vFl)
    a("s_mul_i32 s%d, s%d, %d", sBase, sCur, o["hs"]); a("s_add_u32 s%d, s%d, s%d", sHcur, sBase, sO0)
    a("s_mov_b32 s%d, 0", sInc)
    condbar("L_cb2")
    if o["lprio"]: a("s_setprio %d", o["lprio"])
    pollA = "buffer_load_dwordx2 v[%d:%d], v%d, s[%d:%d], 0 offen sc1" % (vPl, vPl + 1, vFl, sH, sH + 3)
    pollB = "buffer_load_dwordx2 v[%d:%d], v%d, s[%d:%d], 0 offen offset:256 sc1" % (vPl, vPl + 1, vFl, sH, sH + 3)
    chk = "v_cmp_ne_u64 vcc, s[%d:%d], v[%d:%d]" % (sNonce, sNonce + 1, vPl, vPl + 1)
    LAG = NSL - 1
    for g in range(2, LAG): gissue(g)
    for g in range(max(2, LAG), 12):
        a(vmwait("g%d" % (g - LAG)))
        a("s_waitcnt lgkmcnt(0)")
        for r in greads(g - LAG): a(r)
        if g == o["ng"]: get_nonce("L_n1")
        if o["gpace"] < 4 * (LAG - 1) and g < o["gpend"]:
            a("s_cmp_eq_u32 s%d, 0", sCnt); a("s_cbranch_scc1 L_gp%d", g); a("s_waitcnt vmcnt(%d)", o["gpace"]); a.label("L_gp%d" % g)
        gissue(g)
        if g == o["pollg"]: a(pollA); log.append("pa")
        if PROF and "gst" in o["dbg"] and g in (4, 8): a("s_memtime s[%d:%d]", 82 + g // 2, 83 + g // 2)
    stamp()
    def spin(lab, poll):
        a("s_mov_b32 s%d, 0", sT3)
        a.label(lab)
        if o["psleep"]: a("s_sleep %d", o["psleep"])
        a(poll)
        a("s_add_u32 s%d, s%d, 1", sT3, sT3); a("s_cmp_gt_u32 s%d, %d", sT3, o["spin"])
        a("s_waitcnt vmcnt(0)")
        a("s_cbranch_scc1 %s_x", lab)
        a(chk)
        a("s_cbranch_vccnz %s", lab)
        a.label(lab + "_x")
    a(vmwait("pa"))
    a(chk)
    a("s_cbranch_vccz L_spa_x")
    spin("L_spa", pollA)
    stamp()
    D = o["dist"]; NK = 12; NR = 8; PK = 8
    assert D == 7
    def hload(k, ph):
        r = RING + 4 * ((k + ph) % NR)
        return "buffer_load_dwordx4 v[%d:%d], v%d, s[%d:%d], s%d offen offset:%d sc1" % (r, r + 3, vH, sH, sH + 3, sHcur, (k & 3) * 1024)
    def hstep(k): return ["s_add_u32 s%d, s%d, s%d" % (sHcur, sBase, sO1 if k % NK == 3 else sO2)] if k % NK in (3, 7) else []
    for k in range(D):
        a(hload(k, 0)); log.append("h")
        for e in hstep(k): a(e)
        if k == (PK + D) % NK: a(pollB); log.append("pb")
    for g in range(12 - LAG, 12):
        a(vmwait("g%d" % g))
        for r in greads(g): a(r)
    a("s_mov_b32 s%d, 1", sIt)
    a("s_setprio %d", o["p2prio"])
    a("s_waitcnt lgkmcnt(0)")
    src = lambda t: (A2 + 4 * t) if t < 2 else (B2 + 4 * (t - 2))
    W = ["ds_write_b128 v%d, v[%d:%d] offset:%d" % (vRw, src(t), src(t) + 3, 64 * t) for t in range(4)]
    sig = ["v_add_u32 v%d, s%d, v%d" % (vRw, sInc, vRw), "ds_write_b32 v%d, v%d" % (vCa, vRw)]
    def trip(ph):
        for ks in range(NK):
            between = any(((ks - D + d) % NK) == PK for d in range(D))
            a("s_waitcnt vmcnt(%d)", D - 1 + (1 if between else 0))
            ex = {}
            M = []
            for t in range(4):
                c = "0" if ks == 0 else "v[%d:%d]" % (A2 + 4 * t, A2 + 4 * t + 3)
                d = src(t) if ks == NK - 1 else A2 + 4 * t
                k, w = w2reg(ks * 4 + t); h = RING + 4 * ((ks + ph) % NR)
                M.append("v_mfma_f32_16x16x32_bf16 v[%d:%d], %s[%d:%d], v[%d:%d], %s" % (d, d + 3, k, w, w + 3, h, h + 3, c))
            if ks == 0: M = M[2:] + M[:2]
            ex[1] = [hload(ks + D, ph)]
            ex[2] = hstep(ks + D)
            if ks == PK: ex[3] = [pollB]
            if ks == 1: ex[3] = [W[2]]
            if ks == 2: ex[3] = [W[3]]
            if ks == 3: ex[0] = order_next[0:2]; ex[2] = order_next[2:4]; ex[3] = sig + ["s_mov_b32 s%d, %d" % (sInc, REDSZ)]
            if ks == 4:
                ex[0] = [chk]
                ex[2] = order_next[4:6] + ["s_cselect_b64 vcc, vcc, 0"]
                ex[3] = ["s_cbranch_vccnz L_spb%d" % ph, "L_spb%d_r:" % ph, "s_mul_i32 s%d, s%d, %d" % (sBase, sCur, 0 if o["hsame"] else o["hs"]),
                         "s_cmp_ge_u32 s%d, s%d" % (sIt, sNb), "s_cselect_b32 s%d, 0x%x, s%d" % (sBase, OOB, sBase), "s_add_u32 s%d, s%d, s%d" % (sHcur, sBase, sO0)]
            weave(a, M, ex)
        if PROF and "p2st" in o["dbg"]:
            for b in ((1, 3) if ph == 0 else (2,)):
                a("s_cmp_lg_u32 s%d, %d", sIt, b); a("s_cbranch_scc1 L_ps%d", b); a("s_memtime s[%d:%d]", 64 + 2 * b, 65 + 2 * b); a.label("L_ps%d" % b)
        a("s_add_u32 s%d, s%d, 1", sIt, sIt); a("s_cmp_le_u32 s%d, s%d", sIt, sNb); a("s_nop 1")
        a(W[0]); a(W[1])
    a(".p2align 3")
    a.label("L_p2")
    trip(0)
    a("s_cbranch_scc0 L_p2e")
    a(".p2align 3")
    trip(4)
    a("s_cbranch_scc1 L_p2")
    a.label("L_p2e")
    a(W[2]); a(W[3])
    for e in sig: a(e)
    stamp()
    if PROF and "p1st" in o["dbg"]:
        a("s_mov_b32 s70, s84"); a("s_mov_b32 s72, s86")
    pad_to(NSTAMP)
    if PROF and "gst" in o["dbg"]:
        a("s_mov_b32 s76, s84"); a("s_mov_b32 s78, s86")
    if PROF: a("s_branch L_fin")
    else: a("s_endpgm")
    for ph in (0, 4):
        a.label("L_spb%d" % ph)
        spin("L_spb%dl" % ph, pollB)
        a("s_branch L_spb%d_r", ph)
    a.label("L_fin")
    if PROF:
        n = NSTAMP
        a("s_waitcnt vmcnt(0)")
        a("s_memtime s[%d:%d]", 64 + 2 * n, 65 + 2 * n); a("s_memrealtime s[62:63]"); a("s_waitcnt lgkmcnt(0)")
        a("s_add_u32 s8, s54, %d", 128 << 20); a("s_addc_u32 s9, s55, 0"); a("s_mov_b32 s10, 0x100000"); a("s_mov_b32 s11, 0x20000")
        a("s_lshl_b32 s28, s2, 3"); a("s_add_u32 s28, s28, s%d", sWv); a("s_lshl_b32 s28, s28, 6")
        a("v_mov_b32 v0, s28")
        a("s_getreg_b32 s29, hwreg(HW_REG_XCC_ID)")
        vals = ["s60", "s62", "s29"] + ["s%d" % (64 + 2 * i) for i in range(n + 1)]
        vals += ["0"] * (16 - len(vals))
        for i, v in enumerate(vals): a("v_mov_b32 v%d, %s", 4 + i, v)
        a("s_mov_b64 exec, 1")
        for i in range(4): a("buffer_store_dwordx4 v[%d:%d], v0, s[8:11], 0 offen offset:%d", 4 + 4 * i, 7 + 4 * i, 16 * i)
    a.label("L_end")
    a("s_endpgm")
    a.label("L_codeend")
    if "rt" in o["dbg"].split(): a.L = [l.replace("s_memtime", "s_memrealtime") for l in a.L]
    s = HEAD + "; @launch grid=(256,1,1) block=(512,1,1) lds=163840\n"
    s += '.amdgcn_target "amdgcn-amd-amdhsa--gfx950"\n.text\n'
    n = NAME + "_kernel"
    s += ".globl %s\n.p2align 8\n.type %s,@function\n%s:\n%s" % (n, n, n, a.text())
    s += '''.section .rodata,"a"
.p2align 6
.amdhsa_kernel %s
  .amdhsa_next_free_vgpr 256
  .amdhsa_next_free_sgpr 102
  .amdhsa_accum_offset 128
  .amdhsa_group_segment_fixed_size 0
  .amdhsa_kernarg_size 64
  .amdhsa_user_sgpr_count 2
  .amdhsa_user_sgpr_kernarg_segment_ptr 1
  .amdhsa_system_sgpr_workgroup_id_x 1
  .amdhsa_float_denorm_mode_32 3
  .amdhsa_float_denorm_mode_16_64 3
.end_amdhsa_kernel
''' % n
    return s
if __name__ == "__main__":
    kw = json.loads(sys.argv[2]) if len(sys.argv) > 2 else {}
    open(sys.argv[1], "w").write(gen(**kw))
```

```python
import struct, sys, json
def f2u(x): return struct.unpack("<I", struct.pack("<f", x))[0]
C0 = -2.0 * 0.7978845608028654 * 1.4426950408889634
C1 = C0 * 0.044715
NAME = "standalone__dense_activation_gelu__prompt"
HEAD = open("cdna_kernels/%s.s.ref" % NAME).read().split("; Override launch geometry")[0]
FLAGOFF = 8 << 20
OOB = 0x7f000000
DEF = dict(prof=False, a1=4, a2=4, rot1="x", pf=(1, 10), w2pf=True, hst="sc1", ost="", dist=7, spin=200000, codepf=True,
           out=8, prio=1, hsame=False, psleep=0, dbg="", gpace=1, gpend=7, rsleep=1, p2prio=1, swap46=False, krot=True, hdelay=0,
           pollg=11, puba=8, nsl=3, hs=49152, lprio=2, ng=4)

class A:
    def __init__(self): self.L = []
    def __call__(self, s, *args): self.L.append("    " + (s % args if args else s))
    def label(self, s): self.L.append(s + ":")
    def text(self): return "\n".join(self.L) + "\n"

def weave(a, main, extra):
    for i, m in enumerate(main):
        a(m)
        for e in extra.get(i, []): a(e)

def gen(**kw):
    o = dict(DEF); o.update(kw)
    a = A()
    PROF = o["prof"]
    nst = [1]
    def stamp():
        if not PROF: return
        a("s_memtime s[%d:%d]", 64 + 2 * nst[0], 65 + 2 * nst[0]); nst[0] += 1
        a("s_waitcnt lgkmcnt(0)")
    def pad_to(n):
        assert nst[0] <= n, nst[0]
        while PROF and nst[0] < n: stamp()
    NSTAMP = 8
    sX, sW1, sW2, sH, sO = 8, 12, 16, 20, 24
    sWv, sXcd, sI, sMT, sFT = 3, 4, 5, 6, 7
    sXoff, sWoff, sM0, sKb, sDelta, sIt, sT, sT2, sT3, sRd = 28, 29, 30, 31, 32, 33, 34, 35, 36, 37
    sC1 = 38
    sNonce = 56
    sRb, sNb, sDl, sG, sGm, sHcur, sCnt, sOst, sNx, sNw, sPw, sW = 58, 59, 92, 93, 94, 95, 96, 97, 98, 99, 100, 101
    sCur, sEnd, sLate, sBase, sO0, sO1, sO2, sInc = 28, 29, 30, 31, 88, 89, 90, 91
    vL, vZ = 1, 2
    vT = 8
    vPl = 4
    vH, vFl, vRw, vCa = 0, 3, 6, 7
    vXd, vWd, vGd, vGr = 16, 20, 24, 56
    RING, A2, B2 = 8, 40, 56
    def w2reg(i): return ("a", 4 * i) if i < 32 else ("v", 64 + 4 * (i - 32))
    vHi, vXr, vWr, vC0, vONE, vHst = 3, 16, 20, 22, 24, 26
    vRr, vOst, vB2 = 6, 7, 28
    ACC, TMP, OUT = 32, 96, 112
    RD = 32
    NSL = o["nsl"]; REDSZ = 17408; SYNC = 9 * REDSZ
    SLO = [REDSZ, 2 * REDSZ, 3 * REDSZ, 0]
    SLOT = 32768; S = 3
    def srd(d, lo, nbytes):
        a("s_mov_b64 s[%d:%d], s[%d:%d]", d, d + 1, lo, lo + 1)
        a("s_mov_b32 s%d, %d", d + 2, nbytes); a("s_mov_b32 s%d, 0x20000", d + 3)
    def mod3(dst, src):
        a("s_mul_i32 s%d, s%d, 86", sT, src); a("s_lshr_b32 s%d, s%d, 8", sT, sT); a("s_mul_i32 s%d, s%d, 3", sT, sT); a("s_sub_u32 s%d, s%d, s%d", dst, src, sT)
    def krot(dst):
        if o["krot"]:
            if o["a2"] == 4: a("s_lshr_b32 s%d, s%d, 1", dst, sXcd); a("s_cmp_eq_u32 s%d, 3", dst); a("s_cselect_b32 s%d, 0, s%d", dst, dst)
            else: mod3(dst, sXcd)
        else: a("s_mov_b32 s%d, 0", dst)

    a("s_load_dwordx16 s[40:55], s[0:1], 0")
    a("s_cmp_ge_u32 s2, 256"); a("s_cbranch_scc1 L_end")
    if PROF:
        a("s_memrealtime s[60:61]"); a("s_memtime s[64:65]")
    a("v_lshrrev_b32 v%d, 6, v0", vT)
    a("v_and_b32 v%d, 63, v0", vL)
    a("v_readfirstlane_b32 s%d, v%d", sWv, vT)
    a("s_and_b32 s%d, s2, 7", sXcd); a("s_lshr_b32 s%d, s2, 3", sI)
    a("v_lshrrev_b32 v%d, 3, v%d", vT, vL)
    a("v_and_b32 v%d, 7, v%d", vT + 1, vL)
    a("v_lshrrev_b32 v%d, 1, v%d", vT + 2, vT)
    a("v_mov_b32 v%d, 0", vZ)
    a("s_and_b32 s%d, s%d, 3", sW, sWv)
    a("s_mul_i32 s%d, s%d, 10", sKb, sXcd); a("s_lshr_b32 s%d, s%d, 3", sKb, sKb)
    a("s_mov_b32 s%d, %d", sX + 2, 2048 * 640 * 2); a("s_mov_b32 s%d, 0x20000", sX + 3)
    a("s_mov_b32 s%d, %d", sW1 + 2, 640 * 1536 * 2); a("s_mov_b32 s%d, 0x20000", sW1 + 3)
    a("s_cmp_ge_u32 s%d, 24", sI); a("s_cbranch_scc1 L_helper")
    if o["a1"] == 4:
        a("s_lshr_b32 s%d, s%d, 1", sMT, sXcd); a("s_lshl_b32 s%d, s%d, 2", sMT, sMT)
        a("s_and_b32 s%d, s%d, 3", sT, sI); a("s_add_u32 s%d, s%d, s%d", sMT, sMT, sT)
        a("s_and_b32 s%d, s%d, 1", sFT, sXcd); a("s_mul_i32 s%d, s%d, 6", sFT, sFT)
        a("s_lshr_b32 s%d, s%d, 2", sT2, sI); a("s_add_u32 s%d, s%d, s%d", sFT, sFT, sT2)
    else:
        a("s_lshl_b32 s%d, s%d, 1", sMT, sXcd); a("s_and_b32 s%d, s%d, 1", sT, sI); a("s_add_u32 s%d, s%d, s%d", sMT, sMT, sT)
        a("s_lshr_b32 s%d, s%d, 1", sT2, sI); a("s_mov_b32 s%d, s%d", sFT, sT2)
    a("s_cmp_lt_u32 s%d, 4", sWv); a("s_cbranch_scc1 L_comp")

    def tile_assign():
        sI = sNx
        if o["swap46"]: a("s_add_u32 s%d, s5, %d", sI, 26 if o["a2"] == 4 else 24); a("s_and_b32 s%d, s%d, 31", sI, sI)
        else: a("s_mov_b32 s%d, s5", sI)
        if o["a2"] == 8:
            a("s_lshr_b32 s%d, s%d, 1", sDl, sI); a("s_and_b32 s%d, s%d, 1", sRb, sI); a("s_mul_i32 s%d, s%d, 5", sRb, sRb); a("s_add_u32 s%d, s%d, 6", sRb, sRb); a("s_mov_b32 s%d, 5", sNb)
            a("s_lshr_b32 s%d, s%d, 2", sT, sI); a("s_add_u32 s%d, s%d, 4", sT, sT); a("s_and_b32 s%d, s%d, 3", sT2, sI); a("s_lshl_b32 s%d, s%d, 2", sT2, sT2)
            a("s_cmp_ge_u32 s%d, 16", sI); a("s_cselect_b32 s%d, s%d, s%d", sDl, sT, sDl); a("s_cselect_b32 s%d, s%d, s%d", sRb, sT2, sRb); a("s_cselect_b32 s%d, 4, s%d", sNb, sNb)
            a("s_sub_u32 s%d, s%d, 24", sT, sI)
            a("s_cmp_ge_u32 s%d, 24", sI); a("s_cselect_b32 s%d, s%d, s%d", sDl, sT, sDl); a("s_cselect_b32 s%d, 0, s%d", sRb, sRb); a("s_cselect_b32 s%d, 6, s%d", sNb, sNb)
            a("s_lshl_b32 s%d, s%d, 4", sT, sXcd); a("s_add_u32 s%d, s%d, s%d", sRb, sRb, sT)
        else:
            a("s_lshr_b32 s%d, s%d, 2", sDl, sI); a("s_and_b32 s%d, s%d, 3", sRb, sI); a("s_mul_i32 s%d, s%d, 5", sRb, sRb); a("s_add_u32 s%d, s%d, 12", sRb, sRb); a("s_mov_b32 s%d, 5", sNb)
            a("s_and_b32 s%d, s%d, 1", sT, sI); a("s_add_u32 s%d, s%d, 3", sT, sT)
            a("s_sub_u32 s%d, s%d, 20", sT2, sI); a("s_lshr_b32 s%d, s%d, 1", sT2, sT2); a("s_lshl_b32 s%d, s%d, 2", sT2, sT2)
            a("s_cmp_ge_u32 s%d, 20", sI); a("s_cselect_b32 s%d, s%d, s%d", sDl, sT, sDl); a("s_cselect_b32 s%d, s%d, s%d", sRb, sT2, sRb); a("s_cselect_b32 s%d, 4, s%d", sNb, sNb)
            a("s_sub_u32 s%d, s%d, 26", sT, sI); a("s_lshr_b32 s%d, s%d, 1", sT, sT); a("s_and_b32 s%d, s%d, 1", sT2, sI); a("s_mul_i32 s%d, s%d, 6", sT2, sT2)
            a("s_cmp_ge_u32 s%d, 26", sI); a("s_cselect_b32 s%d, s%d, s%d", sDl, sT, sDl); a("s_cselect_b32 s%d, s%d, s%d", sRb, sT2, sRb); a("s_cselect_b32 s%d, 6, s%d", sNb, sNb)
            a("s_lshr_b32 s%d, s%d, 1", sT, sXcd); a("s_lshl_b32 s%d, s%d, 5", sT, sT); a("s_add_u32 s%d, s%d, s%d", sRb, sRb, sT)
            a("s_and_b32 s%d, s%d, 1", sT, sXcd); a("s_mul_i32 s%d, s%d, 5", sT, sT); a("s_add_u32 s%d, s%d, s%d", sDl, sDl, sT)
    def order_init():
        a("s_add_u32 s%d, s%d, s%d", sEnd, sRb, sNb)
        a("s_or_b32 s%d, s%d, 1", sT, sRb); a("s_add_u32 s%d, s%d, 1", sT, sT)
        a("s_bitcmp1_b32 s%d, 1", sRb)
        a("s_cselect_b32 s%d, s%d, s%d", sCur, sT, sRb); a("s_cselect_b32 s%d, s%d, s%d", sLate, sRb, sT)
    order_next = ["s_and_b32 s%d, s%d, 1" % (sT, sCur), "s_lshl_b32 s%d, s%d, 1" % (sT, sT), "s_add_u32 s%d, s%d, s%d" % (sCur, sCur, sT), "s_add_u32 s%d, s%d, 1" % (sCur, sCur),
                  "s_cmp_ge_u32 s%d, s%d" % (sCur, sEnd), "s_cselect_b32 s%d, s%d, s%d" % (sCur, sLate, sCur)]
    log = []
    def vmcount(tag):
        idx = max(i for i, t in enumerate(log) if t == tag)
        return len(log) - 1 - idx
    def vmwait(tag): return "s_waitcnt vmcnt(%d)" % vmcount(tag)
    nload = "buffer_load_dwordx2 v[%d:%d], v%d, s[%d:%d], 0 offen sc1" % (vPl, vPl + 1, vZ, sO, sO + 3)
    def get_nonce(lab):
        a("s_mov_b32 s%d, 0", sIt)
        a.label(lab)
        a("v_readfirstlane_b32 s%d, v%d", sNonce, vPl); a("v_readfirstlane_b32 s%d, v%d", sNonce + 1, vPl + 1)
        a("s_add_u32 s%d, s%d, 1", sIt, sIt); a("s_nop 1")
        a("s_cmp_lg_u32 s%d, 0", sNonce + 1); a("s_cbranch_scc1 %s_ok", lab)
        a("s_cmp_gt_u32 s%d, %d", sIt, o["spin"]); a("s_cbranch_scc1 %s_ok", lab)
        a(nload); a("s_waitcnt vmcnt(0)"); a("s_branch %s", lab)
        a.label(lab + "_ok")

    if o["rot1"] == "3":
        a("s_add_u32 s%d, s%d, s%d", sKb, sT, sT2); mod3(sKb, sKb)
        a("s_mul_i32 s%d, s%d, 3", sKb, sKb); a("s_add_u32 s%d, s%d, s%d", sKb, sKb, sXcd)
        a("s_cmp_ge_u32 s%d, 10", sKb); a("s_cselect_b32 s%d, 10, 0", sT); a("s_sub_u32 s%d, s%d, s%d", sKb, sKb, sT)
    a("v_xor_b32 v%d, v%d, v%d", vT + 3, vT + 1, vT + 2)
    a("v_mul_u32_u24 v%d, 1280, v%d", vT + 4, vT)
    a("v_lshl_add_u32 v%d, v%d, 4, v%d", vXd, vT + 3, vT + 4)
    a("v_xor_b32 v%d, 64, v%d", vXd + 3, vXd)
    a("v_add_u32 v%d, %d, v%d", vXd + 2, 2 * (8 * 1280 - 1024), vXd)
    a("v_add_u32 v%d, %d, v%d", vXd + 1, 1 * (8 * 1280 - 1024), vXd + 3)
    a("v_add_u32 v%d, %d, v%d", vXd + 3, 3 * (8 * 1280 - 1024), vXd + 3)
    a("s_lshl_b32 s%d, s%d, 2", sXoff, sMT); a("s_add_u32 s%d, s%d, s%d", sXoff, sXoff, sW)
    a("s_mul_i32 s%d, s%d, %d", sXoff, sXoff, 32 * 1280); a("s_lshl_b32 s%d, s%d, 7", sT, sKb); a("s_add_u32 s%d, s%d, s%d", sXoff, sXoff, sT)
    a("s_lshl_b32 s%d, s%d, 12", sM0, sW)
    a("s_mov_b32 m0, s%d", sM0)
    a("v_and_b32 v%d, 1, v%d", vT + 3, vT + 2)
    a("v_lshlrev_b32 v%d, 2, v%d", vT + 3, vT + 3)
    a("v_xor_b32 v%d, v%d, v%d", vT + 3, vT + 1, vT + 3)
    a("v_mul_u32_u24 v%d, 3072, v%d", vWd, vT)
    a("v_lshl_add_u32 v%d, v%d, 4, v%d", vWd, vT + 3, vWd)
    for i in range(1, 4): a("v_add_u32 v%d, %d, v%d", vWd + i, i * (8 * 3072 - 1024), vWd)
    a("s_lshl_b32 s%d, s%d, 1", sWoff, sFT); a("s_lshr_b32 s%d, s%d, 1", sT, sW); a("s_add_u32 s%d, s%d, s%d", sWoff, sWoff, sT); a("s_lshl_b32 s%d, s%d, 7", sWoff, sWoff)
    a("s_lshl_b32 s%d, s%d, 1", sT, sKb); a("s_and_b32 s%d, s%d, 1", sT2, sW); a("s_add_u32 s%d, s%d, s%d", sT, sT, sT2)
    a("s_mul_i32 s%d, s%d, %d", sT, sT, 32 * 3072); a("s_add_u32 s%d, s%d, s%d", sWoff, sWoff, sT)
    a("s_mov_b32 s%d, %d", sNx, (128 - 1280) & 0xffffffff)
    a("s_mov_b32 s%d, %d", sNw, (-9 * 64 * 3072) & 0xffffffff)
    a("s_mov_b32 s%d, -1", sIt)
    a("s_waitcnt lgkmcnt(0)")
    a("s_mov_b64 s[%d:%d], s[40:41]", sX, sX + 1); a("s_mov_b64 s[%d:%d], s[42:43]", sW1, sW1 + 1)
    def dma(i):
        if i < 4: return "buffer_load_dwordx4 v%d, s[%d:%d], s%d offen offset:%d lds" % (vXd + i, sX, sX + 3, sXoff, 1024 * i)
        return "buffer_load_dwordx4 v%d, s[%d:%d], s%d offen offset:%d lds" % (vWd + i - 4, sW1, sW1 + 3, sWoff, 1024 * (i - 4))
    adv1 = ["s_add_u32 m0, s%d, 16384" % sM0, "s_add_u32 s%d, s%d, 1" % (sKb, sKb), "s_cmp_eq_u32 s%d, 10" % sKb,
            "s_cselect_b32 s%d, s%d, 128" % (sDelta, sNx), "s_cselect_b32 s%d, s%d, %d" % (sPw, sNw, 64 * 3072), "s_cselect_b32 s%d, 0, s%d" % (sKb, sKb),
            "s_add_u32 s%d, s%d, s%d" % (sXoff, sXoff, sDelta)]
    adv2 = ["s_add_u32 s%d, s%d, s%d" % (sWoff, sWoff, sPw), "s_add_u32 s%d, s%d, %d" % (sM0, sM0, SLOT), "s_cmp_ge_u32 s%d, %d" % (sM0, S * SLOT),
            "s_cselect_b32 s%d, %d, 0" % (sDelta, S * SLOT), "s_sub_u32 s%d, s%d, s%d" % (sM0, sM0, sDelta), "s_mov_b32 m0, s%d" % sM0]
    blk = [[dma(0)], [dma(1)], [dma(2)], [dma(3)] + adv1, [dma(4)], [dma(5)], [dma(6)], [dma(7)] + adv2]
    def emit(gs):
        for g in gs:
            for e in g: a(e)
    stamp()
    a.label("L_ld")
    emit(blk)
    a("s_add_u32 s%d, s%d, 1", sIt, sIt)
    a("s_cbranch_scc1 L_ld")
    a("s_cmp_lt_u32 s%d, 9", sIt)
    a("s_waitcnt vmcnt(8)"); a("s_barrier")
    if PROF and "p1st" in o["dbg"]:
        a("s_cselect_b32 s%d, 1, 0", sT)
        for b, r in ((1, 3), (5, 4)):
            a("s_cmp_lg_u32 s%d, %d", sIt, b); a("s_cbranch_scc1 L_p1s%d", b); a("s_memtime s[%d:%d]", 78 + 2 * r, 79 + 2 * r); a.label("L_p1s%d" % b)
        a("s_cmp_eq_u32 s%d, 1", sT)
    a("s_cbranch_scc1 L_ld")
    a("s_mov_b32 s%d, 1", sCnt)
    a("s_branch L_lw")
    nst[0] = 1

    a.label("L_helper")
    a("s_cmp_lt_u32 s%d, 4", sWv); a("s_cbranch_scc0 L_hl")
    a("v_mul_u32_u24 v%d, 1280, v%d", vXd, vL); a("v_mul_u32_u24 v%d, 3072, v%d", vWd, vL)
    a("s_sub_u32 s%d, s%d, 24", sM0, sI); a("s_lshl_b32 s%d, s%d, 2", sM0, sM0); a("s_add_u32 s%d, s%d, s%d", sM0, sM0, sWv)
    k0, k1 = o["pf"]
    if k1 > k0:
        nx, nw = (8, 12) if o["a1"] == 4 else (4, 24)
        per = nx + nw; tot = per * (k1 - k0)
        magic = (65536 + per - 1) // per
        assert all((n * magic) >> 16 == n // per for n in range(tot + 64)) and tot >= 32
        a("s_mov_b32 s%d, s%d", sIt, sM0)
        a("s_add_u32 s%d, s%d, %d", sKb, sKb, k0)
        if o["a1"] == 4:
            a("s_lshr_b32 s%d, s%d, 1", sXoff, sXcd); a("s_mul_i32 s%d, s%d, %d", sXoff, sXoff, 512 * 1280)
            a("s_and_b32 s%d, s%d, 1", sWoff, sXcd); a("s_mul_i32 s%d, s%d, 1536", sWoff, sWoff)
        else:
            a("s_mul_i32 s%d, s%d, %d", sXoff, sXcd, 256 * 1280); a("s_mov_b32 s%d, 0", sWoff)
        a("s_sub_u32 s%d, s%d, %d", sWoff, sWoff, nx * 128)
    a("s_waitcnt lgkmcnt(0)")
    a("s_mov_b64 s[%d:%d], s[40:41]", sX, sX + 1); a("s_mov_b64 s[%d:%d], s[42:43]", sW1, sW1 + 1)
    if k1 > k0:
        a.label("L_pf")
        a("s_mul_i32 s%d, s%d, %d", sT, sIt, magic); a("s_lshr_b32 s%d, s%d, 16", sT, sT)
        a("s_mul_i32 s%d, s%d, %d", sT2, sT, per); a("s_sub_u32 s%d, s%d, s%d", sT2, sIt, sT2)
        a("s_add_u32 s%d, s%d, s%d", sT, sT, sKb)
        a("s_cmp_ge_u32 s%d, 10", sT); a("s_cselect_b32 s%d, 10, 0", sT3); a("s_sub_u32 s%d, s%d, s%d", sT, sT, sT3)
        a("s_cmp_ge_u32 s%d, %d", sT2, nx); a("s_cbranch_scc1 L_pfw")
        a("s_mul_i32 s%d, s%d, %d", sT2, sT2, 64 * 1280); a("s_lshl_b32 s%d, s%d, 7", sT, sT); a("s_add_u32 s%d, s%d, s%d", sT, sT, sT2); a("s_add_u32 s%d, s%d, s%d", sT, sT, sXoff)
        a("buffer_load_dword v%d, v%d, s[%d:%d], s%d offen", TMP, vXd, sX, sX + 3, sT)
        a("s_branch L_pfn")
        a.label("L_pfw")
        a("s_lshl_b32 s%d, s%d, 7", sT2, sT2); a("s_mul_i32 s%d, s%d, %d", sT, sT, 64 * 3072); a("s_add_u32 s%d, s%d, s%d", sT, sT, sT2); a("s_add_u32 s%d, s%d, s%d", sT, sT, sWoff)
        a("buffer_load_dword v%d, v%d, s[%d:%d], s%d offen", TMP, vWd, sW1, sW1 + 3, sT)
        a.label("L_pfn")
        a("s_add_u32 s%d, s%d, 32", sIt, sIt); a("s_cmp_lt_u32 s%d, %d", sIt, tot); a("s_cbranch_scc1 L_pf")
    stamp()
    a("s_branch L_hc2")
    a.label("L_hl")
    if o["codepf"]:
        a("s_getpc_b64 s[%d:%d]", sT, sT + 1)
        a("s_sub_u32 s%d, s%d, L_hl-%s_kernel+4", sT, sT, NAME); a("s_subb_u32 s%d, s%d, 0", sT + 1, sT + 1)
        a("v_and_b32 v%d, 255, v0", vT + 3)
        a("v_lshlrev_b32 v%d, 7, v%d", vT + 3, vT + 3)
        a("v_cmp_gt_u32 vcc, L_codeend-%s_kernel, v%d", NAME, vT + 3)
        a("s_and_saveexec_b64 s[%d:%d], vcc", sC1, sC1 + 1)
        a("s_cbranch_execz L_nocode")
        a("s_cmp_lg_u32 s%d, 24", sI); a("s_cbranch_scc1 L_nocode")
        a("global_load_dword v%d, v%d, s[%d:%d]", A2, vT + 3, sT, sT + 1)
        a.label("L_nocode")
        a("s_mov_b64 exec, -1")
    a("s_memrealtime s[%d:%d]", sNonce, sNonce + 1)
    a("v_lshlrev_b32 v%d, 2, v%d", vT + 4, vL)
    a("v_add_u32 v%d, %d, v%d", vT + 4, SYNC, vT + 4)
    for r in range(5): a("ds_write_b32 v%d, v%d offset:%d", vT + 4, vZ, 256 * r)
    a("s_mov_b32 s%d, 0", sCnt)
    a("s_waitcnt lgkmcnt(0)")
    a("s_cmp_lg_u32 s2, 255"); a("s_cbranch_scc1 L_nolead")
    a("s_cmp_lg_u32 s%d, 4", sWv); a("s_cbranch_scc1 L_nolead")
    srd(sO, 52, 256)
    a("s_or_b32 s%d, s%d, 0x80000000", sNonce + 1, sNonce + 1)
    a("v_mov_b32 v%d, s%d", vPl, sNonce); a("v_mov_b32 v%d, s%d", vPl + 1, sNonce + 1)
    a("s_mov_b64 exec, 1")
    a("buffer_store_dwordx2 v[%d:%d], v%d, s[%d:%d], 0 offen sc1", vPl, vPl + 1, vZ, sO, sO + 3)
    a("s_mov_b64 exec, -1")
    a.label("L_nolead")
    a("s_barrier")
    nst[0] = 1; stamp()
    a("s_branch L_lw")

    nst[0] = 1
    a.label("L_comp")
    FR = 0
    for r in range(4): a("v_mov_b32 v%d, 0", vB2 + r)
    a("v_and_b32 v%d, 31, v%d", vT + 3, vL)
    a("v_lshlrev_b32 v%d, 1, v%d", vT + 5, vT + 3)
    zz = "v[%d:%d], v[%d:%d], 0" % (vB2, vB2 + 3, vB2, vB2 + 3)
    a("v_mfma_f32_32x32x16_bf16 a[16:31], %s", zz)
    for t in range(4): a("v_mfma_f32_32x32x16_bf16 v[%d:%d], %s", ACC + 16 * t, ACC + 16 * t + 15, zz)
    a("s_and_b32 s%d, s%d, 1", sT, sW); a("s_lshl_b32 s%d, s%d, 7", sT, sT); a("s_lshl_b32 s%d, s%d, 8", sT3, sFT); a("s_add_u32 s%d, s%d, s%d", sT3, sT3, sT)
    a("v_lshrrev_b32 v%d, 5, v%d", vHi, vL)
    a("v_mov_b32 v%d, 0x3f80", vT + 4)
    a("v_cmp_eq_u32 vcc, 0, v%d", vHi)
    a("s_waitcnt lgkmcnt(0)")
    srd(sO, 44, 1536 * 2)
    a("v_cndmask_b32 v%d, 0, v%d, vcc", vT + 4, vT + 4)
    a("buffer_load_ushort a%d, v%d, s[%d:%d], s%d offen", FR + 16, vT + 5, sO, sO + 3, sT3)
    a("buffer_load_ushort a%d, v%d, s[%d:%d], s%d offen offset:64", FR + 20, vT + 5, sO, sO + 3, sT3)
    a("v_accvgpr_write_b32 a%d, v%d", FR + 24, vT + 4); a("v_accvgpr_write_b32 a%d, v%d", FR + 28, vT + 4)
    a("s_lshr_b32 s%d, s%d, 1", sT, sW); a("s_lshl_b32 s%d, s%d, 6", sT, sT)
    a("v_add_u32 v%d, s%d, v%d", vT + 3, sT, vT + 3)
    a("v_lshlrev_b32 v%d, 7, v%d", vT + 3, vT + 3)
    a("v_bfe_u32 v%d, v%d, 1, 3", vT + 4, vL)
    a("v_xor_b32 v%d, v%d, v%d", vT + 4, vT + 4, vHi)
    a("v_lshl_add_u32 v%d, v%d, 4, v%d", vXr, vT + 4, vT + 3)
    for s in range(1, 4): a("v_xor_b32 v%d, %d, v%d", vXr + s, 32 * s, vXr)
    a("v_bfe_u32 v%d, v%d, 2, 2", vT + 3, vL)
    a("v_lshl_add_u32 v%d, v%d, 3, v%d", vT + 3, vHi, vT + 3)
    a("v_lshlrev_b32 v%d, 7, v%d", vT + 3, vT + 3)
    a("v_bfe_u32 v%d, v%d, 4, 1", vT + 4, vL)
    a("v_lshl_add_u32 v%d, v%d, 5, v%d", vT + 3, vT + 4, vT + 3)
    a("v_mul_u32_u24 v%d, %d, v%d", vHst, o["hs"], vT + 4)
    a("v_and_b32 v%d, 3, v%d", vT + 4, vL)
    a("v_lshl_add_u32 v%d, v%d, 3, v%d", vT + 3, vT + 4, vT + 3)
    a("v_bfe_u32 v%d, v%d, 3, 1", vT + 4, vL)
    a("v_lshl_add_u32 v%d, v%d, 6, v%d", vT + 3, vT + 4, vT + 3)
    a("s_and_b32 s%d, s%d, 1", sT, sW); a("s_lshl_b32 s%d, s%d, 13", sT, sT); a("s_add_u32 s%d, s%d, 16384", sT, sT)
    a("v_add_u32 v%d, s%d, v%d", vWr, sT, vT + 3)
    a("v_xor_b32 v%d, 64, v%d", vWr + 1, vWr)
    a("v_lshlrev_b32 v%d, 2, v%d", vT + 4, vL)
    a("v_add_u32 v%d, %d, v%d", vT + 4, SYNC, vT + 4)
    for r in range(5): a("ds_write_b32 v%d, v%d offset:%d", vT + 4, vZ, 256 * r)
    a("v_mov_b32 v%d, 0x%x", vC0, f2u(C0)); a("v_mov_b32 v%d, v%d", vC0 + 1, vC0)
    a("v_mov_b32 v%d, 1.0", vONE); a("v_mov_b32 v%d, 1.0", vONE + 1)
    a("s_mov_b32 s%d, 0x%x", sC1, f2u(C1)); a("s_mov_b32 s%d, s%d", sC1 + 1, sC1)
    srd(sH, 54, FLAGOFF + 131072)
    a("s_lshl_b32 s%d, s%d, 1", sT, sMT); a("s_lshr_b32 s%d, s%d, 1", sT2, sW); a("s_add_u32 s%d, s%d, s%d", sT, sT, sT2); a("s_mul_i32 s%d, s%d, %d", sT, sT, 4 * o["hs"])
    a("s_lshl_b32 s%d, s%d, 4", sT3, sT3)
    a("s_add_u32 s%d, s%d, s%d", sXoff, sT, sT3); a("s_add_u32 s%d, s%d, %d", sWoff, sXoff, 2 * o["hs"])
    a("v_lshl_add_u32 v%d, v%d, 8, v%d", vHst, vHi, vHst)
    a("v_and_b32 v%d, 15, v%d", vT + 4, vL)
    a("v_lshl_add_u32 v%d, v%d, 4, v%d", vHst, vT + 4, vHst)
    a("s_mul_i32 s%d, s%d, 12", sG, sMT); a("s_add_u32 s%d, s%d, s%d", sG, sG, sFT); a("s_lshl_b32 s%d, s%d, 9", sG, sG); a("s_add_u32 s%d, s%d, %d", sG, sG, FLAGOFF)
    a("v_mov_b32 v%d, 1", vT); a("v_mov_b32 v%d, %d", vT + 1, SYNC); a("v_lshlrev_b32 v%d, 3, v%d", vT + 2, vL)
    a("s_mov_b32 s%d, 0", sRd); a("s_mov_b32 s%d, 0", sIt)
    a("s_mov_b32 s%d, %d", sPw, (-(S - 1) * SLOT) & 0xffffffff)
    if o["prio"]: a("s_setprio %d", o["prio"])
    a("s_waitcnt vmcnt(0) lgkmcnt(0)")
    srd(sO, 52, 256)
    stamp()
    a("s_barrier")
    stamp()
    def reads(s):
        b = FR + 16 * (s & 1)
        w = lambda f, u: "ds_read_b64_tr_b16 a[%d:%d], v%d offset:%d" % (b + 4 * f + 2 * u, b + 4 * f + 2 * u + 1, vWr + f, s * 2048 + u * 512)
        x = lambda mt: "ds_read_b128 a[%d:%d], v%d offset:%d" % (b + 8 + 4 * mt, b + 11 + 4 * mt, vXr + s, mt * 4096)
        return [w(0, 0), w(0, 1), x(0), x(1), w(1, 0), w(1, 1)]
    def mfmas(buf):
        b = FR + 16 * buf
        out = []
        for ft in range(2):
            for mt in range(2):
                r = ACC + (mt * 2 + ft) * 16
                out.append("v_mfma_f32_32x32x16_bf16 v[%d:%d], a[%d:%d], a[%d:%d], v[%d:%d]" % (r, r + 15, b + 4 * ft, b + 4 * ft + 3, b + 8 + 4 * mt, b + 11 + 4 * mt, r, r + 15))
        return out
    a(".p2align 3")
    a.label("L_p1")
    upd = lambda r: "v_add_u32 v%d, s%d, v%d" % (r, sDelta, r)
    for s in range(4):
        M = mfmas((s + 1) & 1); R = reads(s)
        if s > 0: a("s_waitcnt lgkmcnt(3)")
        a(M[0]); a(R[0]); a(R[1]); a(R[2])
        if s > 0: a("s_waitcnt lgkmcnt(5)")
        a(M[1]); a(R[3]); a(R[4]); a(R[5])
        if s > 0: a("s_waitcnt lgkmcnt(6)")
        a(M[2])
        if s == 0:
            a("s_add_u32 s%d, s%d, %d", sRd, sRd, SLOT); a("s_cmp_ge_u32 s%d, %d", sRd, S * SLOT)
            a("s_cselect_b32 s%d, s%d, %d", sDelta, sPw, SLOT); a("s_cselect_b32 s%d, 0, s%d", sRd, sRd)
        else: a(upd(vXr + s - 1))
        if s == 3:
            a(upd(vXr + 3)); a(upd(vWr)); a(upd(vWr + 1))
        if s == 2: a("s_add_u32 s%d, s%d, 1", sIt, sIt); a("s_cmp_lt_u32 s%d, 10", sIt)
        a(M[3])
    a("s_waitcnt lgkmcnt(0)"); a("s_barrier")
    a("s_cbranch_scc1 L_p1")
    M = mfmas(1)
    a(M[0]); a(nload); a(M[2]); a(M[1]); a(M[3])
    log[:] = ["n"]
    a("s_nop 7")
    stamp()
    def gelu_list(acc, tmp, outr, n):
        L = []; P = range(n // 2)
        pk = lambda op, d, x, y: "%s v[%d:%d], v[%d:%d], v[%d:%d]" % (op, d, d + 1, x, x + 1, y, y + 1)
        for p in P: L.append(pk("v_pk_mul_f32", tmp + 2 * p, acc + 2 * p, acc + 2 * p))
        for p in P: L.append("v_pk_fma_f32 v[%d:%d], v[%d:%d], s[%d:%d], v[%d:%d]" % (tmp + 2 * p, tmp + 2 * p + 1, tmp + 2 * p, tmp + 2 * p + 1, sC1, sC1 + 1, vC0, vC0 + 1))
        for p in P: L.append(pk("v_pk_mul_f32", tmp + 2 * p, tmp + 2 * p, acc + 2 * p))
        for i in range(n): L.append("v_exp_f32 v%d, v%d" % (tmp + i, tmp + i))
        for p in P: L.append(pk("v_pk_add_f32", tmp + 2 * p, tmp + 2 * p, vONE))
        for i in range(n): L.append("v_rcp_f32 v%d, v%d" % (tmp + i, tmp + i))
        for p in P: L.append(pk("v_pk_mul_f32", tmp + 2 * p, tmp + 2 * p, acc + 2 * p))
        for p in P: L.append("v_cvt_pk_bf16_f32 v%d, v%d, v%d" % (outr + p, tmp + 2 * p, tmp + 2 * p + 1))
        return L
    def publish(part):
        a(vmwait("st%d" % part))
        a("s_mov_b64 exec, 1")
        a("ds_add_rtn_u32 v%d, v%d, v%d offset:%d", vT + 5, vT + 1, vT, 4 * part)
        a("s_waitcnt lgkmcnt(0)")
        a("v_readfirstlane_b32 s%d, v%d", sT2, vT + 5)
        a("s_mov_b64 exec, 0xffff")
        a("s_nop 0")
        a("s_cmp_lg_u32 s%d, 3", sT2); a("s_cbranch_scc1 L_nopub%d", part)
        a("buffer_store_dwordx2 v[%d:%d], v%d, s[%d:%d], s%d offen offset:%d sc1", vPl, vPl + 1, vT + 2, sH, sH + 3, sG, 256 * part)
        a.label("L_nopub%d" % part)
        a("s_mov_b64 exec, -1")
    a(".p2align 3")
    for hh in range(8):
        ob = OUT + 4 * (hh & 3)
        for e in gelu_list(ACC + 8 * hh, TMP, ob, 8): a(e)
        mt, ft, i = hh >> 2, (hh >> 1) & 1, hh & 1
        if "nohst" in o["dbg"]: a("s_mov_b64 exec, 1")
        a("buffer_store_dwordx4 v[%d:%d], v%d, s[%d:%d], s%d offen offset:%d %s", ob, ob + 3, vHst, sH, sH + 3, sWoff if mt else sXoff, i * 512 + ft * 1024, o["hst"])
        if "nohst" in o["dbg"]: a("s_mov_b64 exec, -1")
        log.append("st%d" % mt)
        if hh + 1 == o["puba"]:
            if hh == 7: stamp(); a("s_setprio 0")
            a(vmwait("n")); get_nonce("L_n0")
            publish(0)
            if hh == 7: stamp()
            else: a(".p2align 3")
    if o["puba"] < 8: stamp(); a("s_setprio 0"); stamp()
    if o["puba"] == 8:
        a("s_cmp_lg_u32 s%d, 3", sT2); a("s_cbranch_scc1 L_pw0"); a("s_waitcnt vmcnt(1)"); a("s_branch L_pw1"); a.label("L_pw0"); a("s_waitcnt vmcnt(0)"); a.label("L_pw1")
        log.extend(["x"] * 60)
    publish(1)
    stamp()
    a.label("L_red")
    tile_assign(); order_init()
    srd(sO, 48, 640 * 2)
    a("v_and_b32 v%d, 15, v%d", vT + 3, vL); a("v_lshrrev_b32 v%d, 4, v%d", vT + 4, vL)
    a("v_lshlrev_b32 v%d, 3, v%d", vT + 5, vT + 3); a("s_lshl_b32 s%d, s%d, 7", sDl, sDl)
    a("buffer_load_dwordx2 v[%d:%d], v%d, s[%d:%d], s%d offen", vB2 + 2, vB2 + 3, vT + 5, sO, sO + 3, sDl)
    a("s_lshl_b32 s%d, s%d, 2", sT, sW); a("v_add_u32 v%d, s%d, v%d", vT + 4, sT, vT + 4)
    a("v_mul_u32_u24 v%d, 272, v%d", vRr, vT + 4)
    a("v_lshl_add_u32 v%d, v%d, 4, v%d", vRr, vT + 3, vRr)
    a("v_mul_u32_u24 v%d, 1280, v%d", vOst, vT + 4)
    a("v_add3_u32 v%d, v%d, v%d, s%d", vOst, vOst, vT + 5, sDl)
    a("v_and_b32 v%d, 3, v%d", vT + 2, vL); a("v_lshlrev_b32 v%d, 8, v%d", vT + 2, vT + 2); a("v_lshl_add_u32 v%d, v%d, 2, v%d", vT + 2, vL, vT + 2)
    a("v_add_u32 v%d, %d, v%d", vT + 2, SYNC + 256, vT + 2)
    a("s_mov_b32 s%d, %d", sCnt, REDSZ); a("s_mul_i32 s%d, s%d, %d", sNb, sNb, REDSZ); a("s_mov_b32 s%d, 0", sIt)
    a("s_waitcnt vmcnt(0)")
    srd(sO, 50, 2048 * 640 * 2)
    a("v_lshlrev_b32 v%d, 16, v%d", vB2, vB2 + 2); a("v_and_b32 v%d, 0xffff0000, v%d", vB2 + 1, vB2 + 2)
    a("v_lshlrev_b32 v%d, 16, v%d", vB2 + 2, vB2 + 3); a("v_and_b32 v%d, 0xffff0000, v%d", vB2 + 3, vB2 + 3)
    a.label("L_rw")
    a("ds_read_b32 v%d, v%d", vT + 3, vT + 2)
    a("s_add_u32 s%d, s%d, 1", sIt, sIt); a("s_cmp_gt_u32 s%d, %d", sIt, o["spin"] * 8)
    a("s_waitcnt lgkmcnt(0)")
    a("s_cbranch_scc1 L_rgo")
    a("v_cmp_gt_u32 vcc, s%d, v%d", sCnt, vT + 3)
    a("s_cbranch_vccz L_rgo")
    if o["rsleep"]: a("s_sleep %d", o["rsleep"])
    a("s_branch L_rw")
    a.label("L_rgo")
    for p in range(4): a("ds_read_b128 v[%d:%d], v%d offset:%d", RD + 4 * p, RD + 4 * p + 3, vRr, 4352 * p)
    a("v_add_u32 v%d, %d, v%d", vRr, REDSZ, vRr)
    a("s_mul_i32 s%d, s%d, %d", sOst, sCur, 16 * 1280)
    for e in order_next: a(e)
    a("s_add_u32 s%d, s%d, %d", sCnt, sCnt, REDSZ)
    pk = lambda d, x, y: a("v_pk_add_f32 v[%d:%d], v[%d:%d], v[%d:%d]", d, d + 1, x, x + 1, y, y + 1)
    a("s_waitcnt lgkmcnt(3)")
    pk(RD, RD, vB2); pk(RD + 2, RD + 2, vB2 + 2)
    a("s_waitcnt lgkmcnt(1)")
    pk(RD + 4, RD + 4, RD + 8); pk(RD + 6, RD + 6, RD + 10)
    a("s_waitcnt lgkmcnt(0)")
    pk(RD, RD, RD + 12); pk(RD + 2, RD + 2, RD + 14)
    pk(RD, RD, RD + 4); pk(RD + 2, RD + 2, RD + 6)
    a("v_cvt_pk_bf16_f32 v%d, v%d, v%d", vPl, RD, RD + 1); a("v_cvt_pk_bf16_f32 v%d, v%d, v%d", vPl + 1, RD + 2, RD + 3)
    a("s_cmp_le_u32 s%d, s%d", sCnt, sNb)
    a("buffer_store_dwordx2 v[%d:%d], v%d, s[%d:%d], s%d offen %s", vPl, vPl + 1, vOst, sO, sO + 3, sOst, o["ost"])
    a("s_cbranch_scc1 L_rw")
    pad_to(NSTAMP)
    if PROF: a("s_branch L_fin")
    else: a("s_endpgm")

    nst[0] = 2
    a.label("L_hc2")
    if o["w2pf"]:
        srd(sW2, 46, 1536 * 640 * 2)
        nl = 5 if o["a2"] == 4 else 10
        per = 4 * nl; tot = 6 * per
        magic = (65536 + per - 1) // per
        assert all((n * magic) >> 16 == n // per for n in range(tot + 64))
        a("s_mov_b32 s%d, s%d", sIt, sM0)
        if o["a2"] == 4: a("s_and_b32 s%d, s%d, 1", sWoff, sXcd); a("s_mul_i32 s%d, s%d, 640", sWoff, sWoff)
        else: a("s_mov_b32 s%d, 0", sWoff)
        krot(sRd); a("s_lshl_b32 s%d, s%d, 1", sRd, sRd)
        for _ in range(o["hdelay"]): a("s_sleep 8")
        a.label("L_pf2")
        a("s_mul_i32 s%d, s%d, %d", sT, sIt, magic); a("s_lshr_b32 s%d, s%d, 16", sT, sT)
        a("s_mul_i32 s%d, s%d, %d", sT2, sT, per); a("s_sub_u32 s%d, s%d, s%d", sT2, sIt, sT2)
        a("s_add_u32 s%d, s%d, s%d", sT, sT, sRd); a("s_cmp_ge_u32 s%d, 6", sT); a("s_cselect_b32 s%d, 6, 0", sT3); a("s_sub_u32 s%d, s%d, s%d", sT, sT, sT3)
        a("s_and_b32 s%d, s%d, 3", sT3, sT2); a("s_mul_i32 s%d, s%d, 6", sT3, sT3); a("s_add_u32 s%d, s%d, s%d", sT, sT, sT3)
        a("s_mul_i32 s%d, s%d, %d", sT, sT, 64 * 1280); a("s_lshr_b32 s%d, s%d, 2", sT2, sT2); a("s_lshl_b32 s%d, s%d, 7", sT2, sT2)
        a("s_add_u32 s%d, s%d, s%d", sT, sT, sT2); a("s_add_u32 s%d, s%d, s%d", sT, sT, sWoff)
        a("buffer_load_dword v%d, v%d, s[%d:%d], s%d offen", TMP, vXd, sW2, sW2 + 3, sT)
        a("s_add_u32 s%d, s%d, 32", sIt, sIt); a("s_cmp_lt_u32 s%d, %d", sIt, tot); a("s_cbranch_scc1 L_pf2")
    a("s_barrier")
    stamp()
    if PROF: a("s_waitcnt vmcnt(0)")
    pad_to(7)
    a("s_branch L_red")

    nst[0] = 2
    a.label("L_lw")
    tile_assign()
    srd(sW2, 46, 1536 * 640 * 2); srd(sH, 54, FLAGOFF + 131072); srd(sO, 52, 256)
    a("v_lshlrev_b32 v%d, 1, v%d", vT + 3, vT + 2)
    a("v_xor_b32 v%d, v%d, v%d", vT + 3, vT + 1, vT + 3)
    a("v_mul_u32_u24 v%d, 1280, v%d", vGd, vT)
    a("v_lshl_add_u32 v%d, v%d, 4, v%d", vGd, vT + 3, vGd)
    for i in range(1, 4): a("v_add_u32 v%d, %d, v%d", vGd + i, i * (8 * 1280 - 1024), vGd)
    a("s_mul_i32 s%d, s%d, %d", sNw, sW, 384 * 1280); a("s_lshl_b32 s%d, s%d, 7", sT, sDl); a("s_add_u32 s%d, s%d, s%d", sNw, sNw, sT)
    krot(sRd)
    a("s_mul_i32 s%d, s%d, %d", sT, sRd, 128 * 1280); a("s_add_u32 s%d, s%d, s%d", sG, sNw, sT)
    a("s_mul_i32 s%d, s%d, 4352", sGm, sW); a("s_add_u32 s%d, s%d, %d", sGm, sGm, 5 * REDSZ)
    def gissue(g):
        a("s_add_u32 m0, s%d, %d", sGm, SLO[g % NSL]); a("s_nop 0")
        for i in range(4):
            a("buffer_load_dwordx4 v%d, s[%d:%d], s%d offen offset:%d lds", vGd + i, sW2, sW2 + 3, sG, 1024 * i); log.append("g%d" % g)
        a("s_add_u32 s%d, s%d, %d", sG, sG, 32 * 1280)
        if g in (3, 7):
            a("s_cmp_eq_u32 s%d, %d", sRd, 2 if g == 3 else 1); a("s_cselect_b32 s%d, s%d, s%d", sG, sNw, sG)
    def greads(g):
        L = []
        for t in range(4):
            k, r = w2reg(g * 4 + t)
            for u in range(2): L.append("ds_read_b64_tr_b16 %s[%d:%d], v%d offset:%d" % (k, r + 2 * u, r + 2 * u + 1, vGr + t, SLO[g % NSL] + u * 1024))
        return L
    log[:] = ["p1"]
    gissue(0)
    def condbar(lab):
        a("s_cmp_eq_u32 s%d, 0", sCnt); a("s_cbranch_scc1 %s", lab); a("s_barrier"); a.label(lab)
    a(vmwait("p1")); condbar("L_cb1")
    stamp()
    a(nload); log.append("n")
    gissue(1)
    a("v_lshrrev_b32 v%d, 5, v%d", vT + 3, vL)
    a("v_bfe_u32 v%d, v%d, 2, 3", vT + 4, vL)
    a("v_lshl_add_u32 v%d, v%d, 4, v%d", vT + 3, vT + 3, vT + 4)
    a("v_lshlrev_b32 v%d, 7, v%d", vT + 3, vT + 3)
    a("v_bfe_u32 v%d, v%d, 3, 2", vT + 4, vL)
    a("v_lshl_add_u32 v%d, v%d, 5, v%d", vT + 3, vT + 4, vT + 3)
    a("v_and_b32 v%d, 3, v%d", vT + 4, vL)
    a("v_lshl_add_u32 v%d, v%d, 3, v%d", vT + 3, vT + 4, vT + 3)
    a("v_add_u32 v%d, s%d, v%d", vGr, sGm, vT + 3)
    for t in range(1, 4): a("v_xor_b32 v%d, %d, v%d", vGr + t, 32 * t, vGr)
    a("s_mul_i32 s%d, s%d, 12288", sT, sW); a("v_lshl_add_u32 v%d, v%d, 4, s%d", vH, vL, sT)
    a("s_lshl_b32 s%d, s%d, 12", sO0, sRd)
    a("s_add_u32 s%d, s%d, 4096", sO1, sO0); a("s_cmp_eq_u32 s%d, 2", sRd); a("s_cselect_b32 s%d, 0, s%d", sO1, sO1)
    a("s_add_u32 s%d, s%d, 4096", sO2, sO1); a("s_cmp_eq_u32 s%d, 1", sRd); a("s_cselect_b32 s%d, 0, s%d", sO2, sO2)
    a("v_and_b32 v%d, 15, v%d", vT + 3, vL); a("v_lshrrev_b32 v%d, 4, v%d", vT + 4, vL)
    a("v_mul_u32_u24 v%d, 272, v%d", vRw, vT + 3)
    a("v_lshl_add_u32 v%d, v%d, 4, v%d", vRw, vT + 4, vRw)
    a("s_mul_i32 s%d, s%d, 4352", sT, sW); a("v_add_u32 v%d, s%d, v%d", vRw, sT, vRw)
    a("s_lshl_b32 s%d, s%d, 8", sT, sW); a("s_add_u32 s%d, s%d, %d", sT, sT, SYNC + 256)
    a("v_lshl_add_u32 v%d, v%d, 2, s%d", vCa, vL, sT)
    order_init()
    a("s_lshr_b32 s%d, s%d, 3", sT, sRb); a("s_sub_u32 s%d, s%d, 1", sT2, sEnd); a("s_lshr_b32 s%d, s%d, 3", sT2, sT2)
    a("s_sub_u32 s%d, s%d, s%d", sT2, sT2, sT); a("s_mul_i32 s%d, s%d, 12", sT2, sT2)
    a("s_mul_i32 s%d, s%d, 12", sT, sT); a("s_mul_i32 s%d, s%d, 3", sT3, sW); a("s_add_u32 s%d, s%d, s%d", sT, sT, sT3)
    a("v_lshrrev_b32 v%d, 5, v%d", vT + 3, vL); a("v_mul_u32_u24 v%d, s%d, v%d", vT + 3, sT2, vT + 3)
    a("v_bfe_u32 v%d, v%d, 3, 2", vT + 4, vL); a("v_min_u32 v%d, 2, v%d", vT + 4, vT + 4)
    a("v_add3_u32 v%d, v%d, v%d, s%d", vFl, vT + 3, vT + 4, sT)
    a("v_lshlrev_b32 v%d, 9, v%d", vFl, vFl)
    a("v_add_u32 v%d, %d, v%d", vFl, FLAGOFF, vFl)
    a("s_mul_i32 s%d, s%d, %d", sBase, sCur, o["hs"]); a("s_add_u32 s%d, s%d, s%d", sHcur, sBase, sO0)
    a("s_mov_b32 s%d, 0", sInc)
    condbar("L_cb2")
    if o["lprio"]: a("s_setprio %d", o["lprio"])
    pollA = "buffer_load_dwordx2 v[%d:%d], v%d, s[%d:%d], 0 offen sc1" % (vPl, vPl + 1, vFl, sH, sH + 3)
    pollB = "buffer_load_dwordx2 v[%d:%d], v%d, s[%d:%d], 0 offen offset:256 sc1" % (vPl, vPl + 1, vFl, sH, sH + 3)
    chk = "v_cmp_ne_u64 vcc, s[%d:%d], v[%d:%d]" % (sNonce, sNonce + 1, vPl, vPl + 1)
    LAG = NSL - 1
    for g in range(2, LAG): gissue(g)
    for g in range(max(2, LAG), 12):
        a(vmwait("g%d" % (g - LAG)))
        a("s_waitcnt lgkmcnt(0)")
        for r in greads(g - LAG): a(r)
        if g == o["ng"]: get_nonce("L_n1")
        if o["gpace"] < 4 * (LAG - 1) and g < o["gpend"]:
            a("s_cmp_eq_u32 s%d, 0", sCnt); a("s_cbranch_scc1 L_gp%d", g); a("s_waitcnt vmcnt(%d)", o["gpace"]); a.label("L_gp%d" % g)
        gissue(g)
        if g == o["pollg"]: a(pollA); log.append("pa")
        if PROF and "gst" in o["dbg"] and g in (4, 8): a("s_memtime s[%d:%d]", 82 + g // 2, 83 + g // 2)
    stamp()
    def spin(lab, poll):
        a("s_mov_b32 s%d, 0", sT3)
        a.label(lab)
        if o["psleep"]: a("s_sleep %d", o["psleep"])
        a(poll)
        a("s_add_u32 s%d, s%d, 1", sT3, sT3); a("s_cmp_gt_u32 s%d, %d", sT3, o["spin"])
        a("s_waitcnt vmcnt(0)")
        a("s_cbranch_scc1 %s_x", lab)
        a(chk)
        a("s_cbranch_vccnz %s", lab)
        a.label(lab + "_x")
    a(vmwait("pa"))
    a(chk)
    a("s_cbranch_vccz L_spa_x")
    spin("L_spa", pollA)
    stamp()
    D = o["dist"]; NK = 12; NR = 8; PK = 8
    assert D == 7
    def hload(k, ph):
        r = RING + 4 * ((k + ph) % NR)
        return "buffer_load_dwordx4 v[%d:%d], v%d, s[%d:%d], s%d offen offset:%d sc1" % (r, r + 3, vH, sH, sH + 3, sHcur, (k & 3) * 1024)
    def hstep(k): return ["s_add_u32 s%d, s%d, s%d" % (sHcur, sBase, sO1 if k % NK == 3 else sO2)] if k % NK in (3, 7) else []
    for k in range(D):
        a(hload(k, 0)); log.append("h")
        for e in hstep(k): a(e)
        if k == (PK + D) % NK: a(pollB); log.append("pb")
    for g in range(12 - LAG, 12):
        a(vmwait("g%d" % g))
        for r in greads(g): a(r)
    a("s_mov_b32 s%d, 1", sIt)
    a("s_setprio %d", o["p2prio"])
    a("s_waitcnt lgkmcnt(0)")
    src = lambda t: (A2 + 4 * t) if t < 2 else (B2 + 4 * (t - 2))
    W = ["ds_write_b128 v%d, v[%d:%d] offset:%d" % (vRw, src(t), src(t) + 3, 64 * t) for t in range(4)]
    sig = ["v_add_u32 v%d, s%d, v%d" % (vRw, sInc, vRw), "ds_write_b32 v%d, v%d" % (vCa, vRw)]
    def trip(ph):
        for ks in range(NK):
            between = any(((ks - D + d) % NK) == PK for d in range(D))
            a("s_waitcnt vmcnt(%d)", D - 1 + (1 if between else 0))
            ex = {}
            M = []
            for t in range(4):
                c = "0" if ks == 0 else "v[%d:%d]" % (A2 + 4 * t, A2 + 4 * t + 3)
                d = src(t) if ks == NK - 1 else A2 + 4 * t
                k, w = w2reg(ks * 4 + t); h = RING + 4 * ((ks + ph) % NR)
                M.append("v_mfma_f32_16x16x32_bf16 v[%d:%d], %s[%d:%d], v[%d:%d], %s" % (d, d + 3, k, w, w + 3, h, h + 3, c))
            if ks == 0: M = M[2:] + M[:2]
            ex[1] = [hload(ks + D, ph)]
            ex[2] = hstep(ks + D)
            if ks == PK: ex[3] = [pollB]
            if ks == 1: ex[3] = [W[2]]
            if ks == 2: ex[3] = [W[3]]
            if ks == 3: ex[0] = order_next[0:2]; ex[2] = order_next[2:4]; ex[3] = sig + ["s_mov_b32 s%d, %d" % (sInc, REDSZ)]
            if ks == 4:
                ex[0] = [chk]
                ex[2] = order_next[4:6] + ["s_cselect_b64 vcc, vcc, 0"]
                ex[3] = ["s_cbranch_vccnz L_spb%d" % ph, "L_spb%d_r:" % ph, "s_mul_i32 s%d, s%d, %d" % (sBase, sCur, 0 if o["hsame"] else o["hs"]),
                         "s_cmp_ge_u32 s%d, s%d" % (sIt, sNb), "s_cselect_b32 s%d, 0x%x, s%d" % (sBase, OOB, sBase), "s_add_u32 s%d, s%d, s%d" % (sHcur, sBase, sO0)]
            weave(a, M, ex)
        if PROF and "p2st" in o["dbg"]:
            for b in ((1, 3) if ph == 0 else (2,)):
                a("s_cmp_lg_u32 s%d, %d", sIt, b); a("s_cbranch_scc1 L_ps%d", b); a("s_memtime s[%d:%d]", 64 + 2 * b, 65 + 2 * b); a.label("L_ps%d" % b)
        a("s_add_u32 s%d, s%d, 1", sIt, sIt); a("s_cmp_le_u32 s%d, s%d", sIt, sNb); a("s_nop 1")
        a(W[0]); a(W[1])
    a(".p2align 3")
    a.label("L_p2")
    trip(0)
    a("s_cbranch_scc0 L_p2e")
    a(".p2align 3")
    trip(4)
    a("s_cbranch_scc1 L_p2")
    a.label("L_p2e")
    a(W[2]); a(W[3])
    for e in sig: a(e)
    stamp()
    if PROF and "p1st" in o["dbg"]:
        a("s_mov_b32 s70, s84"); a("s_mov_b32 s72, s86")
    pad_to(NSTAMP)
    if PROF and "gst" in o["dbg"]:
        a("s_mov_b32 s76, s84"); a("s_mov_b32 s78, s86")
    if PROF: a("s_branch L_fin")
    else: a("s_endpgm")
    for ph in (0, 4):
        a.label("L_spb%d" % ph)
        spin("L_spb%dl" % ph, pollB)
        a("s_branch L_spb%d_r", ph)
    a.label("L_fin")
    if PROF:
        n = NSTAMP
        a("s_waitcnt vmcnt(0)")
        a("s_memtime s[%d:%d]", 64 + 2 * n, 65 + 2 * n); a("s_memrealtime s[62:63]"); a("s_waitcnt lgkmcnt(0)")
        a("s_add_u32 s8, s54, %d", 128 << 20); a("s_addc_u32 s9, s55, 0"); a("s_mov_b32 s10, 0x100000"); a("s_mov_b32 s11, 0x20000")
        a("s_lshl_b32 s28, s2, 3"); a("s_add_u32 s28, s28, s%d", sWv); a("s_lshl_b32 s28, s28, 6")
        a("v_mov_b32 v0, s28")
        a("s_getreg_b32 s29, hwreg(HW_REG_XCC_ID)")
        vals = ["s60", "s62", "s29"] + ["s%d" % (64 + 2 * i) for i in range(n + 1)]
        vals += ["0"] * (16 - len(vals))
        for i, v in enumerate(vals): a("v_mov_b32 v%d, %s", 4 + i, v)
        a("s_mov_b64 exec, 1")
        for i in range(4): a("buffer_store_dwordx4 v[%d:%d], v0, s[8:11], 0 offen offset:%d", 4 + 4 * i, 7 + 4 * i, 16 * i)
    if PROF and o.get("probe") is not None:
        pw, pv, pi = o["probe"]
        a("s_cmp_lg_u32 s2, %d", pw); a("s_cbranch_scc1 L_end")
        a("s_cmp_lg_u32 s%d, %d", sWv, pv); a("s_cbranch_scc1 L_end")
        a("s_sub_u32 s30, s%d, s64", 64 + 2 * pi); a("s_lshl_b32 s30, s30, 2"); a("s_add_u32 s30, s30, 300")
        a("s_min_u32 s30, s30, 20000")
        a.label("L_spin")
        a("s_memrealtime s[32:33]"); a("s_waitcnt lgkmcnt(0)")
        a("s_sub_u32 s32, s32, s62"); a("s_cmp_lt_u32 s32, s30"); a("s_cbranch_scc1 L_spin")
    a.label("L_end")
    a("s_endpgm")
    a.label("L_codeend")
    if "rt" in o["dbg"].split(): a.L = [l.replace("s_memtime", "s_memrealtime") for l in a.L]
    s = HEAD + "; @launch grid=(256,1,1) block=(512,1,1) lds=163840\n"
    s += '.amdgcn_target "amdgcn-amd-amdhsa--gfx950"\n.text\n'
    n = NAME + "_kernel"
    s += ".globl %s\n.p2align 8\n.type %s,@function\n%s:\n%s" % (n, n, n, a.text())
    s += '''.section .rodata,"a"
.p2align 6
.amdhsa_kernel %s
  .amdhsa_next_free_vgpr 256
  .amdhsa_next_free_sgpr 102
  .amdhsa_accum_offset 128
  .amdhsa_group_segment_fixed_size 0
  .amdhsa_kernarg_size 64
  .amdhsa_user_sgpr_count 2
  .amdhsa_user_sgpr_kernarg_segment_ptr 1
  .amdhsa_system_sgpr_workgroup_id_x 1
  .amdhsa_float_denorm_mode_32 3
  .amdhsa_float_denorm_mode_16_64 3
.end_amdhsa_kernel
''' % n
    return s
if __name__ == "__main__":
    kw = json.loads(sys.argv[2]) if len(sys.argv) > 2 else {}
    open(sys.argv[1], "w").write(gen(**kw))
```

```python
import struct, sys, json
def f2u(x): return struct.unpack("<I", struct.pack("<f", x))[0]
C0 = -2.0 * 0.7978845608028654 * 1.4426950408889634
C1 = C0 * 0.044715
NAME = "standalone__dense_activation_gelu__prompt"
HEAD = open("cdna_kernels/%s.s.ref" % NAME).read().split("; Override launch geometry")[0]
FLAGOFF = 8 << 20
OOB = 0x7f000000
DEF = dict(prof=False, a1=4, a2=4, rot1="x", pf=(1, 10), w2pf=True, hst="sc1", ost="", dist=7, spin=200000, codepf=True,
           out=8, prio=1, hsame=False, psleep=0, dbg="", gpace=1, gpend=7, rsleep=1, p2prio=1, swap46=False, krot=True, hdelay=0,
           pollg=11, puba=8, nsl=3, hs=49152, lprio=0, ng=9, swapx=True, rotx=0, hbal=False, pad=0xD00, lay="EHW|CR", tmap="min6", alt=0, light=0, snake=True, barpos=16, nw=2, bp=0, fl=1, kks=(0, 1, 2, 3, 4, 5))

class A:
    def __init__(self): self.L = []
    def __call__(self, s, *args): self.L.append("    " + (s % args if args else s))
    def label(self, s): self.L.append(s + ":")
    def text(self): return "\n".join(self.L) + "\n"

def weave(a, main, extra):
    for i, m in enumerate(main):
        a(m)
        for e in extra.get(i, []): a(e)

def make_table(o):
    T = {}
    for x in range(8):
        par, q = x & 1, x >> 1
        tiles = []
        if o["a2"] == 8:
            par = 0
            if o["tmap"] == "cur":
                for i in range(32):
                    dl, rb, n = i >> 1, 6 + 5 * (i & 1), 5
                    if i >= 16: dl, rb, n = (i >> 2) + 4, 4 * (i & 3), 4
                    if i >= 24: dl, rb, n = i - 24, 0, 6
                    tiles.append((dl, rb + 16 * x, n))
            else:
                four = {0: (0, 4), 1: (1, 5), 2: (2, 6), 3: (3, 7), 4: (0, 4), 5: (2, 6), 6: (1,), 7: (3,), 8: (5,), 9: (7,)}
                six = {6: (3, 5, 7), 7: (0, 5, 7), 8: (1, 2, 6), 9: (1, 3, 4)}
                for dl in range(10):
                    c = lambda k: 4 if k in four[dl] else 3
                    d = lambda k: (-1 if (dl < 6 and k in four[dl]) else (1 if k in six.get(dl, ()) else 0))
                    rb = sum(5 * c(k) + d(k) for k in range(x))
                    for k in range(c(x)):
                        n = 5 + (d(x) if k == 0 else 0)
                        tiles.append((dl, rb, n)); rb += n
                t6 = [t for t in tiles if t[2] == 6]; t4 = [t for t in tiles if t[2] == 4]; t5 = [t for t in tiles if t[2] == 5]
                nh = 8 - len(t6) - len(t4)
                tiles = t5[nh:] + t4 + t5[:nh] + t6
        elif o["tmap"] == "cur":
            for i in range(32):
                dl, rb, n = i >> 2, 12 + 5 * (i & 3), 5
                if i >= 20: dl, rb, n = 3 + (i & 1), ((i - 20) >> 1) * 4, 4
                if i >= 26: dl, rb, n = (i - 26) >> 1, 6 * (i & 1), 6
                tiles.append((dl, rb + 32 * q, n))
        else:
            cnt = [[7, 6, 7, 6], [6, 7, 6, 7], [7, 6, 6, 7], [6, 7, 6, 6], [6, 6, 7, 6]]
            odd = [[-1, 0, -1, 0], [0, -1, 0, -1], [-1, 0, 0, -1], [1, 0, 1, 1], [1, 1, 0, 1]]
            for dl in range(5):
                rb = sum(5 * cnt[dl][k] + odd[dl][k] for k in range(q))
                for k in range(cnt[dl][q]):
                    n = 5 + (odd[dl][q] if k == 0 else 0)
                    tiles.append((dl, rb, n)); rb += n
            t6 = [t for t in tiles if t[2] == 6]; t4 = [t for t in tiles if t[2] == 4]; t5 = [t for t in tiles if t[2] == 5]
            nh = 8 - len(t6) - len(t4)
            tiles = t5[nh:] + t4 + t5[:nh] + t6
        assert len(tiles) == 32
        for i, (dl, rb, n) in enumerate(tiles):
            E = [b for b in range(rb, rb + n) if not b & 2]; Lt = [b for b in range(rb, rb + n) if b & 2]
            if o["alt"] == 1 and dl & 1: E.reverse(); Lt.reverse()
            if o["alt"] == 2:
                r = dl % len(E); E = E[r:] + E[:r]; r = dl % len(Lt); Lt = Lt[r:] + Lt[:r]
            T[x + 8 * i] = (dl + 5 * par, rb, E + Lt)
    cov = set()
    W = []
    for wg in range(256):
        dl, rb, seq = T[wg]
        for b in seq:
            assert (dl, b) not in cov; cov.add((dl, b))
        w = dl | (rb << 4) | (len(seq) << 11)
        for k, b in enumerate(seq): w |= (b - rb) << (14 + 3 * k)
        W.append(w)
    assert len(cov) == 1280
    return W

def gen(**kw):
    o = dict(DEF); o.update(kw)
    a = A()
    PROF = o["prof"]
    nst = [1]
    def stamp():
        if not PROF: return
        a("s_memtime s[%d:%d]", 64 + 2 * nst[0], 65 + 2 * nst[0]); nst[0] += 1
        a("s_waitcnt lgkmcnt(0)")
    def pad_to(n):
        assert nst[0] <= n, nst[0]
        while PROF and nst[0] < n: stamp()
    NSTAMP = 8
    sX, sW1, sW2, sH, sO = 8, 12, 16, 20, 24
    sWv, sXcd, sI, sMT, sFT = 3, 4, 5, 6, 7
    sXoff, sWoff, sM0, sKb, sDelta, sIt, sT, sT2, sT3, sRd = 28, 29, 30, 31, 32, 33, 34, 35, 36, 37
    sC1 = 38
    sNonce = 56
    sRb, sNb, sDl, sG, sGm, sHcur, sCnt, sOst, sNx, sNw, sPw, sW = 58, 59, 92, 93, 94, 95, 96, 97, 98, 99, 100, 101
    sCur, sEnd, sLate, sBase, sO0, sO1, sO2, sInc = 28, 29, 30, 31, 88, 89, 90, 91
    vL, vZ = 1, 2
    vT = 8
    vPl = 4
    vH, vFl, vRw, vCa = 0, 3, 6, 7
    vXd, vWd, vGd, vGr = 16, 20, 24, 56
    RING, A2, B2 = 8, 40, 56
    def w2reg(i): return ("a", 4 * i) if i < 32 else ("v", 64 + 4 * (i - 32))
    vHi, vXr, vWr, vC0, vONE, vHst = 3, 16, 20, 22, 24, 26
    vRr, vOst, vB2 = 6, 7, 28
    ACC, TMP, OUT = 32, 96, 112
    RD = 32
    NSL = o["nsl"]; REDSZ = 17408; SYNC = 9 * REDSZ
    SLO = [REDSZ, 2 * REDSZ, 3 * REDSZ, 0]
    SLOT = 32768; S = 3
    def srd(d, lo, nbytes):
        a("s_mov_b64 s[%d:%d], s[%d:%d]", d, d + 1, lo, lo + 1)
        a("s_mov_b32 s%d, %d", d + 2, nbytes); a("s_mov_b32 s%d, 0x20000", d + 3)
    def mod3(dst, src):
        a("s_mul_i32 s%d, s%d, 86", sT, src); a("s_lshr_b32 s%d, s%d, 8", sT, sT); a("s_mul_i32 s%d, s%d, 3", sT, sT); a("s_sub_u32 s%d, s%d, s%d", dst, src, sT)
    def krot(dst):
        if o["krot"]:
            if o["a2"] == 4: a("s_lshr_b32 s%d, s%d, 1", dst, sXcd); a("s_cmp_eq_u32 s%d, 3", dst); a("s_cselect_b32 s%d, 0, s%d", dst, dst)
            else: mod3(dst, sXcd)
        else: a("s_mov_b32 s%d, 0", dst)

    a("s_load_dwordx16 s[40:55], s[0:1], 0")
    a("s_cmp_ge_u32 s2, 256"); a("s_cbranch_scc1 L_end")
    if PROF:
        a("s_memrealtime s[60:61]"); a("s_memtime s[64:65]")
    a("v_lshrrev_b32 v%d, 6, v0", vT)
    a("v_and_b32 v%d, 63, v0", vL)
    a("v_readfirstlane_b32 s%d, v%d", sWv, vT)
    a("s_and_b32 s%d, s2, 7", sXcd); a("s_lshr_b32 s%d, s2, 3", sI)
    a("v_lshrrev_b32 v%d, 3, v%d", vT, vL)
    a("v_and_b32 v%d, 7, v%d", vT + 1, vL)
    a("v_lshrrev_b32 v%d, 1, v%d", vT + 2, vT)
    a("v_mov_b32 v%d, 0", vZ)
    a("s_and_b32 s%d, s%d, 3", sW, sWv)
    if o["rotx"] == 0: a("s_mul_i32 s%d, s%d, 10", sKb, sXcd); a("s_lshr_b32 s%d, s%d, 3", sKb, sKb)
    else:
        tab = {1: [0, 5, 2, 7, 5, 0, 7, 2], 2: [0, 5, 3, 8, 5, 0, 8, 3], 3: [0, 6, 2, 8, 5, 1, 7, 3]}[o["rotx"]]
        a("s_lshl_b32 s%d, s%d, 2", sKb, sXcd); a("s_lshr_b32 s%d, 0x%x, s%d", sKb, sum(v << (4 * i) for i, v in enumerate(tab)), sKb); a("s_and_b32 s%d, s%d, 15", sKb, sKb)
    a("s_mov_b32 s%d, %d", sX + 2, 2048 * 640 * 2); a("s_mov_b32 s%d, 0x20000", sX + 3)
    a("s_mov_b32 s%d, %d", sW1 + 2, 640 * 1536 * 2); a("s_mov_b32 s%d, 0x20000", sW1 + 3)
    a("s_cmp_ge_u32 s%d, 24", sI); a("s_cbranch_scc1 L_helper")
    if o["a1"] == 4:
        a("s_lshr_b32 s%d, s%d, 1", sMT, sXcd); a("s_lshl_b32 s%d, s%d, 2", sMT, sMT)
        a("s_and_b32 s%d, s%d, 3", sT, sI); a("s_add_u32 s%d, s%d, s%d", sMT, sMT, sT)
        a("s_and_b32 s%d, s%d, 1", sFT, sXcd); a("s_mul_i32 s%d, s%d, 6", sFT, sFT)
        a("s_lshr_b32 s%d, s%d, 2", sT2, sI); a("s_add_u32 s%d, s%d, s%d", sFT, sFT, sT2)
    else:
        a("s_lshl_b32 s%d, s%d, 1", sMT, sXcd); a("s_and_b32 s%d, s%d, 1", sT, sI); a("s_add_u32 s%d, s%d, s%d", sMT, sMT, sT)
        a("s_lshr_b32 s%d, s%d, 1", sT2, sI); a("s_mov_b32 s%d, s%d", sFT, sT2)
    a("s_cmp_lt_u32 s%d, 4", sWv); a("s_cbranch_scc0 L_ldr")
    a("v_and_b32 v%d, 15, v%d", vT + 3, vL)
    a("v_lshlrev_b32 v%d, 1, v%d", vT + 5, vT + 3)
    a("s_bfe_u32 s%d, s%d, 0x10000", sT, sW); a("s_lshl1_add_u32 s%d, s%d, s%d", sT3, sFT, sT); a("s_lshl_b32 s%d, s%d, 7", sT3, sT3)
    a("s_movk_i32 s%d, %d", sO + 2, 1536 * 2); a("s_mov_b32 s%d, s%d", sO + 3, sX + 3)
    a("s_waitcnt lgkmcnt(0)")
    a("s_mov_b64 s[%d:%d], s[44:45]", sO, sO + 1)
    for f in range(4): a("buffer_load_ushort v%d, v%d, s[%d:%d], s%d offen offset:%d", TMP + 4 * f, vT + 5, sO, sO + 3, sT3, 32 * f)
    a("s_branch L_comp")
    a.label("L_ldr")

    sTab = 83
    def tab_load(lab):
        a("s_getpc_b64 s[%d:%d]", sT, sT + 1)
        a.label(lab)
        a("s_add_u32 s%d, s%d, L_table-%s", sT, sT, lab); a("s_addc_u32 s%d, s%d, 0", sT + 1, sT + 1)
        a("s_lshl_b32 s%d, s2, 2", sTab)
        a("s_load_dword s%d, s[%d:%d], s%d", sTab, sT, sT + 1, sTab)
    def tile_assign():
        a("s_and_b32 s%d, s%d, 15", sDl, sTab); a("s_bfe_u32 s%d, s%d, 0x70004", sRb, sTab); a("s_bfe_u32 s%d, s%d, 0x3000b", sNb, sTab)
        a("s_lshr_b32 s%d, s%d, 14", sTab, sTab)
    def order_init():
        a("s_add_u32 s%d, s%d, s%d", sEnd, sRb, sNb)
        a("s_and_b32 s%d, s%d, 7", sCur, sTab); a("s_add_u32 s%d, s%d, s%d", sCur, sCur, sRb)
    order_next = ["s_lshr_b32 s%d, s%d, 3" % (sTab, sTab), "s_and_b32 s%d, s%d, 7" % (sCur, sTab), "s_add_u32 s%d, s%d, s%d" % (sCur, sCur, sRb), "s_bitcmp1_b32 s%d, 1" % sCur]
    log = []
    def vmcount(tag):
        idx = max(i for i, t in enumerate(log) if t == tag)
        return len(log) - 1 - idx
    def vmwait(tag): return "s_waitcnt vmcnt(%d)" % vmcount(tag)
    nload = "buffer_load_dwordx2 v[%d:%d], v%d, s[%d:%d], 0 offen sc1" % (vPl, vPl + 1, vZ, sO, sO + 3)
    def get_nonce(lab):
        a("s_mov_b32 s%d, 0", sIt)
        a.label(lab)
        a("v_readfirstlane_b32 s%d, v%d", sNonce, vPl); a("v_readfirstlane_b32 s%d, v%d", sNonce + 1, vPl + 1)
        a("s_add_u32 s%d, s%d, 1", sIt, sIt); a("s_nop 1")
        a("s_cmp_lg_u32 s%d, 0", sNonce + 1); a("s_cbranch_scc1 %s_ok", lab)
        a("s_cmp_gt_u32 s%d, %d", sIt, o["spin"]); a("s_cbranch_scc1 %s_ok", lab)
        a(nload); a("s_waitcnt vmcnt(0)"); a("s_branch %s", lab)
        a.label(lab + "_ok")

    a("s_add_u32 s%d, s%d, s%d", sRd, sT, sT2)
    if o["rot1"] == "3":
        a("s_add_u32 s%d, s%d, s%d", sKb, sT, sT2); mod3(sKb, sKb)
        a("s_mul_i32 s%d, s%d, 3", sKb, sKb); a("s_add_u32 s%d, s%d, s%d", sKb, sKb, sXcd)
        a("s_cmp_ge_u32 s%d, 10", sKb); a("s_cselect_b32 s%d, 10, 0", sT); a("s_sub_u32 s%d, s%d, s%d", sKb, sKb, sT)
    a("v_xor_b32 v%d, v%d, v%d", vT + 3, vT + 1, vT + 2)
    a("v_mul_u32_u24 v%d, 1280, v%d", vT + 4, vT)
    a("v_lshl_add_u32 v%d, v%d, 4, v%d", vXd, vT + 3, vT + 4)
    a("v_xor_b32 v%d, 64, v%d", vXd + 3, vXd)
    a("v_add_u32 v%d, %d, v%d", vXd + 2, 2 * (8 * 1280 - 1024), vXd)
    a("v_add_u32 v%d, %d, v%d", vXd + 1, 1 * (8 * 1280 - 1024), vXd + 3)
    a("v_add_u32 v%d, %d, v%d", vXd + 3, 3 * (8 * 1280 - 1024), vXd + 3)
    a("s_lshl_b32 s%d, s%d, 2", sXoff, sMT); a("s_add_u32 s%d, s%d, s%d", sXoff, sXoff, sW)
    a("s_mul_i32 s%d, s%d, %d", sXoff, sXoff, 32 * 1280); a("s_lshl_b32 s%d, s%d, 7", sT, sKb); a("s_add_u32 s%d, s%d, s%d", sXoff, sXoff, sT)
    a("s_lshl_b32 s%d, s%d, 12", sM0, sW)
    a("v_and_b32 v%d, 1, v%d", vT + 3, vT + 2)
    a("v_lshlrev_b32 v%d, 1, v%d", vT + 3, vT + 3)
    a("v_xor_b32 v%d, v%d, v%d", vT + 3, vT + 1, vT + 3)
    a("v_mul_u32_u24 v%d, 3072, v%d", vWd, vT)
    a("v_lshl_add_u32 v%d, v%d, 4, v%d", vWd, vT + 3, vWd)
    a("v_xor_b32 v%d, 64, v%d", vWd + 3, vWd)
    a("v_add_u32 v%d, %d, v%d", vWd + 2, 2 * (8 * 3072 - 1024), vWd)
    a("v_add_u32 v%d, %d, v%d", vWd + 1, 1 * (8 * 3072 - 1024), vWd + 3)
    a("v_add_u32 v%d, %d, v%d", vWd + 3, 3 * (8 * 3072 - 1024), vWd + 3)
    a("s_lshl_b32 s%d, s%d, 1", sWoff, sFT); a("s_lshr_b32 s%d, s%d, 1", sT, sW); a("s_add_u32 s%d, s%d, s%d", sWoff, sWoff, sT); a("s_lshl_b32 s%d, s%d, 7", sWoff, sWoff)
    a("s_lshl_b32 s%d, s%d, 1", sT, sKb); a("s_and_b32 s%d, s%d, 1", sT2, sW); a("s_add_u32 s%d, s%d, s%d", sT, sT, sT2)
    a("s_mul_i32 s%d, s%d, %d", sT, sT, 32 * 3072); a("s_add_u32 s%d, s%d, s%d", sWoff, sWoff, sT)
    sSa, sSb, sMb = sG, sGm, sHcur
    a("s_movk_i32 s%d, %d", sNx, 128 - 1280); a("s_mov_b32 s%d, %d", sNw, (-9 * 64 * 3072) & 0xffffffff)
    a("s_movk_i32 s%d, 128", sSa); a("s_mov_b32 s%d, %d", sSb, 64 * 3072)
    a("s_movk_i32 s%d, 16384", sMb)
    a("s_mov_b32 s%d, -1", sIt)
    if o["swapx"]:
        a("s_bitcmp1_b32 s%d, 0", sRd); a("s_cbranch_scc0 L_nosw")
        for i in range(4): a("v_swap_b32 v%d, v%d", vXd + i, vWd + i)
        for x, y in ((sNx, sNw), (sSa, sSb), (sXoff, sWoff), (sX + 2, sW1 + 2)):
            a("s_mov_b32 s%d, s%d", sT, x); a("s_mov_b32 s%d, s%d", x, y); a("s_mov_b32 s%d, s%d", y, sT)
        a("s_movk_i32 s%d, -16384", sMb); a("s_addk_i32 s%d, 16384", sM0)
        a.label("L_nosw")
        a("s_bitcmp1_b32 s%d, 0", sRd)
    else: a("s_cmp_eq_u32 s%d, 0", sIt)
    a("s_mov_b32 m0, s%d", sM0)
    a("s_waitcnt lgkmcnt(0)")
    a("s_cselect_b64 s[%d:%d], s[42:43], s[40:41]", sX, sX + 1); a("s_cselect_b64 s[%d:%d], s[40:41], s[42:43]", sW1, sW1 + 1)
    def dma(i):
        if "nodma" in o["dbg"]: return "s_nop 0"
        if i < 4: return "buffer_load_dwordx4 v%d, s[%d:%d], s%d offen offset:%d lds" % (vXd + i, sX, sX + 3, sXoff, 1024 * i)
        return "buffer_load_dwordx4 v%d, s[%d:%d], s%d offen offset:%d lds" % (vWd + i - 4, sW1, sW1 + 3, sWoff, 1024 * (i - 4))
    stamp()
    a.label("L_ld")
    for i in range(4): a(dma(i))
    a("s_add_u32 m0, s%d, s%d", sM0, sMb)
    a("s_add_u32 s%d, s%d, 1", sKb, sKb); a("s_cmp_eq_u32 s%d, 10", sKb)
    a("s_cselect_b32 s%d, s%d, s%d", sDelta, sNx, sSa); a("s_cselect_b32 s%d, s%d, s%d", sPw, sNw, sSb); a("s_cselect_b32 s%d, 0, s%d", sKb, sKb)
    if "nold" in o["dbg"]: a("s_mov_b64 exec, 1")
    for i in range(4, 8): a(dma(i))
    if "nold" in o["dbg"]: a("s_mov_b64 exec, -1")
    a("s_add_u32 s%d, s%d, s%d", sXoff, sXoff, sDelta); a("s_add_u32 s%d, s%d, s%d", sWoff, sWoff, sPw)
    a("s_add_u32 s%d, s%d, %d", sM0, sM0, SLOT); a("s_cmp_ge_u32 s%d, %d", sM0, S * SLOT)
    a("s_cselect_b32 s%d, %d, 0", sT, S * SLOT); a("s_sub_u32 s%d, s%d, s%d", sM0, sM0, sT); a("s_mov_b32 m0, s%d", sM0)
    a("s_add_u32 s%d, s%d, 1", sIt, sIt)
    a("s_cbranch_scc1 L_ld")
    a("s_cmp_lg_u32 s%d, 1", sIt); a("s_cbranch_scc1 L_not")
    tab_load("L_t0")
    a.label("L_not")
    a("s_cmp_lt_u32 s%d, 9", sIt)
    a("s_waitcnt vmcnt(8)"); a("s_barrier")
    if PROF and "p1st" in o["dbg"]:
        a("s_cselect_b32 s%d, 1, 0", sT)
        for b, r in ((1, 3), (5, 4)):
            a("s_cmp_lg_u32 s%d, %d", sIt, b); a("s_cbranch_scc1 L_ld_s%d", b); a("s_memtime s[%d:%d]", 78 + 2 * r, 79 + 2 * r); a.label("L_ld_s%d" % b)
        a("s_cmp_eq_u32 s%d, 1", sT)
    a("s_cbranch_scc1 L_ld")
    a("s_mov_b32 s%d, 1", sCnt)
    a("s_branch L_lw")
    nst[0] = 1

    a.L.append("@H")
    a.label("L_helper")
    a("s_cmp_lt_u32 s%d, 4", sWv); a("s_cbranch_scc0 L_hl")
    a("v_mul_u32_u24 v%d, 1280, v%d", vXd, vL); a("v_mul_u32_u24 v%d, 3072, v%d", vWd, vL)
    a("s_sub_u32 s%d, s%d, 24", sM0, sI); a("s_lshl_b32 s%d, s%d, 2", sM0, sM0); a("s_add_u32 s%d, s%d, s%d", sM0, sM0, sWv)
    k0, k1 = o["pf"]
    if k1 > k0:
        nx, nw = (8, 12) if o["a1"] == 4 else (4, 24)
        per = nx + nw; tot = per * (k1 - k0)
        magic = (65536 + per - 1) // per
        assert all((n * magic) >> 16 == n // per for n in range(tot + 64)) and tot >= 32
        a("s_mov_b32 s%d, s%d", sIt, sM0)
        a("s_add_u32 s%d, s%d, %d", sKb, sKb, k0)
        if o["a1"] == 4:
            a("s_lshr_b32 s%d, s%d, 1", sXoff, sXcd); a("s_mul_i32 s%d, s%d, %d", sXoff, sXoff, 512 * 1280)
            a("s_and_b32 s%d, s%d, 1", sWoff, sXcd); a("s_mul_i32 s%d, s%d, 1536", sWoff, sWoff)
        else:
            a("s_mul_i32 s%d, s%d, %d", sXoff, sXcd, 256 * 1280); a("s_mov_b32 s%d, 0", sWoff)
        a("s_sub_u32 s%d, s%d, %d", sWoff, sWoff, nx * 128)
    a("s_waitcnt lgkmcnt(0)")
    a("s_mov_b64 s[%d:%d], s[40:41]", sX, sX + 1); a("s_mov_b64 s[%d:%d], s[42:43]", sW1, sW1 + 1)
    if k1 > k0:
        a.label("L_pf")
        a("s_mul_i32 s%d, s%d, %d", sT, sIt, magic); a("s_lshr_b32 s%d, s%d, 16", sT, sT)
        a("s_mul_i32 s%d, s%d, %d", sT2, sT, per); a("s_sub_u32 s%d, s%d, s%d", sT2, sIt, sT2)
        a("s_add_u32 s%d, s%d, s%d", sT, sT, sKb)
        a("s_cmp_ge_u32 s%d, 10", sT); a("s_cselect_b32 s%d, 10, 0", sT3); a("s_sub_u32 s%d, s%d, s%d", sT, sT, sT3)
        a("s_cmp_ge_u32 s%d, %d", sT2, nx); a("s_cbranch_scc1 L_pfw")
        a("s_mul_i32 s%d, s%d, %d", sT2, sT2, 64 * 1280); a("s_lshl_b32 s%d, s%d, 7", sT, sT); a("s_add_u32 s%d, s%d, s%d", sT, sT, sT2); a("s_add_u32 s%d, s%d, s%d", sT, sT, sXoff)
        a("buffer_load_dword v%d, v%d, s[%d:%d], s%d offen", TMP, vXd, sX, sX + 3, sT)
        a("s_branch L_pfn")
        a.label("L_pfw")
        a("s_lshl_b32 s%d, s%d, 7", sT2, sT2); a("s_mul_i32 s%d, s%d, %d", sT, sT, 64 * 3072); a("s_add_u32 s%d, s%d, s%d", sT, sT, sT2); a("s_add_u32 s%d, s%d, s%d", sT, sT, sWoff)
        a("buffer_load_dword v%d, v%d, s[%d:%d], s%d offen", TMP, vWd, sW1, sW1 + 3, sT)
        a.label("L_pfn")
        a("s_add_u32 s%d, s%d, 32", sIt, sIt); a("s_cmp_lt_u32 s%d, %d", sIt, tot); a("s_cbranch_scc1 L_pf")
    stamp()
    a("s_branch L_hc2")
    a.label("L_hl")
    if o["codepf"]:
        a("s_getpc_b64 s[%d:%d]", sT, sT + 1)
        a("s_sub_u32 s%d, s%d, L_hl-%s_kernel+4", sT, sT, NAME); a("s_subb_u32 s%d, s%d, 0", sT + 1, sT + 1)
        a("v_and_b32 v%d, 255, v0", vT + 3)
        a("v_lshlrev_b32 v%d, 7, v%d", vT + 3, vT + 3)
        a("v_cmp_gt_u32 vcc, L_codeend-%s_kernel, v%d", NAME, vT + 3)
        a("s_and_saveexec_b64 s[%d:%d], vcc", sC1, sC1 + 1)
        a("s_cbranch_execz L_nocode")
        a("s_cmp_lg_u32 s%d, 24", sI); a("s_cbranch_scc1 L_nocode")
        a("global_load_dword v%d, v%d, s[%d:%d]", A2, vT + 3, sT, sT + 1)
        a.label("L_nocode")
        a("s_mov_b64 exec, -1")
    a("s_memrealtime s[%d:%d]", sNonce, sNonce + 1)
    a("v_lshlrev_b32 v%d, 2, v%d", vT + 4, vL)
    a("v_add_u32 v%d, %d, v%d", vT + 4, SYNC, vT + 4)
    for r in range(5): a("ds_write_b32 v%d, v%d offset:%d", vT + 4, vZ, 256 * r)
    a("s_mov_b32 s%d, 0", sCnt)
    a("s_waitcnt lgkmcnt(0)")
    tab_load("L_t3")
    a("s_cmp_lg_u32 s2, 255"); a("s_cbranch_scc1 L_nolead")
    a("s_cmp_lg_u32 s%d, 4", sWv); a("s_cbranch_scc1 L_nolead")
    a("s_or_b32 s%d, s%d, 0x80000000", sNonce + 1, sNonce + 1)
    a("s_atomic_add_x2 s[%d:%d], s[52:53], 0", sNonce, sNonce + 1)
    a.label("L_nolead")
    a("s_barrier")
    nst[0] = 1; stamp()
    a("s_branch L_lw")

    a.L.append("@C")
    nst[0] = 1
    a.label("L_comp")
    FR = 0
    tab_load("L_t1")
    vXr, vWr = 16, 18
    for f in range(4):
        for r in range(1, 4): a("v_mov_b32 v%d, 0", TMP + 4 * f + r)
    for r in range(1, 4): a("v_mov_b32 v%d, 0", vB2 + r)
    a("v_lshrrev_b32 v%d, 4, v%d", vHi, vL)
    a("v_mov_b32 v%d, 0x3f80", vT + 5)
    a("v_cmp_eq_u32 vcc, 0, v%d", vHi)
    a("s_lshr_b32 s%d, s%d, 1", sT, sW); a("s_lshl_b32 s%d, s%d, 6", sT, sT)
    a("v_add_u32 v%d, s%d, v%d", vT + 3, sT, vT + 3)
    a("v_lshlrev_b32 v%d, 7, v%d", vT + 3, vT + 3)
    a("v_bfe_u32 v%d, v%d, 1, 3", vT + 4, vL)
    a("v_xor_b32 v%d, v%d, v%d", vT + 4, vT + 4, vHi)
    a("v_lshl_add_u32 v%d, v%d, 4, v%d", vXr, vT + 4, vT + 3)
    a("v_xor_b32 v%d, 64, v%d", vXr + 1, vXr)
    a("v_bfe_u32 v%d, v%d, 2, 2", vT + 3, vL)
    a("v_lshl_add_u32 v%d, v%d, 3, v%d", vT + 3, vHi, vT + 3)
    a("v_lshlrev_b32 v%d, 7, v%d", vT + 3, vT + 3)
    a("v_bfe_u32 v%d, v%d, 3, 2", vT + 4, vL)
    a("v_lshl_add_u32 v%d, v%d, 5, v%d", vT + 3, vT + 4, vT + 3)
    a("v_and_b32 v%d, 3, v%d", vT + 4, vL)
    a("v_lshl_add_u32 v%d, v%d, 3, v%d", vT + 3, vT + 4, vT + 3)
    a("s_and_b32 s%d, s%d, 1", sT, sW); a("s_lshl_b32 s%d, s%d, 13", sT, sT); a("s_add_u32 s%d, s%d, 16384", sT, sT)
    a("v_add_u32 v%d, s%d, v%d", vWr, sT, vT + 3)
    for f in range(1, 4): a("v_xor_b32 v%d, %d, v%d", vWr + f, 32 * f, vWr)
    a("v_lshlrev_b32 v%d, 2, v%d", vT + 4, vL)
    a("v_add_u32 v%d, %d, v%d", vT + 4, SYNC, vT + 4)
    for r in range(5): a("ds_write_b32 v%d, v%d offset:%d", vT + 4, vZ, 256 * r)
    a("v_cndmask_b32 v%d, 0, v%d, vcc", vB2, vT + 5)
    a("v_mov_b32 v%d, 0x%x", vC0, f2u(C0)); a("v_mov_b32 v%d, v%d", vC0 + 1, vC0)
    a("v_mov_b32 v%d, 1.0", vONE); a("v_mov_b32 v%d, 1.0", vONE + 1)
    a("s_mov_b32 s%d, 0x%x", sC1, f2u(C1)); a("s_mov_b32 s%d, s%d", sC1 + 1, sC1)
    srd(sH, 54, FLAGOFF + 131072)
    a("s_lshl_b32 s%d, s%d, 1", sT, sMT); a("s_lshr_b32 s%d, s%d, 1", sT2, sW); a("s_add_u32 s%d, s%d, s%d", sT, sT, sT2); a("s_mul_i32 s%d, s%d, %d", sT, sT, 4 * o["hs"])
    a("s_lshl_b32 s%d, s%d, 4", sT3, sT3)
    a("s_add_u32 s%d, s%d, s%d", sXoff, sT, sT3)
    a("v_lshlrev_b32 v%d, 4, v%d", vHst, vL)
    a("s_mul_i32 s%d, s%d, 12", sG, sMT); a("s_add_u32 s%d, s%d, s%d", sG, sG, sFT); a("s_lshl_b32 s%d, s%d, 9", sG, sG); a("s_add_u32 s%d, s%d, %d", sG, sG, FLAGOFF)
    a("v_mov_b32 v%d, 1", vT); a("v_mov_b32 v%d, %d", vT + 1, SYNC); a("v_lshlrev_b32 v%d, 3, v%d", vT + 2, vL)
    a("s_mov_b32 s%d, 0", sRd); a("s_mov_b32 s%d, 0", sIt)
    a("s_mov_b32 s%d, %d", sPw, (-(S - 1) * SLOT) & 0xffffffff)
    if o["prio"]: a("s_setprio %d", o["prio"])
    a("s_waitcnt vmcnt(0) lgkmcnt(0)")
    for m in range(4):
        for f in range(4):
            r = ACC + (m * 4 + f) * 4
            a("v_mfma_f32_16x16x32_bf16 v[%d:%d], v[%d:%d], v[%d:%d], 0", r, r + 3, TMP + 4 * f, TMP + 4 * f + 3, vB2, vB2 + 3)
    srd(sO, 52, 256)
    stamp()
    a("s_barrier")
    stamp()
    def reads(s):
        b = 32 * s
        w = lambda f, u: "ds_read_b64_tr_b16 a[%d:%d], v%d offset:%d" % (b + 4 * f + 2 * u, b + 4 * f + 2 * u + 1, vWr + f, s * 4096 + u * 512)
        x = lambda m: "ds_read_b128 a[%d:%d], v%d offset:%d" % (b + 16 + 4 * m, b + 19 + 4 * m, vXr + s, m * 2048)
        return [w(0, 0), w(0, 1), x(0), x(1), x(2), x(3), w(1, 0), w(1, 1), w(2, 0), w(2, 1), w(3, 0), w(3, 1)]
    def mf(buf, f, m):
        b = 32 * buf; r = ACC + (m * 4 + f) * 4
        return "v_mfma_f32_16x16x32_bf16 v[%d:%d], a[%d:%d], a[%d:%d], v[%d:%d]" % (r, r + 3, b + 4 * f, b + 4 * f + 3, b + 16 + 4 * m, b + 19 + 4 * m, r, r + 3)
    def order(): return [(f, m) for f in range(4) for m in (range(4) if (f % 2 == 0 or not o["snake"]) else range(3, -1, -1))]
    upd = lambda r: "v_add_u32 v%d, s%d, v%d" % (r, sDelta, r)
    slot = ["s_add_u32 s%d, s%d, %d" % (sRd, sRd, SLOT), "s_cmp_ge_u32 s%d, %d" % (sRd, S * SLOT), "s_cselect_b32 s%d, s%d, %d" % (sDelta, sPw, SLOT),
            "s_cselect_b32 s%d, 0, s%d" % (sRd, sRd), upd(vXr), "s_add_u32 s%d, s%d, 1" % (sIt, sIt), "s_cmp_lt_u32 s%d, 10" % sIt]
    for r in reads(0): a(r)
    a("@PRE")
    a("s_branch L_p1m")
    a(".p2align 3")
    a.label("L_p1")
    BP = o["bp"]
    O = order()
    def place(R, gaps, fl):
        d = {g: [] for g in gaps}; i = 0
        for g in gaps:
            if i < len(R): d[g].append(R[i]); i += 1
            if fl and i < len(R) and "tr_b16" in d[g][0] and "tr_b16" in R[i]: d[g].append(R[i]); i += 1
        assert i == len(R)
        return d
    u1 = [upd(vXr + 1), upd(vWr), upd(vWr + 1), upd(vWr + 2), upd(vWr + 3)]
    P0 = place(reads(0), list(range(BP, 16)), o["fl"])
    P1 = place(reads(1), list(range(16)), o["fl"])
    def fill(P, gaps, items):
        items = list(items)
        for g in gaps:
            while items and len(P.setdefault(g, [])) < 2 - (1 if any("b128" in e for e in P[g]) else 0) and not any(q > g and any("ds_read" in e for e in P[q]) for q in P):
                P[g].append(items.pop(0))
        return items
    left = fill(P0, range(BP, 15), slot)
    nleft = len(left)
    pre = slot[:len(slot) - nleft]
    for n in range(BP, 16):
        f, m = O[n]
        a(mf(1, f, m))
        for e in P0.get(n, []): a(e)
    a.label("L_p1m")
    rest = fill(P1, range(16), left[:0] + u1)
    need = {0: 6, 4: 8, 8: 10, 12: 12}
    if o["nw"] == 3: need = {0: 8, 8: 10, 12: 12}
    if o["nw"] == 2: need = {0: 10, 12: 12}
    issued = 0
    for n in range(16):
        f, m = O[n]
        if n in need: a("s_waitcnt lgkmcnt(%d)", min(15, 12 - need[n] + issued))
        a(mf(0, f, m))
        for e in P1.get(n, []):
            a(e); issued += "ds_read" in e
    rest = rest + left
    for n in range(BP):
        f, m = O[n]
        if n in (0, 4): a("s_waitcnt lgkmcnt(%d)", 6 if n == 0 else 4)
        a(mf(1, f, m))
        for _ in range(2):
            if rest and n < BP - 1: a(rest.pop(0))
    for e in rest: a(e)
    a("s_waitcnt lgkmcnt(0)"); a("s_barrier")
    a("s_cbranch_scc1 L_p1")
    for n, (f, m) in enumerate(sorted(O[BP:], key=lambda t: (t[1], t[0]))):
        a(mf(1, f, m))
        if n == 0: a(nload)
    k0_ = a.L.index("    @PRE"); a.L[k0_:k0_ + 1] = ["    " + e for e in pre]
    log[:] = ["n"]
    stamp()
    def gelu_list(acc, tmp, outr, n):
        L = []; P = range(n // 2)
        pk = lambda op, d, x, y: "%s v[%d:%d], v[%d:%d], v[%d:%d]" % (op, d, d + 1, x, x + 1, y, y + 1)
        for p in P: L.append(pk("v_pk_mul_f32", tmp + 2 * p, acc + 2 * p, acc + 2 * p))
        for p in P: L.append("v_pk_fma_f32 v[%d:%d], v[%d:%d], s[%d:%d], v[%d:%d]" % (tmp + 2 * p, tmp + 2 * p + 1, tmp + 2 * p, tmp + 2 * p + 1, sC1, sC1 + 1, vC0, vC0 + 1))
        for p in P: L.append(pk("v_pk_mul_f32", tmp + 2 * p, tmp + 2 * p, acc + 2 * p))
        for i in range(n): L.append("v_exp_f32 v%d, v%d" % (tmp + i, tmp + i))
        for p in P: L.append(pk("v_pk_add_f32", tmp + 2 * p, tmp + 2 * p, vONE))
        for i in range(n): L.append("v_rcp_f32 v%d, v%d" % (tmp + i, tmp + i))
        for p in P: L.append(pk("v_pk_mul_f32", tmp + 2 * p, tmp + 2 * p, acc + 2 * p))
        for p in P: L.append("v_cvt_pk_bf16_f32 v%d, v%d, v%d" % (outr + p, tmp + 2 * p, tmp + 2 * p + 1))
        return L
    def publish(part):
        a(vmwait("st%d" % part))
        a("s_mov_b64 exec, 1")
        a("ds_add_rtn_u32 v%d, v%d, v%d offset:%d", vT + 5, vT + 1, vT, 4 * part)
        a("s_waitcnt lgkmcnt(0)")
        a("v_readfirstlane_b32 s%d, v%d", sT2, vT + 5)
        a("s_mov_b64 exec, 0xffff")
        a("s_nop 0")
        a("s_cmp_lg_u32 s%d, 3", sT2); a("s_cbranch_scc1 L_nopub%d", part)
        a("buffer_store_dwordx2 v[%d:%d], v%d, s[%d:%d], s%d offen offset:%d sc1", vPl, vPl + 1, vT + 2, sH, sH + 3, sG, 256 * part)
        a.label("L_nopub%d" % part)
        a("s_mov_b64 exec, -1")
    a(".p2align 3")
    for hh in range(8):
        ob = OUT + 4 * (hh & 3)
        for e in gelu_list(ACC + 8 * hh, TMP, ob, 8): a(e)
        mt = hh >> 2
        if "nohst" in o["dbg"]: a("s_mov_b64 exec, 1")
        a("buffer_store_dwordx4 v[%d:%d], v%d, s[%d:%d], s%d offen offset:%d %s", ob, ob + 3, vHst, sH, sH + 3, sXoff, (hh & 1) * 1024, o["hst"])
        if hh & 1: a("s_add_u32 s%d, s%d, %d", sXoff, sXoff, o["hs"])
        if "nohst" in o["dbg"]: a("s_mov_b64 exec, -1")
        log.append("st%d" % mt)
        if hh + 1 == o["puba"]:
            if hh == 7: stamp(); a("s_setprio 0")
            a(vmwait("n")); get_nonce("L_n0")
            publish(0)
            if hh == 7: stamp()
            else: a(".p2align 3")
    if o["puba"] < 8: stamp(); a("s_setprio 0"); stamp()
    if o["puba"] == 8:
        a("s_cmp_lg_u32 s%d, 3", sT2); a("s_cbranch_scc1 L_pw0"); a("s_waitcnt vmcnt(1)"); a("s_branch L_pw1"); a.label("L_pw0"); a("s_waitcnt vmcnt(0)"); a.label("L_pw1")
        log.extend(["x"] * 60)
    publish(1)
    stamp()
    a.label("L_red")
    a("s_waitcnt lgkmcnt(0)")
    tile_assign(); order_init()
    srd(sO, 48, 640 * 2)
    a("v_and_b32 v%d, 15, v%d", vT + 3, vL); a("v_lshrrev_b32 v%d, 4, v%d", vT + 4, vL)
    a("v_lshlrev_b32 v%d, 3, v%d", vT + 5, vT + 3); a("s_lshl_b32 s%d, s%d, 7", sDl, sDl)
    a("buffer_load_dwordx2 v[%d:%d], v%d, s[%d:%d], s%d offen", vB2 + 2, vB2 + 3, vT + 5, sO, sO + 3, sDl)
    a("s_lshl_b32 s%d, s%d, 2", sT, sW); a("v_add_u32 v%d, s%d, v%d", vT + 4, sT, vT + 4)
    a("v_mul_u32_u24 v%d, 272, v%d", vRr, vT + 4)
    a("v_lshl_add_u32 v%d, v%d, 4, v%d", vRr, vT + 3, vRr)
    a("v_mul_u32_u24 v%d, 1280, v%d", vOst, vT + 4)
    a("v_add3_u32 v%d, v%d, v%d, s%d", vOst, vOst, vT + 5, sDl)
    a("v_and_b32 v%d, 3, v%d", vT + 2, vL); a("v_lshlrev_b32 v%d, 8, v%d", vT + 2, vT + 2); a("v_lshl_add_u32 v%d, v%d, 2, v%d", vT + 2, vL, vT + 2)
    a("v_add_u32 v%d, %d, v%d", vT + 2, SYNC + 256, vT + 2)
    a("s_mov_b32 s%d, %d", sCnt, REDSZ); a("s_mul_i32 s%d, s%d, %d", sNb, sNb, REDSZ); a("s_mov_b32 s%d, 0", sIt)
    a("s_waitcnt vmcnt(0)")
    srd(sO, 50, 2048 * 640 * 2)
    a("v_lshlrev_b32 v%d, 16, v%d", vB2, vB2 + 2); a("v_and_b32 v%d, 0xffff0000, v%d", vB2 + 1, vB2 + 2)
    a("v_lshlrev_b32 v%d, 16, v%d", vB2 + 2, vB2 + 3); a("v_and_b32 v%d, 0xffff0000, v%d", vB2 + 3, vB2 + 3)
    a.label("L_rw")
    a("ds_read_b32 v%d, v%d", vT + 3, vT + 2)
    a("s_add_u32 s%d, s%d, 1", sIt, sIt); a("s_cmp_gt_u32 s%d, %d", sIt, o["spin"] * 8)
    a("s_waitcnt lgkmcnt(0)")
    a("s_cbranch_scc1 L_rgo")
    a("v_cmp_gt_u32 vcc, s%d, v%d", sCnt, vT + 3)
    a("s_cbranch_vccz L_rgo")
    if o["rsleep"]: a("s_sleep %d", o["rsleep"])
    a("s_branch L_rw")
    a.label("L_rgo")
    for p in range(4): a("ds_read_b128 v[%d:%d], v%d offset:%d", RD + 4 * p, RD + 4 * p + 3, vRr, 4352 * p)
    a("v_add_u32 v%d, %d, v%d", vRr, REDSZ, vRr)
    a("s_mul_i32 s%d, s%d, %d", sOst, sCur, 16 * 1280)
    for e in order_next: a(e)
    a("s_add_u32 s%d, s%d, %d", sCnt, sCnt, REDSZ)
    pk = lambda d, x, y: a("v_pk_add_f32 v[%d:%d], v[%d:%d], v[%d:%d]", d, d + 1, x, x + 1, y, y + 1)
    a("s_waitcnt lgkmcnt(3)")
    pk(RD, RD, vB2); pk(RD + 2, RD + 2, vB2 + 2)
    a("s_waitcnt lgkmcnt(1)")
    pk(RD + 4, RD + 4, RD + 8); pk(RD + 6, RD + 6, RD + 10)
    a("s_waitcnt lgkmcnt(0)")
    pk(RD, RD, RD + 12); pk(RD + 2, RD + 2, RD + 14)
    pk(RD, RD, RD + 4); pk(RD + 2, RD + 2, RD + 6)
    a("v_cvt_pk_bf16_f32 v%d, v%d, v%d", vPl, RD, RD + 1); a("v_cvt_pk_bf16_f32 v%d, v%d, v%d", vPl + 1, RD + 2, RD + 3)
    a("s_cmp_le_u32 s%d, s%d", sCnt, sNb)
    a("buffer_store_dwordx2 v[%d:%d], v%d, s[%d:%d], s%d offen %s", vPl, vPl + 1, vOst, sO, sO + 3, sOst, o["ost"])
    a("s_cbranch_scc1 L_rw")
    pad_to(NSTAMP)
    if PROF: a("s_branch L_fin")
    else: a("s_endpgm")

    a.L.append("@R")
    nst[0] = 2
    a.label("L_hc2")
    tab_load("L_t2")
    if o["w2pf"]:
        srd(sW2, 46, 1536 * 640 * 2)
        nl = 5 if o["a2"] == 4 else 10
        per = 4 * nl; tot = len(o["kks"]) * per
        magic = (65536 + per - 1) // per
        assert all((n * magic) >> 16 == n // per for n in range(tot + 64))
        NT = 32 - 4 * o["light"]
        if o["light"]:
            a("s_cmp_ge_u32 s%d, %d", sM0, NT); a("s_cbranch_scc1 L_pf2e")
        if o["hbal"]: a("s_sub_u32 s%d, %d, s%d", sIt, NT - 1, sM0)
        else: a("s_mov_b32 s%d, s%d", sIt, sM0)
        if o["a2"] == 4: a("s_and_b32 s%d, s%d, 1", sWoff, sXcd); a("s_mul_i32 s%d, s%d, 640", sWoff, sWoff)
        else: a("s_mov_b32 s%d, 0", sWoff)
        krot(sRd); a("s_lshl_b32 s%d, s%d, 1", sRd, sRd)
        for _ in range(o["hdelay"]): a("s_sleep 8")
        a.label("L_pf2")
        a("s_mul_i32 s%d, s%d, %d", sT, sIt, magic); a("s_lshr_b32 s%d, s%d, 16", sT, sT)
        a("s_mul_i32 s%d, s%d, %d", sT2, sT, per); a("s_sub_u32 s%d, s%d, s%d", sT2, sIt, sT2)
        if len(o["kks"]) < 6:
            a("s_lshl_b32 s%d, s%d, 2", sT, sT); a("s_lshr_b32 s%d, 0x%x, s%d", sT, 0x10000000 | sum(v << (4 * i) for i, v in enumerate(o["kks"])), sT); a("s_and_b32 s%d, s%d, 15", sT, sT)
        a("s_add_u32 s%d, s%d, s%d", sT, sT, sRd); a("s_cmp_ge_u32 s%d, 6", sT); a("s_cselect_b32 s%d, 6, 0", sT3); a("s_sub_u32 s%d, s%d, s%d", sT, sT, sT3)
        a("s_and_b32 s%d, s%d, 3", sT3, sT2); a("s_mul_i32 s%d, s%d, 6", sT3, sT3); a("s_add_u32 s%d, s%d, s%d", sT, sT, sT3)
        a("s_mul_i32 s%d, s%d, %d", sT, sT, 64 * 1280); a("s_lshr_b32 s%d, s%d, 2", sT2, sT2); a("s_lshl_b32 s%d, s%d, 7", sT2, sT2)
        a("s_add_u32 s%d, s%d, s%d", sT, sT, sT2); a("s_add_u32 s%d, s%d, s%d", sT, sT, sWoff)
        a("buffer_load_dword v%d, v%d, s[%d:%d], s%d offen", TMP, vXd, sW2, sW2 + 3, sT)
        a("s_add_u32 s%d, s%d, %d", sIt, sIt, NT); a("s_cmp_lt_u32 s%d, %d", sIt, tot); a("s_cbranch_scc1 L_pf2")
        a.label("L_pf2e")
    a("s_barrier")
    stamp()
    if PROF: a("s_waitcnt vmcnt(0)")
    pad_to(7)
    a("s_branch L_red")

    a.L.append("@W")
    nst[0] = 2
    a.label("L_lw")
    a("s_waitcnt lgkmcnt(0)")
    tile_assign()
    srd(sW2, 46, 1536 * 640 * 2); srd(sH, 54, FLAGOFF + 131072); srd(sO, 52, 256)
    a("v_lshlrev_b32 v%d, 1, v%d", vT + 3, vT + 2)
    a("v_xor_b32 v%d, v%d, v%d", vT + 3, vT + 1, vT + 3)
    a("v_mul_u32_u24 v%d, 1280, v%d", vGd, vT)
    a("v_lshl_add_u32 v%d, v%d, 4, v%d", vGd, vT + 3, vGd)
    for i in range(1, 4): a("v_add_u32 v%d, %d, v%d", vGd + i, i * (8 * 1280 - 1024), vGd)
    a("s_mul_i32 s%d, s%d, %d", sNw, sW, 384 * 1280); a("s_lshl_b32 s%d, s%d, 7", sT, sDl); a("s_add_u32 s%d, s%d, s%d", sNw, sNw, sT)
    krot(sRd)
    a("s_mul_i32 s%d, s%d, %d", sT, sRd, 128 * 1280); a("s_add_u32 s%d, s%d, s%d", sG, sNw, sT)
    a("s_mul_i32 s%d, s%d, 4352", sGm, sW); a("s_add_u32 s%d, s%d, %d", sGm, sGm, 5 * REDSZ)
    def gissue(g):
        a("s_add_u32 m0, s%d, %d", sGm, SLO[g % NSL]); a("s_nop 0")
        for i in range(4):
            a("buffer_load_dwordx4 v%d, s[%d:%d], s%d offen offset:%d lds", vGd + i, sW2, sW2 + 3, sG, 1024 * i); log.append("g%d" % g)
        a("s_add_u32 s%d, s%d, %d", sG, sG, 32 * 1280)
        if g in (3, 7):
            a("s_cmp_eq_u32 s%d, %d", sRd, 2 if g == 3 else 1); a("s_cselect_b32 s%d, s%d, s%d", sG, sNw, sG)
    def greads(g):
        L = []
        for t in range(4):
            k, r = w2reg(g * 4 + t)
            for u in range(2): L.append("ds_read_b64_tr_b16 %s[%d:%d], v%d offset:%d" % (k, r + 2 * u, r + 2 * u + 1, vGr + t, SLO[g % NSL] + u * 2048))
        return L
    log[:] = ["p1"]
    gissue(0)
    def condbar(lab):
        a("s_cmp_eq_u32 s%d, 0", sCnt); a("s_cbranch_scc1 %s", lab); a("s_barrier"); a.label(lab)
    a(vmwait("p1")); condbar("L_cb1")
    stamp()
    a(nload); log.append("n")
    gissue(1)
    a("v_lshrrev_b32 v%d, 2, v%d", vT + 3, vL)
    a("v_lshlrev_b32 v%d, 7, v%d", vT + 3, vT + 3)
    a("v_bfe_u32 v%d, v%d, 3, 2", vT + 4, vL)
    a("v_lshl_add_u32 v%d, v%d, 5, v%d", vT + 3, vT + 4, vT + 3)
    a("v_and_b32 v%d, 3, v%d", vT + 4, vL)
    a("v_lshl_add_u32 v%d, v%d, 3, v%d", vT + 3, vT + 4, vT + 3)
    a("v_add_u32 v%d, s%d, v%d", vGr, sGm, vT + 3)
    for t in range(1, 4): a("v_xor_b32 v%d, %d, v%d", vGr + t, 32 * t, vGr)
    a("s_mul_i32 s%d, s%d, 12288", sT, sW); a("v_lshl_add_u32 v%d, v%d, 4, s%d", vH, vL, sT)
    a("s_lshl_b32 s%d, s%d, 12", sO0, sRd)
    a("s_add_u32 s%d, s%d, 4096", sO1, sO0); a("s_cmp_eq_u32 s%d, 2", sRd); a("s_cselect_b32 s%d, 0, s%d", sO1, sO1)
    a("s_add_u32 s%d, s%d, 4096", sO2, sO1); a("s_cmp_eq_u32 s%d, 1", sRd); a("s_cselect_b32 s%d, 0, s%d", sO2, sO2)
    a("v_and_b32 v%d, 15, v%d", vT + 3, vL); a("v_lshrrev_b32 v%d, 4, v%d", vT + 4, vL)
    a("v_mul_u32_u24 v%d, 272, v%d", vRw, vT + 3)
    a("v_lshl_add_u32 v%d, v%d, 4, v%d", vRw, vT + 4, vRw)
    a("s_mul_i32 s%d, s%d, 4352", sT, sW); a("v_add_u32 v%d, s%d, v%d", vRw, sT, vRw)
    a("s_lshl_b32 s%d, s%d, 8", sT, sW); a("s_add_u32 s%d, s%d, %d", sT, sT, SYNC + 256)
    a("v_lshl_add_u32 v%d, v%d, 2, s%d", vCa, vL, sT)
    order_init()
    a("s_lshr_b32 s%d, s%d, 3", sT, sRb); a("s_sub_u32 s%d, s%d, 1", sT2, sEnd); a("s_lshr_b32 s%d, s%d, 3", sT2, sT2)
    a("s_sub_u32 s%d, s%d, s%d", sT2, sT2, sT); a("s_mul_i32 s%d, s%d, 12", sT2, sT2)
    a("s_mul_i32 s%d, s%d, 12", sT, sT); a("s_mul_i32 s%d, s%d, 3", sT3, sW); a("s_add_u32 s%d, s%d, s%d", sT, sT, sT3)
    a("v_lshrrev_b32 v%d, 5, v%d", vT + 3, vL); a("v_mul_u32_u24 v%d, s%d, v%d", vT + 3, sT2, vT + 3)
    a("v_bfe_u32 v%d, v%d, 3, 2", vT + 4, vL); a("v_min_u32 v%d, 2, v%d", vT + 4, vT + 4)
    a("v_add3_u32 v%d, v%d, v%d, s%d", vFl, vT + 3, vT + 4, sT)
    a("v_lshlrev_b32 v%d, 9, v%d", vFl, vFl)
    a("v_add_u32 v%d, %d, v%d", vFl, FLAGOFF, vFl)
    a("s_mul_i32 s%d, s%d, %d", sBase, sCur, o["hs"]); a("s_add_u32 s%d, s%d, s%d", sHcur, sBase, sO0)
    a("s_mov_b32 s%d, 0", sInc)
    condbar("L_cb2")
    if o["lprio"]: a("s_setprio %d", o["lprio"])
    pollA = "buffer_load_dwordx2 v[%d:%d], v%d, s[%d:%d], 0 offen sc1" % (vPl, vPl + 1, vFl, sH, sH + 3)
    pollB = "buffer_load_dwordx2 v[%d:%d], v%d, s[%d:%d], 0 offen offset:256 sc1" % (vPl, vPl + 1, vFl, sH, sH + 3)
    chk = "v_cmp_ne_u64 vcc, s[%d:%d], v[%d:%d]" % (sNonce, sNonce + 1, vPl, vPl + 1)
    LAG = NSL - 1
    for g in range(2, LAG): gissue(g)
    for g in range(max(2, LAG), 12):
        a(vmwait("g%d" % (g - LAG)))
        a("s_waitcnt lgkmcnt(0)")
        for r in greads(g - LAG): a(r)
        if g == o["ng"]: get_nonce("L_n1")
        if o["gpace"] < 4 * (LAG - 1) and g < o["gpend"]:
            a("s_cmp_eq_u32 s%d, 0", sCnt); a("s_cbranch_scc1 L_gp%d", g); a("s_waitcnt vmcnt(%d)", o["gpace"]); a.label("L_gp%d" % g)
        gissue(g)
        if g == o["pollg"]: a(pollA); log.append("pa")
        if PROF and "gst" in o["dbg"] and g in (4, 8): a("s_memtime s[%d:%d]", 82 + g // 2, 83 + g // 2)
    stamp()
    def spin(lab, poll):
        a("s_mov_b32 s%d, 0", sT3)
        a.label(lab)
        if o["psleep"]: a("s_sleep %d", o["psleep"])
        a(poll)
        a("s_add_u32 s%d, s%d, 1", sT3, sT3); a("s_cmp_gt_u32 s%d, %d", sT3, o["spin"])
        a("s_waitcnt vmcnt(0)")
        a("s_cbranch_scc1 %s_x", lab)
        a(chk)
        a("s_cbranch_vccnz %s", lab)
        a.label(lab + "_x")
    a(vmwait("pa"))
    a(chk)
    a("s_cbranch_vccz L_spa_x")
    spin("L_spa", pollA)
    stamp()
    D = o["dist"]; NK = 12; NR = 8; PK = 8
    assert D == 7
    def hload(k, ph):
        r = RING + 4 * ((k + ph) % NR)
        return "buffer_load_dwordx4 v[%d:%d], v%d, s[%d:%d], s%d offen offset:%d sc1" % (r, r + 3, vH, sH, sH + 3, sHcur, (k & 3) * 1024)
    def hstep(k): return ["s_add_u32 s%d, s%d, s%d" % (sHcur, sBase, sO1 if k % NK == 3 else sO2)] if k % NK in (3, 7) else []
    for k in range(D):
        a(hload(k, 0)); log.append("h")
        for e in hstep(k): a(e)
        if k == (PK + D) % NK: a(pollB); log.append("pb")
    for g in range(12 - LAG, 12):
        a(vmwait("g%d" % g))
        for r in greads(g): a(r)
    a("s_mov_b32 s%d, 1", sIt)
    a("s_setprio %d", o["p2prio"])
    a("s_waitcnt lgkmcnt(0)")
    src = lambda t: (A2 + 4 * t) if t < 2 else (B2 + 4 * (t - 2))
    W = ["ds_write_b128 v%d, v[%d:%d] offset:%d" % (vRw, src(t), src(t) + 3, 64 * t) for t in range(4)]
    sig = ["v_add_u32 v%d, s%d, v%d" % (vRw, sInc, vRw), "ds_write_b32 v%d, v%d" % (vCa, vRw)]
    def trip(ph):
        for ks in range(NK):
            between = any(((ks - D + d) % NK) == PK for d in range(D))
            a("s_waitcnt vmcnt(%d)", D - 1 + (1 if between else 0))
            ex = {}
            M = []
            for t in range(4):
                c = "0" if ks == 0 else "v[%d:%d]" % (A2 + 4 * t, A2 + 4 * t + 3)
                d = src(t) if ks == NK - 1 else A2 + 4 * t
                k, w = w2reg(ks * 4 + t); h = RING + 4 * ((ks + ph) % NR)
                M.append("v_mfma_f32_16x16x32_bf16 v[%d:%d], %s[%d:%d], v[%d:%d], %s" % (d, d + 3, k, w, w + 3, h, h + 3, c))
            if ks == 0: M = M[2:] + M[:2]
            ex[1] = [hload(ks + D, ph)]
            ex[2] = hstep(ks + D)
            if ks == PK: ex[3] = [pollB]
            if ks == 1: ex[3] = [W[2]]
            if ks == 2: ex[3] = [W[3]]
            if ks == 3: ex[0] = order_next[0:2]; ex[3] = sig + ["s_mov_b32 s%d, %d" % (sInc, REDSZ)]
            if ks == 4:
                ex[0] = [chk]
                ex[2] = order_next[2:4] + ["s_cselect_b64 vcc, vcc, 0"]
                ex[3] = ["s_cbranch_vccnz L_spb%d" % ph, "L_spb%d_r:" % ph, "s_mul_i32 s%d, s%d, %d" % (sBase, sCur, 0 if o["hsame"] else o["hs"]),
                         "s_cmp_ge_u32 s%d, s%d" % (sIt, sNb), "s_cselect_b32 s%d, 0x%x, s%d" % (sBase, OOB, sBase), "s_add_u32 s%d, s%d, s%d" % (sHcur, sBase, sO0)]
            weave(a, M, ex)
        if PROF and "p2st" in o["dbg"]:
            for b in ((1, 3) if ph == 0 else (2,)):
                a("s_cmp_lg_u32 s%d, %d", sIt, b); a("s_cbranch_scc1 L_ps%d", b); a("s_memtime s[%d:%d]", 64 + 2 * b, 65 + 2 * b); a.label("L_ps%d" % b)
        a("s_add_u32 s%d, s%d, 1", sIt, sIt); a("s_cmp_le_u32 s%d, s%d", sIt, sNb); a("s_nop 1")
        a(W[0]); a(W[1])
    a(".p2align 3")
    a.label("L_p2")
    trip(0)
    a("s_cbranch_scc0 L_p2e")
    a(".p2align 3")
    trip(4)
    a("s_cbranch_scc1 L_p2")
    a.label("L_p2e")
    a(W[2]); a(W[3])
    for e in sig: a(e)
    stamp()
    if PROF and "p1st" in o["dbg"]:
        a("s_mov_b32 s70, s84"); a("s_mov_b32 s72, s86")
    pad_to(NSTAMP)
    if PROF and "gst" in o["dbg"]:
        a("s_mov_b32 s76, s84"); a("s_mov_b32 s78, s86")
    if PROF: a("s_branch L_fin")
    else: a("s_endpgm")
    for ph in (0, 4):
        a.label("L_spb%d" % ph)
        spin("L_spb%dl" % ph, pollB)
        a("s_branch L_spb%d_r", ph)
    a.L.append("@F")
    a.label("L_fin")
    if PROF:
        n = NSTAMP
        a("s_waitcnt vmcnt(0)")
        a("s_memtime s[%d:%d]", 64 + 2 * n, 65 + 2 * n); a("s_memrealtime s[62:63]"); a("s_waitcnt lgkmcnt(0)")
        a("s_add_u32 s8, s54, %d", 128 << 20); a("s_addc_u32 s9, s55, 0"); a("s_mov_b32 s10, 0x100000"); a("s_mov_b32 s11, 0x20000")
        a("s_lshl_b32 s28, s2, 3"); a("s_add_u32 s28, s28, s%d", sWv); a("s_lshl_b32 s28, s28, 6")
        a("v_mov_b32 v0, s28")
        a("s_getreg_b32 s29, hwreg(HW_REG_XCC_ID)")
        vals = ["s60", "s62", "s29"] + ["s%d" % (64 + 2 * i) for i in range(n + 1)]
        vals += ["0"] * (16 - len(vals))
        for i, v in enumerate(vals): a("v_mov_b32 v%d, %s", 4 + i, v)
        a("s_mov_b64 exec, 1")
        for i in range(4): a("buffer_store_dwordx4 v[%d:%d], v0, s[8:11], 0 offen offset:%d", 4 + 4 * i, 7 + 4 * i, 16 * i)
    if PROF and o.get("probe") is not None:
        pw, pv, pi = o["probe"]
        a("s_cmp_lg_u32 s2, %d", pw); a("s_cbranch_scc1 L_end")
        a("s_cmp_lg_u32 s%d, %d", sWv, pv); a("s_cbranch_scc1 L_end")
        if pi == "start": a("s_sub_u32 s30, s60, s%d", sNonce); a("s_add_u32 s30, s30, 200"); a("s_lshl_b32 s30, s30, 2")
        else: a("s_sub_u32 s30, s%d, s64", 64 + 2 * pi); a("s_lshl_b32 s30, s30, 2"); a("s_add_u32 s30, s30, 300")
        a("s_min_u32 s30, s30, 20000")
        a.label("L_spin")
        a("s_memrealtime s[32:33]"); a("s_waitcnt lgkmcnt(0)")
        a("s_sub_u32 s32, s32, s62"); a("s_cmp_lt_u32 s32, s30"); a("s_cbranch_scc1 L_spin")
    a.label("L_end")
    a("s_endpgm")
    a(".p2align 6")
    a(".type L_table,@object")
    a.label("L_table")
    W = make_table(o)
    for k in range(0, 256, 8): a(".long " + ", ".join("0x%x" % w for w in W[k:k + 8]))
    a.label("L_codeend")
    sec = {"E": []}; cur = "E"
    for l in a.L:
        if l.startswith("@"): cur = l[1]; sec[cur] = []
        else: sec[cur].append(l)
    a.L = []
    for c in o["lay"] + "F":
        if c == "|": a.L.append("    .p2align 12")
        if c in sec: a.L += sec[c]
    if "rt" in o["dbg"].split(): a.L = [l.replace("s_memtime", "s_memrealtime") for l in a.L]
    s = HEAD + "; @launch grid=(256,1,1) block=(512,1,1) lds=163840\n"
    s += '.amdgcn_target "amdgcn-amd-amdhsa--gfx950"\n.text\n'
    n = NAME + "_kernel"
    if o["pad"] is not None: s += ".p2align 12\n.fill %d, 4, 0xbf800000\n" % (o["pad"] // 4)
    s += ".globl %s\n.p2align 8\n.type %s,@function\n%s:\n%s" % (n, n, n, a.text())
    s += '''.section .rodata,"a"
.p2align 6
.amdhsa_kernel %s
  .amdhsa_next_free_vgpr 256
  .amdhsa_next_free_sgpr 102
  .amdhsa_accum_offset 128
  .amdhsa_group_segment_fixed_size 0
  .amdhsa_kernarg_size 64
  .amdhsa_user_sgpr_count 2
  .amdhsa_user_sgpr_kernarg_segment_ptr 1
  .amdhsa_system_sgpr_workgroup_id_x 1
  .amdhsa_float_denorm_mode_32 3
  .amdhsa_float_denorm_mode_16_64 3
.end_amdhsa_kernel
''' % n
    return s
if __name__ == "__main__":
    kw = json.loads(sys.argv[2]) if len(sys.argv) > 2 else {}
    open(sys.argv[1], "w").write(gen(**kw))
```

```python
import struct, sys, json
def f2u(x): return struct.unpack("<I", struct.pack("<f", x))[0]
C0 = -2.0 * 0.7978845608028654 * 1.4426950408889634
C1 = C0 * 0.044715
NAME = "standalone__dense_activation_gelu__prompt"
HEAD = open("cdna_kernels/%s.s.ref" % NAME).read().split("; Override launch geometry")[0]
FLAGOFF = 8 << 20
OOB = 0x7f000000
DEF = dict(prof=False, a1=4, a2=4, rot1="x", pf=(1, 10), w2pf=True, hst="sc1", ost="nt", dist=7, spin=1000000, codepf=True,
           out=8, prio=1, hsame=False, psleep=0, dbg="", gpace=2, gpend=9, rsleep=1, p2prio=1, swap46=False, krot=True, hdelay=0,
           pollg=10, puba=8, nsl=3, hs=49152, lprio=0, ng=8, swapx=True, rotx=0, hbal=False, pad=0xD00, lay="EHSW|CR", tmap="min6", alt=0, light=0, snake=True, barpos=16, nw=2, bp=0, fl=1, poll0=0, spub=False, rprio=0, l1prio=0, lwait=8, spec=False, lfrom=2, lstep=1, gpb=5, pre9=2, sup=3, a1at=7, hld="sc1", tfl="", dfl="", kks=(0, 1, 2, 3, 4, 5))

class A:
    def __init__(self): self.L = []
    def __call__(self, s, *args): self.L.append("    " + (s % args if args else s))
    def label(self, s): self.L.append(s + ":")
    def text(self): return "\n".join(self.L) + "\n"

def weave(a, main, extra):
    for i, m in enumerate(main):
        a(m)
        for e in extra.get(i, []): a(e)

def make_table(o):
    T = {}
    for x in range(8):
        par, q = x & 1, x >> 1
        tiles = []
        if o["a2"] == 8:
            par = 0
            if o["tmap"] == "cur":
                for i in range(32):
                    dl, rb, n = i >> 1, 6 + 5 * (i & 1), 5
                    if i >= 16: dl, rb, n = (i >> 2) + 4, 4 * (i & 3), 4
                    if i >= 24: dl, rb, n = i - 24, 0, 6
                    tiles.append((dl, rb + 16 * x, n))
            else:
                four = {0: (0, 4), 1: (1, 5), 2: (2, 6), 3: (3, 7), 4: (0, 4), 5: (2, 6), 6: (1,), 7: (3,), 8: (5,), 9: (7,)}
                six = {6: (3, 5, 7), 7: (0, 5, 7), 8: (1, 2, 6), 9: (1, 3, 4)}
                for dl in range(10):
                    c = lambda k: 4 if k in four[dl] else 3
                    d = lambda k: (-1 if (dl < 6 and k in four[dl]) else (1 if k in six.get(dl, ()) else 0))
                    rb = sum(5 * c(k) + d(k) for k in range(x))
                    for k in range(c(x)):
                        n = 5 + (d(x) if k == 0 else 0)
                        tiles.append((dl, rb, n)); rb += n
                t6 = [t for t in tiles if t[2] == 6]; t4 = [t for t in tiles if t[2] == 4]; t5 = [t for t in tiles if t[2] == 5]
                nh = 8 - len(t6) - len(t4)
                tiles = t5[nh:] + t4 + t5[:nh] + t6
        elif o["tmap"] == "cur":
            for i in range(32):
                dl, rb, n = i >> 2, 12 + 5 * (i & 3), 5
                if i >= 20: dl, rb, n = 3 + (i & 1), ((i - 20) >> 1) * 4, 4
                if i >= 26: dl, rb, n = (i - 26) >> 1, 6 * (i & 1), 6
                tiles.append((dl, rb + 32 * q, n))
        else:
            cnt = [[7, 6, 7, 6], [6, 7, 6, 7], [7, 6, 6, 7], [6, 7, 6, 6], [6, 6, 7, 6]]
            odd = [[-1, 0, -1, 0], [0, -1, 0, -1], [-1, 0, 0, -1], [1, 0, 1, 1], [1, 1, 0, 1]]
            for dl in range(5):
                rb = sum(5 * cnt[dl][k] + odd[dl][k] for k in range(q))
                for k in range(cnt[dl][q]):
                    n = 5 + (odd[dl][q] if k == 0 else 0)
                    tiles.append((dl, rb, n)); rb += n
            t6 = [t for t in tiles if t[2] == 6]; t4 = [t for t in tiles if t[2] == 4]; t5 = [t for t in tiles if t[2] == 5]
            nh = 8 - len(t6) - len(t4)
            tiles = t5[nh:] + t4 + t5[:nh] + t6
        assert len(tiles) == 32
        for i, (dl, rb, n) in enumerate(tiles):
            E = [b for b in range(rb, rb + n) if not b & 2]; Lt = [b for b in range(rb, rb + n) if b & 2]
            if o["alt"] == 1 and dl & 1: E.reverse(); Lt.reverse()
            if o["alt"] == 2:
                r = dl % len(E); E = E[r:] + E[:r]; r = dl % len(Lt); Lt = Lt[r:] + Lt[:r]
            k = next(k for k, b in enumerate(E) if b % 4 == 0)
            E = [E[k]] + E[:k] + E[k + 1:]
            assert len(E) >= 2
            T[x + 8 * i] = (dl + 5 * par, rb, E + Lt)
    cov = set()
    W = []
    for wg in range(256):
        dl, rb, seq = T[wg]
        for b in seq:
            assert (dl, b) not in cov; cov.add((dl, b))
        w = dl | (rb << 4) | (len(seq) << 11)
        for k, b in enumerate(seq): w |= (b - rb) << (14 + 3 * k)
        W.append(w)
    assert len(cov) == 1280
    return W

def gen(**kw):
    o = dict(DEF); o.update(kw)
    a = A()
    PROF = o["prof"]
    nst = [1]
    def stamp():
        if not PROF: return
        a("s_memtime s[%d:%d]", 64 + 2 * nst[0], 65 + 2 * nst[0]); nst[0] += 1
        a("s_waitcnt lgkmcnt(0)")
    def pad_to(n):
        assert nst[0] <= n, nst[0]
        while PROF and nst[0] < n: stamp()
    NSTAMP = 8
    sX, sW1, sW2, sH, sO = 8, 12, 16, 20, 24
    sWv, sXcd, sI, sMT, sFT = 3, 4, 5, 6, 7
    sXoff, sWoff, sM0, sKb, sDelta, sIt, sT, sT2, sT3, sRd = 28, 29, 30, 31, 32, 33, 34, 35, 36, 37
    sC1 = 38
    sNonce = 56
    sRb, sNb, sDl, sG, sGm, sHcur, sCnt, sOst, sNx, sNw, sPw, sW = 58, 59, 92, 93, 94, 95, 96, 97, 98, 99, 100, 101
    sCur, sEnd, sBase, sO0, sO1, sO2, sInc, sGw, sKr = 0, 1, 82, 88, 89, 90, 91, 97, 96
    vL, vZ = 1, 2
    vT = 8
    vPl = 4
    vH, vFl, vRw, vCa = 0, 3, 6, 7
    vXd, vWd, vGd, vGr = 16, 20, 24, 56
    RING, A2, B2 = 8, 40, 56
    def w2reg(i): return ("a", 4 * i) if i < 32 else ("v", 64 + 4 * (i - 32))
    vHi, vXr, vWr, vC0, vONE, vHst = 3, 16, 20, 22, 24, 26
    vRr, vOst, vB2 = 6, 7, 28
    ACC, TMP, OUT = 32, 96, 112
    RD = 32
    NSL = o["nsl"]; REDSZ = 17408; SYNC = 9 * REDSZ
    SLO = [REDSZ, 2 * REDSZ, 3 * REDSZ, 0]
    SLOT = 32768; S = 3
    def srd(d, lo, nbytes):
        a("s_mov_b64 s[%d:%d], s[%d:%d]", d, d + 1, lo, lo + 1)
        a("s_mov_b32 s%d, %d", d + 2, nbytes); a("s_mov_b32 s%d, 0x20000", d + 3)
    def mod3(dst, src):
        a("s_mul_i32 s%d, s%d, 86", sT, src); a("s_lshr_b32 s%d, s%d, 8", sT, sT); a("s_mul_i32 s%d, s%d, 3", sT, sT); a("s_sub_u32 s%d, s%d, s%d", dst, src, sT)
    def krot(dst):
        if o["krot"]:
            if o["a2"] == 4: a("s_lshr_b32 s%d, s%d, 1", dst, sXcd); a("s_cmp_eq_u32 s%d, 3", dst); a("s_cselect_b32 s%d, 0, s%d", dst, dst)
            else: mod3(dst, sXcd)
        else: a("s_mov_b32 s%d, 0", dst)

    a("s_load_dwordx16 s[40:55], s[0:1], 0")
    a("s_cmp_ge_u32 s2, 256"); a("s_cbranch_scc1 L_end")
    if PROF:
        a("s_memrealtime s[60:61]"); a("s_memtime s[64:65]")
    a("v_lshrrev_b32 v%d, 6, v0", vT)
    a("v_and_b32 v%d, 63, v0", vL)
    a("v_readfirstlane_b32 s%d, v%d", sWv, vT)
    a("s_and_b32 s%d, s2, 7", sXcd); a("s_lshr_b32 s%d, s2, 3", sI)
    a("v_lshrrev_b32 v%d, 3, v%d", vT, vL)
    a("v_and_b32 v%d, 7, v%d", vT + 1, vL)
    a("v_lshrrev_b32 v%d, 1, v%d", vT + 2, vT)
    a("v_mov_b32 v%d, 0", vZ)
    a("s_and_b32 s%d, s%d, 3", sW, sWv)
    if o["rotx"] == 0: a("s_mul_i32 s%d, s%d, 10", sKb, sXcd); a("s_lshr_b32 s%d, s%d, 3", sKb, sKb)
    else:
        tab = {1: [0, 5, 2, 7, 5, 0, 7, 2], 2: [0, 5, 3, 8, 5, 0, 8, 3], 3: [0, 6, 2, 8, 5, 1, 7, 3]}[o["rotx"]]
        a("s_lshl_b32 s%d, s%d, 2", sKb, sXcd); a("s_lshr_b32 s%d, 0x%x, s%d", sKb, sum(v << (4 * i) for i, v in enumerate(tab)), sKb); a("s_and_b32 s%d, s%d, 15", sKb, sKb)
    a("s_mov_b32 s%d, %d", sX + 2, 2048 * 640 * 2); a("s_mov_b32 s%d, 0x20000", sX + 3)
    a("s_mov_b32 s%d, %d", sW1 + 2, 640 * 1536 * 2); a("s_mov_b32 s%d, 0x20000", sW1 + 3)
    a("s_cmp_ge_u32 s%d, 24", sI); a("s_cbranch_scc1 L_helper")
    if o["a1"] == 4:
        a("s_lshr_b32 s%d, s%d, 1", sMT, sXcd); a("s_lshl_b32 s%d, s%d, 2", sMT, sMT)
        a("s_and_b32 s%d, s%d, 3", sT, sI); a("s_add_u32 s%d, s%d, s%d", sMT, sMT, sT)
        a("s_and_b32 s%d, s%d, 1", sFT, sXcd); a("s_mul_i32 s%d, s%d, 6", sFT, sFT)
        a("s_lshr_b32 s%d, s%d, 2", sT2, sI); a("s_add_u32 s%d, s%d, s%d", sFT, sFT, sT2)
    else:
        a("s_lshl_b32 s%d, s%d, 1", sMT, sXcd); a("s_and_b32 s%d, s%d, 1", sT, sI); a("s_add_u32 s%d, s%d, s%d", sMT, sMT, sT)
        a("s_lshr_b32 s%d, s%d, 1", sT2, sI); a("s_mov_b32 s%d, s%d", sFT, sT2)
    a("s_cmp_lt_u32 s%d, 4", sWv); a("s_cbranch_scc0 L_ldr")
    a("v_and_b32 v%d, 15, v%d", vT + 3, vL)
    a("v_lshlrev_b32 v%d, 1, v%d", vT + 5, vT + 3)
    a("s_bfe_u32 s%d, s%d, 0x10000", sT, sW); a("s_lshl1_add_u32 s%d, s%d, s%d", sT3, sFT, sT); a("s_lshl_b32 s%d, s%d, 7", sT3, sT3)
    a("s_movk_i32 s%d, %d", sO + 2, 1536 * 2); a("s_mov_b32 s%d, s%d", sO + 3, sX + 3)
    a("s_waitcnt lgkmcnt(0)")
    a("s_mov_b64 s[%d:%d], s[44:45]", sO, sO + 1)
    for f in range(4): a("buffer_load_ushort v%d, v%d, s[%d:%d], s%d offen offset:%d", TMP + 4 * f, vT + 5, sO, sO + 3, sT3, 32 * f)
    a("s_branch L_comp")
    a.label("L_ldr")

    sTab = 83
    def tab_load(lab):
        a("s_getpc_b64 s[%d:%d]", sT, sT + 1)
        a.label(lab)
        a("s_add_u32 s%d, s%d, L_table-%s", sT, sT, lab); a("s_addc_u32 s%d, s%d, 0", sT + 1, sT + 1)
        a("s_lshl_b32 s%d, s2, 2", sTab)
        a("s_load_dword s%d, s[%d:%d], s%d", sTab, sT, sT + 1, sTab)
    def tile_assign():
        a("s_and_b32 s%d, s%d, 15", sDl, sTab); a("s_bfe_u32 s%d, s%d, 0x70004", sRb, sTab); a("s_bfe_u32 s%d, s%d, 0x3000b", sNb, sTab)
        a("s_lshr_b32 s%d, s%d, 14", sTab, sTab)
    def order_init():
        a("s_add_u32 s%d, s%d, s%d", sEnd, sRb, sNb)
        a("s_and_b32 s%d, s%d, 7", sCur, sTab); a("s_add_u32 s%d, s%d, s%d", sCur, sCur, sRb)
    order_next = ["s_lshr_b32 s%d, s%d, 3" % (sTab, sTab), "s_and_b32 s%d, s%d, 7" % (sCur, sTab), "s_add_u32 s%d, s%d, s%d" % (sCur, sCur, sRb), "s_bitcmp1_b32 s%d, 1" % sCur]
    log = []
    def vmcount(tag):
        idx = max(i for i, t in enumerate(log) if t == tag)
        return len(log) - 1 - idx
    def vmwait(tag): return "s_waitcnt vmcnt(%d)" % vmcount(tag)
    nload = "buffer_load_dwordx2 v[%d:%d], v%d, s[%d:%d], 0 offen sc1" % (vPl, vPl + 1, vZ, sO, sO + 3)
    def get_nonce(lab):
        a("s_mov_b32 s%d, 0", sIt)
        a.label(lab)
        a("v_readfirstlane_b32 s%d, v%d", sNonce, vPl); a("v_readfirstlane_b32 s%d, v%d", sNonce + 1, vPl + 1)
        a("s_add_u32 s%d, s%d, 1", sIt, sIt); a("s_nop 1")
        a("s_cmp_lg_u32 s%d, 0", sNonce + 1); a("s_cbranch_scc1 %s_ok", lab)
        a("s_cmp_gt_u32 s%d, %d", sIt, o["spin"]); a("s_cbranch_scc1 %s_ok", lab)
        a(nload); a("s_waitcnt vmcnt(0)"); a("s_branch %s", lab)
        a.label(lab + "_ok")

    def lsetup():
        a("s_waitcnt lgkmcnt(0)")
        tile_assign()
        a("v_lshlrev_b32 v%d, 1, v%d", vT + 3, vT + 2)
        a("v_xor_b32 v%d, v%d, v%d", vT + 3, vT + 1, vT + 3)
        a("v_mul_u32_u24 v%d, 1280, v%d", vGd, vT)
        a("v_lshl_add_u32 v%d, v%d, 4, v%d", vGd, vT + 3, vGd)
        for i in range(1, 4): a("v_add_u32 v%d, %d, v%d", vGd + i, i * (8 * 1280 - 1024), vGd)
        a("s_mul_i32 s%d, s%d, %d", sGw, sW, 384 * 1280); a("s_lshl_b32 s%d, s%d, 7", sT, sDl); a("s_add_u32 s%d, s%d, s%d", sGw, sGw, sT)
        krot(sRd)
        a("s_mul_i32 s%d, s%d, %d", sT, sRd, 128 * 1280); a("s_add_u32 s%d, s%d, s%d", sG, sGw, sT)
        a("s_mul_i32 s%d, s%d, 4352", sGm, sW); a("s_add_u32 s%d, s%d, %d", sGm, sGm, 5 * REDSZ)
        a("v_lshrrev_b32 v%d, 2, v%d", vT + 3, vL)
        a("v_lshlrev_b32 v%d, 7, v%d", vT + 3, vT + 3)
        a("v_bfe_u32 v%d, v%d, 3, 2", vT + 4, vL)
        a("v_lshl_add_u32 v%d, v%d, 5, v%d", vT + 3, vT + 4, vT + 3)
        a("v_and_b32 v%d, 3, v%d", vT + 4, vL)
        a("v_lshl_add_u32 v%d, v%d, 3, v%d", vT + 3, vT + 4, vT + 3)
        a("v_add_u32 v%d, s%d, v%d", vGr, sGm, vT + 3)
        for t in range(1, 4): a("v_xor_b32 v%d, %d, v%d", vGr + t, 32 * t, vGr)
        a("s_mul_i32 s%d, s%d, 12288", sT, sW); a("v_lshl_add_u32 v%d, v%d, 4, s%d", vH, vL, sT)
        a("s_lshl_b32 s%d, s%d, 12", sO0, sRd)
        a("s_add_u32 s%d, s%d, 4096", sO1, sO0); a("s_cmp_eq_u32 s%d, 2", sRd); a("s_cselect_b32 s%d, 0, s%d", sO1, sO1)
        a("s_add_u32 s%d, s%d, 4096", sO2, sO1); a("s_cmp_eq_u32 s%d, 1", sRd); a("s_cselect_b32 s%d, 0, s%d", sO2, sO2)
        a("v_and_b32 v%d, 15, v%d", vT + 3, vL); a("v_lshrrev_b32 v%d, 4, v%d", vT + 4, vL)
        a("v_mul_u32_u24 v%d, 272, v%d", vRw, vT + 3)
        a("v_lshl_add_u32 v%d, v%d, 4, v%d", vRw, vT + 4, vRw)
        a("s_mul_i32 s%d, s%d, 4352", sT, sW); a("v_add_u32 v%d, s%d, v%d", vRw, sT, vRw)
        a("s_lshl_b32 s%d, s%d, 8", sT, sW); a("s_add_u32 s%d, s%d, %d", sT, sT, SYNC + 256)
        a("v_lshl_add_u32 v%d, v%d, 2, s%d", vCa, vL, sT)
        order_init()
        a("s_lshr_b32 s%d, s%d, 3", sT, sRb); a("s_sub_u32 s%d, s%d, 1", sT2, sEnd); a("s_lshr_b32 s%d, s%d, 3", sT2, sT2)
        a("s_sub_u32 s%d, s%d, s%d", sT2, sT2, sT); a("s_mul_i32 s%d, s%d, 12", sT2, sT2)
        a("s_mul_i32 s%d, s%d, 12", sT, sT); a("s_mul_i32 s%d, s%d, 3", sT3, sW); a("s_add_u32 s%d, s%d, s%d", sT, sT, sT3)
        a("v_lshrrev_b32 v%d, 5, v%d", vT + 3, vL); a("v_mul_u32_u24 v%d, s%d, v%d", vT + 3, sT2, vT + 3)
        a("v_bfe_u32 v%d, v%d, 3, 2", vT + 4, vL); a("v_min_u32 v%d, 2, v%d", vT + 4, vT + 4)
        a("v_add3_u32 v%d, v%d, v%d, s%d", vFl, vT + 3, vT + 4, sT)
        a("v_lshlrev_b32 v%d, 9, v%d", vFl, vFl)
        a("v_add_u32 v%d, %d, v%d", vFl, FLAGOFF, vFl)
        a("s_mul_i32 s%d, s%d, %d", sBase, sCur, o["hs"]); a("s_add_u32 s%d, s%d, s%d", sHcur, sBase, sO0)
        a("s_mov_b32 s%d, 0", sInc); a("s_mov_b32 s%d, 0", sKr)
        a("s_lshr_b32 s%d, s%d, 2", sT, sCur); a("s_mul_i32 s%d, s%d, 24", sT, sT); a("s_lshl1_add_u32 s%d, s%d, s%d", sT, sT3, sT)
        a("v_min_u32 v62, 5, v%d", vT); a("v_add_u32 v62, s%d, v62", sT); a("v_lshlrev_b32 v62, 8, v62"); a("v_add_u32 v62, %d, v62", FLAGOFF + 131072)
    a("s_add_u32 s%d, s%d, s%d", sRd, sT, sT2)
    if o["rot1"] == "3":
        a("s_add_u32 s%d, s%d, s%d", sKb, sT, sT2); mod3(sKb, sKb)
        a("s_mul_i32 s%d, s%d, 3", sKb, sKb); a("s_add_u32 s%d, s%d, s%d", sKb, sKb, sXcd)
        a("s_cmp_ge_u32 s%d, 10", sKb); a("s_cselect_b32 s%d, 10, 0", sT); a("s_sub_u32 s%d, s%d, s%d", sKb, sKb, sT)
    a("v_xor_b32 v%d, v%d, v%d", vT + 3, vT + 1, vT + 2)
    a("v_mul_u32_u24 v%d, 1280, v%d", vT + 4, vT)
    a("v_lshl_add_u32 v%d, v%d, 4, v%d", vXd, vT + 3, vT + 4)
    a("v_xor_b32 v%d, 64, v%d", vXd + 3, vXd)
    a("v_add_u32 v%d, %d, v%d", vXd + 2, 2 * (8 * 1280 - 1024), vXd)
    a("v_add_u32 v%d, %d, v%d", vXd + 1, 1 * (8 * 1280 - 1024), vXd + 3)
    a("v_add_u32 v%d, %d, v%d", vXd + 3, 3 * (8 * 1280 - 1024), vXd + 3)
    a("s_lshl_b32 s%d, s%d, 2", sXoff, sMT); a("s_add_u32 s%d, s%d, s%d", sXoff, sXoff, sW)
    a("s_mul_i32 s%d, s%d, %d", sXoff, sXoff, 32 * 1280); a("s_lshl_b32 s%d, s%d, 7", sT, sKb); a("s_add_u32 s%d, s%d, s%d", sXoff, sXoff, sT)
    a("s_lshl_b32 s%d, s%d, 12", sM0, sW)
    a("v_and_b32 v%d, 1, v%d", vT + 3, vT + 2)
    a("v_lshlrev_b32 v%d, 1, v%d", vT + 3, vT + 3)
    a("v_xor_b32 v%d, v%d, v%d", vT + 3, vT + 1, vT + 3)
    a("v_mul_u32_u24 v%d, 3072, v%d", vWd, vT)
    a("v_lshl_add_u32 v%d, v%d, 4, v%d", vWd, vT + 3, vWd)
    a("v_xor_b32 v%d, 64, v%d", vWd + 3, vWd)
    a("v_add_u32 v%d, %d, v%d", vWd + 2, 2 * (8 * 3072 - 1024), vWd)
    a("v_add_u32 v%d, %d, v%d", vWd + 1, 1 * (8 * 3072 - 1024), vWd + 3)
    a("v_add_u32 v%d, %d, v%d", vWd + 3, 3 * (8 * 3072 - 1024), vWd + 3)
    a("s_lshl_b32 s%d, s%d, 1", sWoff, sFT); a("s_lshr_b32 s%d, s%d, 1", sT, sW); a("s_add_u32 s%d, s%d, s%d", sWoff, sWoff, sT); a("s_lshl_b32 s%d, s%d, 7", sWoff, sWoff)
    a("s_lshl_b32 s%d, s%d, 1", sT, sKb); a("s_and_b32 s%d, s%d, 1", sT2, sW); a("s_add_u32 s%d, s%d, s%d", sT, sT, sT2)
    a("s_mul_i32 s%d, s%d, %d", sT, sT, 32 * 3072); a("s_add_u32 s%d, s%d, s%d", sWoff, sWoff, sT)
    sSa, sSb, sMb = sMT, sFT, sC1
    a("s_movk_i32 s%d, %d", sNx, 128 - 1280); a("s_mov_b32 s%d, %d", sNw, (-9 * 64 * 3072) & 0xffffffff)
    a("s_movk_i32 s%d, 128", sSa); a("s_mov_b32 s%d, %d", sSb, 64 * 3072)
    a("s_movk_i32 s%d, 16384", sMb)
    a("s_mov_b32 s%d, -1", sIt)
    a("s_getpc_b64 s[56:57]"); a.label("L_t0"); a("s_add_u32 s56, s56, L_table-L_t0"); a("s_addc_u32 s57, s57, 0"); a("s_lshl_b32 s%d, s2, 2", sTab)
    if o["swapx"]:
        a("s_bitcmp1_b32 s%d, 0", sRd); a("s_cbranch_scc0 L_nosw")
        for i in range(4): a("v_swap_b32 v%d, v%d", vXd + i, vWd + i)
        for x, y in ((sNx, sNw), (sSa, sSb), (sXoff, sWoff), (sX + 2, sW1 + 2)):
            a("s_mov_b32 s%d, s%d", sT, x); a("s_mov_b32 s%d, s%d", x, y); a("s_mov_b32 s%d, s%d", y, sT)
        a("s_movk_i32 s%d, -16384", sMb); a("s_addk_i32 s%d, 16384", sM0)
        a.label("L_nosw")
        a("s_bitcmp1_b32 s%d, 0", sRd)
    else: a("s_cmp_eq_u32 s%d, 0", sIt)
    a("s_mov_b32 m0, s%d", sM0)
    a("s_waitcnt lgkmcnt(0)")
    a("s_cselect_b64 s[%d:%d], s[42:43], s[40:41]", sX, sX + 1); a("s_cselect_b64 s[%d:%d], s[40:41], s[42:43]", sW1, sW1 + 1)
    def dma(i):
        if "nodma" in o["dbg"]: return "s_nop 0"
        if i < 4: return "buffer_load_dwordx4 v%d, s[%d:%d], s%d offen offset:%d lds" % (vXd + i, sX, sX + 3, sXoff, 1024 * i)
        return "buffer_load_dwordx4 v%d, s[%d:%d], s%d offen offset:%d lds" % (vWd + i - 4, sW1, sW1 + 3, sWoff, 1024 * (i - 4))
    if o["l1prio"]: a("s_setprio %d", o["l1prio"])
    stamp()
    def ldloop(lab, first, last_it):
        a.label(lab)
        thr = (not first) and o["lwait"] < 8
        for i in range(4):
            if thr: a("s_waitcnt vmcnt(%d)", o["lwait"] - 1)
            a(dma(i))
        a("s_add_u32 m0, s%d, s%d", sM0, sMb)
        a("s_add_u32 s%d, s%d, 1", sKb, sKb); a("s_cmp_eq_u32 s%d, 10", sKb)
        a("s_cselect_b32 s%d, s%d, s%d", sDelta, sNx, sSa); a("s_cselect_b32 s%d, s%d, s%d", sPw, sNw, sSb); a("s_cselect_b32 s%d, 0, s%d", sKb, sKb)
        for i in range(4, 8):
            if thr: a("s_waitcnt vmcnt(%d)", o["lwait"] - 1)
            a(dma(i))
        a("s_add_u32 s%d, s%d, s%d", sXoff, sXoff, sDelta); a("s_add_u32 s%d, s%d, s%d", sWoff, sWoff, sPw)
        a("s_add_u32 s%d, s%d, %d", sM0, sM0, SLOT); a("s_cmp_ge_u32 s%d, %d", sM0, S * SLOT)
        a("s_cselect_b32 s%d, %d, 0", sT, S * SLOT); a("s_sub_u32 s%d, s%d, s%d", sM0, sM0, sT); a("s_mov_b32 m0, s%d", sM0)
        a("s_add_u32 s%d, s%d, 1", sIt, sIt)
        if first:
            a("s_cbranch_scc1 %s", lab)
            a("s_cmp_eq_u32 s%d, %d", sIt, last_it); a("s_cbranch_scc1 L_su")
            a("s_waitcnt vmcnt(8)"); a("s_barrier")
            a("s_branch %s", lab)
        else:
            a.label(lab + "w")
            a("s_cmp_lt_u32 s%d, %d", sIt, last_it)
            a("s_waitcnt vmcnt(8)"); a("s_barrier")
            a("s_cbranch_scc1 %s", lab)
    a("s_load_dword s%d, s[56:57], s%d", sTab, sTab)
    ldloop("L_ld", True, o["sup"])
    a.L.append("@S")
    a.label("L_su")
    lsetup()
    a("s_cmp_lt_u32 s5, 24"); a("s_cbranch_scc1 L_ld2w")
    a("s_barrier")
    nst[0] = 1; stamp()
    a("s_branch L_lw")
    ldloop("L_ld2", False, 9)
    nst[0] = 1
    a.L.append("@H")
    a.label("L_helper")
    a("s_cmp_lt_u32 s%d, 4", sWv); a("s_cbranch_scc0 L_hl")
    a("v_mul_u32_u24 v%d, 1280, v%d", vXd, vL); a("v_mul_u32_u24 v%d, 3072, v%d", vWd, vL)
    a("s_sub_u32 s%d, s%d, 24", sM0, sI); a("s_lshl_b32 s%d, s%d, 2", sM0, sM0); a("s_add_u32 s%d, s%d, s%d", sM0, sM0, sWv)
    k0, k1 = o["pf"]
    if k1 > k0:
        nx, nw = (8, 12) if o["a1"] == 4 else (4, 24)
        per = nx + nw; tot = per * (k1 - k0)
        magic = (65536 + per - 1) // per
        assert all((n * magic) >> 16 == n // per for n in range(tot + 64)) and tot >= 32
        a("s_mov_b32 s%d, s%d", sIt, sM0)
        a("s_add_u32 s%d, s%d, %d", sKb, sKb, k0)
        if o["a1"] == 4:
            a("s_lshr_b32 s%d, s%d, 1", sXoff, sXcd); a("s_mul_i32 s%d, s%d, %d", sXoff, sXoff, 512 * 1280)
            a("s_and_b32 s%d, s%d, 1", sWoff, sXcd); a("s_mul_i32 s%d, s%d, 1536", sWoff, sWoff)
        else:
            a("s_mul_i32 s%d, s%d, %d", sXoff, sXcd, 256 * 1280); a("s_mov_b32 s%d, 0", sWoff)
        a("s_sub_u32 s%d, s%d, %d", sWoff, sWoff, nx * 128)
    a("s_waitcnt lgkmcnt(0)")
    a("s_mov_b64 s[%d:%d], s[40:41]", sX, sX + 1); a("s_mov_b64 s[%d:%d], s[42:43]", sW1, sW1 + 1)
    if k1 > k0:
        a.label("L_pf")
        a("s_mul_i32 s%d, s%d, %d", sT, sIt, magic); a("s_lshr_b32 s%d, s%d, 16", sT, sT)
        a("s_mul_i32 s%d, s%d, %d", sT2, sT, per); a("s_sub_u32 s%d, s%d, s%d", sT2, sIt, sT2)
        a("s_add_u32 s%d, s%d, s%d", sT, sT, sKb)
        a("s_cmp_ge_u32 s%d, 10", sT); a("s_cselect_b32 s%d, 10, 0", sT3); a("s_sub_u32 s%d, s%d, s%d", sT, sT, sT3)
        a("s_cmp_ge_u32 s%d, %d", sT2, nx); a("s_cbranch_scc1 L_pfw")
        a("s_mul_i32 s%d, s%d, %d", sT2, sT2, 64 * 1280); a("s_lshl_b32 s%d, s%d, 7", sT, sT); a("s_add_u32 s%d, s%d, s%d", sT, sT, sT2); a("s_add_u32 s%d, s%d, s%d", sT, sT, sXoff)
        a("buffer_load_dword v%d, v%d, s[%d:%d], s%d offen " + o["tfl"], TMP, vXd, sX, sX + 3, sT)
        a("s_branch L_pfn")
        a.label("L_pfw")
        a("s_lshl_b32 s%d, s%d, 7", sT2, sT2); a("s_mul_i32 s%d, s%d, %d", sT, sT, 64 * 3072); a("s_add_u32 s%d, s%d, s%d", sT, sT, sT2); a("s_add_u32 s%d, s%d, s%d", sT, sT, sWoff)
        a("buffer_load_dword v%d, v%d, s[%d:%d], s%d offen " + o["tfl"], TMP, vWd, sW1, sW1 + 3, sT)
        a.label("L_pfn")
        a("s_add_u32 s%d, s%d, 32", sIt, sIt); a("s_cmp_lt_u32 s%d, %d", sIt, tot); a("s_cbranch_scc1 L_pf")
    stamp()
    a("s_branch L_hc2")
    a.label("L_hl")
    if o["codepf"]:
        a("s_getpc_b64 s[%d:%d]", sT, sT + 1)
        a("s_sub_u32 s%d, s%d, L_hl-%s_kernel+4", sT, sT, NAME); a("s_subb_u32 s%d, s%d, 0", sT + 1, sT + 1)
        a("v_and_b32 v%d, 255, v0", vT + 3)
        a("v_lshlrev_b32 v%d, 7, v%d", vT + 3, vT + 3)
        a("v_cmp_gt_u32 vcc, L_codeend-%s_kernel, v%d", NAME, vT + 3)
        a("s_and_saveexec_b64 s[%d:%d], vcc", sC1, sC1 + 1)
        a("s_cbranch_execz L_nocode")
        a("s_cmp_lg_u32 s%d, 24", sI); a("s_cbranch_scc1 L_nocode")
        a("global_load_dword v%d, v%d, s[%d:%d]", A2, vT + 3, sT, sT + 1)
        a.label("L_nocode")
        a("s_mov_b64 exec, -1")
    a("s_memrealtime s[%d:%d]", sNonce, sNonce + 1)
    a("v_lshlrev_b32 v%d, 2, v%d", vT + 4, vL)
    a("v_add_u32 v%d, %d, v%d", vT + 4, SYNC, vT + 4)
    for r in range(5): a("ds_write_b32 v%d, v%d offset:%d", vT + 4, vZ, 256 * r)
    a("s_waitcnt lgkmcnt(0)")
    tab_load("L_t3")
    a("s_cmp_lg_u32 s2, 255"); a("s_cbranch_scc1 L_nolead")
    a("s_cmp_lg_u32 s%d, 4", sWv); a("s_cbranch_scc1 L_nolead")
    a("s_or_b32 s%d, s%d, 0x80000000", sNonce + 1, sNonce + 1)
    a("s_atomic_add_x2 s[%d:%d], s[52:53], 0", sNonce, sNonce + 1)
    a.label("L_nolead")
    a("s_branch L_su")

    a.L.append("@C")
    nst[0] = 1
    a.label("L_comp")
    FR = 0
    tab_load("L_t1")
    vXr, vWr = 16, 18
    for f in range(4):
        for r in range(1, 4): a("v_mov_b32 v%d, 0", TMP + 4 * f + r)
    for r in range(1, 4): a("v_mov_b32 v%d, 0", vB2 + r)
    a("v_lshrrev_b32 v%d, 4, v%d", vHi, vL)
    a("v_mov_b32 v%d, 0x3f80", vT + 5)
    a("v_cmp_eq_u32 vcc, 0, v%d", vHi)
    a("s_lshr_b32 s%d, s%d, 1", sT, sW); a("s_lshl_b32 s%d, s%d, 6", sT, sT)
    a("v_add_u32 v%d, s%d, v%d", vT + 3, sT, vT + 3)
    a("v_lshlrev_b32 v%d, 7, v%d", vT + 3, vT + 3)
    a("v_bfe_u32 v%d, v%d, 1, 3", vT + 4, vL)
    a("v_xor_b32 v%d, v%d, v%d", vT + 4, vT + 4, vHi)
    a("v_lshl_add_u32 v%d, v%d, 4, v%d", vXr, vT + 4, vT + 3)
    a("v_xor_b32 v%d, 64, v%d", vXr + 1, vXr)
    a("v_bfe_u32 v%d, v%d, 2, 2", vT + 3, vL)
    a("v_lshl_add_u32 v%d, v%d, 3, v%d", vT + 3, vHi, vT + 3)
    a("v_lshlrev_b32 v%d, 7, v%d", vT + 3, vT + 3)
    a("v_bfe_u32 v%d, v%d, 3, 2", vT + 4, vL)
    a("v_lshl_add_u32 v%d, v%d, 5, v%d", vT + 3, vT + 4, vT + 3)
    a("v_and_b32 v%d, 3, v%d", vT + 4, vL)
    a("v_lshl_add_u32 v%d, v%d, 3, v%d", vT + 3, vT + 4, vT + 3)
    a("s_and_b32 s%d, s%d, 1", sT, sW); a("s_lshl_b32 s%d, s%d, 13", sT, sT); a("s_add_u32 s%d, s%d, 16384", sT, sT)
    a("v_add_u32 v%d, s%d, v%d", vWr, sT, vT + 3)
    for f in range(1, 4): a("v_xor_b32 v%d, %d, v%d", vWr + f, 32 * f, vWr)
    a("v_lshlrev_b32 v%d, 2, v%d", vT + 4, vL)
    a("v_add_u32 v%d, %d, v%d", vT + 4, SYNC, vT + 4)
    for r in range(5): a("ds_write_b32 v%d, v%d offset:%d", vT + 4, vZ, 256 * r)
    a("v_cndmask_b32 v%d, 0, v%d, vcc", vB2, vT + 5)
    a("v_mov_b32 v%d, 0x%x", vC0, f2u(C0)); a("v_mov_b32 v%d, v%d", vC0 + 1, vC0)
    a("v_mov_b32 v%d, 1.0", vONE); a("v_mov_b32 v%d, 1.0", vONE + 1)
    a("s_mov_b32 s%d, 0x%x", sC1, f2u(C1)); a("s_mov_b32 s%d, s%d", sC1 + 1, sC1)
    srd(sH, 54, FLAGOFF + 131072 + 196608)
    a("s_lshl_b32 s%d, s%d, 1", sT, sMT); a("s_lshr_b32 s%d, s%d, 1", sT2, sW); a("s_add_u32 s%d, s%d, s%d", sT, sT, sT2); a("s_mul_i32 s%d, s%d, %d", sT, sT, 4 * o["hs"])
    a("s_lshl_b32 s%d, s%d, 4", sT3, sT3)
    a("s_add_u32 s%d, s%d, s%d", sXoff, sT, sT3)
    a("v_lshlrev_b32 v%d, 4, v%d", vHst, vL)
    a("s_mul_i32 s%d, s%d, 12", sG, sMT); a("s_add_u32 s%d, s%d, s%d", sG, sG, sFT); a("s_lshl_b32 s%d, s%d, 9", sG, sG); a("s_add_u32 s%d, s%d, %d", sG, sG, FLAGOFF)
    if o["spub"]:
        fp = 80 if not PROF else 84
        a("s_add_u32 s%d, s54, s%d", fp, sG); a("s_addc_u32 s%d, s55, 0", fp + 1)
        a("s_and_b32 s%d, s%d, 1", sT, sW); a("s_lshl_b32 s%d, s%d, 8", sT, sT)
        a("s_load_dword s%d, s[%d:%d], s%d glc", sNx, fp, fp + 1, sT)
    a("s_lshl_b32 s%d, s%d, 1", sT, sMT); a("s_lshr_b32 s%d, s%d, 1", sT2, sW); a("s_add_u32 s%d, s%d, s%d", sT, sT, sT2); a("s_mul_i32 s%d, s%d, %d", sT, sT, 24 * 256)
    a("s_lshr_b32 s%d, s%d, 3", sT3, sT3); a("s_add_u32 s%d, s%d, s%d", sT, sT, sT3); a("s_add_u32 s%d, s%d, %d", sWoff, sT, FLAGOFF + 131072)
    a("v_mov_b32 v%d, 1", vT); a("v_mov_b32 v%d, %d", vT + 1, SYNC); a("v_lshlrev_b32 v%d, 3, v%d", vT + 2, vL)
    a("s_mov_b32 s%d, 0", sRd); a("s_mov_b32 s%d, 0", sIt)
    a("s_mov_b32 s%d, %d", sPw, (-(S - 1) * SLOT) & 0xffffffff)
    if o["prio"]: a("s_setprio %d", o["prio"])
    a("s_waitcnt vmcnt(0) lgkmcnt(0)")
    for m in range(4):
        for f in range(4):
            r = ACC + (m * 4 + f) * 4
            a("v_mfma_f32_16x16x32_bf16 v[%d:%d], v[%d:%d], v[%d:%d], 0", r, r + 3, TMP + 4 * f, TMP + 4 * f + 3, vB2, vB2 + 3)
    srd(sO, 52, 256)
    stamp()
    a("s_barrier")
    stamp()
    def reads(s):
        b = 32 * s
        w = lambda f, u: "ds_read_b64_tr_b16 a[%d:%d], v%d offset:%d" % (b + 4 * f + 2 * u, b + 4 * f + 2 * u + 1, vWr + f, s * 4096 + u * 512)
        x = lambda m: "ds_read_b128 a[%d:%d], v%d offset:%d" % (b + 16 + 4 * m, b + 19 + 4 * m, vXr + s, m * 2048)
        return [w(0, 0), w(0, 1), x(0), x(1), x(2), x(3), w(1, 0), w(1, 1), w(2, 0), w(2, 1), w(3, 0), w(3, 1)]
    def mf(buf, f, m):
        b = 32 * buf; r = ACC + (m * 4 + f) * 4
        return "v_mfma_f32_16x16x32_bf16 v[%d:%d], a[%d:%d], a[%d:%d], v[%d:%d]" % (r, r + 3, b + 4 * f, b + 4 * f + 3, b + 16 + 4 * m, b + 19 + 4 * m, r, r + 3)
    def order(): return [(f, m) for f in range(4) for m in (range(4) if (f % 2 == 0 or not o["snake"]) else range(3, -1, -1))]
    upd = lambda r: "v_add_u32 v%d, s%d, v%d" % (r, sDelta, r)
    slot = ["s_add_u32 s%d, s%d, %d" % (sRd, sRd, SLOT), "s_cmp_ge_u32 s%d, %d" % (sRd, S * SLOT), "s_cselect_b32 s%d, s%d, %d" % (sDelta, sPw, SLOT),
            "s_cselect_b32 s%d, 0, s%d" % (sRd, sRd), upd(vXr), "s_add_u32 s%d, s%d, 1" % (sIt, sIt), "s_cmp_lt_u32 s%d, 10" % sIt]
    for r in reads(0): a(r)
    a("@PRE")
    a("s_branch L_p1m")
    a(".p2align 3")
    a("s_nop 0")
    a.label("L_p1b")
    a("s_barrier")
    a.label("L_p1")
    BP = o["bp"]
    O = order()
    def place(R, gaps, fl):
        d = {g: [] for g in gaps}; i = 0
        for g in gaps:
            if i < len(R): d[g].append(R[i]); i += 1
            if fl and i < len(R) and "tr_b16" in d[g][0] and "tr_b16" in R[i]: d[g].append(R[i]); i += 1
        assert i == len(R)
        return d
    u1 = [upd(vXr + 1), upd(vWr), upd(vWr + 1), upd(vWr + 2), upd(vWr + 3)]
    P0 = place(reads(0), list(range(BP, 16)), o["fl"])
    P1 = place(reads(1), list(range(16)), o["fl"])
    def fill(P, gaps, items):
        items = list(items)
        for g in gaps:
            while items and len(P.setdefault(g, [])) < 2 - (1 if any("b128" in e for e in P[g]) else 0) and not any(q > g and any("ds_read" in e for e in P[q]) for q in P):
                P[g].append(items.pop(0))
        return items
    left = fill(P0, range(BP, 15), slot)
    nleft = len(left)
    pre = slot[:len(slot) - nleft]
    for n in range(BP, 16):
        f, m = O[n]
        a(mf(1, f, m))
        for e in P0.get(n, []): a(e)
    a.label("L_p1m")
    rest = fill(P1, range(16), left[:0] + u1)
    need = {0: 6, 4: 8, 8: 10, 12: 12}
    if o["nw"] == 3: need = {0: 8, 8: 10, 12: 12}
    if o["nw"] == 2: need = {0: 10, 12: 12}
    issued = 0
    for n in range(16):
        f, m = O[n]
        if n in need: a("s_waitcnt lgkmcnt(%d)", min(15, 12 - need[n] + issued))
        a(mf(0, f, m))
        for e in P1.get(n, []):
            a(e); issued += "ds_read" in e
    rest = rest + left
    for n in range(BP):
        f, m = O[n]
        if n in (0, 4): a("s_waitcnt lgkmcnt(%d)", 6 if n == 0 else 4)
        a(mf(1, f, m))
        for _ in range(2):
            if rest and n < BP - 1: a(rest.pop(0))
    for e in rest: a(e)
    a("s_waitcnt lgkmcnt(0)")
    a("s_cbranch_scc1 L_p1b")
    for n, (f, m) in enumerate(sorted(O[BP:], key=lambda t: (t[1], t[0]))):
        a(mf(1, f, m))
        if n == 0: a(nload)
    k0_ = a.L.index("    @PRE"); a.L[k0_:k0_ + 1] = ["    " + e for e in pre]
    log[:] = ["n"]
    stamp()
    def gelu_list(acc, tmp, outr, n):
        L = []; P = range(n // 2)
        pk = lambda op, d, x, y: "%s v[%d:%d], v[%d:%d], v[%d:%d]" % (op, d, d + 1, x, x + 1, y, y + 1)
        for p in P: L.append(pk("v_pk_mul_f32", tmp + 2 * p, acc + 2 * p, acc + 2 * p))
        for p in P: L.append("v_pk_fma_f32 v[%d:%d], v[%d:%d], s[%d:%d], v[%d:%d]" % (tmp + 2 * p, tmp + 2 * p + 1, tmp + 2 * p, tmp + 2 * p + 1, sC1, sC1 + 1, vC0, vC0 + 1))
        for p in P: L.append(pk("v_pk_mul_f32", tmp + 2 * p, tmp + 2 * p, acc + 2 * p))
        for i in range(n): L.append("v_exp_f32 v%d, v%d" % (tmp + i, tmp + i))
        for p in P: L.append(pk("v_pk_add_f32", tmp + 2 * p, tmp + 2 * p, vONE))
        for i in range(n): L.append("v_rcp_f32 v%d, v%d" % (tmp + i, tmp + i))
        for p in P: L.append(pk("v_pk_mul_f32", tmp + 2 * p, tmp + 2 * p, acc + 2 * p))
        for p in P: L.append("v_cvt_pk_bf16_f32 v%d, v%d, v%d" % (outr + p, tmp + 2 * p, tmp + 2 * p + 1))
        return L
    def publish(part):
        a(vmwait("st%d" % part))
        a("s_mov_b64 exec, 1")
        a("ds_add_rtn_u32 v%d, v%d, v%d offset:%d", vT + 5, vT + 1, vT, 4 * part)
        a("s_waitcnt lgkmcnt(0)")
        a("v_readfirstlane_b32 s%d, v%d", sT2, vT + 5)
        a("s_mov_b64 exec, 0xffff")
        a("s_nop 0")
        a("s_cmp_lg_u32 s%d, 3", sT2); a("s_cbranch_scc1 L_nopub%d", part)
        if o["spub"]: a("s_atomic_swap_x2 s[%d:%d], s[%d:%d], %d", sNonce, sNonce + 1, 80 if not PROF else 84, 81 if not PROF else 85, 256 * part)
        else: a("buffer_store_dwordx2 v[%d:%d], v%d, s[%d:%d], s%d offen offset:%d sc1", vPl, vPl + 1, vT + 2, sH, sH + 3, sG, 256 * part)
        a.label("L_nopub%d" % part)
        a("s_mov_b64 exec, -1")
    a(".p2align 3")
    for hh in range(8):
        ob = OUT + 4 * (hh & 3)
        for e in gelu_list(ACC + 8 * hh, TMP, ob, 8): a(e)
        mt = hh >> 2
        if "nohst" in o["dbg"]: a("s_mov_b64 exec, 1")
        a("buffer_store_dwordx4 v[%d:%d], v%d, s[%d:%d], s%d offen offset:%d %s", ob, ob + 3, vHst, sH, sH + 3, sXoff, (hh & 1) * 1024, o["hst"])
        if hh & 1: a("s_add_u32 s%d, s%d, %d", sXoff, sXoff, o["hs"])
        if "nohst" in o["dbg"]: a("s_mov_b64 exec, -1")
        log.append("st%d" % mt if hh != 1 else "s1")
        if hh + 1 == o["a1at"]:
            a(vmwait("s1"))
            a("v_cmp_eq_u32 vcc, 0, v%d", vPl + 1); a("s_cbranch_vccnz L_nz"); a.label("L_nz_r")
            if o["spub"]: a("v_readfirstlane_b32 s%d, v%d", sNonce, vPl); a("v_readfirstlane_b32 s%d, v%d", sNonce + 1, vPl + 1)
            a("s_mov_b64 exec, 0xffff")
            a("buffer_store_dwordx2 v[%d:%d], v%d, s[%d:%d], s%d offen sc1", vPl, vPl + 1, vT + 2, sH, sH + 3, sWoff); log.append("f1")
            a("s_mov_b64 exec, -1")
            a(".p2align 3")
        if hh + 1 == o["puba"]:
            if hh == 7: stamp(); a("s_setprio 0")
            publish(0)
            if hh == 7: stamp()
            else: a(".p2align 3")
    if o["puba"] < 8: stamp(); a("s_setprio 0"); stamp()
    if o["puba"] == 8 and not o["spub"]:
        a("s_cmp_lg_u32 s%d, 3", sT2); a("s_cbranch_scc1 L_pw0"); a("s_waitcnt vmcnt(1)"); a("s_branch L_pw1"); a.label("L_pw0"); a("s_waitcnt vmcnt(0)"); a.label("L_pw1")
        log.extend(["x"] * 60)
    publish(1)
    stamp()
    a.label("L_red")
    a("s_waitcnt lgkmcnt(0)")
    tile_assign(); order_init()
    srd(sO, 48, 640 * 2)
    a("v_and_b32 v%d, 15, v%d", vT + 3, vL); a("v_lshrrev_b32 v%d, 4, v%d", vT + 4, vL)
    a("v_lshlrev_b32 v%d, 3, v%d", vT + 5, vT + 3); a("s_lshl_b32 s%d, s%d, 7", sDl, sDl)
    a("buffer_load_dwordx2 v[%d:%d], v%d, s[%d:%d], s%d offen", vB2 + 2, vB2 + 3, vT + 5, sO, sO + 3, sDl)
    a("s_lshl_b32 s%d, s%d, 2", sT, sW); a("v_add_u32 v%d, s%d, v%d", vT + 4, sT, vT + 4)
    a("v_mul_u32_u24 v%d, 272, v%d", vRr, vT + 4)
    a("v_lshl_add_u32 v%d, v%d, 4, v%d", vRr, vT + 3, vRr)
    a("v_mul_u32_u24 v%d, 1280, v%d", vOst, vT + 4)
    a("v_add3_u32 v%d, v%d, v%d, s%d", vOst, vOst, vT + 5, sDl)
    a("v_and_b32 v%d, 3, v%d", vT + 2, vL); a("v_lshlrev_b32 v%d, 8, v%d", vT + 2, vT + 2); a("v_lshl_add_u32 v%d, v%d, 2, v%d", vT + 2, vL, vT + 2)
    a("v_add_u32 v%d, %d, v%d", vT + 2, SYNC + 256, vT + 2)
    a("s_mov_b32 s%d, %d", sCnt, REDSZ); a("s_mul_i32 s%d, s%d, %d", sNb, sNb, REDSZ); a("s_mov_b32 s%d, 0", sIt)
    a("s_waitcnt vmcnt(0)")
    srd(sO, 50, 2048 * 640 * 2)
    a("v_lshlrev_b32 v%d, 16, v%d", vB2, vB2 + 2); a("v_and_b32 v%d, 0xffff0000, v%d", vB2 + 1, vB2 + 2)
    a("v_lshlrev_b32 v%d, 16, v%d", vB2 + 2, vB2 + 3); a("v_and_b32 v%d, 0xffff0000, v%d", vB2 + 3, vB2 + 3)
    if o["rprio"]: a("s_setprio %d", o["rprio"])
    a.label("L_rw")
    a("ds_read_b32 v%d, v%d", vT + 3, vT + 2)
    if o["spec"]:
        for p in range(4): a("ds_read_b128 v[%d:%d], v%d offset:%d", RD + 4 * p, RD + 4 * p + 3, vRr, 4352 * p)
    a("s_add_u32 s%d, s%d, 1", sIt, sIt); a("s_cmp_gt_u32 s%d, %d", sIt, o["spin"] * 8)
    a("s_waitcnt lgkmcnt(%d)", 4 if o["spec"] else 0)
    a("s_cbranch_scc1 L_rgo")
    a("v_cmp_gt_u32 vcc, s%d, v%d", sCnt, vT + 3)
    a("s_cbranch_vccz L_rgo")
    if o["rsleep"]: a("s_sleep %d", o["rsleep"])
    a("s_branch L_rw")
    a.label("L_rgo")
    if not o["spec"]:
        for p in range(4): a("ds_read_b128 v[%d:%d], v%d offset:%d", RD + 4 * p, RD + 4 * p + 3, vRr, 4352 * p)
    a("v_add_u32 v%d, %d, v%d", vRr, REDSZ, vRr)
    a("s_mul_i32 s%d, s%d, %d", sOst, sCur, 16 * 1280)
    for e in order_next: a(e)
    a("s_add_u32 s%d, s%d, %d", sCnt, sCnt, REDSZ)
    pk = lambda d, x, y: a("v_pk_add_f32 v[%d:%d], v[%d:%d], v[%d:%d]", d, d + 1, x, x + 1, y, y + 1)
    a("s_waitcnt lgkmcnt(3)")
    pk(RD, RD, vB2); pk(RD + 2, RD + 2, vB2 + 2)
    a("s_waitcnt lgkmcnt(1)")
    pk(RD + 4, RD + 4, RD + 8); pk(RD + 6, RD + 6, RD + 10)
    a("s_waitcnt lgkmcnt(0)")
    pk(RD, RD, RD + 12); pk(RD + 2, RD + 2, RD + 14)
    pk(RD, RD, RD + 4); pk(RD + 2, RD + 2, RD + 6)
    a("v_cvt_pk_bf16_f32 v%d, v%d, v%d", vPl, RD, RD + 1); a("v_cvt_pk_bf16_f32 v%d, v%d, v%d", vPl + 1, RD + 2, RD + 3)
    a("s_cmp_le_u32 s%d, s%d", sCnt, sNb)
    a("buffer_store_dwordx2 v[%d:%d], v%d, s[%d:%d], s%d offen %s", vPl, vPl + 1, vOst, sO, sO + 3, sOst, o["ost"])
    a("s_cbranch_scc1 L_rw")
    pad_to(NSTAMP)
    if PROF: a("s_branch L_fin")
    else: a("s_endpgm")

    a.label("L_nz")
    get_nonce("L_n0")
    a("s_branch L_nz_r")
    a.L.append("@R")
    nst[0] = 2
    a.label("L_hc2")
    tab_load("L_t2")
    if o["w2pf"]:
        srd(sW2, 46, 1536 * 640 * 2)
        nl = 5 if o["a2"] == 4 else 10
        per = 4 * nl; tot = len(o["kks"]) * per
        magic = (65536 + per - 1) // per
        assert all((n * magic) >> 16 == n // per for n in range(tot + 64))
        NT = 32 - 4 * o["light"]
        if o["light"]:
            a("s_cmp_ge_u32 s%d, %d", sM0, NT); a("s_cbranch_scc1 L_pf2e")
        if o["hbal"]: a("s_sub_u32 s%d, %d, s%d", sIt, NT - 1, sM0)
        else: a("s_mov_b32 s%d, s%d", sIt, sM0)
        if o["a2"] == 4: a("s_and_b32 s%d, s%d, 1", sWoff, sXcd); a("s_mul_i32 s%d, s%d, 640", sWoff, sWoff)
        else: a("s_mov_b32 s%d, 0", sWoff)
        krot(sRd); a("s_lshl_b32 s%d, s%d, 1", sRd, sRd)
        for _ in range(o["hdelay"]): a("s_sleep 8")
        a.label("L_pf2")
        a("s_mul_i32 s%d, s%d, %d", sT, sIt, magic); a("s_lshr_b32 s%d, s%d, 16", sT, sT)
        a("s_mul_i32 s%d, s%d, %d", sT2, sT, per); a("s_sub_u32 s%d, s%d, s%d", sT2, sIt, sT2)
        if len(o["kks"]) < 6:
            a("s_lshl_b32 s%d, s%d, 2", sT, sT); a("s_lshr_b32 s%d, 0x%x, s%d", sT, 0x10000000 | sum(v << (4 * i) for i, v in enumerate(o["kks"])), sT); a("s_and_b32 s%d, s%d, 15", sT, sT)
        a("s_add_u32 s%d, s%d, s%d", sT, sT, sRd); a("s_cmp_ge_u32 s%d, 6", sT); a("s_cselect_b32 s%d, 6, 0", sT3); a("s_sub_u32 s%d, s%d, s%d", sT, sT, sT3)
        a("s_and_b32 s%d, s%d, 3", sT3, sT2); a("s_mul_i32 s%d, s%d, 6", sT3, sT3); a("s_add_u32 s%d, s%d, s%d", sT, sT, sT3)
        a("s_mul_i32 s%d, s%d, %d", sT, sT, 64 * 1280); a("s_lshr_b32 s%d, s%d, 2", sT2, sT2); a("s_lshl_b32 s%d, s%d, 7", sT2, sT2)
        a("s_add_u32 s%d, s%d, s%d", sT, sT, sT2); a("s_add_u32 s%d, s%d, s%d", sT, sT, sWoff)
        a("buffer_load_dword v%d, v%d, s[%d:%d], s%d offen " + o["tfl"], TMP, vXd, sW2, sW2 + 3, sT)
        a("s_add_u32 s%d, s%d, %d", sIt, sIt, NT); a("s_cmp_lt_u32 s%d, %d", sIt, tot); a("s_cbranch_scc1 L_pf2")
        a.label("L_pf2e")
    a("s_barrier")
    stamp()
    if PROF: a("s_waitcnt vmcnt(0)")
    pad_to(7)
    a("s_branch L_red")

    a.L.append("@W")
    nst[0] = 2
    a.label("L_lw")
    def gissue(g):
        a("s_add_u32 m0, s%d, %d", sGm, SLO[g % NSL]); a("s_nop 0")
        for i in range(4):
            a("buffer_load_dwordx4 v%d, s[%d:%d], s%d offen offset:%d lds", vGd + i, sW2, sW2 + 3, sG, 1024 * i); log.append("g%d" % g)
        a("s_add_u32 s%d, s%d, %d", sG, sG, 32 * 1280)
        if g in (3, 7):
            a("s_cmp_eq_u32 s%d, %d", sRd, 2 if g == 3 else 1); a("s_cselect_b32 s%d, s%d, s%d", sG, sGw, sG)
    def greads(g):
        L = []
        for t in range(4):
            k, r = w2reg(g * 4 + t)
            for u in range(2): L.append("ds_read_b64_tr_b16 %s[%d:%d], v%d offset:%d" % (k, r + 2 * u, r + 2 * u + 1, vGr + t, SLO[g % NSL] + u * 2048))
        return L
    log[:] = ["p1"]
    srd(sW2, 46, 1536 * 640 * 2)
    for g in range(o["pre9"]): gissue(g)
    srd(sH, 54, FLAGOFF + 131072 + 196608); srd(sO, 52, 256)
    a(vmwait("p1"))
    a("s_cmp_ge_u32 s5, 24"); a("s_cbranch_scc1 L_cb1"); a("s_barrier"); a.label("L_cb1")
    stamp()
    a(nload); log.append("n")
    a("s_setprio %d", o["lprio"])
    pollA = "buffer_load_dwordx2 v[%d:%d], v62, s[%d:%d], 0 offen sc1" % (vPl, vPl + 1, sH, sH + 3)
    pollB = "buffer_load_dwordx2 v[%d:%d], v%d, s[%d:%d], s%d offen sc1" % (vPl, vPl + 1, vFl, sH, sH + 3, sKr)
    chk = "v_cmp_ne_u64 vcc, s[%d:%d], v[%d:%d]" % (sNonce, sNonce + 1, vPl, vPl + 1)
    LAG = NSL - 1
    assert NSL == 3
    for g in range(o["pre9"], LAG): gissue(g)
    for g in range(LAG, 12):
        a(vmwait("g%d" % (g - LAG)))
        a("s_waitcnt lgkmcnt(0)")
        for r in greads(g - LAG): a(r)
        if g == o["ng"]: get_nonce("L_n1")
        if o["gpace"] < 4 * (LAG - 1) and o["gpb"] <= g < o["gpend"]:
            a("s_cmp_ge_u32 s5, 24"); a("s_cbranch_scc1 L_gp%d", g); a("s_waitcnt vmcnt(%d)", o["gpace"]); a.label("L_gp%d" % g)
        gissue(g)
        if g == o["poll0"]: a(pollA.replace("v[%d:%d]" % (vPl, vPl + 1), "v[60:61]")); log.append("p0")
        if g == o["pollg"]: a(pollA); log.append("pa")
        if g == 11 and o["poll0"]:
            a(vmwait("p0")); a(chk.replace("v[%d:%d]" % (vPl, vPl + 1), "v[60:61]")); a("s_cbranch_vccz L_spa_x")
        if PROF and "gst" in o["dbg"] and g in (4, 8): a("s_memtime s[%d:%d]", 82 + g // 2, 83 + g // 2)
    stamp()
    def spin(lab, poll):
        a("s_mov_b32 s%d, 0", sT3)
        a.label(lab)
        if o["psleep"]: a("s_sleep %d", o["psleep"])
        a(poll)
        a("s_add_u32 s%d, s%d, 1", sT3, sT3); a("s_cmp_gt_u32 s%d, %d", sT3, o["spin"])
        a("s_waitcnt vmcnt(0)")
        a("s_cbranch_scc1 %s_x", lab)
        a(chk)
        a("s_cbranch_vccnz %s", lab)
        a.label(lab + "_x")
    a(vmwait("pa"))
    a(chk)
    a("s_cbranch_vccz L_spa_x")
    spin("L_spa", pollA)
    stamp()
    D = o["dist"]; NK = 12; NR = 8; PK = 8
    assert D == 7
    def hload(k, ph):
        r = RING + 4 * ((k + ph) % NR)
        return "buffer_load_dwordx4 v[%d:%d], v%d, s[%d:%d], s%d offen offset:%d %s" % (r, r + 3, vH, sH, sH + 3, sHcur, (k & 3) * 1024, o["hld"])
    def hstep(k): return ["s_add_u32 s%d, s%d, s%d" % (sHcur, sBase, sO1 if k % NK == 3 else sO2)] if k % NK in (3, 7) else []
    for k in range(D):
        a(hload(k, 0)); log.append("h")
        for e in hstep(k): a(e)
        if k == (PK + D) % NK: a(pollB); log.append("pb")
    for g in range(12 - LAG, 12):
        a(vmwait("g%d" % g))
        for r in greads(g): a(r)
    a("s_cmp_ge_u32 s5, 24"); a("s_cbranch_scc1 L_cd_x")
    a("v_mov_b32 v62, %d", SYNC); a("s_mov_b32 s%d, 0", sIt)
    a.label("L_cd")
    a("ds_read_b32 v63, v62")
    a("s_add_u32 s%d, s%d, 1", sIt, sIt); a("s_cmp_gt_u32 s%d, %d", sIt, o["spin"] * 8)
    a("s_waitcnt lgkmcnt(0)")
    a("s_cbranch_scc1 L_cd_x")
    a("v_cmp_gt_u32 vcc, 4, v63")
    a("s_cbranch_vccnz L_cd")
    a.label("L_cd_x")
    a("s_mov_b32 s%d, 1", sIt)
    a("s_setprio %d", o["p2prio"])
    a("s_waitcnt lgkmcnt(0)")
    src = lambda t: (A2 + 4 * t) if t < 2 else (B2 + 4 * (t - 2))
    W = ["ds_write_b128 v%d, v[%d:%d] offset:%d" % (vRw, src(t), src(t) + 3, 64 * t) for t in range(4)]
    sig = ["v_add_u32 v%d, s%d, v%d" % (vRw, sInc, vRw), "ds_write_b32 v%d, v%d" % (vCa, vRw)]
    def trip(ph):
        for ks in range(NK):
            between = any(((ks - D + d) % NK) == PK for d in range(D))
            a("s_waitcnt vmcnt(%d)", D - 1 + (1 if between else 0))
            ex = {}
            M = []
            for t in range(4):
                c = "0" if ks == 0 else "v[%d:%d]" % (A2 + 4 * t, A2 + 4 * t + 3)
                d = src(t) if ks == NK - 1 else A2 + 4 * t
                k, w = w2reg(ks * 4 + t); h = RING + 4 * ((ks + ph) % NR)
                M.append("v_mfma_f32_16x16x32_bf16 v[%d:%d], %s[%d:%d], v[%d:%d], %s" % (d, d + 3, k, w, w + 3, h, h + 3, c))
            if ks == 0: M = M[2:] + M[:2]
            ex[1] = [hload(ks + D, ph)]
            ex[2] = hstep(ks + D)
            if ks == PK: ex[3] = [pollB]
            if ks == 1: ex[3] = [W[2]]
            if ks == 2: ex[3] = [W[3]]
            if ks == 3: ex[0] = order_next[0:2]; ex[3] = sig + ["s_mov_b32 s%d, %d" % (sInc, REDSZ)]
            if ks == 4:
                ex[0] = [chk]
                ex[1] = ex[1] + order_next[2:3]
                ex[2] = ["s_lshl_b32 s%d, s%d, 7" % (sT, sCur), "s_andn2_b32 s%d, s%d, s%d" % (sT, sKr, sT), "s_cselect_b64 vcc, 0, vcc"]
                ex[3] = ["s_cbranch_vccnz L_spb%d" % ph, "L_spb%d_r:" % ph, "s_movk_i32 s%d, 256" % sKr, "s_mul_i32 s%d, s%d, %d" % (sBase, sCur, 0 if o["hsame"] else o["hs"]),
                         "s_cmp_ge_u32 s%d, s%d" % (sIt, sNb), "s_cselect_b32 s%d, 0x%x, s%d" % (sBase, OOB, sBase), "s_add_u32 s%d, s%d, s%d" % (sHcur, sBase, sO0)]
            weave(a, M, ex)
        if PROF and "p2st" in o["dbg"]:
            for b in ((1, 3, 5) if ph == 0 else (2, 4)):
                r = {1: 66, 2: 68, 3: 70, 4: 84, 5: 86}[b]
                a("s_cmp_lg_u32 s%d, %d", sIt, b); a("s_cbranch_scc1 L_ps%d", b); a("s_memtime s[%d:%d]", r, r + 1); a.label("L_ps%d" % b)
        a("s_add_u32 s%d, s%d, 1", sIt, sIt); a("s_cmp_le_u32 s%d, s%d", sIt, sNb); a("s_nop 1")
        a(W[0]); a(W[1])
    a(".p2align 3")
    a.label("L_p2")
    trip(0)
    a("s_cbranch_scc0 L_p2e")
    a(".p2align 3")
    trip(4)
    a("s_cbranch_scc1 L_p2")
    a.label("L_p2e")
    a(W[2]); a(W[3])
    for e in sig: a(e)
    stamp()
    if PROF and "p1st" in o["dbg"]:
        a("s_mov_b32 s70, s84"); a("s_mov_b32 s72, s86")
    pad_to(NSTAMP)
    if PROF and ("gst" in o["dbg"] or "p2st" in o["dbg"]):
        a("s_mov_b32 s76, s84"); a("s_mov_b32 s78, s86")
    if PROF: a("s_branch L_fin")
    else: a("s_endpgm")
    for ph in (0, 4):
        a.label("L_spb%d" % ph)
        spin("L_spb%dl" % ph, pollB)
        a("s_branch L_spb%d_r", ph)
    a.L.append("@F")
    a.label("L_fin")
    if PROF:
        n = NSTAMP
        a("s_waitcnt vmcnt(0)")
        a("s_memtime s[%d:%d]", 64 + 2 * n, 65 + 2 * n); a("s_memrealtime s[62:63]"); a("s_waitcnt lgkmcnt(0)")
        a("s_add_u32 s8, s54, %d", 128 << 20); a("s_addc_u32 s9, s55, 0"); a("s_mov_b32 s10, 0x100000"); a("s_mov_b32 s11, 0x20000")
        a("s_lshl_b32 s28, s2, 3"); a("s_add_u32 s28, s28, s%d", sWv); a("s_lshl_b32 s28, s28, 6")
        a("v_mov_b32 v0, s28")
        a("s_getreg_b32 s29, hwreg(HW_REG_XCC_ID)")
        vals = ["s60", "s62", "s29"] + ["s%d" % (64 + 2 * i) for i in range(n + 1)]
        vals += ["0"] * (16 - len(vals))
        for i, v in enumerate(vals): a("v_mov_b32 v%d, %s", 4 + i, v)
        a("s_mov_b64 exec, 1")
        for i in range(4): a("buffer_store_dwordx4 v[%d:%d], v0, s[8:11], 0 offen offset:%d", 4 + 4 * i, 7 + 4 * i, 16 * i)
    if PROF and o.get("probe") is not None:
        pw, pv, pi = o["probe"]
        a("s_cmp_lg_u32 s2, %d", pw); a("s_cbranch_scc1 L_end")
        a("s_cmp_lg_u32 s%d, %d", sWv, pv); a("s_cbranch_scc1 L_end")
        if pi == "start": a("s_sub_u32 s30, s60, s%d", sNonce); a("s_add_u32 s30, s30, 200"); a("s_lshl_b32 s30, s30, 2")
        else: a("s_sub_u32 s30, s%d, s64", 64 + 2 * pi); a("s_lshl_b32 s30, s30, 2"); a("s_add_u32 s30, s30, 300")
        a("s_min_u32 s30, s30, 20000")
        a.label("L_spin")
        a("s_memrealtime s[32:33]"); a("s_waitcnt lgkmcnt(0)")
        a("s_sub_u32 s32, s32, s62"); a("s_cmp_lt_u32 s32, s30"); a("s_cbranch_scc1 L_spin")
    a.label("L_end")
    a("s_endpgm")
    a(".p2align 6")
    a(".type L_table,@object")
    a.label("L_table")
    W = make_table(o)
    for k in range(0, 256, 8): a(".long " + ", ".join("0x%x" % w for w in W[k:k + 8]))
    a.label("L_codeend")
    sec = {"E": []}; cur = "E"
    for l in a.L:
        if l.startswith("@"): cur = l[1]; sec[cur] = []
        else: sec[cur].append(l)
    a.L = []
    for c in o["lay"] + "F":
        if c == "|": a.L.append("    .p2align 12")
        if c in sec: a.L += sec[c]
    if "rt" in o["dbg"].split(): a.L = [l.replace("s_memtime", "s_memrealtime") for l in a.L]
    s = HEAD + "; @launch grid=(256,1,1) block=(512,1,1) lds=163840\n"
    s += '.amdgcn_target "amdgcn-amd-amdhsa--gfx950"\n.text\n'
    n = NAME + "_kernel"
    if o["pad"] is not None: s += ".p2align 12\n.fill %d, 4, 0xbf800000\n" % (o["pad"] // 4)
    s += ".globl %s\n.p2align 8\n.type %s,@function\n%s:\n%s" % (n, n, n, a.text())
    s += '''.section .rodata,"a"
.p2align 6
.amdhsa_kernel %s
  .amdhsa_next_free_vgpr 256
  .amdhsa_next_free_sgpr 102
  .amdhsa_accum_offset 128
  .amdhsa_group_segment_fixed_size 0
  .amdhsa_kernarg_size 64
  .amdhsa_user_sgpr_count 2
  .amdhsa_user_sgpr_kernarg_segment_ptr 1
  .amdhsa_system_sgpr_workgroup_id_x 1
  .amdhsa_float_denorm_mode_32 3
  .amdhsa_float_denorm_mode_16_64 3
.end_amdhsa_kernel
''' % n
    return s
if __name__ == "__main__":
    kw = json.loads(sys.argv[2]) if len(sys.argv) > 2 else {}
    open(sys.argv[1], "w").write(gen(**kw))
```

```python
import struct, sys, json
def f2u(x): return struct.unpack("<I", struct.pack("<f", x))[0]
C0 = -2.0 * 0.7978845608028654 * 1.4426950408889634
C1 = C0 * 0.044715
NAME = "standalone__dense_activation_gelu__prompt"
HEAD = open("cdna_kernels/%s.s.ref" % NAME).read().split("; Override launch geometry")[0]
FLAGOFF = 8 << 20
OOB = 0x7f000000
DEF = dict(prof=False, a1=4, a2=4, rot1="x", pf=(1, 10), w2pf=True, hst="sc1", ost="nt", dist=7, spin=1000000, codepf=True,
           out=8, prio=1, hsame=False, psleep=0, dbg="", gpace=2, gpend=9, rsleep=1, p2prio=1, swap46=False, krot=True, hdelay=0,
           pollg=10, puba=8, nsl=3, hs=49152, lprio=0, ng=8, swapx=True, rotx=0, hbal=False, pad=0xD00, lay="EHSW|CR", tmap="min6", alt=0, light=0, snake=True, barpos=16, nw=2, bp=0, fl=1, poll0=0, spub=False, rprio=0, l1prio=0, lwait=8, spec=False, lfrom=2, lstep=1, gpb=5, pre9=2, sup=3, a1at=7, pm=0, wpos=(2, 3), hld="sc1", tfl="", dfl="", kks=(0, 1, 2, 3, 4, 5))

class A:
    def __init__(self): self.L = []
    def __call__(self, s, *args): self.L.append("    " + (s % args if args else s))
    def label(self, s): self.L.append(s + ":")
    def text(self): return "\n".join(self.L) + "\n"

def weave(a, main, extra):
    for i, m in enumerate(main):
        a(m)
        for e in extra.get(i, []): a(e)

def make_table(o):
    T = {}
    for x in range(8):
        par, q = x & 1, x >> 1
        tiles = []
        if o["a2"] == 8:
            par = 0
            if o["tmap"] == "cur":
                for i in range(32):
                    dl, rb, n = i >> 1, 6 + 5 * (i & 1), 5
                    if i >= 16: dl, rb, n = (i >> 2) + 4, 4 * (i & 3), 4
                    if i >= 24: dl, rb, n = i - 24, 0, 6
                    tiles.append((dl, rb + 16 * x, n))
            else:
                four = {0: (0, 4), 1: (1, 5), 2: (2, 6), 3: (3, 7), 4: (0, 4), 5: (2, 6), 6: (1,), 7: (3,), 8: (5,), 9: (7,)}
                six = {6: (3, 5, 7), 7: (0, 5, 7), 8: (1, 2, 6), 9: (1, 3, 4)}
                for dl in range(10):
                    c = lambda k: 4 if k in four[dl] else 3
                    d = lambda k: (-1 if (dl < 6 and k in four[dl]) else (1 if k in six.get(dl, ()) else 0))
                    rb = sum(5 * c(k) + d(k) for k in range(x))
                    for k in range(c(x)):
                        n = 5 + (d(x) if k == 0 else 0)
                        tiles.append((dl, rb, n)); rb += n
                t6 = [t for t in tiles if t[2] == 6]; t4 = [t for t in tiles if t[2] == 4]; t5 = [t for t in tiles if t[2] == 5]
                nh = 8 - len(t6) - len(t4)
                tiles = t5[nh:] + t4 + t5[:nh] + t6
        elif o["tmap"] == "cur":
            for i in range(32):
                dl, rb, n = i >> 2, 12 + 5 * (i & 3), 5
                if i >= 20: dl, rb, n = 3 + (i & 1), ((i - 20) >> 1) * 4, 4
                if i >= 26: dl, rb, n = (i - 26) >> 1, 6 * (i & 1), 6
                tiles.append((dl, rb + 32 * q, n))
        else:
            cnt = [[7, 6, 7, 6], [6, 7, 6, 7], [7, 6, 6, 7], [6, 7, 6, 6], [6, 6, 7, 6]]
            odd = [[-1, 0, -1, 0], [0, -1, 0, -1], [-1, 0, 0, -1], [1, 0, 1, 1], [1, 1, 0, 1]]
            for dl in range(5):
                rb = sum(5 * cnt[dl][k] + odd[dl][k] for k in range(q))
                for k in range(cnt[dl][q]):
                    n = 5 + (odd[dl][q] if k == 0 else 0)
                    tiles.append((dl, rb, n)); rb += n
            t6 = [t for t in tiles if t[2] == 6]; t4 = [t for t in tiles if t[2] == 4]; t5 = [t for t in tiles if t[2] == 5]
            nh = 8 - len(t6) - len(t4)
            tiles = t5[nh:] + t4 + t5[:nh] + t6
        assert len(tiles) == 32
        for i, (dl, rb, n) in enumerate(tiles):
            E = [b for b in range(rb, rb + n) if not b & 2]; Lt = [b for b in range(rb, rb + n) if b & 2]
            if o["alt"] == 1 and dl & 1: E.reverse(); Lt.reverse()
            if o["alt"] == 2:
                r = dl % len(E); E = E[r:] + E[:r]; r = dl % len(Lt); Lt = Lt[r:] + Lt[:r]
            k = next(k for k, b in enumerate(E) if b % 4 == 0)
            E = [E[k]] + E[:k] + E[k + 1:]
            assert len(E) >= 2
            T[x + 8 * i] = (dl + 5 * par, rb, E + Lt)
    cov = set()
    W = []
    for wg in range(256):
        dl, rb, seq = T[wg]
        for b in seq:
            assert (dl, b) not in cov; cov.add((dl, b))
        w = dl | (rb << 4) | (len(seq) << 11)
        for k, b in enumerate(seq): w |= (b - rb) << (14 + 3 * k)
        W.append(w)
    assert len(cov) == 1280
    return W

def gen(**kw):
    o = dict(DEF); o.update(kw)
    a = A()
    PROF = o["prof"]
    nst = [1]
    def stamp():
        if not PROF: return
        a("s_memtime s[%d:%d]", 64 + 2 * nst[0], 65 + 2 * nst[0]); nst[0] += 1
        a("s_waitcnt lgkmcnt(0)")
    def pad_to(n):
        assert nst[0] <= n, nst[0]
        while PROF and nst[0] < n: stamp()
    NSTAMP = 8
    sX, sW1, sW2, sH, sO = 8, 12, 16, 20, 24
    sWv, sXcd, sI, sMT, sFT = 3, 4, 5, 6, 7
    sXoff, sWoff, sM0, sKb, sDelta, sIt, sT, sT2, sT3, sRd = 28, 29, 30, 31, 32, 33, 34, 35, 36, 37
    sC1 = 38
    sNonce = 56
    sRb, sNb, sDl, sG, sGm, sHcur, sCnt, sOst, sNx, sNw, sPw, sW = 58, 59, 92, 93, 94, 95, 96, 97, 98, 99, 100, 101
    sCur, sEnd, sBase, sO0, sO1, sO2, sInc, sGw, sKr = 0, 1, 82, 88, 89, 90, 91, 97, 96
    vL, vZ = 1, 2
    vT = 8
    vPl = 4
    vH, vFl, vRw, vCa = 0, 3, 6, 7
    vXd, vWd, vGd, vGr = 16, 20, 24, 56
    RING, A2, B2 = 8, 40, 56
    def w2reg(i): return ("a", 4 * i) if i < 32 else ("v", 64 + 4 * (i - 32))
    vHi, vXr, vWr, vC0, vONE, vHst = 3, 16, 20, 22, 24, 26
    vRr, vOst, vB2 = 6, 7, 28
    ACC, TMP, OUT = 32, 96, 112
    RD = 32
    NSL = o["nsl"]; REDSZ = 17408; SYNC = 9 * REDSZ
    SLO = [REDSZ, 2 * REDSZ, 3 * REDSZ, 0]
    SLOT = 32768; S = 3
    def srd(d, lo, nbytes):
        a("s_mov_b64 s[%d:%d], s[%d:%d]", d, d + 1, lo, lo + 1)
        a("s_mov_b32 s%d, %d", d + 2, nbytes); a("s_mov_b32 s%d, 0x20000", d + 3)
    def mod3(dst, src):
        a("s_mul_i32 s%d, s%d, 86", sT, src); a("s_lshr_b32 s%d, s%d, 8", sT, sT); a("s_mul_i32 s%d, s%d, 3", sT, sT); a("s_sub_u32 s%d, s%d, s%d", dst, src, sT)
    def krot(dst):
        if o["krot"]:
            if o["a2"] == 4: a("s_lshr_b32 s%d, s%d, 1", dst, sXcd); a("s_cmp_eq_u32 s%d, 3", dst); a("s_cselect_b32 s%d, 0, s%d", dst, dst)
            else: mod3(dst, sXcd)
        else: a("s_mov_b32 s%d, 0", dst)

    a("s_load_dwordx16 s[40:55], s[0:1], 0")
    a("s_cmp_ge_u32 s2, 256"); a("s_cbranch_scc1 L_end")
    if PROF:
        a("s_memrealtime s[60:61]"); a("s_memtime s[64:65]")
    a("v_lshrrev_b32 v%d, 6, v0", vT)
    a("v_and_b32 v%d, 63, v0", vL)
    a("v_readfirstlane_b32 s%d, v%d", sWv, vT)
    a("s_and_b32 s%d, s2, 7", sXcd); a("s_lshr_b32 s%d, s2, 3", sI)
    a("v_lshrrev_b32 v%d, 3, v%d", vT, vL)
    a("v_and_b32 v%d, 7, v%d", vT + 1, vL)
    a("v_lshrrev_b32 v%d, 1, v%d", vT + 2, vT)
    a("v_mov_b32 v%d, 0", vZ)
    a("s_and_b32 s%d, s%d, 3", sW, sWv)
    if o["rotx"] == 0: a("s_mul_i32 s%d, s%d, 10", sKb, sXcd); a("s_lshr_b32 s%d, s%d, 3", sKb, sKb)
    else:
        tab = {1: [0, 5, 2, 7, 5, 0, 7, 2], 2: [0, 5, 3, 8, 5, 0, 8, 3], 3: [0, 6, 2, 8, 5, 1, 7, 3]}[o["rotx"]]
        a("s_lshl_b32 s%d, s%d, 2", sKb, sXcd); a("s_lshr_b32 s%d, 0x%x, s%d", sKb, sum(v << (4 * i) for i, v in enumerate(tab)), sKb); a("s_and_b32 s%d, s%d, 15", sKb, sKb)
    a("s_mov_b32 s%d, %d", sX + 2, 2048 * 640 * 2); a("s_mov_b32 s%d, 0x20000", sX + 3)
    a("s_mov_b32 s%d, %d", sW1 + 2, 640 * 1536 * 2); a("s_mov_b32 s%d, 0x20000", sW1 + 3)
    a("s_cmp_ge_u32 s%d, 24", sI); a("s_cbranch_scc1 L_helper")
    if o["a1"] == 4:
        a("s_lshr_b32 s%d, s%d, 1", sMT, sXcd); a("s_lshl_b32 s%d, s%d, 2", sMT, sMT)
        a("s_and_b32 s%d, s%d, 3", sT, sI); a("s_add_u32 s%d, s%d, s%d", sMT, sMT, sT)
        a("s_and_b32 s%d, s%d, 1", sFT, sXcd); a("s_mul_i32 s%d, s%d, 6", sFT, sFT)
        a("s_lshr_b32 s%d, s%d, 2", sT2, sI); a("s_add_u32 s%d, s%d, s%d", sFT, sFT, sT2)
    else:
        a("s_lshl_b32 s%d, s%d, 1", sMT, sXcd); a("s_and_b32 s%d, s%d, 1", sT, sI); a("s_add_u32 s%d, s%d, s%d", sMT, sMT, sT)
        a("s_lshr_b32 s%d, s%d, 1", sT2, sI); a("s_mov_b32 s%d, s%d", sFT, sT2)
    a("s_cmp_lt_u32 s%d, 4", sWv); a("s_cbranch_scc0 L_ldr")
    a("v_and_b32 v%d, 15, v%d", vT + 3, vL)
    a("v_lshlrev_b32 v%d, 1, v%d", vT + 5, vT + 3)
    a("s_bfe_u32 s%d, s%d, 0x10000", sT, sW); a("s_lshl1_add_u32 s%d, s%d, s%d", sT3, sFT, sT); a("s_lshl_b32 s%d, s%d, 7", sT3, sT3)
    a("s_movk_i32 s%d, %d", sO + 2, 1536 * 2); a("s_mov_b32 s%d, s%d", sO + 3, sX + 3)
    a("s_waitcnt lgkmcnt(0)")
    a("s_mov_b64 s[%d:%d], s[44:45]", sO, sO + 1)
    for f in range(4): a("buffer_load_ushort v%d, v%d, s[%d:%d], s%d offen offset:%d", TMP + 4 * f, vT + 5, sO, sO + 3, sT3, 32 * f)
    a("s_branch L_comp")
    a.label("L_ldr")

    sTab = 83
    def tab_load(lab):
        a("s_getpc_b64 s[%d:%d]", sT, sT + 1)
        a.label(lab)
        a("s_add_u32 s%d, s%d, L_table-%s", sT, sT, lab); a("s_addc_u32 s%d, s%d, 0", sT + 1, sT + 1)
        a("s_lshl_b32 s%d, s2, 2", sTab)
        a("s_load_dword s%d, s[%d:%d], s%d", sTab, sT, sT + 1, sTab)
    def tile_assign():
        a("s_and_b32 s%d, s%d, 15", sDl, sTab); a("s_bfe_u32 s%d, s%d, 0x70004", sRb, sTab); a("s_bfe_u32 s%d, s%d, 0x3000b", sNb, sTab)
        a("s_lshr_b32 s%d, s%d, 14", sTab, sTab)
    def order_init():
        a("s_add_u32 s%d, s%d, s%d", sEnd, sRb, sNb)
        a("s_and_b32 s%d, s%d, 7", sCur, sTab); a("s_add_u32 s%d, s%d, s%d", sCur, sCur, sRb)
    order_next = ["s_lshr_b32 s%d, s%d, 3" % (sTab, sTab), "s_and_b32 s%d, s%d, 7" % (sCur, sTab), "s_add_u32 s%d, s%d, s%d" % (sCur, sCur, sRb), "s_bitcmp1_b32 s%d, 1" % sCur]
    log = []
    def vmcount(tag):
        idx = max(i for i, t in enumerate(log) if t == tag)
        return len(log) - 1 - idx
    def vmwait(tag): return "s_waitcnt vmcnt(%d)" % vmcount(tag)
    nload = "buffer_load_dwordx2 v[%d:%d], v%d, s[%d:%d], 0 offen sc1" % (vPl, vPl + 1, vZ, sO, sO + 3)
    def get_nonce(lab):
        a("s_mov_b32 s%d, 0", sIt)
        a.label(lab)
        a("v_readfirstlane_b32 s%d, v%d", sNonce, vPl); a("v_readfirstlane_b32 s%d, v%d", sNonce + 1, vPl + 1)
        a("s_add_u32 s%d, s%d, 1", sIt, sIt); a("s_nop 1")
        a("s_cmp_lg_u32 s%d, 0", sNonce + 1); a("s_cbranch_scc1 %s_ok", lab)
        a("s_cmp_gt_u32 s%d, %d", sIt, o["spin"]); a("s_cbranch_scc1 %s_ok", lab)
        a(nload); a("s_waitcnt vmcnt(0)"); a("s_branch %s", lab)
        a.label(lab + "_ok")

    def lsetup():
        a("s_waitcnt lgkmcnt(0)")
        tile_assign()
        a("v_lshlrev_b32 v%d, 1, v%d", vT + 3, vT + 2)
        a("v_xor_b32 v%d, v%d, v%d", vT + 3, vT + 1, vT + 3)
        a("v_mul_u32_u24 v%d, 1280, v%d", vGd, vT)
        a("v_lshl_add_u32 v%d, v%d, 4, v%d", vGd, vT + 3, vGd)
        for i in range(1, 4): a("v_add_u32 v%d, %d, v%d", vGd + i, i * (8 * 1280 - 1024), vGd)
        a("s_mul_i32 s%d, s%d, %d", sGw, sW, 384 * 1280); a("s_lshl_b32 s%d, s%d, 7", sT, sDl); a("s_add_u32 s%d, s%d, s%d", sGw, sGw, sT)
        krot(sRd)
        a("s_mul_i32 s%d, s%d, %d", sT, sRd, 128 * 1280); a("s_add_u32 s%d, s%d, s%d", sG, sGw, sT)
        a("s_mul_i32 s%d, s%d, 4352", sGm, sW); a("s_add_u32 s%d, s%d, %d", sGm, sGm, 5 * REDSZ)
        a("v_lshrrev_b32 v%d, 2, v%d", vT + 3, vL)
        a("v_lshlrev_b32 v%d, 7, v%d", vT + 3, vT + 3)
        a("v_bfe_u32 v%d, v%d, 3, 2", vT + 4, vL)
        a("v_lshl_add_u32 v%d, v%d, 5, v%d", vT + 3, vT + 4, vT + 3)
        a("v_and_b32 v%d, 3, v%d", vT + 4, vL)
        a("v_lshl_add_u32 v%d, v%d, 3, v%d", vT + 3, vT + 4, vT + 3)
        a("v_add_u32 v%d, s%d, v%d", vGr, sGm, vT + 3)
        for t in range(1, 4): a("v_xor_b32 v%d, %d, v%d", vGr + t, 32 * t, vGr)
        a("s_mul_i32 s%d, s%d, 12288", sT, sW); a("v_lshl_add_u32 v%d, v%d, 4, s%d", vH, vL, sT)
        a("s_lshl_b32 s%d, s%d, 12", sO0, sRd)
        a("s_add_u32 s%d, s%d, 4096", sO1, sO0); a("s_cmp_eq_u32 s%d, 2", sRd); a("s_cselect_b32 s%d, 0, s%d", sO1, sO1)
        a("s_add_u32 s%d, s%d, 4096", sO2, sO1); a("s_cmp_eq_u32 s%d, 1", sRd); a("s_cselect_b32 s%d, 0, s%d", sO2, sO2)
        a("v_and_b32 v%d, 15, v%d", vT + 3, vL); a("v_lshrrev_b32 v%d, 4, v%d", vT + 4, vL)
        a("v_mul_u32_u24 v%d, 272, v%d", vRw, vT + 3)
        a("v_lshl_add_u32 v%d, v%d, 4, v%d", vRw, vT + 4, vRw)
        a("s_mul_i32 s%d, s%d, 4352", sT, sW); a("v_add_u32 v%d, s%d, v%d", vRw, sT, vRw)
        a("s_lshl_b32 s%d, s%d, 8", sT, sW); a("s_add_u32 s%d, s%d, %d", sT, sT, SYNC + 256)
        a("v_lshl_add_u32 v%d, v%d, 2, s%d", vCa, vL, sT)
        order_init()
        a("s_lshr_b32 s%d, s%d, 3", sT, sRb); a("s_sub_u32 s%d, s%d, 1", sT2, sEnd); a("s_lshr_b32 s%d, s%d, 3", sT2, sT2)
        a("s_sub_u32 s%d, s%d, s%d", sT2, sT2, sT); a("s_mul_i32 s%d, s%d, 12", sT2, sT2)
        a("s_mul_i32 s%d, s%d, 12", sT, sT); a("s_mul_i32 s%d, s%d, 3", sT3, sW); a("s_add_u32 s%d, s%d, s%d", sT, sT, sT3)
        if o["pm"]:
            a("v_bfe_u32 v%d, v%d, 2, 1", vT + 3, vL); a("v_and_b32 v%d, 3, v%d", vT + 4, vL)
        else:
            a("v_lshrrev_b32 v%d, 5, v%d", vT + 3, vL); a("v_bfe_u32 v%d, v%d, 3, 2", vT + 4, vL)
        a("v_mul_u32_u24 v%d, s%d, v%d", vT + 3, sT2, vT + 3); a("v_min_u32 v%d, 2, v%d", vT + 4, vT + 4)
        a("v_add3_u32 v%d, v%d, v%d, s%d", vFl, vT + 3, vT + 4, sT)
        a("v_lshlrev_b32 v%d, 9, v%d", vFl, vFl)
        a("v_add_u32 v%d, %d, v%d", vFl, FLAGOFF, vFl)
        a("s_mul_i32 s%d, s%d, %d", sBase, sCur, o["hs"]); a("s_add_u32 s%d, s%d, s%d", sHcur, sBase, sO0)
        a("s_mov_b32 s%d, 0", sInc); a("s_mov_b32 s%d, 0", sKr)
        a("s_lshr_b32 s%d, s%d, 2", sT, sCur); a("s_mul_i32 s%d, s%d, 24", sT, sT); a("s_lshl1_add_u32 s%d, s%d, s%d", sT, sT3, sT)
        a("v_min_u32 v62, 5, v%d", vT); a("v_add_u32 v62, s%d, v62", sT); a("v_lshlrev_b32 v62, 8, v62"); a("v_add_u32 v62, %d, v62", FLAGOFF + 131072)
    a("s_add_u32 s%d, s%d, s%d", sRd, sT, sT2)
    if o["rot1"] == "3":
        a("s_add_u32 s%d, s%d, s%d", sKb, sT, sT2); mod3(sKb, sKb)
        a("s_mul_i32 s%d, s%d, 3", sKb, sKb); a("s_add_u32 s%d, s%d, s%d", sKb, sKb, sXcd)
        a("s_cmp_ge_u32 s%d, 10", sKb); a("s_cselect_b32 s%d, 10, 0", sT); a("s_sub_u32 s%d, s%d, s%d", sKb, sKb, sT)
    a("v_xor_b32 v%d, v%d, v%d", vT + 3, vT + 1, vT + 2)
    a("v_mul_u32_u24 v%d, 1280, v%d", vT + 4, vT)
    a("v_lshl_add_u32 v%d, v%d, 4, v%d", vXd, vT + 3, vT + 4)
    a("v_xor_b32 v%d, 64, v%d", vXd + 3, vXd)
    a("v_add_u32 v%d, %d, v%d", vXd + 2, 2 * (8 * 1280 - 1024), vXd)
    a("v_add_u32 v%d, %d, v%d", vXd + 1, 1 * (8 * 1280 - 1024), vXd + 3)
    a("v_add_u32 v%d, %d, v%d", vXd + 3, 3 * (8 * 1280 - 1024), vXd + 3)
    a("s_lshl_b32 s%d, s%d, 2", sXoff, sMT); a("s_add_u32 s%d, s%d, s%d", sXoff, sXoff, sW)
    a("s_mul_i32 s%d, s%d, %d", sXoff, sXoff, 32 * 1280); a("s_lshl_b32 s%d, s%d, 7", sT, sKb); a("s_add_u32 s%d, s%d, s%d", sXoff, sXoff, sT)
    a("s_lshl_b32 s%d, s%d, 12", sM0, sW)
    a("v_and_b32 v%d, 1, v%d", vT + 3, vT + 2)
    a("v_lshlrev_b32 v%d, 1, v%d", vT + 3, vT + 3)
    a("v_xor_b32 v%d, v%d, v%d", vT + 3, vT + 1, vT + 3)
    a("v_mul_u32_u24 v%d, 3072, v%d", vWd, vT)
    a("v_lshl_add_u32 v%d, v%d, 4, v%d", vWd, vT + 3, vWd)
    a("v_xor_b32 v%d, 64, v%d", vWd + 3, vWd)
    a("v_add_u32 v%d, %d, v%d", vWd + 2, 2 * (8 * 3072 - 1024), vWd)
    a("v_add_u32 v%d, %d, v%d", vWd + 1, 1 * (8 * 3072 - 1024), vWd + 3)
    a("v_add_u32 v%d, %d, v%d", vWd + 3, 3 * (8 * 3072 - 1024), vWd + 3)
    a("s_lshl_b32 s%d, s%d, 1", sWoff, sFT); a("s_lshr_b32 s%d, s%d, 1", sT, sW); a("s_add_u32 s%d, s%d, s%d", sWoff, sWoff, sT); a("s_lshl_b32 s%d, s%d, 7", sWoff, sWoff)
    a("s_lshl_b32 s%d, s%d, 1", sT, sKb); a("s_and_b32 s%d, s%d, 1", sT2, sW); a("s_add_u32 s%d, s%d, s%d", sT, sT, sT2)
    a("s_mul_i32 s%d, s%d, %d", sT, sT, 32 * 3072); a("s_add_u32 s%d, s%d, s%d", sWoff, sWoff, sT)
    sSa, sSb, sMb = sMT, sFT, sC1
    a("s_movk_i32 s%d, %d", sNx, 128 - 1280); a("s_mov_b32 s%d, %d", sNw, (-9 * 64 * 3072) & 0xffffffff)
    a("s_movk_i32 s%d, 128", sSa); a("s_mov_b32 s%d, %d", sSb, 64 * 3072)
    a("s_movk_i32 s%d, 16384", sMb)
    a("s_mov_b32 s%d, -1", sIt)
    a("s_getpc_b64 s[56:57]"); a.label("L_t0"); a("s_add_u32 s56, s56, L_table-L_t0"); a("s_addc_u32 s57, s57, 0"); a("s_lshl_b32 s%d, s2, 2", sTab)
    if o["swapx"]:
        a("s_bitcmp1_b32 s%d, 0", sRd); a("s_cbranch_scc0 L_nosw")
        for i in range(4): a("v_swap_b32 v%d, v%d", vXd + i, vWd + i)
        for x, y in ((sNx, sNw), (sSa, sSb), (sXoff, sWoff), (sX + 2, sW1 + 2)):
            a("s_mov_b32 s%d, s%d", sT, x); a("s_mov_b32 s%d, s%d", x, y); a("s_mov_b32 s%d, s%d", y, sT)
        a("s_movk_i32 s%d, -16384", sMb); a("s_addk_i32 s%d, 16384", sM0)
        a.label("L_nosw")
        a("s_bitcmp1_b32 s%d, 0", sRd)
    else: a("s_cmp_eq_u32 s%d, 0", sIt)
    a("s_mov_b32 m0, s%d", sM0)
    a("s_waitcnt lgkmcnt(0)")
    a("s_cselect_b64 s[%d:%d], s[42:43], s[40:41]", sX, sX + 1); a("s_cselect_b64 s[%d:%d], s[40:41], s[42:43]", sW1, sW1 + 1)
    def dma(i):
        if "nodma" in o["dbg"]: return "s_nop 0"
        if i < 4: return "buffer_load_dwordx4 v%d, s[%d:%d], s%d offen offset:%d lds" % (vXd + i, sX, sX + 3, sXoff, 1024 * i)
        return "buffer_load_dwordx4 v%d, s[%d:%d], s%d offen offset:%d lds" % (vWd + i - 4, sW1, sW1 + 3, sWoff, 1024 * (i - 4))
    if o["l1prio"]: a("s_setprio %d", o["l1prio"])
    stamp()
    def ldloop(lab, first, last_it):
        a.label(lab)
        thr = (not first) and o["lwait"] < 8
        for i in range(4):
            if thr: a("s_waitcnt vmcnt(%d)", o["lwait"] - 1)
            a(dma(i))
        a("s_add_u32 m0, s%d, s%d", sM0, sMb)
        a("s_add_u32 s%d, s%d, 1", sKb, sKb); a("s_cmp_eq_u32 s%d, 10", sKb)
        a("s_cselect_b32 s%d, s%d, s%d", sDelta, sNx, sSa); a("s_cselect_b32 s%d, s%d, s%d", sPw, sNw, sSb); a("s_cselect_b32 s%d, 0, s%d", sKb, sKb)
        for i in range(4, 8):
            if thr: a("s_waitcnt vmcnt(%d)", o["lwait"] - 1)
            a(dma(i))
        a("s_add_u32 s%d, s%d, s%d", sXoff, sXoff, sDelta); a("s_add_u32 s%d, s%d, s%d", sWoff, sWoff, sPw)
        a("s_add_u32 s%d, s%d, %d", sM0, sM0, SLOT); a("s_cmp_ge_u32 s%d, %d", sM0, S * SLOT)
        a("s_cselect_b32 s%d, %d, 0", sT, S * SLOT); a("s_sub_u32 s%d, s%d, s%d", sM0, sM0, sT); a("s_mov_b32 m0, s%d", sM0)
        a("s_add_u32 s%d, s%d, 1", sIt, sIt)
        if first:
            a("s_cbranch_scc1 %s", lab)
            a("s_cmp_eq_u32 s%d, %d", sIt, last_it); a("s_cbranch_scc1 L_su")
            a("s_waitcnt vmcnt(8)"); a("s_barrier")
            a("s_branch %s", lab)
        else:
            a.label(lab + "w")
            a("s_cmp_lt_u32 s%d, %d", sIt, last_it)
            a("s_waitcnt vmcnt(8)"); a("s_barrier")
            a("s_cbranch_scc1 %s", lab)
    a("s_load_dword s%d, s[56:57], s%d", sTab, sTab)
    ldloop("L_ld", True, o["sup"])
    a.L.append("@S")
    a.label("L_su")
    lsetup()
    a("s_cmp_lt_u32 s5, 24"); a("s_cbranch_scc1 L_ld2w")
    a("s_barrier")
    nst[0] = 1; stamp()
    a("s_branch L_lw")
    ldloop("L_ld2", False, 9)
    nst[0] = 1
    a.L.append("@H")
    a.label("L_helper")
    a("s_cmp_lt_u32 s%d, 4", sWv); a("s_cbranch_scc0 L_hl")
    a("v_mul_u32_u24 v%d, 1280, v%d", vXd, vL); a("v_mul_u32_u24 v%d, 3072, v%d", vWd, vL)
    a("s_sub_u32 s%d, s%d, 24", sM0, sI); a("s_lshl_b32 s%d, s%d, 2", sM0, sM0); a("s_add_u32 s%d, s%d, s%d", sM0, sM0, sWv)
    k0, k1 = o["pf"]
    if k1 > k0:
        nx, nw = (8, 12) if o["a1"] == 4 else (4, 24)
        per = nx + nw; tot = per * (k1 - k0)
        magic = (65536 + per - 1) // per
        assert all((n * magic) >> 16 == n // per for n in range(tot + 64)) and tot >= 32
        a("s_mov_b32 s%d, s%d", sIt, sM0)
        a("s_add_u32 s%d, s%d, %d", sKb, sKb, k0)
        if o["a1"] == 4:
            a("s_lshr_b32 s%d, s%d, 1", sXoff, sXcd); a("s_mul_i32 s%d, s%d, %d", sXoff, sXoff, 512 * 1280)
            a("s_and_b32 s%d, s%d, 1", sWoff, sXcd); a("s_mul_i32 s%d, s%d, 1536", sWoff, sWoff)
        else:
            a("s_mul_i32 s%d, s%d, %d", sXoff, sXcd, 256 * 1280); a("s_mov_b32 s%d, 0", sWoff)
        a("s_sub_u32 s%d, s%d, %d", sWoff, sWoff, nx * 128)
    a("s_waitcnt lgkmcnt(0)")
    a("s_mov_b64 s[%d:%d], s[40:41]", sX, sX + 1); a("s_mov_b64 s[%d:%d], s[42:43]", sW1, sW1 + 1)
    if k1 > k0:
        a.label("L_pf")
        a("s_mul_i32 s%d, s%d, %d", sT, sIt, magic); a("s_lshr_b32 s%d, s%d, 16", sT, sT)
        a("s_mul_i32 s%d, s%d, %d", sT2, sT, per); a("s_sub_u32 s%d, s%d, s%d", sT2, sIt, sT2)
        a("s_add_u32 s%d, s%d, s%d", sT, sT, sKb)
        a("s_cmp_ge_u32 s%d, 10", sT); a("s_cselect_b32 s%d, 10, 0", sT3); a("s_sub_u32 s%d, s%d, s%d", sT, sT, sT3)
        a("s_cmp_ge_u32 s%d, %d", sT2, nx); a("s_cbranch_scc1 L_pfw")
        a("s_mul_i32 s%d, s%d, %d", sT2, sT2, 64 * 1280); a("s_lshl_b32 s%d, s%d, 7", sT, sT); a("s_add_u32 s%d, s%d, s%d", sT, sT, sT2); a("s_add_u32 s%d, s%d, s%d", sT, sT, sXoff)
        a("buffer_load_dword v%d, v%d, s[%d:%d], s%d offen " + o["tfl"], TMP, vXd, sX, sX + 3, sT)
        a("s_branch L_pfn")
        a.label("L_pfw")
        a("s_lshl_b32 s%d, s%d, 7", sT2, sT2); a("s_mul_i32 s%d, s%d, %d", sT, sT, 64 * 3072); a("s_add_u32 s%d, s%d, s%d", sT, sT, sT2); a("s_add_u32 s%d, s%d, s%d", sT, sT, sWoff)
        a("buffer_load_dword v%d, v%d, s[%d:%d], s%d offen " + o["tfl"], TMP, vWd, sW1, sW1 + 3, sT)
        a.label("L_pfn")
        a("s_add_u32 s%d, s%d, 32", sIt, sIt); a("s_cmp_lt_u32 s%d, %d", sIt, tot); a("s_cbranch_scc1 L_pf")
    stamp()
    a("s_branch L_hc2")
    a.label("L_hl")
    if o["codepf"]:
        a("s_getpc_b64 s[%d:%d]", sT, sT + 1)
        a("s_sub_u32 s%d, s%d, L_hl-%s_kernel+4", sT, sT, NAME); a("s_subb_u32 s%d, s%d, 0", sT + 1, sT + 1)
        a("v_and_b32 v%d, 255, v0", vT + 3)
        a("v_lshlrev_b32 v%d, 7, v%d", vT + 3, vT + 3)
        a("v_cmp_gt_u32 vcc, L_codeend-%s_kernel, v%d", NAME, vT + 3)
        a("s_and_saveexec_b64 s[%d:%d], vcc", sC1, sC1 + 1)
        a("s_cbranch_execz L_nocode")
        a("s_cmp_lg_u32 s%d, 24", sI); a("s_cbranch_scc1 L_nocode")
        a("global_load_dword v%d, v%d, s[%d:%d]", A2, vT + 3, sT, sT + 1)
        a.label("L_nocode")
        a("s_mov_b64 exec, -1")
    a("s_memrealtime s[%d:%d]", sNonce, sNonce + 1)
    a("v_lshlrev_b32 v%d, 2, v%d", vT + 4, vL)
    a("v_add_u32 v%d, %d, v%d", vT + 4, SYNC, vT + 4)
    for r in range(5): a("ds_write_b32 v%d, v%d offset:%d", vT + 4, vZ, 256 * r)
    a("s_waitcnt lgkmcnt(0)")
    tab_load("L_t3")
    a("s_cmp_lg_u32 s2, 255"); a("s_cbranch_scc1 L_nolead")
    a("s_cmp_lg_u32 s%d, 4", sWv); a("s_cbranch_scc1 L_nolead")
    a("s_or_b32 s%d, s%d, 0x80000000", sNonce + 1, sNonce + 1)
    a("s_atomic_add_x2 s[%d:%d], s[52:53], 0", sNonce, sNonce + 1)
    a.label("L_nolead")
    a("s_branch L_su")

    a.L.append("@C")
    nst[0] = 1
    a.label("L_comp")
    FR = 0
    tab_load("L_t1")
    vXr, vWr = 16, 18
    for f in range(4):
        for r in range(1, 4): a("v_mov_b32 v%d, 0", TMP + 4 * f + r)
    for r in range(1, 4): a("v_mov_b32 v%d, 0", vB2 + r)
    a("v_lshrrev_b32 v%d, 4, v%d", vHi, vL)
    a("v_mov_b32 v%d, 0x3f80", vT + 5)
    a("v_cmp_eq_u32 vcc, 0, v%d", vHi)
    a("s_lshr_b32 s%d, s%d, 1", sT, sW); a("s_lshl_b32 s%d, s%d, 6", sT, sT)
    a("v_add_u32 v%d, s%d, v%d", vT + 3, sT, vT + 3)
    a("v_lshlrev_b32 v%d, 7, v%d", vT + 3, vT + 3)
    a("v_bfe_u32 v%d, v%d, 1, 3", vT + 4, vL)
    a("v_xor_b32 v%d, v%d, v%d", vT + 4, vT + 4, vHi)
    a("v_lshl_add_u32 v%d, v%d, 4, v%d", vXr, vT + 4, vT + 3)
    a("v_xor_b32 v%d, 64, v%d", vXr + 1, vXr)
    a("v_bfe_u32 v%d, v%d, 2, 2", vT + 3, vL)
    a("v_lshl_add_u32 v%d, v%d, 3, v%d", vT + 3, vHi, vT + 3)
    a("v_lshlrev_b32 v%d, 7, v%d", vT + 3, vT + 3)
    a("v_bfe_u32 v%d, v%d, 3, 2", vT + 4, vL)
    a("v_lshl_add_u32 v%d, v%d, 5, v%d", vT + 3, vT + 4, vT + 3)
    a("v_and_b32 v%d, 3, v%d", vT + 4, vL)
    a("v_lshl_add_u32 v%d, v%d, 3, v%d", vT + 3, vT + 4, vT + 3)
    a("s_and_b32 s%d, s%d, 1", sT, sW); a("s_lshl_b32 s%d, s%d, 13", sT, sT); a("s_add_u32 s%d, s%d, 16384", sT, sT)
    a("v_add_u32 v%d, s%d, v%d", vWr, sT, vT + 3)
    for f in range(1, 4): a("v_xor_b32 v%d, %d, v%d", vWr + f, 32 * f, vWr)
    a("v_lshlrev_b32 v%d, 2, v%d", vT + 4, vL)
    a("v_add_u32 v%d, %d, v%d", vT + 4, SYNC, vT + 4)
    for r in range(5): a("ds_write_b32 v%d, v%d offset:%d", vT + 4, vZ, 256 * r)
    a("v_cndmask_b32 v%d, 0, v%d, vcc", vB2, vT + 5)
    a("v_mov_b32 v%d, 0x%x", vC0, f2u(C0)); a("v_mov_b32 v%d, v%d", vC0 + 1, vC0)
    a("v_mov_b32 v%d, 1.0", vONE); a("v_mov_b32 v%d, 1.0", vONE + 1)
    a("s_mov_b32 s%d, 0x%x", sC1, f2u(C1)); a("s_mov_b32 s%d, s%d", sC1 + 1, sC1)
    srd(sH, 54, FLAGOFF + 131072 + 196608)
    a("s_lshl_b32 s%d, s%d, 1", sT, sMT); a("s_lshr_b32 s%d, s%d, 1", sT2, sW); a("s_add_u32 s%d, s%d, s%d", sT, sT, sT2); a("s_mul_i32 s%d, s%d, %d", sT, sT, 4 * o["hs"])
    a("s_lshl_b32 s%d, s%d, 4", sT3, sT3)
    a("s_add_u32 s%d, s%d, s%d", sXoff, sT, sT3)
    a("v_lshlrev_b32 v%d, 4, v%d", vHst, vL)
    a("s_mul_i32 s%d, s%d, 12", sG, sMT); a("s_add_u32 s%d, s%d, s%d", sG, sG, sFT); a("s_lshl_b32 s%d, s%d, 9", sG, sG); a("s_add_u32 s%d, s%d, %d", sG, sG, FLAGOFF)
    if o["spub"]:
        fp = 80 if not PROF else 84
        a("s_add_u32 s%d, s54, s%d", fp, sG); a("s_addc_u32 s%d, s55, 0", fp + 1)
        a("s_and_b32 s%d, s%d, 1", sT, sW); a("s_lshl_b32 s%d, s%d, 8", sT, sT)
        a("s_load_dword s%d, s[%d:%d], s%d glc", sNx, fp, fp + 1, sT)
    a("s_lshl_b32 s%d, s%d, 1", sT, sMT); a("s_lshr_b32 s%d, s%d, 1", sT2, sW); a("s_add_u32 s%d, s%d, s%d", sT, sT, sT2); a("s_mul_i32 s%d, s%d, %d", sT, sT, 24 * 256)
    a("s_lshr_b32 s%d, s%d, 3", sT3, sT3); a("s_add_u32 s%d, s%d, s%d", sT, sT, sT3); a("s_add_u32 s%d, s%d, %d", sWoff, sT, FLAGOFF + 131072)
    a("v_mov_b32 v%d, 1", vT); a("v_mov_b32 v%d, %d", vT + 1, SYNC); a("v_lshlrev_b32 v%d, 3, v%d", vT + 2, vL)
    a("s_mov_b32 s%d, 0", sRd); a("s_mov_b32 s%d, 0", sIt)
    a("s_mov_b32 s%d, %d", sPw, (-(S - 1) * SLOT) & 0xffffffff)
    if o["prio"]: a("s_setprio %d", o["prio"])
    a("s_waitcnt vmcnt(0) lgkmcnt(0)")
    for m in range(4):
        for f in range(4):
            r = ACC + (m * 4 + f) * 4
            a("v_mfma_f32_16x16x32_bf16 v[%d:%d], v[%d:%d], v[%d:%d], 0", r, r + 3, TMP + 4 * f, TMP + 4 * f + 3, vB2, vB2 + 3)
    srd(sO, 52, 256)
    stamp()
    a("s_barrier")
    stamp()
    def reads(s):
        b = 32 * s
        w = lambda f, u: "ds_read_b64_tr_b16 a[%d:%d], v%d offset:%d" % (b + 4 * f + 2 * u, b + 4 * f + 2 * u + 1, vWr + f, s * 4096 + u * 512)
        x = lambda m: "ds_read_b128 a[%d:%d], v%d offset:%d" % (b + 16 + 4 * m, b + 19 + 4 * m, vXr + s, m * 2048)
        return [w(0, 0), w(0, 1), x(0), x(1), x(2), x(3), w(1, 0), w(1, 1), w(2, 0), w(2, 1), w(3, 0), w(3, 1)]
    def mf(buf, f, m):
        b = 32 * buf; r = ACC + (m * 4 + f) * 4
        return "v_mfma_f32_16x16x32_bf16 v[%d:%d], a[%d:%d], a[%d:%d], v[%d:%d]" % (r, r + 3, b + 4 * f, b + 4 * f + 3, b + 16 + 4 * m, b + 19 + 4 * m, r, r + 3)
    def order(): return [(f, m) for f in range(4) for m in (range(4) if (f % 2 == 0 or not o["snake"]) else range(3, -1, -1))]
    upd = lambda r: "v_add_u32 v%d, s%d, v%d" % (r, sDelta, r)
    slot = ["s_add_u32 s%d, s%d, %d" % (sRd, sRd, SLOT), "s_cmp_ge_u32 s%d, %d" % (sRd, S * SLOT), "s_cselect_b32 s%d, s%d, %d" % (sDelta, sPw, SLOT),
            "s_cselect_b32 s%d, 0, s%d" % (sRd, sRd), upd(vXr), "s_add_u32 s%d, s%d, 1" % (sIt, sIt), "s_cmp_lt_u32 s%d, 10" % sIt]
    for r in reads(0): a(r)
    a("@PRE")
    a("s_branch L_p1m")
    a(".p2align 3")
    a("s_nop 0")
    a.label("L_p1b")
    a("s_barrier")
    a.label("L_p1")
    BP = o["bp"]
    O = order()
    def place(R, gaps, fl):
        d = {g: [] for g in gaps}; i = 0
        for g in gaps:
            if i < len(R): d[g].append(R[i]); i += 1
            if fl and i < len(R) and "tr_b16" in d[g][0] and "tr_b16" in R[i]: d[g].append(R[i]); i += 1
        assert i == len(R)
        return d
    u1 = [upd(vXr + 1), upd(vWr), upd(vWr + 1), upd(vWr + 2), upd(vWr + 3)]
    P0 = place(reads(0), list(range(BP, 16)), o["fl"])
    P1 = place(reads(1), list(range(16)), o["fl"])
    def fill(P, gaps, items):
        items = list(items)
        for g in gaps:
            while items and len(P.setdefault(g, [])) < 2 - (1 if any("b128" in e for e in P[g]) else 0) and not any(q > g and any("ds_read" in e for e in P[q]) for q in P):
                P[g].append(items.pop(0))
        return items
    left = fill(P0, range(BP, 15), slot)
    nleft = len(left)
    pre = slot[:len(slot) - nleft]
    for n in range(BP, 16):
        f, m = O[n]
        a(mf(1, f, m))
        for e in P0.get(n, []): a(e)
    a.label("L_p1m")
    rest = fill(P1, range(16), left[:0] + u1)
    need = {0: 6, 4: 8, 8: 10, 12: 12}
    if o["nw"] == 3: need = {0: 8, 8: 10, 12: 12}
    if o["nw"] == 2: need = {0: 10, 12: 12}
    issued = 0
    for n in range(16):
        f, m = O[n]
        if n in need: a("s_waitcnt lgkmcnt(%d)", min(15, 12 - need[n] + issued))
        a(mf(0, f, m))
        for e in P1.get(n, []):
            a(e); issued += "ds_read" in e
    rest = rest + left
    for n in range(BP):
        f, m = O[n]
        if n in (0, 4): a("s_waitcnt lgkmcnt(%d)", 6 if n == 0 else 4)
        a(mf(1, f, m))
        for _ in range(2):
            if rest and n < BP - 1: a(rest.pop(0))
    for e in rest: a(e)
    a("s_waitcnt lgkmcnt(0)")
    a("s_cbranch_scc1 L_p1b")
    for n, (f, m) in enumerate(sorted(O[BP:], key=lambda t: (t[1], t[0]))):
        a(mf(1, f, m))
        if n == 0: a(nload)
    k0_ = a.L.index("    @PRE"); a.L[k0_:k0_ + 1] = ["    " + e for e in pre]
    log[:] = ["n"]
    stamp()
    def gelu_list(acc, tmp, outr, n):
        L = []; P = range(n // 2)
        pk = lambda op, d, x, y: "%s v[%d:%d], v[%d:%d], v[%d:%d]" % (op, d, d + 1, x, x + 1, y, y + 1)
        for p in P: L.append(pk("v_pk_mul_f32", tmp + 2 * p, acc + 2 * p, acc + 2 * p))
        for p in P: L.append("v_pk_fma_f32 v[%d:%d], v[%d:%d], s[%d:%d], v[%d:%d]" % (tmp + 2 * p, tmp + 2 * p + 1, tmp + 2 * p, tmp + 2 * p + 1, sC1, sC1 + 1, vC0, vC0 + 1))
        for p in P: L.append(pk("v_pk_mul_f32", tmp + 2 * p, tmp + 2 * p, acc + 2 * p))
        for i in range(n): L.append("v_exp_f32 v%d, v%d" % (tmp + i, tmp + i))
        for p in P: L.append(pk("v_pk_add_f32", tmp + 2 * p, tmp + 2 * p, vONE))
        for i in range(n): L.append("v_rcp_f32 v%d, v%d" % (tmp + i, tmp + i))
        for p in P: L.append(pk("v_pk_mul_f32", tmp + 2 * p, tmp + 2 * p, acc + 2 * p))
        for p in P: L.append("v_cvt_pk_bf16_f32 v%d, v%d, v%d" % (outr + p, tmp + 2 * p, tmp + 2 * p + 1))
        return L
    def publish(part):
        a(vmwait("st%d" % part))
        a("s_mov_b64 exec, 1")
        a("ds_add_rtn_u32 v%d, v%d, v%d offset:%d", vT + 5, vT + 1, vT, 4 * part)
        a("s_waitcnt lgkmcnt(0)")
        a("v_readfirstlane_b32 s%d, v%d", sT2, vT + 5)
        a("s_mov_b64 exec, 0xffff")
        a("s_nop 0")
        a("s_cmp_lg_u32 s%d, 3", sT2); a("s_cbranch_scc1 L_nopub%d", part)
        if o["spub"]: a("s_atomic_swap_x2 s[%d:%d], s[%d:%d], %d", sNonce, sNonce + 1, 80 if not PROF else 84, 81 if not PROF else 85, 256 * part)
        else: a("buffer_store_dwordx2 v[%d:%d], v%d, s[%d:%d], s%d offen offset:%d sc1", vPl, vPl + 1, vT + 2, sH, sH + 3, sG, 256 * part)
        a.label("L_nopub%d" % part)
        a("s_mov_b64 exec, -1")
    a(".p2align 3")
    for hh in range(8):
        ob = OUT + 4 * (hh & 3)
        for e in gelu_list(ACC + 8 * hh, TMP, ob, 8): a(e)
        mt = hh >> 2
        if "nohst" in o["dbg"]: a("s_mov_b64 exec, 1")
        a("buffer_store_dwordx4 v[%d:%d], v%d, s[%d:%d], s%d offen offset:%d %s", ob, ob + 3, vHst, sH, sH + 3, sXoff, (hh & 1) * 1024, o["hst"])
        if hh & 1: a("s_add_u32 s%d, s%d, %d", sXoff, sXoff, o["hs"])
        if "nohst" in o["dbg"]: a("s_mov_b64 exec, -1")
        log.append("st%d" % mt if hh != 1 else "s1")
        if hh + 1 == o["a1at"]:
            a(vmwait("s1"))
            a("v_cmp_eq_u32 vcc, 0, v%d", vPl + 1); a("s_cbranch_vccnz L_nz"); a.label("L_nz_r")
            if o["spub"]: a("v_readfirstlane_b32 s%d, v%d", sNonce, vPl); a("v_readfirstlane_b32 s%d, v%d", sNonce + 1, vPl + 1)
            a("s_mov_b64 exec, 0xffff")
            a("buffer_store_dwordx2 v[%d:%d], v%d, s[%d:%d], s%d offen sc1", vPl, vPl + 1, vT + 2, sH, sH + 3, sWoff); log.append("f1")
            a("s_mov_b64 exec, -1")
            a(".p2align 3")
        if hh + 1 == o["puba"]:
            if hh == 7: stamp(); a("s_setprio 0")
            publish(0)
            if hh == 7: stamp()
            else: a(".p2align 3")
    if o["puba"] < 8: stamp(); a("s_setprio 0"); stamp()
    if o["puba"] == 8 and not o["spub"]:
        a("s_cmp_lg_u32 s%d, 3", sT2); a("s_cbranch_scc1 L_pw0"); a("s_waitcnt vmcnt(1)"); a("s_branch L_pw1"); a.label("L_pw0"); a("s_waitcnt vmcnt(0)"); a.label("L_pw1")
        log.extend(["x"] * 60)
    publish(1)
    stamp()
    a.label("L_red")
    a("s_waitcnt lgkmcnt(0)")
    tile_assign(); order_init()
    srd(sO, 48, 640 * 2)
    a("v_and_b32 v%d, 15, v%d", vT + 3, vL); a("v_lshrrev_b32 v%d, 4, v%d", vT + 4, vL)
    a("v_lshlrev_b32 v%d, 3, v%d", vT + 5, vT + 3); a("s_lshl_b32 s%d, s%d, 7", sDl, sDl)
    a("buffer_load_dwordx2 v[%d:%d], v%d, s[%d:%d], s%d offen", vB2 + 2, vB2 + 3, vT + 5, sO, sO + 3, sDl)
    a("s_lshl_b32 s%d, s%d, 2", sT, sW); a("v_add_u32 v%d, s%d, v%d", vT + 4, sT, vT + 4)
    a("v_mul_u32_u24 v%d, 272, v%d", vRr, vT + 4)
    a("v_lshl_add_u32 v%d, v%d, 4, v%d", vRr, vT + 3, vRr)
    a("v_mul_u32_u24 v%d, 1280, v%d", vOst, vT + 4)
    a("v_add3_u32 v%d, v%d, v%d, s%d", vOst, vOst, vT + 5, sDl)
    a("v_and_b32 v%d, 3, v%d", vT + 2, vL); a("v_lshlrev_b32 v%d, 8, v%d", vT + 2, vT + 2); a("v_lshl_add_u32 v%d, v%d, 2, v%d", vT + 2, vL, vT + 2)
    a("v_add_u32 v%d, %d, v%d", vT + 2, SYNC + 256, vT + 2)
    a("s_mov_b32 s%d, %d", sCnt, REDSZ); a("s_mul_i32 s%d, s%d, %d", sNb, sNb, REDSZ); a("s_mov_b32 s%d, 0", sIt)
    a("s_waitcnt vmcnt(0)")
    srd(sO, 50, 2048 * 640 * 2)
    a("v_lshlrev_b32 v%d, 16, v%d", vB2, vB2 + 2); a("v_and_b32 v%d, 0xffff0000, v%d", vB2 + 1, vB2 + 2)
    a("v_lshlrev_b32 v%d, 16, v%d", vB2 + 2, vB2 + 3); a("v_and_b32 v%d, 0xffff0000, v%d", vB2 + 3, vB2 + 3)
    if o["rprio"]: a("s_setprio %d", o["rprio"])
    a.label("L_rw")
    a("ds_read_b32 v%d, v%d", vT + 3, vT + 2)
    if o["spec"]:
        for p in range(4): a("ds_read_b128 v[%d:%d], v%d offset:%d", RD + 4 * p, RD + 4 * p + 3, vRr, 4352 * p)
    a("s_add_u32 s%d, s%d, 1", sIt, sIt); a("s_cmp_gt_u32 s%d, %d", sIt, o["spin"] * 8)
    a("s_waitcnt lgkmcnt(%d)", 4 if o["spec"] else 0)
    a("s_cbranch_scc1 L_rgo")
    a("v_cmp_gt_u32 vcc, s%d, v%d", sCnt, vT + 3)
    a("s_cbranch_vccz L_rgo")
    if o["rsleep"]: a("s_sleep %d", o["rsleep"])
    a("s_branch L_rw")
    a.label("L_rgo")
    if not o["spec"]:
        for p in range(4): a("ds_read_b128 v[%d:%d], v%d offset:%d", RD + 4 * p, RD + 4 * p + 3, vRr, 4352 * p)
    a("v_add_u32 v%d, %d, v%d", vRr, REDSZ, vRr)
    a("s_mul_i32 s%d, s%d, %d", sOst, sCur, 16 * 1280)
    for e in order_next: a(e)
    a("s_add_u32 s%d, s%d, %d", sCnt, sCnt, REDSZ)
    def pk(d, x, y):
        a("v_add_f32 v%d, v%d, v%d", d, x, y); a("v_add_f32 v%d, v%d, v%d", d + 1, x + 1, y + 1)
    a("s_waitcnt lgkmcnt(3)")
    pk(RD, RD, vB2); pk(RD + 2, RD + 2, vB2 + 2)
    a("s_waitcnt lgkmcnt(1)")
    pk(RD + 4, RD + 4, RD + 8); pk(RD + 6, RD + 6, RD + 10)
    a("s_waitcnt lgkmcnt(0)")
    pk(RD, RD, RD + 12); pk(RD + 2, RD + 2, RD + 14)
    pk(RD, RD, RD + 4); pk(RD + 2, RD + 2, RD + 6)
    a("v_cvt_pk_bf16_f32 v%d, v%d, v%d", vPl, RD, RD + 1); a("v_cvt_pk_bf16_f32 v%d, v%d, v%d", vPl + 1, RD + 2, RD + 3)
    a("s_cmp_le_u32 s%d, s%d", sCnt, sNb)
    a("buffer_store_dwordx2 v[%d:%d], v%d, s[%d:%d], s%d offen %s", vPl, vPl + 1, vOst, sO, sO + 3, sOst, o["ost"])
    a("s_cbranch_scc1 L_rw")
    pad_to(NSTAMP)
    if PROF: a("s_branch L_fin")
    else: a("s_endpgm")

    a.label("L_nz")
    get_nonce("L_n0")
    a("s_branch L_nz_r")
    a.L.append("@R")
    nst[0] = 2
    a.label("L_hc2")
    tab_load("L_t2")
    if o["w2pf"]:
        srd(sW2, 46, 1536 * 640 * 2)
        nl = 5 if o["a2"] == 4 else 10
        per = 4 * nl; tot = len(o["kks"]) * per
        magic = (65536 + per - 1) // per
        assert all((n * magic) >> 16 == n // per for n in range(tot + 64))
        NT = 32 - 4 * o["light"]
        if o["light"]:
            a("s_cmp_ge_u32 s%d, %d", sM0, NT); a("s_cbranch_scc1 L_pf2e")
        if o["hbal"]: a("s_sub_u32 s%d, %d, s%d", sIt, NT - 1, sM0)
        else: a("s_mov_b32 s%d, s%d", sIt, sM0)
        if o["a2"] == 4: a("s_and_b32 s%d, s%d, 1", sWoff, sXcd); a("s_mul_i32 s%d, s%d, 640", sWoff, sWoff)
        else: a("s_mov_b32 s%d, 0", sWoff)
        krot(sRd); a("s_lshl_b32 s%d, s%d, 1", sRd, sRd)
        for _ in range(o["hdelay"]): a("s_sleep 8")
        a.label("L_pf2")
        a("s_mul_i32 s%d, s%d, %d", sT, sIt, magic); a("s_lshr_b32 s%d, s%d, 16", sT, sT)
        a("s_mul_i32 s%d, s%d, %d", sT2, sT, per); a("s_sub_u32 s%d, s%d, s%d", sT2, sIt, sT2)
        if len(o["kks"]) < 6:
            a("s_lshl_b32 s%d, s%d, 2", sT, sT); a("s_lshr_b32 s%d, 0x%x, s%d", sT, 0x10000000 | sum(v << (4 * i) for i, v in enumerate(o["kks"])), sT); a("s_and_b32 s%d, s%d, 15", sT, sT)
        a("s_add_u32 s%d, s%d, s%d", sT, sT, sRd); a("s_cmp_ge_u32 s%d, 6", sT); a("s_cselect_b32 s%d, 6, 0", sT3); a("s_sub_u32 s%d, s%d, s%d", sT, sT, sT3)
        a("s_and_b32 s%d, s%d, 3", sT3, sT2); a("s_mul_i32 s%d, s%d, 6", sT3, sT3); a("s_add_u32 s%d, s%d, s%d", sT, sT, sT3)
        a("s_mul_i32 s%d, s%d, %d", sT, sT, 64 * 1280); a("s_lshr_b32 s%d, s%d, 2", sT2, sT2); a("s_lshl_b32 s%d, s%d, 7", sT2, sT2)
        a("s_add_u32 s%d, s%d, s%d", sT, sT, sT2); a("s_add_u32 s%d, s%d, s%d", sT, sT, sWoff)
        a("buffer_load_dword v%d, v%d, s[%d:%d], s%d offen " + o["tfl"], TMP, vXd, sW2, sW2 + 3, sT)
        a("s_add_u32 s%d, s%d, %d", sIt, sIt, NT); a("s_cmp_lt_u32 s%d, %d", sIt, tot); a("s_cbranch_scc1 L_pf2")
        a.label("L_pf2e")
    a("s_barrier")
    stamp()
    if PROF: a("s_waitcnt vmcnt(0)")
    pad_to(7)
    a("s_branch L_red")

    a.L.append("@W")
    nst[0] = 2
    a.label("L_lw")
    def gissue(g):
        a("s_add_u32 m0, s%d, %d", sGm, SLO[g % NSL]); a("s_nop 0")
        for i in range(4):
            a("buffer_load_dwordx4 v%d, s[%d:%d], s%d offen offset:%d lds", vGd + i, sW2, sW2 + 3, sG, 1024 * i); log.append("g%d" % g)
        a("s_add_u32 s%d, s%d, %d", sG, sG, 32 * 1280)
        if g in (3, 7):
            a("s_cmp_eq_u32 s%d, %d", sRd, 2 if g == 3 else 1); a("s_cselect_b32 s%d, s%d, s%d", sG, sGw, sG)
    def greads(g):
        L = []
        for t in range(4):
            k, r = w2reg(g * 4 + t)
            for u in range(2): L.append("ds_read_b64_tr_b16 %s[%d:%d], v%d offset:%d" % (k, r + 2 * u, r + 2 * u + 1, vGr + t, SLO[g % NSL] + u * 2048))
        return L
    log[:] = ["p1"]
    srd(sW2, 46, 1536 * 640 * 2)
    for g in range(o["pre9"]): gissue(g)
    srd(sH, 54, FLAGOFF + 131072 + 196608); srd(sO, 52, 256)
    a(vmwait("p1"))
    a("s_cmp_ge_u32 s5, 24"); a("s_cbranch_scc1 L_cb1"); a("s_barrier"); a.label("L_cb1")
    stamp()
    a(nload); log.append("n")
    a("s_setprio %d", o["lprio"])
    pollA = "buffer_load_dwordx2 v[%d:%d], v62, s[%d:%d], 0 offen sc1" % (vPl, vPl + 1, sH, sH + 3)
    pollB = "buffer_load_dwordx2 v[%d:%d], v%d, s[%d:%d], s%d offen sc1" % (vPl, vPl + 1, vFl, sH, sH + 3, sKr)
    chk = "v_cmp_ne_u64 vcc, s[%d:%d], v[%d:%d]" % (sNonce, sNonce + 1, vPl, vPl + 1)
    LAG = NSL - 1
    assert NSL == 3
    for g in range(o["pre9"], LAG): gissue(g)
    for g in range(LAG, 12):
        a(vmwait("g%d" % (g - LAG)))
        a("s_waitcnt lgkmcnt(0)")
        for r in greads(g - LAG): a(r)
        if g == o["ng"]: get_nonce("L_n1")
        if o["gpace"] < 4 * (LAG - 1) and o["gpb"] <= g < o["gpend"]:
            a("s_cmp_ge_u32 s5, 24"); a("s_cbranch_scc1 L_gp%d", g); a("s_waitcnt vmcnt(%d)", o["gpace"]); a.label("L_gp%d" % g)
        gissue(g)
        if g == o["poll0"]: a(pollA.replace("v[%d:%d]" % (vPl, vPl + 1), "v[60:61]")); log.append("p0")
        if g == o["pollg"]: a(pollA); log.append("pa")
        if g == 11 and o["poll0"]:
            a(vmwait("p0")); a(chk.replace("v[%d:%d]" % (vPl, vPl + 1), "v[60:61]")); a("s_cbranch_vccz L_spa_x")
        if PROF and "gst" in o["dbg"] and g in (4, 8): a("s_memtime s[%d:%d]", 82 + g // 2, 83 + g // 2)
    stamp()
    def spin(lab, poll):
        a("s_mov_b32 s%d, 0", sT3)
        a.label(lab)
        if o["psleep"]: a("s_sleep %d", o["psleep"])
        a(poll)
        a("s_add_u32 s%d, s%d, 1", sT3, sT3); a("s_cmp_gt_u32 s%d, %d", sT3, o["spin"])
        a("s_waitcnt vmcnt(0)")
        a("s_cbranch_scc1 %s_x", lab)
        a(chk)
        a("s_cbranch_vccnz %s", lab)
        a.label(lab + "_x")
    a(vmwait("pa"))
    a(chk)
    a("s_cbranch_vccz L_spa_x")
    spin("L_spa", pollA)
    stamp()
    D = o["dist"]; NK = 12; NR = 8; PK = 8
    assert D == 7
    def hload(k, ph):
        r = RING + 4 * ((k + ph) % NR)
        return "buffer_load_dwordx4 v[%d:%d], v%d, s[%d:%d], s%d offen offset:%d %s" % (r, r + 3, vH, sH, sH + 3, sHcur, (k & 3) * 1024, o["hld"])
    def hstep(k): return ["s_add_u32 s%d, s%d, s%d" % (sHcur, sBase, sO1 if k % NK == 3 else sO2)] if k % NK in (3, 7) else []
    for k in range(D):
        a(hload(k, 0)); log.append("h")
        for e in hstep(k): a(e)
        if k == (PK + D) % NK:
            if o["pm"]: a("s_mov_b64 exec, 0xff")
            a(pollB); log.append("pb")
            if o["pm"]: a("s_mov_b64 exec, -1")
    for g in range(12 - LAG, 12):
        a(vmwait("g%d" % g))
        for r in greads(g): a(r)
    a("s_cmp_ge_u32 s5, 24"); a("s_cbranch_scc1 L_cd_x")
    a("v_mov_b32 v62, %d", SYNC); a("s_mov_b32 s%d, 0", sIt)
    a.label("L_cd")
    a("ds_read_b32 v63, v62")
    a("s_add_u32 s%d, s%d, 1", sIt, sIt); a("s_cmp_gt_u32 s%d, %d", sIt, o["spin"] * 8)
    a("s_waitcnt lgkmcnt(0)")
    a("s_cbranch_scc1 L_cd_x")
    a("v_cmp_gt_u32 vcc, 4, v63")
    a("s_cbranch_vccnz L_cd")
    a.label("L_cd_x")
    a("s_mov_b32 s%d, 1", sIt)
    a("s_setprio %d", o["p2prio"])
    a("s_waitcnt lgkmcnt(0)")
    src = lambda t: (A2 + 4 * t) if t < 2 else (B2 + 4 * (t - 2))
    W = ["ds_write_b128 v%d, v[%d:%d] offset:%d" % (vRw, src(t), src(t) + 3, 64 * t) for t in range(4)]
    sig = ["v_add_u32 v%d, s%d, v%d" % (vRw, sInc, vRw), "ds_write_b32 v%d, v%d" % (vCa, vRw)]
    def trip(ph):
        X = {}
        add = lambda ks, g, *e: X.setdefault((ks, g), []).extend(e)
        add(0, 0, W[0]); add(0, 1, W[1])
        add(o["wpos"][0], 0, W[2]); add(o["wpos"][1], 0, W[3])
        add(o["wpos"][1], 2, sig[0]); add(o["wpos"][1], 3, sig[1])
        add(1, 0, *order_next[0:2]); add(1, 2, order_next[2], "s_lshl_b32 s%d, s%d, 7" % (sT, sCur))
        add(2, 2, "s_mul_i32 s%d, s%d, %d" % (sT2, sCur, 0 if o["hsame"] else o["hs"]), "s_cmp_ge_u32 s%d, s%d" % (sIt, sNb))
        add(2, 3, "s_cselect_b32 s%d, s%d, s%d" % (sBase, sNx, sT2))
        add(4, 0, chk, "s_andn2_b32 s%d, s%d, s%d" % (sT, sKr, sT))
        add(4, 1, "s_cselect_b32 s%d, 0, %s" % (sT, "0xff" if o["pm"] else "-1"))
        if o["pm"]: add(4, 2, "s_and_b32 s%d, s%d, vcc_lo" % (sT, sT), "s_cbranch_scc1 L_spb%d" % ph, "L_spb%d_r:" % ph)
        else: add(4, 2, "s_cselect_b64 vcc, 0, vcc", "s_cbranch_vccnz L_spb%d" % ph, "L_spb%d_r:" % ph)
        add(4, 3, "s_add_u32 s%d, s%d, s%d" % (sHcur, sBase, sO0))
        add(5, 0, "s_movk_i32 s%d, 256" % sKr, "s_mov_b32 s%d, %d" % (sInc, REDSZ))
        if o["pm"]: add(PK, 2, "s_mov_b64 exec, 0xff", pollB, "s_mov_b64 exec, -1")
        else: add(PK, 3, pollB)
        add(NK - 1, 2, "s_add_u32 s%d, s%d, 1" % (sIt, sIt), "s_cmp_le_u32 s%d, s%d" % (sIt, sNb))
        for ks in range(NK):
            between = any(((ks - D + d) % NK) == PK for d in range(D))
            a("s_waitcnt vmcnt(%d)", D - 1 + (1 if between else 0))
            M = []
            for t in range(4):
                c = "0" if ks == 0 else "v[%d:%d]" % (A2 + 4 * t, A2 + 4 * t + 3)
                d = src(t) if ks == NK - 1 else A2 + 4 * t
                k, w = w2reg(ks * 4 + t); h = RING + 4 * ((ks + ph) % NR)
                M.append("v_mfma_f32_16x16x32_bf16 v[%d:%d], %s[%d:%d], v[%d:%d], %s" % (d, d + 3, k, w, w + 3, h, h + 3, c))
            if ks == 0: M = M[2:] + M[:2]
            hg = 2 if ks == 0 else 1
            ex = {g: list(X.get((ks, g), [])) for g in range(4)}
            ex[hg] = [hload(ks + D, ph)] + hstep(ks + D) + ex[hg]
            weave(a, M, ex)
        if PROF and "p2st" in o["dbg"]:
            a("s_cselect_b32 s%d, 1, 0", sT)
            for b in ((1, 3, 5) if ph == 0 else (2, 4)):
                r = {1: 66, 2: 68, 3: 70, 4: 84, 5: 86}[b]
                a("s_cmp_lg_u32 s%d, %d", sIt, b + 1); a("s_cbranch_scc1 L_ps%d", b); a("s_memtime s[%d:%d]", r, r + 1); a.label("L_ps%d" % b)
            a("s_cmp_eq_u32 s%d, 1", sT)
    a("s_mov_b32 s%d, 0x%x", sNx, OOB)
    a(".p2align 3")
    a.label("L_p2")
    trip(0)
    a("s_cbranch_scc0 L_p2e")
    a(".p2align 3")
    trip(4)
    a("s_cbranch_scc1 L_p2")
    a.label("L_p2e")
    a("s_nop 3")
    for w in W: a(w)
    for e in sig: a(e)
    stamp()
    if PROF and "p1st" in o["dbg"]:
        a("s_mov_b32 s70, s84"); a("s_mov_b32 s72, s86")
    pad_to(NSTAMP)
    if PROF and ("gst" in o["dbg"] or "p2st" in o["dbg"]):
        a("s_mov_b32 s76, s84"); a("s_mov_b32 s78, s86")
    if PROF: a("s_branch L_fin")
    else: a("s_endpgm")
    for ph in (0, 4):
        a.label("L_spb%d" % ph)
        if o["pm"]: a("s_mov_b64 exec, 0xff")
        spin("L_spb%dl" % ph, pollB)
        if o["pm"]: a("s_mov_b64 exec, -1")
        a("s_branch L_spb%d_r", ph)
    a.L.append("@F")
    a.label("L_fin")
    if PROF:
        n = NSTAMP
        a("s_waitcnt vmcnt(0)")
        a("s_memtime s[%d:%d]", 64 + 2 * n, 65 + 2 * n); a("s_memrealtime s[62:63]"); a("s_waitcnt lgkmcnt(0)")
        a("s_add_u32 s8, s54, %d", 128 << 20); a("s_addc_u32 s9, s55, 0"); a("s_mov_b32 s10, 0x100000"); a("s_mov_b32 s11, 0x20000")
        a("s_lshl_b32 s28, s2, 3"); a("s_add_u32 s28, s28, s%d", sWv); a("s_lshl_b32 s28, s28, 6")
        a("v_mov_b32 v0, s28")
        a("s_getreg_b32 s29, hwreg(HW_REG_XCC_ID)")
        vals = ["s60", "s62", "s29"] + ["s%d" % (64 + 2 * i) for i in range(n + 1)]
        vals += ["0"] * (16 - len(vals))
        for i, v in enumerate(vals): a("v_mov_b32 v%d, %s", 4 + i, v)
        a("s_mov_b64 exec, 1")
        for i in range(4): a("buffer_store_dwordx4 v[%d:%d], v0, s[8:11], 0 offen offset:%d", 4 + 4 * i, 7 + 4 * i, 16 * i)
    if PROF and o.get("probe") is not None:
        pw, pv, pi = o["probe"]
        a("s_cmp_lg_u32 s2, %d", pw); a("s_cbranch_scc1 L_end")
        a("s_cmp_lg_u32 s%d, %d", sWv, pv); a("s_cbranch_scc1 L_end")
        if pi == "start": a("s_sub_u32 s30, s60, s%d", sNonce); a("s_add_u32 s30, s30, 200"); a("s_lshl_b32 s30, s30, 2")
        else: a("s_sub_u32 s30, s%d, s64", 64 + 2 * pi); a("s_lshl_b32 s30, s30, 2"); a("s_add_u32 s30, s30, 300")
        a("s_min_u32 s30, s30, 20000")
        a.label("L_spin")
        a("s_memrealtime s[32:33]"); a("s_waitcnt lgkmcnt(0)")
        a("s_sub_u32 s32, s32, s62"); a("s_cmp_lt_u32 s32, s30"); a("s_cbranch_scc1 L_spin")
    a.label("L_end")
    a("s_endpgm")
    a(".p2align 6")
    a(".type L_table,@object")
    a.label("L_table")
    W = make_table(o)
    for k in range(0, 256, 8): a(".long " + ", ".join("0x%x" % w for w in W[k:k + 8]))
    a.label("L_codeend")
    sec = {"E": []}; cur = "E"
    for l in a.L:
        if l.startswith("@"): cur = l[1]; sec[cur] = []
        else: sec[cur].append(l)
    a.L = []
    for c in o["lay"] + "F":
        if c == "|": a.L.append("    .p2align 12")
        if c in sec: a.L += sec[c]
    if "rt" in o["dbg"].split(): a.L = [l.replace("s_memtime", "s_memrealtime") for l in a.L]
    s = HEAD + "; @launch grid=(256,1,1) block=(512,1,1) lds=163840\n"
    s += '.amdgcn_target "amdgcn-amd-amdhsa--gfx950"\n.text\n'
    n = NAME + "_kernel"
    if o["pad"] is not None: s += ".p2align 12\n.fill %d, 4, 0xbf800000\n" % (o["pad"] // 4)
    s += ".globl %s\n.p2align 8\n.type %s,@function\n%s:\n%s" % (n, n, n, a.text())
    s += '''.section .rodata,"a"
.p2align 6
.amdhsa_kernel %s
  .amdhsa_next_free_vgpr 256
  .amdhsa_next_free_sgpr 102
  .amdhsa_accum_offset 128
  .amdhsa_group_segment_fixed_size 0
  .amdhsa_kernarg_size 64
  .amdhsa_user_sgpr_count 2
  .amdhsa_user_sgpr_kernarg_segment_ptr 1
  .amdhsa_system_sgpr_workgroup_id_x 1
  .amdhsa_float_denorm_mode_32 3
  .amdhsa_float_denorm_mode_16_64 3
.end_amdhsa_kernel
''' % n
    return s
if __name__ == "__main__":
    kw = json.loads(sys.argv[2]) if len(sys.argv) > 2 else {}
    open(sys.argv[1], "w").write(gen(**kw))
```

```python
import struct, sys, json
def f2u(x): return struct.unpack("<I", struct.pack("<f", x))[0]
C0 = -2.0 * 0.7978845608028654 * 1.4426950408889634
C1 = C0 * 0.044715
NAME = "standalone__dense_activation_gelu__prompt"
HEAD = open("cdna_kernels/%s.s.ref" % NAME).read().split("; Override launch geometry")[0]
FLAGOFF = 8 << 20
OOB = 0x7f000000
DEF = dict(prof=False, a1=4, a2=4, rot1="x", pf=(1, 10), w2pf=True, hst="sc1", ost="nt", dist=7, spin=1000000, codepf=True,
           out=8, prio=1, hsame=False, psleep=4, dbg="", gpace=1, gpend=9, rsleep=3, p2prio=1, swap46=False, krot=True, hdelay=0,
           pollg=10, puba=8, nsl=3, hs=49152, lprio=0, ng=4, swapx=True, rotx=0, hbal=False, pad=0xD00, lay="EGHRPST|W|C", tmap="half", alt=0, light=0, snake=True, barpos=16, nw=2, bp=0, fl=1, poll0=0, spub=False, rprio=0, l1prio=0, lwait=8, spec=False, lfrom=2, lstep=1, gpb=5, pre9=2, sup=3, np=8, dbl=0, tog2=1, mv=2, w64=0, pex=1, nocls=False, a1at=6, pm=0, mid=False, hwait=0, pr=4, polx=0, pskip=True, rlast=True, wpos=(2, 3), hld="sc1", tfl="", dfl="", kks=(0, 1, 2, 3, 4, 5))

class A:
    def __init__(self): self.L = []
    def __call__(self, s, *args): self.L.append("    " + (s % args if args else s))
    def label(self, s): self.L.append(s + ":")
    def text(self): return "\n".join(self.L) + "\n"

def weave(a, main, extra):
    for i, m in enumerate(main):
        a(m)
        for e in extra.get(i, []): a(e)

def make_table(o):
    T = {}
    for x in range(8):
        par, q = x & 1, x >> 1
        tiles = []
        if o["a2"] == 8:
            par = 0
            if o["tmap"] == "cur":
                for i in range(32):
                    dl, rb, n = i >> 1, 6 + 5 * (i & 1), 5
                    if i >= 16: dl, rb, n = (i >> 2) + 4, 4 * (i & 3), 4
                    if i >= 24: dl, rb, n = i - 24, 0, 6
                    tiles.append((dl, rb + 16 * x, n))
            else:
                four = {0: (0, 4), 1: (1, 5), 2: (2, 6), 3: (3, 7), 4: (0, 4), 5: (2, 6), 6: (1,), 7: (3,), 8: (5,), 9: (7,)}
                six = {6: (3, 5, 7), 7: (0, 5, 7), 8: (1, 2, 6), 9: (1, 3, 4)}
                for dl in range(10):
                    c = lambda k: 4 if k in four[dl] else 3
                    d = lambda k: (-1 if (dl < 6 and k in four[dl]) else (1 if k in six.get(dl, ()) else 0))
                    rb = sum(5 * c(k) + d(k) for k in range(x))
                    for k in range(c(x)):
                        n = 5 + (d(x) if k == 0 else 0)
                        tiles.append((dl, rb, n)); rb += n
                t6 = [t for t in tiles if t[2] == 6]; t4 = [t for t in tiles if t[2] == 4]; t5 = [t for t in tiles if t[2] == 5]
                nh = 8 - len(t6) - len(t4)
                tiles = t5[nh:] + t4 + t5[:nh] + t6
        elif o["tmap"] == "cur":
            for i in range(32):
                dl, rb, n = i >> 2, 12 + 5 * (i & 3), 5
                if i >= 20: dl, rb, n = 3 + (i & 1), ((i - 20) >> 1) * 4, 4
                if i >= 26: dl, rb, n = (i - 26) >> 1, 6 * (i & 1), 6
                tiles.append((dl, rb + 32 * q, n))
        else:
            cnt = [[7, 6, 7, 6], [6, 7, 6, 7], [7, 6, 6, 7], [6, 7, 6, 6], [6, 6, 7, 6]]
            odd = [[-1, 0, -1, 0], [0, -1, 0, -1], [-1, 0, 0, -1], [1, 0, 1, 1], [1, 1, 0, 1]]
            if o["tmap"] == "half":
                cnt = [[7, 6, 7, 6], [6, 7, 6, 7], [7, 6, 7, 6], [6, 7, 6, 7], [6, 6, 6, 6]]
                odd = [[-1, 0, -1, 0], [0, -1, 0, -1], [-1, 0, -1, 0], [0, -1, 0, -1], [2, 2, 2, 2]]
            for dl in range(5):
                rb = sum(5 * cnt[dl][k] + odd[dl][k] for k in range(q))
                for k in range(cnt[dl][q]):
                    n = 5 + (odd[dl][q] if k == 0 else 0)
                    if odd[dl][q] == 2: n = 6 if k in (0, 2) else 5
                    tiles.append((dl, rb, n)); rb += n
            t6 = [t for t in tiles if t[2] == 6]; t4 = [t for t in tiles if t[2] == 4]; t5 = [t for t in tiles if t[2] == 5]
            nh = 8 - len(t6) - len(t4)
            tiles = t5[nh:] + t4 + t5[:nh] + t6
        assert len(tiles) == 32
        for i, (dl, rb, n) in enumerate(tiles):
            E = [b for b in range(rb, rb + n) if not b & 2]; Lt = [b for b in range(rb, rb + n) if b & 2]
            if o["alt"] == 1 and dl & 1: E.reverse(); Lt.reverse()
            if o["alt"] == 2:
                r = dl % len(E); E = E[r:] + E[:r]; r = dl % len(Lt); Lt = Lt[r:] + Lt[:r]
            k = next(k for k, b in enumerate(E) if b % 4 == 0)
            E = [E[k]] + E[:k] + E[k + 1:]
            assert len(E) >= 2
            T[x + 8 * i] = (dl + 5 * par, rb, E + Lt)
    cov = set()
    W = []
    for wg in range(256):
        dl, rb, seq = T[wg]
        for b in seq:
            assert (dl, b) not in cov; cov.add((dl, b))
        w = dl | (rb << 4) | (len(seq) << 11)
        for k, b in enumerate(seq): w |= (b - rb) << (14 + 3 * k)
        W.append(w)
    assert len(cov) == 1280
    return W

def gen(**kw):
    o = dict(DEF); o.update(kw)
    a = A()
    PROF = o["prof"]
    nst = [1]
    def stamp():
        if not PROF: return
        a("s_memtime s[%d:%d]", 64 + 2 * nst[0], 65 + 2 * nst[0]); nst[0] += 1
        a("s_waitcnt lgkmcnt(0)")
    def pad_to(n):
        assert nst[0] <= n, nst[0]
        while PROF and nst[0] < n: stamp()
    NSTAMP = 8
    sX, sW1, sW2, sH, sO = 8, 12, 16, 20, 24
    sWv, sXcd, sI, sMT, sFT = 3, 4, 5, 6, 7
    sXoff, sWoff, sM0, sKb, sDelta, sIt, sT, sT2, sT3, sRd = 28, 29, 30, 31, 32, 33, 34, 35, 36, 37
    sC1 = 38
    sNonce = 56
    sRb, sNb, sDl, sG, sGm, sHcur, sCnt, sOst, sNx, sNw, sPw, sW = 58, 59, 92, 93, 94, 95, 96, 97, 98, 99, 100, 101
    sCur, sEnd, sBase, sO0, sO1, sO2, sInc, sGw, sKr = 0, 1, 82, 88, 89, 90, 91, 97, 96
    vL, vZ = 1, 2
    vT = 8
    vPl = 4
    vH, vFl, vRw, vCa = 0, 3, 6, 7
    vXd, vWd, vGd, vGr = 16, 20, 24, 56
    RING, A2, B2 = 8, 40, 56
    def w2reg(i): return ("a", 4 * i) if i < 32 else ("v", 64 + 4 * (i - 32))
    vHi, vXr, vWr, vC0, vONE, vHst = 3, 16, 20, 22, 24, 26
    vRr, vOst, vB2 = 6, 7, 28
    ACC, TMP, OUT = 32, 96, 112
    RD = 32
    NSL = o["nsl"]; REDSZ = 17408; SYNC = 9 * REDSZ
    SLO = [REDSZ, 2 * REDSZ, 3 * REDSZ, 0]
    SLOT = 32768; S = 3
    def srd(d, lo, nbytes):
        a("s_mov_b64 s[%d:%d], s[%d:%d]", d, d + 1, lo, lo + 1)
        a("s_mov_b32 s%d, %d", d + 2, nbytes); a("s_mov_b32 s%d, 0x20000", d + 3)
    def mod3(dst, src):
        a("s_mul_i32 s%d, s%d, 86", sT, src); a("s_lshr_b32 s%d, s%d, 8", sT, sT); a("s_mul_i32 s%d, s%d, 3", sT, sT); a("s_sub_u32 s%d, s%d, s%d", dst, src, sT)
    def krot(dst):
        if o["krot"]:
            if o["a2"] == 4: a("s_lshr_b32 s%d, s%d, 1", dst, sXcd); a("s_cmp_eq_u32 s%d, 3", dst); a("s_cselect_b32 s%d, 0, s%d", dst, dst)
            else: mod3(dst, sXcd)
        else: a("s_mov_b32 s%d, 0", dst)

    a("s_load_dwordx16 s[40:55], s[0:1], 0")
    a("s_cmp_ge_u32 s2, 256"); a("s_cbranch_scc1 L_end")
    if PROF:
        a("s_memrealtime s[60:61]"); a("s_memtime s[64:65]")
    a("v_lshrrev_b32 v%d, 6, v0", vT)
    a("v_and_b32 v%d, 63, v0", vL)
    a("v_readfirstlane_b32 s%d, v%d", sWv, vT)
    a("s_and_b32 s%d, s2, 7", sXcd); a("s_lshr_b32 s%d, s2, 3", sI)
    a("v_lshrrev_b32 v%d, 3, v%d", vT, vL)
    a("v_and_b32 v%d, 7, v%d", vT + 1, vL)
    a("v_lshrrev_b32 v%d, 1, v%d", vT + 2, vT)
    a("v_mov_b32 v%d, 0", vZ)
    a("s_and_b32 s%d, s%d, 3", sW, sWv)
    if o["rotx"] == 0: a("s_mul_i32 s%d, s%d, 10", sKb, sXcd); a("s_lshr_b32 s%d, s%d, 3", sKb, sKb)
    else:
        tab = {1: [0, 5, 2, 7, 5, 0, 7, 2], 2: [0, 5, 3, 8, 5, 0, 8, 3], 3: [0, 6, 2, 8, 5, 1, 7, 3]}[o["rotx"]]
        a("s_lshl_b32 s%d, s%d, 2", sKb, sXcd); a("s_lshr_b32 s%d, 0x%x, s%d", sKb, sum(v << (4 * i) for i, v in enumerate(tab)), sKb); a("s_and_b32 s%d, s%d, 15", sKb, sKb)
    a("s_mov_b32 s%d, %d", sX + 2, 2048 * 640 * 2); a("s_mov_b32 s%d, 0x20000", sX + 3)
    a("s_mov_b32 s%d, %d", sW1 + 2, 640 * 1536 * 2); a("s_mov_b32 s%d, 0x20000", sW1 + 3)
    a("s_cmp_ge_u32 s%d, 24", sI); a("s_cbranch_scc1 L_helper")
    if o["a1"] == 4:
        a("s_lshr_b32 s%d, s%d, 1", sMT, sXcd); a("s_lshl_b32 s%d, s%d, 2", sMT, sMT)
        a("s_and_b32 s%d, s%d, 3", sT, sI); a("s_add_u32 s%d, s%d, s%d", sMT, sMT, sT)
        a("s_and_b32 s%d, s%d, 1", sFT, sXcd); a("s_mul_i32 s%d, s%d, 6", sFT, sFT)
        a("s_lshr_b32 s%d, s%d, 2", sT2, sI); a("s_add_u32 s%d, s%d, s%d", sFT, sFT, sT2)
    else:
        a("s_lshl_b32 s%d, s%d, 1", sMT, sXcd); a("s_and_b32 s%d, s%d, 1", sT, sI); a("s_add_u32 s%d, s%d, s%d", sMT, sMT, sT)
        a("s_lshr_b32 s%d, s%d, 1", sT2, sI); a("s_mov_b32 s%d, s%d", sFT, sT2)
    a("s_cmp_lt_u32 s%d, 4", sWv); a("s_cbranch_scc1 L_c0")
    a.label("L_ldr")

    sTab = 83; sPol = 63
    HBYTES = 8 << 20
    def hbase(dst, rb, tmp):
        return ["s_lshr_b32 s%d, s%d, 4" % (tmp, rb), "s_lshr_b32 s%d, s%d, s%d" % (tmp, sPol, tmp), "s_and_b32 s%d, s%d, 8192" % (tmp, tmp),
                "s_and_b32 s%d, s%d, 63" % (dst, rb), "s_lshl_b32 s%d, s%d, 17" % (dst, dst), "s_or_b32 s%d, s%d, s%d" % (dst, dst, tmp)]
    def setpol(hi):
        a("s_bfe_u32 s%d, s%d, 0x40018", sPol, hi); a("s_mul_i32 s%d, s%d, 17", sPol, sPol); a("s_xor_b32 s%d, s%d, %d", sPol, sPol, 15 ^ o["polx"]); a("s_lshl_b32 s%d, s%d, 13", sPol, sPol)
    def hptr(d):
        a("s_sub_u32 s%d, 0, s54", d); a("s_and_b32 s%d, s%d, 0x1fffff", d, d); a("s_add_u32 s%d, s54, s%d", d, d); a("s_addc_u32 s%d, s55, 0", d + 1)
    def srdH():
        hptr(sH); a("s_mov_b32 s%d, %d", sH + 2, HBYTES); a("s_mov_b32 s%d, 0x20000", sH + 3)
    def tab_load(lab):
        a("s_getpc_b64 s[%d:%d]", sT, sT + 1)
        a.label(lab)
        a("s_add_u32 s%d, s%d, L_table-%s", sT, sT, lab); a("s_addc_u32 s%d, s%d, 0", sT + 1, sT + 1)
        a("s_lshl_b32 s%d, s2, 2", sTab)
        a("s_load_dword s%d, s[%d:%d], s%d", sTab, sT, sT + 1, sTab)
    def tile_assign():
        a("s_and_b32 s%d, s%d, 15", sDl, sTab); a("s_bfe_u32 s%d, s%d, 0x70004", sRb, sTab); a("s_bfe_u32 s%d, s%d, 0x3000b", sNb, sTab)
        a("s_lshr_b32 s%d, s%d, 14", sTab, sTab)
    def order_init():
        a("s_add_u32 s%d, s%d, s%d", sEnd, sRb, sNb)
        a("s_and_b32 s%d, s%d, 7", sCur, sTab); a("s_add_u32 s%d, s%d, s%d", sCur, sCur, sRb)
    order_next = ["s_lshr_b32 s%d, s%d, 3" % (sTab, sTab), "s_and_b32 s%d, s%d, 7" % (sCur, sTab), "s_add_u32 s%d, s%d, s%d" % (sCur, sCur, sRb), "s_bitcmp1_b32 s%d, 1" % sCur]
    log = []
    def vmcount(tag):
        idx = max(i for i, t in enumerate(log) if t == tag)
        return len(log) - 1 - idx
    def vmwait(tag): return "s_waitcnt vmcnt(%d)" % vmcount(tag)
    nload = "buffer_load_dwordx2 v[%d:%d], v%d, s[%d:%d], 0 offen sc1" % (vPl, vPl + 1, vZ, sO, sO + 3)
    def get_nonce(lab):
        a("s_mov_b32 s%d, 0", sIt)
        a.label(lab)
        a("v_readfirstlane_b32 s%d, v%d", sNonce, vPl); a("v_readfirstlane_b32 s%d, v%d", sNonce + 1, vPl + 1)
        a("s_add_u32 s%d, s%d, 1", sIt, sIt); a("s_nop 1")
        a("s_bitcmp1_b32 s%d, 30", sNonce + 1); a("s_cbranch_scc1 %s_ok", lab)
        a("s_cmp_gt_u32 s%d, %d", sIt, o["spin"]); a("s_cbranch_scc1 %s_ok", lab)
        a(nload); a("s_waitcnt vmcnt(0)"); a("s_branch %s", lab)
        a.label(lab + "_ok")

    def lsetup():
        a("v_lshlrev_b32 v%d, 1, v%d", vT + 3, vT + 2)
        a("v_xor_b32 v%d, v%d, v%d", vT + 3, vT + 1, vT + 3)
        a("v_mul_u32_u24 v%d, 1280, v%d", vGd, vT)
        a("v_lshl_add_u32 v%d, v%d, 4, v%d", vGd, vT + 3, vGd)
        for i in range(1, 4): a("v_add_u32 v%d, %d, v%d", vGd + i, i * (8 * 1280 - 1024), vGd)
        krot(sRd)
        a("s_mul_i32 s%d, s%d, 4352", sGm, sW); a("s_add_u32 s%d, s%d, %d", sGm, sGm, 5 * REDSZ)
        a("v_lshrrev_b32 v%d, 2, v%d", vT + 3, vL)
        a("v_lshlrev_b32 v%d, 7, v%d", vT + 3, vT + 3)
        a("v_bfe_u32 v%d, v%d, 3, 2", vT + 4, vL)
        a("v_lshl_add_u32 v%d, v%d, 5, v%d", vT + 3, vT + 4, vT + 3)
        a("v_and_b32 v%d, 3, v%d", vT + 4, vL)
        a("v_lshl_add_u32 v%d, v%d, 3, v%d", vT + 3, vT + 4, vT + 3)
        a("v_add_u32 v%d, s%d, v%d", vGr, sGm, vT + 3)
        for t in range(1, 4): a("v_xor_b32 v%d, %d, v%d", vGr + t, 32 * t, vGr)
        a("v_lshlrev_b32 v%d, 4, v%d", vH, vL)
        a("s_mul_i32 s%d, s%d, 3", sT3, sW); a("s_add_u32 s%d, s%d, s%d", sO0, sT3, sRd)
        a("s_add_u32 s%d, s%d, 1", sO1, sO0); a("s_cmp_eq_u32 s%d, 2", sRd); a("s_cselect_b32 s%d, s%d, s%d", sO1, sT3, sO1)
        a("s_add_u32 s%d, s%d, 1", sO2, sO1); a("s_cmp_eq_u32 s%d, 1", sRd); a("s_cselect_b32 s%d, s%d, s%d", sO2, sT3, sO2)
        for r in (sO0, sO1, sO2):
            a("s_and_b32 s%d, s%d, 14", sT, r); a("s_add_u32 s%d, s%d, s%d", r, r, sT); a("s_lshl_b32 s%d, s%d, 12", r, r)
        a("v_and_b32 v%d, 15, v%d", vT + 3, vL); a("v_lshrrev_b32 v%d, 4, v%d", vT + 4, vL)
        a("v_mul_u32_u24 v%d, 272, v%d", vRw, vT + 3)
        a("v_lshl_add_u32 v%d, v%d, 4, v%d", vRw, vT + 4, vRw)
        a("s_mul_i32 s%d, s%d, 4352", sT, sW); a("v_add_u32 v%d, s%d, v%d", vRw, sT, vRw)
        a("s_lshl_b32 s%d, s%d, 8", sT, sW); a("s_add_u32 s%d, s%d, %d", sT, sT, SYNC + 256)
        a("v_lshl_add_u32 v%d, v%d, 2, s%d", vCa, vL, sT)
        a("s_waitcnt lgkmcnt(0)")
        tile_assign()
        a("s_mul_i32 s%d, s%d, %d", sGw, sW, 384 * 1280); a("s_lshl_b32 s%d, s%d, 7", sT, sDl); a("s_add_u32 s%d, s%d, s%d", sGw, sGw, sT)
        a("s_mul_i32 s%d, s%d, %d", sT, sRd, 128 * 1280); a("s_add_u32 s%d, s%d, s%d", sG, sGw, sT)
        order_init()
    def lsetup2():
        setpol(sNonce + 1)
        a("s_mul_i32 s%d, s%d, 3", sT3, sW)
        a("s_and_b32 s%d, s%d, 0x78", sInc, sRb)
        for e in hbase(sBase, sInc, sT): a(e)
        a("s_sub_u32 s%d, s%d, 1", sInc, sEnd); a("s_and_b32 s%d, s%d, 0x78", sInc, sInc)
        for e in hbase(sT2, sInc, sT): a(e)
        a("v_mov_b32 v%d, s%d", vT + 3, sBase); a("v_mov_b32 v%d, s%d", vT + 4, sT2); a("v_cmp_lt_u32 vcc, 31, v%d", vL)
        a("v_bfe_u32 v%d, v%d, 3, 2", vFl, vL); a("v_min_u32 v%d, 2, v%d", vFl, vFl); a("v_add_u32 v%d, s%d, v%d", vFl, sT3, vFl)
        a("v_cndmask_b32 v%d, v%d, v%d, vcc", vT + 3, vT + 3, vT + 4)
        a("v_lshl_add_u32 v%d, v%d, 9, v%d", vFl, vFl, vT + 3); a("v_add_u32 v%d, 98304, v%d", vFl, vFl)
        for e in hbase(sBase, sCur, sT): a(e)
        a("s_add_u32 s%d, s%d, s%d", sHcur, sBase, sO0)
        a("s_mov_b32 s%d, 0", sInc); a("s_mov_b32 s%d, 0", sKr)
        a("s_lshl_b32 s%d, s%d, 9", sT, sT3); a("s_add_u32 s%d, s%d, s%d", sT, sT, sBase); a("s_add_u32 s%d, s%d, 114688", sT, sT)
        a("v_min_u32 v62, 5, v%d", vT); a("v_lshl_add_u32 v62, v62, 8, s%d", sT)
    sSa, sSb, sMb = sG, sGm, sC1
    a("s_add_u32 s%d, s%d, s%d", sRd, sT, sT2); a("s_and_b32 s%d, s%d, %d", sRd, sRd, 1 if o["swapx"] else 0)
    a("s_lshl2_add_u32 s%d, s%d, s%d", sXoff, sMT, sW); a("s_mul_i32 s%d, s%d, 320", sXoff, sXoff); a("s_add_u32 s%d, s%d, s%d", sXoff, sXoff, sKb)
    a("s_and_b32 s%d, s%d, 1", sT, sW); a("s_lshl1_add_u32 s%d, s%d, s%d", sT, sKb, sT); a("s_mul_i32 s%d, s%d, 768", sT, sT)
    a("s_lshr_b32 s%d, s%d, 1", sT2, sW); a("s_lshl1_add_u32 s%d, s%d, s%d", sT2, sFT, sT2); a("s_add_u32 s%d, s%d, s%d", sT, sT, sT2)
    a("s_movk_i32 s%d, 1280", sMT); a("s_movk_i32 s%d, 3072", sFT)
    a("s_cmp_eq_u32 s%d, 1", sRd)
    a("s_cselect_b32 s%d, s%d, s%d", sWoff, sXoff, sT); a("s_cselect_b32 s%d, s%d, s%d", sXoff, sT, sXoff)
    a("s_cselect_b32 s%d, s%d, s%d", sT, sFT, sMT); a("s_cselect_b32 s%d, s%d, s%d", sT2, sMT, sFT)
    a("s_cselect_b32 s%d, s%d, s%d", sT3, sW1 + 2, sX + 2); a("s_cselect_b32 s%d, s%d, s%d", sW1 + 2, sX + 2, sW1 + 2); a("s_mov_b32 s%d, s%d", sX + 2, sT3)
    a("s_lshl_b32 s%d, s%d, 7", sXoff, sXoff); a("s_lshl_b32 s%d, s%d, 7", sWoff, sWoff)
    a("s_lshl2_add_u32 s%d, s%d, s%d", sM0, sRd, sW); a("s_lshl_b32 s%d, s%d, 12", sM0, sM0); a("s_mov_b32 m0, s%d", sM0)
    def offs(v, pitch, sh):
        a("v_lshlrev_b32 v%d, s%d, v%d", vT + 3, sh, vT + 2); a("v_and_b32 v%d, 3, v%d", vT + 3, vT + 3); a("v_xor_b32 v%d, v%d, v%d", vT + 3, vT + 1, vT + 3)
        a("v_mul_u32_u24 v%d, s%d, v%d", v, pitch, vT); a("v_lshl_add_u32 v%d, v%d, 4, v%d", v, vT + 3, v)
        a("s_lshl_b32 s%d, s%d, 3", pitch, pitch); a("s_addk_i32 s%d, -1024", pitch)
        a("v_xor_b32 v%d, 64, v%d", v + 1, v); a("v_add_u32 v%d, s%d, v%d", v + 1, pitch, v + 1)
        a("s_lshl_b32 s%d, s%d, 1", pitch, pitch)
        a("v_add_u32 v%d, s%d, v%d", v + 2, pitch, v); a("v_add_u32 v%d, s%d, v%d", v + 3, pitch, v + 1)
    offs(vXd, sT, sRd)
    a("s_xor_b32 s%d, s%d, 1", sT3, sRd)
    offs(vWd, sT2, sT3)
    a("s_movk_i32 s%d, 128", sT); a("s_mov_b32 s%d, %d", sT2, 64 * 3072); a("s_mov_b32 s%d, -1", sIt)
    a("s_cmp_eq_u32 s%d, 1", sRd)
    a("s_cselect_b32 s%d, s%d, s%d", sMT, sT2, sT); a("s_cselect_b32 s%d, s%d, s%d", sFT, sT, sT2)
    sSa, sSb = sMT, sFT
    a("s_mul_i32 s%d, s%d, -9", sNx, sSa); a("s_mul_i32 s%d, s%d, -9", sNw, sSb)
    a("s_waitcnt lgkmcnt(0)")
    a("s_cselect_b64 s[%d:%d], s[42:43], s[40:41]", sX, sX + 1); a("s_cselect_b64 s[%d:%d], s[40:41], s[42:43]", sW1, sW1 + 1)
    def dma(i):
        if "nodma" in o["dbg"]: return "s_nop 0"
        if i < 4: return "buffer_load_dwordx4 v%d, s[%d:%d], s%d offen offset:%d lds" % (vXd + i, sX, sX + 3, sXoff, 1024 * i)
        return "buffer_load_dwordx4 v%d, s[%d:%d], s%d offen offset:%d lds" % (vWd + i - 4, sW1, sW1 + 3, sWoff, 1024 * (i - 4))
    if o["l1prio"]: a("s_setprio %d", o["l1prio"])
    stamp()
    def ldloop(lab, first, last_it):
        a.label(lab)
        thr = (not first) and o["lwait"] < 8
        for i in range(4):
            if thr: a("s_waitcnt vmcnt(%d)", o["lwait"] - 1)
            a(dma(i))
        a("s_xor_b32 m0, s%d, 16384", sM0)
        if first and o["mid"]:
            a("s_cmp_lt_i32 s%d, 0", sIt); a("s_cbranch_scc1 L_ldn"); a("s_waitcnt vmcnt(4)"); a("s_barrier"); a.label("L_ldn")
        a("s_add_u32 s%d, s%d, 1", sKb, sKb); a("s_cmp_eq_u32 s%d, 10", sKb)
        a("s_cselect_b32 s%d, s%d, s%d", sDelta, sNx, sSa); a("s_cselect_b32 s%d, s%d, s%d", sPw, sNw, sSb); a("s_cselect_b32 s%d, 0, s%d", sKb, sKb)
        for i in range(4, 8):
            if thr: a("s_waitcnt vmcnt(%d)", o["lwait"] - 1)
            a(dma(i))
        a("s_add_u32 s%d, s%d, s%d", sXoff, sXoff, sDelta); a("s_add_u32 s%d, s%d, s%d", sWoff, sWoff, sPw)
        a("s_add_u32 s%d, s%d, %d", sM0, sM0, SLOT); a("s_cmp_ge_u32 s%d, %d", sM0, S * SLOT)
        a("s_cselect_b32 s%d, %d, 0", sT, S * SLOT); a("s_sub_u32 s%d, s%d, s%d", sM0, sM0, sT); a("s_mov_b32 m0, s%d", sM0)
        a("s_add_u32 s%d, s%d, 1", sIt, sIt)
        if first and o["mid"]:
            a("s_cmp_lt_u32 s%d, %d", sIt, last_it - 1); a("s_cbranch_scc1 %s", lab)
            a("s_branch L_su")
        elif first:
            a("s_cbranch_scc1 %s", lab)
            a("s_cmp_eq_u32 s%d, %d", sIt, last_it); a("s_cbranch_scc1 L_su")
            a("s_waitcnt vmcnt(8)"); a("s_barrier")
            a("s_branch %s", lab)
        else:
            a("s_cmp_lg_u32 s%d, s%d", sIt, sNonce); a("s_cbranch_scc1 %sw", lab); a(nload)
            a.label(lab + "w")
            a("s_cmp_lt_u32 s%d, %d", sIt, last_it)
            a("s_waitcnt vmcnt(8)"); a("s_barrier")
            a("s_cbranch_scc1 %s", lab)
    ldloop("L_ld", True, o["sup"])
    a.label("L_c0")
    a("v_and_b32 v%d, 15, v%d", vT + 3, vL)
    a("v_lshlrev_b32 v%d, 1, v%d", vT + 5, vT + 3)
    a("s_bfe_u32 s%d, s%d, 0x10000", sT, sW); a("s_lshl1_add_u32 s%d, s%d, s%d", sT3, sFT, sT); a("s_lshl_b32 s%d, s%d, 7", sT3, sT3)
    a("s_movk_i32 s%d, %d", sO + 2, 1536 * 2); a("s_mov_b32 s%d, s%d", sO + 3, sX + 3)
    a("s_waitcnt lgkmcnt(0)")
    a("s_mov_b64 s[%d:%d], s[44:45]", sO, sO + 1)
    for f in range(4): a("buffer_load_ushort v%d, v%d, s[%d:%d], s%d offen offset:%d", TMP + 4 * f, vT + 5, sO, sO + 3, sT3, 32 * f)
    a("s_branch L_comp")
    a.L.append("@S")
    a.label("L_su")
    tab_load("L_t0")
    lsetup()
    srd(sO, 52, 256)
    a("s_cmp_eq_u32 s%d, 0", sW); a("s_cselect_b32 s%d, %d, -1", sNonce, o["np"])
    a("s_cmp_lt_u32 s5, 24"); a("s_cbranch_scc1 L_ld2w")
    a("s_barrier")
    a(nload)
    nst[0] = 1; stamp()
    a("s_branch L_lw")
    a.L.append("@T")
    ldloop("L_ld2", False, 9)
    a("s_branch L_lw")
    nst[0] = 1
    a.L.append("@H")
    a.label("L_helper")
    a("s_cmp_lt_u32 s%d, 4", sWv); a("s_cbranch_scc0 L_hl")
    a("v_mul_u32_u24 v%d, 1280, v%d", vXd, vL); a("v_mul_u32_u24 v%d, 3072, v%d", vWd, vL)
    sCl = sNx
    k0, k1 = o["pf"]
    a("s_bfe_u32 s%d, s%d, 0x20001", sM0, sI)
    a("s_and_b32 s%d, s%d, 1", sCl, sI); a("s_lshl_b32 s%d, s%d, 13", sCl, sCl)
    a("s_add_u32 s%d, s%d, %d", sKb, sKb, k0); a("s_cmp_ge_u32 s%d, 10", sKb); a("s_cselect_b32 s%d, 10, 0", sT); a("s_sub_u32 s%d, s%d, s%d", sKb, sKb, sT)
    a("s_lshr_b32 s%d, s%d, 1", sT, sXcd); a("s_lshl2_add_u32 s%d, s%d, s%d", sXoff, sT, sM0); a("s_mul_i32 s%d, s%d, %d", sXoff, sXoff, 128 * 1280)
    a("s_and_b32 s%d, s%d, 1", sT, sXcd); a("s_lshl2_add_u32 s%d, s%d, s%d", sWoff, sT, sM0); a("s_mul_i32 s%d, s%d, 384", sWoff, sWoff)
    def touch(v, srdn, off):
        a("v_add3_u32 v%d, s%d, v%d, %s", TMP + 1, sT, v, "0") if off == 0 else a("v_add_u32 v%d, %d, v%d", TMP + 1, off, TMP + 1)
        a("v_and_b32 v%d, 8192, v%d", TMP + 2, TMP + 1)
        a("v_cmpx_eq_u32 vcc, s%d, v%d", sCl, TMP + 2)
        a("buffer_load_dword v%d, v%d, s[%d:%d], 0 offen", TMP, TMP + 1, srdn, srdn + 3)
        a("s_mov_b64 exec, -1")
    def wstep(kb):
        a("s_mul_i32 s%d, s%d, %d", sT, kb, 64 * 3072); a("s_add_u32 s%d, s%d, s%d", sT, sT, sWoff)
        for q in range(3): touch(vWd, sW1, 128 if q else 0)
    def xstep(kb):
        a("s_lshl_b32 s%d, s%d, 7", sT, kb); a("s_add_u32 s%d, s%d, s%d", sT, sT, sXoff)
        for q in range(2): touch(vXd, sX, 64 * 1280 if q else 0)
    def knext(d, sr): a("s_add_u32 s%d, s%d, 1", d, sr); a("s_cmp_eq_u32 s%d, 10", d); a("s_cselect_b32 s%d, 0, s%d", d, d)
    flip = lambda: a("s_xor_b32 s%d, s%d, 8192", sCl, sCl)
    a("s_mov_b32 s%d, %d", sIt, k0)
    a("s_waitcnt lgkmcnt(0)")
    a("s_mov_b64 s[%d:%d], s[40:41]", sX, sX + 1); a("s_mov_b64 s[%d:%d], s[42:43]", sW1, sW1 + 1)
    a("s_cmp_ge_u32 s%d, 1", sWv); a("s_cbranch_scc1 L_pfe")
    if o["dbl"]:
        assert (k1 - k0) % 2 == 1
        a("s_mov_b32 s%d, s%d", sRd, sKb); a("s_sub_u32 s%d, s%d, 1", sIt, sIt)
        a("s_branch L_pfm")
        a.label("L_pf")
        wstep(sKb); knext(sRd, sKb)
        a.label("L_pfm")
        wstep(sRd); flip()
        a("s_cmp_eq_u32 s%d, s%d", sRd, sKb); a("s_cbranch_scc1 L_pfx")
        xstep(sKb)
        a.label("L_pfx")
        xstep(sRd); knext(sKb, sRd)
        a("s_add_u32 s%d, s%d, 2", sIt, sIt)
    else:
        a.label("L_pf")
        wstep(sKb); xstep(sKb); flip(); knext(sKb, sKb)
        a("s_add_u32 s%d, s%d, 1", sIt, sIt)
    a("s_cmp_lt_u32 s%d, %d", sIt, k1); a("s_cbranch_scc1 L_pf")
    a.label("L_pfe")
    stamp()
    a("s_branch L_hc2")
    a.L.append("@G")
    a.label("L_hl")
    if o["codepf"]:
        a("s_getpc_b64 s[%d:%d]", sT, sT + 1)
        a("s_sub_u32 s%d, s%d, L_hl-%s_kernel+4", sT, sT, NAME); a("s_subb_u32 s%d, s%d, 0", sT + 1, sT + 1)
        a("v_and_b32 v%d, 255, v0", vT + 3)
        a("v_lshlrev_b32 v%d, 7, v%d", vT + 3, vT + 3)
        a("v_cmp_gt_u32 vcc, L_codeend-%s_kernel, v%d", NAME, vT + 3)
        a("s_and_saveexec_b64 s[%d:%d], vcc", sC1, sC1 + 1)
        a("s_cbranch_execz L_nocode")
        a("s_cmp_lg_u32 s%d, 24", sI); a("s_cbranch_scc1 L_nocode")
        a("global_load_dword v%d, v%d, s[%d:%d]", A2, vT + 3, sT, sT + 1)
        a.label("L_nocode")
        a("s_mov_b64 exec, -1")
    a("s_branch L_hl2")
    a.L.append("@P")
    a.label("L_hl2")
    a("s_memrealtime s[%d:%d]", sNonce, sNonce + 1)
    a("v_lshlrev_b32 v%d, 2, v%d", vT + 4, vL)
    a("v_add_u32 v%d, %d, v%d", vT + 4, SYNC, vT + 4)
    for r in range(5): a("ds_write_b32 v%d, v%d offset:%d", vT + 4, vZ, 256 * r)
    a("s_waitcnt lgkmcnt(0)")
    a("s_cmp_lg_u32 s2, 255"); a("s_cbranch_scc1 L_nolead")
    hptr(8)
    a("s_lshl_b32 s%d, s%d, 21", sT, sW); a("s_add_u32 s%d, s%d, %d", sT, sT, 98304 + 7168); a("s_add_u32 s%d, s%d, 8192", sT2, sT)
    a("s_load_dword s12, s[8:9], s%d glc", sT); a("s_load_dword s13, s[8:9], s%d glc", sT2)
    a("s_mov_b32 s14, -1"); a("s_mov_b32 s15, -1"); a("s_mov_b32 s%d, %d", sIt, o["pr"])
    a("s_waitcnt lgkmcnt(0)")
    a.label("L_pr")
    for q in range(2):
        a("s_memtime s[16:17]"); a("s_load_dword s12, s[8:9], s%d glc", sT + q); a("s_waitcnt lgkmcnt(0)")
        a("s_memtime s[18:19]"); a("s_waitcnt lgkmcnt(0)"); a("s_sub_u32 s13, s18, s16"); a("s_min_u32 s%d, s%d, s13", 14 + q, 14 + q)
    a("s_sub_u32 s%d, s%d, 1", sIt, sIt); a("s_cmp_lg_u32 s%d, 0", sIt); a("s_cbranch_scc1 L_pr")
    a("s_cmp_lt_u32 s15, s14"); a("s_cselect_b32 s%d, 0x1000000, 0", sT); a("s_lshl_b32 s%d, s%d, s%d", sT, sT, sW); a("s_bitset1_b32 s%d, 28", sT)
    a("s_and_b32 s%d, s%d, 0xffffff", sNonce + 1, sNonce + 1)
    a("s_cmp_eq_u32 s%d, 0", sW); a("s_cselect_b64 s[%d:%d], s[%d:%d], 0", sNonce, sNonce + 1, sNonce, sNonce + 1)
    a("s_or_b32 s%d, s%d, s%d", sNonce + 1, sNonce + 1, sT)
    a("s_atomic_add_x2 s[%d:%d], s[52:53], 0", sNonce, sNonce + 1)
    a.label("L_nolead")
    a("s_branch L_su")

    a.L.append("@C")
    nst[0] = 1
    a.label("L_comp")
    FR = 0
    tab_load("L_t1")
    vXr, vWr = 16, 18
    for f in range(4):
        for r in range(1, 4): a("v_mov_b32 v%d, 0", TMP + 4 * f + r)
    for r in range(1, 4): a("v_mov_b32 v%d, 0", vB2 + r)
    a("v_lshrrev_b32 v%d, 4, v%d", vHi, vL)
    a("v_mov_b32 v%d, 0x3f80", vT + 5)
    a("v_cmp_eq_u32 vcc, 0, v%d", vHi)
    a("s_lshr_b32 s%d, s%d, 1", sT, sW); a("s_lshl_b32 s%d, s%d, 6", sT, sT)
    a("v_add_u32 v%d, s%d, v%d", vT + 3, sT, vT + 3)
    a("v_lshlrev_b32 v%d, 7, v%d", vT + 3, vT + 3)
    a("v_bfe_u32 v%d, v%d, 1, 3", vT + 4, vL)
    a("v_xor_b32 v%d, v%d, v%d", vT + 4, vT + 4, vHi)
    a("v_lshl_add_u32 v%d, v%d, 4, v%d", vXr, vT + 4, vT + 3)
    a("v_xor_b32 v%d, 64, v%d", vXr + 1, vXr)
    a("v_bfe_u32 v%d, v%d, 2, 2", vT + 3, vL)
    a("v_lshl_add_u32 v%d, v%d, 3, v%d", vT + 3, vHi, vT + 3)
    a("v_lshlrev_b32 v%d, 7, v%d", vT + 3, vT + 3)
    a("v_bfe_u32 v%d, v%d, 3, 2", vT + 4, vL)
    a("v_lshl_add_u32 v%d, v%d, 5, v%d", vT + 3, vT + 4, vT + 3)
    a("v_and_b32 v%d, 3, v%d", vT + 4, vL)
    a("v_lshl_add_u32 v%d, v%d, 3, v%d", vT + 3, vT + 4, vT + 3)
    a("s_and_b32 s%d, s%d, 1", sT, sW); a("s_lshl_b32 s%d, s%d, 13", sT, sT); a("s_add_u32 s%d, s%d, 16384", sT, sT)
    a("v_add_u32 v%d, s%d, v%d", vWr, sT, vT + 3)
    for f in range(1, 4): a("v_xor_b32 v%d, %d, v%d", vWr + f, 32 * f, vWr)
    a("v_lshlrev_b32 v%d, 2, v%d", vT + 4, vL)
    a("v_add_u32 v%d, %d, v%d", vT + 4, SYNC, vT + 4)
    for r in range(5): a("ds_write_b32 v%d, v%d offset:%d", vT + 4, vZ, 256 * r)
    a("v_cndmask_b32 v%d, 0, v%d, vcc", vB2, vT + 5)
    a("v_mov_b32 v%d, 0x%x", vC0, f2u(C0)); a("v_mov_b32 v%d, v%d", vC0 + 1, vC0)
    a("v_mov_b32 v%d, 1.0", vONE); a("v_mov_b32 v%d, 1.0", vONE + 1)
    a("s_mov_b32 s%d, 0x%x", sC1, f2u(C1)); a("s_mov_b32 s%d, s%d", sC1 + 1, sC1)
    srdH()
    a("s_and_b32 s%d, s%d, 7", sG, sMT); a("s_lshl_b32 s%d, s%d, 20", sG, sG)
    a("s_and_b32 s%d, s%d, 2", sT, sW); a("s_lshl_b32 s%d, s%d, 18", sT, sT); a("s_add_u32 s%d, s%d, s%d", sXoff, sG, sT)
    a("s_lshl_b32 s%d, s%d, 1", sT, sT3); a("s_add_u32 s%d, s%d, s%d", sWoff, sXoff, sT); a("s_add_u32 s%d, s%d, 114688", sWoff, sWoff)
    a("s_lshl_b32 s%d, s%d, 4", sT3, sT3); a("s_and_b32 s%d, s%d, 0xe000", sT, sT3); a("s_add_u32 s%d, s%d, s%d", sT3, sT3, sT); a("s_add_u32 s%d, s%d, s%d", sXoff, sXoff, sT3)
    a("s_lshl_b32 s%d, s%d, 9", sT, sFT); a("s_add_u32 s%d, s%d, s%d", sG, sG, sT); a("s_add_u32 s%d, s%d, 98304", sG, sG)
    a("v_lshlrev_b32 v%d, 4, v%d", vHst, vL)
    a("v_mov_b32 v%d, 1", vT); a("v_mov_b32 v%d, %d", vT + 1, SYNC); a("v_lshlrev_b32 v%d, 3, v%d", vT + 2, vL)
    a("s_mov_b32 s%d, 0", sRd); a("s_mov_b32 s%d, 0", sIt)
    a("s_mov_b32 s%d, %d", sPw, (-(S - 1) * SLOT) & 0xffffffff)
    if o["prio"]: a("s_setprio %d", o["prio"])
    a("s_waitcnt vmcnt(0) lgkmcnt(0)")
    for m in range(4):
        for f in range(4):
            r = ACC + (m * 4 + f) * 4
            a("v_mfma_f32_16x16x32_bf16 v[%d:%d], v[%d:%d], v[%d:%d], 0", r, r + 3, TMP + 4 * f, TMP + 4 * f + 3, vB2, vB2 + 3)
    stamp()
    a("s_barrier")
    stamp()
    def reads(s):
        b = 32 * s
        w = lambda f, u: "ds_read_b64_tr_b16 a[%d:%d], v%d offset:%d" % (b + 4 * f + 2 * u, b + 4 * f + 2 * u + 1, vWr + f, s * 4096 + u * 512)
        x = lambda m: "ds_read_b128 a[%d:%d], v%d offset:%d" % (b + 16 + 4 * m, b + 19 + 4 * m, vXr + s, m * 2048)
        return [w(0, 0), w(0, 1), x(0), x(1), x(2), x(3), w(1, 0), w(1, 1), w(2, 0), w(2, 1), w(3, 0), w(3, 1)]
    def mf(buf, f, m):
        b = 32 * buf; r = ACC + (m * 4 + f) * 4
        return "v_mfma_f32_16x16x32_bf16 v[%d:%d], a[%d:%d], a[%d:%d], v[%d:%d]" % (r, r + 3, b + 4 * f, b + 4 * f + 3, b + 16 + 4 * m, b + 19 + 4 * m, r, r + 3)
    def order(): return [(f, m) for f in range(4) for m in (range(4) if (f % 2 == 0 or not o["snake"]) else range(3, -1, -1))]
    upd = lambda r: "v_add_u32 v%d, s%d, v%d" % (r, sDelta, r)
    slot = ["s_add_u32 s%d, s%d, %d" % (sRd, sRd, SLOT), "s_cmp_ge_u32 s%d, %d" % (sRd, S * SLOT), "s_cselect_b32 s%d, s%d, %d" % (sDelta, sPw, SLOT),
            "s_cselect_b32 s%d, 0, s%d" % (sRd, sRd), upd(vXr), "s_add_u32 s%d, s%d, 1" % (sIt, sIt), "s_cmp_lt_u32 s%d, 10" % sIt]
    for r in reads(0): a(r)
    a("@PRE")
    a("s_branch L_p1m")
    a(".p2align 3")
    a("s_nop 0")
    a.label("L_p1b")
    a("s_barrier")
    a.label("L_p1")
    BP = o["bp"]
    O = order()
    def place(R, gaps, fl):
        d = {g: [] for g in gaps}; i = 0
        for g in gaps:
            if i < len(R): d[g].append(R[i]); i += 1
            if fl and i < len(R) and "tr_b16" in d[g][0] and "tr_b16" in R[i]: d[g].append(R[i]); i += 1
        assert i == len(R)
        return d
    u1 = [upd(vXr + 1), upd(vWr), upd(vWr + 1), upd(vWr + 2), upd(vWr + 3)]
    P0 = place(reads(0), list(range(BP, 16)), o["fl"])
    P1 = place(reads(1), list(range(16)), o["fl"])
    def fill(P, gaps, items):
        items = list(items)
        for g in gaps:
            while items and len(P.setdefault(g, [])) < 2 - (1 if any("b128" in e for e in P[g]) else 0) and not any(q > g and any("ds_read" in e for e in P[q]) for q in P):
                P[g].append(items.pop(0))
        return items
    left = fill(P0, range(BP, 15), slot)
    nleft = len(left)
    pre = slot[:len(slot) - nleft]
    for n in range(BP, 16):
        f, m = O[n]
        a(mf(1, f, m))
        for e in P0.get(n, []): a(e)
    a.label("L_p1m")
    rest = fill(P1, range(16), left[:0] + u1)
    need = {0: 6, 4: 8, 8: 10, 12: 12}
    if o["nw"] == 3: need = {0: 8, 8: 10, 12: 12}
    if o["nw"] == 2: need = {0: 10, 12: 12}
    issued = 0
    for n in range(16):
        f, m = O[n]
        if n in need: a("s_waitcnt lgkmcnt(%d)", min(15, 12 - need[n] + issued))
        a(mf(0, f, m))
        for e in P1.get(n, []):
            a(e); issued += "ds_read" in e
    rest = rest + left
    for n in range(BP):
        f, m = O[n]
        if n in (0, 4): a("s_waitcnt lgkmcnt(%d)", 6 if n == 0 else 4)
        a(mf(1, f, m))
        for _ in range(2):
            if rest and n < BP - 1: a(rest.pop(0))
    for e in rest: a(e)
    a("s_waitcnt lgkmcnt(0)")
    a("s_cbranch_scc1 L_p1b")
    for n, (f, m) in enumerate(sorted(O[BP:], key=lambda t: (t[1], t[0]))):
        a(mf(1, f, m))
        if n == 0: a("ds_read_b64 v[%d:%d], v%d offset:8", vPl, vPl + 1, vT + 1)
        if n == 8: a("s_waitcnt lgkmcnt(0)"); a("v_readfirstlane_b32 s%d, v%d", sNonce + 1, vPl + 1)
        if n == 9: a("s_lshr_b32 s%d, s%d, 1", sT, sMT)
        if n == 10: setpol(sNonce + 1)
        if n == 12: a("s_lshr_b32 s%d, s%d, s%d", sT, sPol, sT); a("s_and_b32 s%d, s%d, 8192", sT, sT)
        if n == 13: a("s_add_u32 s%d, s%d, s%d", sXoff, sXoff, sT); a("s_add_u32 s%d, s%d, s%d", sWoff, sWoff, sT)
        if n == 14: a("s_add_u32 s%d, s%d, s%d", sG, sG, sT)
    k0_ = a.L.index("    @PRE"); a.L[k0_:k0_ + 1] = ["    " + e for e in pre]
    log[:] = []
    assert BP == 0
    stamp()
    def gelu_list(acc, tmp, outr, n):
        L = []; P = range(n // 2)
        pk = lambda op, d, x, y: "%s v[%d:%d], v[%d:%d], v[%d:%d]" % (op, d, d + 1, x, x + 1, y, y + 1)
        for p in P: L.append(pk("v_pk_mul_f32", tmp + 2 * p, acc + 2 * p, acc + 2 * p))
        for p in P: L.append("v_pk_fma_f32 v[%d:%d], v[%d:%d], s[%d:%d], v[%d:%d]" % (tmp + 2 * p, tmp + 2 * p + 1, tmp + 2 * p, tmp + 2 * p + 1, sC1, sC1 + 1, vC0, vC0 + 1))
        for p in P: L.append(pk("v_pk_mul_f32", tmp + 2 * p, tmp + 2 * p, acc + 2 * p))
        for i in range(n): L.append("v_exp_f32 v%d, v%d" % (tmp + i, tmp + i))
        for p in P: L.append(pk("v_pk_add_f32", tmp + 2 * p, tmp + 2 * p, vONE))
        for i in range(n): L.append("v_rcp_f32 v%d, v%d" % (tmp + i, tmp + i))
        for p in P: L.append(pk("v_pk_mul_f32", tmp + 2 * p, tmp + 2 * p, acc + 2 * p))
        for p in P: L.append("v_cvt_pk_bf16_f32 v%d, v%d, v%d" % (outr + p, tmp + 2 * p, tmp + 2 * p + 1))
        return L
    def publish(part):
        a(vmwait("st%d" % part))
        a("s_mov_b64 exec, 1")
        a("ds_add_rtn_u32 v%d, v%d, v%d offset:%d", vT + 5, vT + 1, vT, 4 * part)
        a("s_waitcnt lgkmcnt(0)")
        a("v_readfirstlane_b32 s%d, v%d", sT2, vT + 5)
        a("s_mov_b64 exec, 0xffff")
        a("s_nop 0")
        a("s_cmp_lg_u32 s%d, 3", sT2); a("s_cbranch_scc1 L_nopub%d", part)
        if o["spub"]: a("s_atomic_swap_x2 s[%d:%d], s[%d:%d], %d", sNonce, sNonce + 1, 80 if not PROF else 84, 81 if not PROF else 85, 256 * part)
        else: a("buffer_store_dwordx2 v[%d:%d], v%d, s[%d:%d], s%d offen offset:%d sc1", vPl, vPl + 1, vT + 2, sH, sH + 3, sG, 256 * part)
        a.label("L_nopub%d" % part)
        a("s_mov_b64 exec, -1")
    a(".p2align 3")
    for hh in range(8):
        ob = OUT + 4 * (hh & 3)
        for e in gelu_list(ACC + 8 * hh, TMP, ob, 8): a(e)
        mt = hh >> 2
        if "nohst" in o["dbg"]: a("s_mov_b64 exec, 1")
        a("buffer_store_dwordx4 v[%d:%d], v%d, s[%d:%d], s%d offen offset:%d %s", ob, ob + 3, vHst, sH, sH + 3, sXoff, (hh & 1) * 1024, o["hst"])
        if hh & 1: a("s_add_u32 s%d, s%d, %d", sXoff, sXoff, 1 << 17)
        if "nohst" in o["dbg"]: a("s_mov_b64 exec, -1")
        log.append("st%d" % mt if hh != 1 else "s1")
        if hh + 1 == o["a1at"]:
            a(vmwait("s1"))
            a("s_mov_b64 exec, 0xffff")
            a("buffer_store_dwordx2 v[%d:%d], v%d, s[%d:%d], s%d offen sc1", vPl, vPl + 1, vT + 2, sH, sH + 3, sWoff); log.append("f1")
            a("s_mov_b64 exec, -1")
            a(".p2align 3")
        if hh + 1 == o["puba"]:
            if hh == 7: stamp(); a("s_setprio 0")
            publish(0)
            if hh == 7: stamp()
            else: a(".p2align 3")
    if o["puba"] < 8: stamp(); a("s_setprio 0"); stamp()
    if o["puba"] == 8 and not o["spub"]:
        a("s_cmp_lg_u32 s%d, 3", sT2); a("s_cbranch_scc1 L_pw0"); a("s_waitcnt vmcnt(1)"); a("s_branch L_pw1"); a.label("L_pw0"); a("s_waitcnt vmcnt(0)"); a.label("L_pw1")
        log.extend(["x"] * 60)
    publish(1)
    stamp()
    a.label("L_red")
    a("s_waitcnt lgkmcnt(0)")
    tile_assign(); order_init()
    srd(sO, 48, 640 * 2)
    a("v_and_b32 v%d, 15, v%d", vT + 3, vL); a("v_lshrrev_b32 v%d, 4, v%d", vT + 4, vL)
    a("v_lshlrev_b32 v%d, 3, v%d", vT + 5, vT + 3); a("s_lshl_b32 s%d, s%d, 7", sDl, sDl)
    a("buffer_load_dwordx2 v[%d:%d], v%d, s[%d:%d], s%d offen", vB2 + 2, vB2 + 3, vT + 5, sO, sO + 3, sDl)
    a("s_lshl_b32 s%d, s%d, 2", sT, sW); a("v_add_u32 v%d, s%d, v%d", vT + 4, sT, vT + 4)
    a("v_mul_u32_u24 v%d, 272, v%d", vRr, vT + 4)
    a("v_lshl_add_u32 v%d, v%d, 4, v%d", vRr, vT + 3, vRr)
    a("v_mul_u32_u24 v%d, 1280, v%d", vOst, vT + 4)
    a("v_add3_u32 v%d, v%d, v%d, s%d", vOst, vOst, vT + 5, sDl)
    a("v_and_b32 v%d, 3, v%d", vT + 2, vL); a("v_lshlrev_b32 v%d, 8, v%d", vT + 2, vT + 2); a("v_lshl_add_u32 v%d, v%d, 2, v%d", vT + 2, vL, vT + 2)
    a("v_add_u32 v%d, %d, v%d", vT + 2, SYNC + 256, vT + 2)
    a("s_mov_b32 s%d, %d", sCnt, REDSZ); a("s_mul_i32 s%d, s%d, %d", sNb, sNb, REDSZ); a("s_mov_b32 s%d, 0", sIt)
    a("s_waitcnt vmcnt(0)")
    srd(sO, 50, 2048 * 640 * 2)
    a("v_lshlrev_b32 v%d, 16, v%d", vB2, vB2 + 2); a("v_and_b32 v%d, 0xffff0000, v%d", vB2 + 1, vB2 + 2)
    a("v_lshlrev_b32 v%d, 16, v%d", vB2 + 2, vB2 + 3); a("v_and_b32 v%d, 0xffff0000, v%d", vB2 + 3, vB2 + 3)
    if o["rprio"]: a("s_setprio %d", o["rprio"])
    a.label("L_rw")
    a("ds_read_b32 v%d, v%d", vT + 3, vT + 2)
    if o["spec"]:
        for p in range(4): a("ds_read_b128 v[%d:%d], v%d offset:%d", RD + 4 * p, RD + 4 * p + 3, vRr, 4352 * p)
    a("s_add_u32 s%d, s%d, 1", sIt, sIt); a("s_cmp_gt_u32 s%d, %d", sIt, o["spin"] * 8)
    a("s_waitcnt lgkmcnt(%d)", 4 if o["spec"] else 0)
    a("s_cbranch_scc1 L_rgo")
    a("v_cmp_gt_u32 vcc, s%d, v%d", sCnt, vT + 3)
    a("s_cbranch_vccz L_rgo")
    if o["rlast"]: a("s_cmp_eq_u32 s%d, s%d", sCnt, sNb); a("s_cbranch_scc1 L_rw")
    if o["rsleep"]: a("s_sleep %d", o["rsleep"])
    a("s_branch L_rw")
    a.label("L_rgo")
    if not o["spec"]:
        for p in range(4): a("ds_read_b128 v[%d:%d], v%d offset:%d", RD + 4 * p, RD + 4 * p + 3, vRr, 4352 * p)
    a("v_add_u32 v%d, %d, v%d", vRr, REDSZ, vRr)
    a("s_mul_i32 s%d, s%d, %d", sOst, sCur, 16 * 1280)
    for e in order_next: a(e)
    a("s_add_u32 s%d, s%d, %d", sCnt, sCnt, REDSZ)
    def pk(d, x, y):
        a("v_add_f32 v%d, v%d, v%d", d, x, y); a("v_add_f32 v%d, v%d, v%d", d + 1, x + 1, y + 1)
    a("s_waitcnt lgkmcnt(3)")
    pk(RD, RD, vB2); pk(RD + 2, RD + 2, vB2 + 2)
    a("s_waitcnt lgkmcnt(1)")
    pk(RD + 4, RD + 4, RD + 8); pk(RD + 6, RD + 6, RD + 10)
    a("s_waitcnt lgkmcnt(0)")
    pk(RD, RD, RD + 12); pk(RD + 2, RD + 2, RD + 14)
    pk(RD, RD, RD + 4); pk(RD + 2, RD + 2, RD + 6)
    a("v_cvt_pk_bf16_f32 v%d, v%d, v%d", vPl, RD, RD + 1); a("v_cvt_pk_bf16_f32 v%d, v%d, v%d", vPl + 1, RD + 2, RD + 3)
    a("s_cmp_le_u32 s%d, s%d", sCnt, sNb)
    a("buffer_store_dwordx2 v[%d:%d], v%d, s[%d:%d], s%d offen %s", vPl, vPl + 1, vOst, sO, sO + 3, sOst, o["ost"])
    a("s_cbranch_scc1 L_rw")
    pad_to(NSTAMP)
    if PROF: a("s_branch L_fin")
    else: a("s_endpgm")

    a.L.append("@R")
    nst[0] = 2
    a.label("L_hc2")
    tab_load("L_t2")
    if o["w2pf"]:
        srd(sW2, 46, 1536 * 640 * 2)
        a("s_cmp_ge_u32 s%d, 1", sWv); a("s_cbranch_scc1 L_pf2e")
        a("s_and_b32 s%d, s%d, 1", sWoff, sXcd); a("s_mul_i32 s%d, s%d, 640", sWoff, sWoff)
        a("s_mul_i32 s%d, s%d, %d", sT, sM0, 384 * 1280); a("s_add_u32 s%d, s%d, s%d", sWoff, sWoff, sT)
        krot(sRd); a("s_lshl_b32 s%d, s%d, 1", sRd, sRd)
        NKK = len(o["kks"]); MV = o["mv"]
        lst = list(o["kks"]) + list(o["kks"])[NKK - MV:]
        assert len(lst) <= 8
        a("s_mov_b32 s%d, 0x%x", sKb, sum(v << (4 * i) for i, v in enumerate(lst))); a("s_mov_b32 s%d, 0", sIt)
        a("s_cmp_eq_u32 s%d, 0", sM0); a("s_cselect_b32 s%d, %d, %d", sXoff, NKK + MV, NKK)
        a("s_cmp_eq_u32 s%d, 3", sM0); a("s_cselect_b32 s%d, %d, s%d", sXoff, NKK - MV, sXoff)
        a.label("L_pf2")
        a("s_and_b32 s%d, s%d, 15", sT, sKb); a("s_lshr_b32 s%d, s%d, 4", sKb, sKb)
        a("s_add_u32 s%d, s%d, s%d", sT, sT, sRd); a("s_cmp_ge_u32 s%d, 6", sT); a("s_cselect_b32 s%d, 6, 0", sT3); a("s_sub_u32 s%d, s%d, s%d", sT, sT, sT3)
        a("s_mul_i32 s%d, s%d, %d", sT, sT, 64 * 1280); a("s_add_u32 s%d, s%d, s%d", sT, sT, sWoff)
        for q in range(5): touch(vXd, sW2, 128 if q else 0)
        a("s_add_u32 s%d, s%d, 1", sIt, sIt)
        if o["tog2"] == 1: flip()
        else: a("s_lshl_b32 s%d, s%d, 13", sT, sIt); a("s_and_b32 s%d, s%d, 8192", sT, sT); a("s_xor_b32 s%d, s%d, s%d", sCl, sCl, sT)
        a("s_cmp_eq_u32 s%d, %d", sIt, NKK); a("s_cselect_b32 s%d, %d, 0", sT, 3 * 384 * 1280); a("s_add_u32 s%d, s%d, s%d", sWoff, sWoff, sT)
        a("s_cmp_lt_u32 s%d, s%d", sIt, sXoff); a("s_cbranch_scc1 L_pf2")
        a.label("L_pf2e")
    a("s_barrier")
    stamp()
    if PROF: a("s_waitcnt vmcnt(0)")
    pad_to(7)
    a("s_branch L_red")

    a.L.append("@W")
    nst[0] = 2
    a.label("L_lw")
    def gissue(g):
        a("s_add_u32 m0, s%d, %d", sGm, SLO[g % NSL]); a("s_nop 0")
        for i in range(4):
            a("buffer_load_dwordx4 v%d, s[%d:%d], s%d offen offset:%d lds", vGd + i, sW2, sW2 + 3, sG, 1024 * i); log.append("g%d" % g)
        a("s_add_u32 s%d, s%d, %d", sG, sG, 32 * 1280 if "w2same" not in o["dbg"] else (32 * 1280 if g % 2 == 0 else (-32 * 1280) & 0xffffffff))
        if g in (3, 7):
            a("s_cmp_eq_u32 s%d, %d", sRd, 2 if g == 3 else 1); a("s_cselect_b32 s%d, s%d, s%d", sG, sGw, sG)
    def greads(g):
        L = []
        for t in range(4):
            k, r = w2reg(g * 4 + t)
            for u in range(2): L.append("ds_read_b64_tr_b16 %s[%d:%d], v%d offset:%d" % (k, r + 2 * u, r + 2 * u + 1, vGr + t, SLO[g % NSL] + u * 2048))
        return L
    log[:] = ["p1"]
    srd(sW2, 46, 1536 * 640 * 2)
    gissue(0)
    a("v_mov_b32 v%d, %d", vT + 5, SYNC + 8)
    a("s_cmp_ge_u32 s5, 24"); a("s_cbranch_scc1 L_cb0")
    a("s_cmp_lg_u32 s%d, 0", sW); a("s_cbranch_scc1 L_cb0")
    get_nonce("L_n0")
    a("ds_write_b64 v%d, v[%d:%d]", vT + 5, vPl, vPl + 1)
    a.label("L_cb0")
    for g in range(1, o["pre9"]): gissue(g)
    srdH()
    a("s_waitcnt vmcnt(%d) lgkmcnt(0)", vmcount("p1"))
    a("s_cmp_ge_u32 s5, 24"); a("s_cbranch_scc1 L_cb1")
    a("s_barrier")
    a("ds_read_b64 v[%d:%d], v%d", vPl, vPl + 1, vT + 5)
    a.label("L_cb1")
    stamp()
    a("s_setprio %d", o["lprio"])
    pollA = "buffer_load_dwordx2 v[%d:%d], v62, s[%d:%d], 0 offen sc1" % (vPl, vPl + 1, sH, sH + 3)
    pollB = "buffer_load_dwordx2 v[%d:%d], v%d, s[%d:%d], s%d offen sc1" % (vPl, vPl + 1, vFl, sH, sH + 3, sKr)
    chk = "v_cmp_ne_u64 vcc, s[%d:%d], v[%d:%d]" % (sNonce, sNonce + 1, vPl, vPl + 1)
    LAG = NSL - 1
    assert NSL == 3
    for g in range(o["pre9"], LAG): gissue(g)
    for g in range(LAG, 12):
        a(vmwait("g%d" % (g - LAG)))
        a("s_waitcnt lgkmcnt(0)")
        for r in greads(g - LAG): a(r)
        if o["gpace"] < 4 * (LAG - 1) and o["gpb"] <= g < o["gpend"]:
            a("s_cmp_ge_u32 s5, 24"); a("s_cbranch_scc1 L_gp%d", g); a("s_waitcnt vmcnt(%d)", o["gpace"]); a.label("L_gp%d" % g)
        gissue(g)
        if g == o["ng"]: get_nonce("L_n1"); lsetup2()
        if g == o["poll0"]: a(pollA.replace("v[%d:%d]" % (vPl, vPl + 1), "v[60:61]")); log.append("p0")
        if g == o["pollg"]: a(pollA); log.append("pa")
        if g == 11 and o["poll0"]:
            a(vmwait("p0")); a(chk.replace("v[%d:%d]" % (vPl, vPl + 1), "v[60:61]")); a("s_cbranch_vccz L_spa_x")
        if PROF and "gst" in o["dbg"] and g in (4, 8): a("s_memtime s[%d:%d]", 82 + g // 2, 83 + g // 2)
    stamp()
    def spin(lab, poll):
        a("s_mov_b32 s%d, 0", sT3)
        a.label(lab)
        if o["psleep"]: a("s_sleep %d", o["psleep"])
        a(poll)
        a("s_add_u32 s%d, s%d, 1", sT3, sT3); a("s_cmp_gt_u32 s%d, %d", sT3, o["spin"])
        a("s_waitcnt vmcnt(0)")
        a("s_cbranch_scc1 %s_x", lab)
        a(chk)
        a("s_cbranch_vccnz %s", lab)
        a.label(lab + "_x")
    a(vmwait("pa"))
    a(chk)
    a("s_cbranch_vccz L_spa_x")
    spin("L_spa", pollA)
    stamp()
    D = o["dist"]; NK = 12; NR = 8; PK = 8
    assert D == 7
    def hload(k, ph):
        r = RING + 4 * ((k + ph) % NR)
        return "buffer_load_dwordx4 v[%d:%d], v%d, s[%d:%d], s%d offen offset:%d %s" % (r, r + 3, vH, sH, sH + 3, sHcur, (k & 3) * 1024, o["hld"])
    def hstep(k): return ["s_add_u32 s%d, s%d, s%d" % (sHcur, sBase, sO1 if k % NK == 3 else sO2)] if k % NK in (3, 7) else []
    for k in range(D):
        a(hload(k, 0)); log.append("h")
        for e in hstep(k): a(e)
        if k == (PK + D) % NK:
            if o["pm"]: a("s_mov_b64 exec, 0xff")
            a(pollB); log.append("pb")
            if o["pm"]: a("s_mov_b64 exec, -1")
    for g in range(12 - LAG, 12):
        a(vmwait("g%d" % g))
        for r in greads(g): a(r)
    a("s_cmp_ge_u32 s5, 24"); a("s_cbranch_scc1 L_cd_x")
    a("v_mov_b32 v62, %d", SYNC); a("s_mov_b32 s%d, 0", sIt)
    a.label("L_cd")
    a("ds_read_b32 v63, v62")
    a("s_add_u32 s%d, s%d, 1", sIt, sIt); a("s_cmp_gt_u32 s%d, %d", sIt, o["spin"] * 8)
    a("s_waitcnt lgkmcnt(0)")
    a("s_cbranch_scc1 L_cd_x")
    a("v_cmp_gt_u32 vcc, 4, v63")
    a("s_cbranch_vccnz L_cd")
    a.label("L_cd_x")
    a("s_mov_b32 s%d, 1", sIt)
    a("s_setprio %d", o["p2prio"])
    a("s_waitcnt lgkmcnt(0)")
    src = lambda t: (A2 + 4 * t) if t < 2 else (B2 + 4 * (t - 2))
    W = ["ds_write_b128 v%d, v[%d:%d] offset:%d" % (vRw, src(t), src(t) + 3, 64 * t) for t in range(4)]
    sig = ["v_add_u32 v%d, s%d, v%d" % (vRw, sInc, vRw), "ds_write_b32 v%d, v%d" % (vCa, vRw)]
    def trip(ph):
        X = {}
        add = lambda ks, g, *e: X.setdefault((ks, g), []).extend(e)
        H = lambda t, u: "ds_write_b64 v%d, v[%d:%d] offset:%d" % (vRw, src(t) + 2 * u, src(t) + 2 * u + 1, 64 * t + 8 * u)
        if o["w64"] == 0:
            add(0, 0, W[0]); add(0, 1, W[1])
            add(o["wpos"][0], 0, W[2]); add(o["wpos"][1], 0, W[3])
            add(o["wpos"][1], 2, sig[0]); add(o["wpos"][1], 3, sig[1])
        else:
            if o["w64"] == 1: add(0, 0, W[0]); add(0, 1, W[1])
            else: add(0, 0, H(0, 0), H(0, 1)); add(0, 1, H(1, 0), H(1, 1))
            add(2, 0, H(2, 0)); add(3, 0, H(2, 1)); add(3, 2, H(3, 0)); add(6, 0, H(3, 1)); add(6, 2, sig[0], sig[1]); add(7, 0, "s_mov_b32 s%d, %d" % (sInc, REDSZ))
        HB = hbase(sBase, sCur, sT2)
        add(0, 3, order_next[0]); add(1, 0, order_next[1], order_next[2]); add(1, 1, HB[0]); add(1, 2, HB[1], HB[2]); add(1, 3, HB[3])
        add(2, 1, HB[4]); add(2, 2, HB[5], "s_lshl_b32 s%d, s%d, 7" % (sT, sCur)); add(2, 3, "s_cmp_ge_u32 s%d, s%d" % (sIt, sNb))
        add(3, 1, "s_cselect_b32 s%d, s%d, s%d" % (sBase, sNx, sBase))
        add(4, 0, chk, "s_andn2_b32 s%d, s%d, s%d" % (sT, sKr, sT))
        if o["pskip"]:
            add(4, 1, "s_cselect_b64 s[%d:%d], 0, -1" % (sT, sT + 1))
            add(4, 2, "s_and_b64 s[%d:%d], s[%d:%d], vcc" % (sT, sT + 1, sT, sT + 1), "s_cbranch_scc1 L_spb%d" % ph, "L_spb%d_r:" % ph)
            add(5, 2, "s_or_b64 vcc, vcc, s[%d:%d]" % (sC1, sC1 + 1), "s_mov_b64 s[%d:%d], 0" % (sC1, sC1 + 1))
        elif o["pm"]: add(4, 1, "s_cselect_b32 s%d, 0, 0xff" % sT)
        if o["pskip"]: pass
        elif o["pm"]: add(4, 2, "s_and_b32 s%d, s%d, vcc_lo" % (sT, sT), "s_cbranch_scc1 L_spb%d" % ph, "L_spb%d_r:" % ph)
        else: add(4, 2, "s_cselect_b64 vcc, 0, vcc", "s_cbranch_vccnz L_spb%d" % ph, "L_spb%d_r:" % ph)
        add(4, 3, "s_add_u32 s%d, s%d, s%d" % (sHcur, sBase, sO0))
        add(5, 0, "s_movk_i32 s%d, 256" % sKr)
        if o["w64"] == 0: add(5, 0, "s_mov_b32 s%d, %d" % (sInc, REDSZ))
        if o["pskip"] and o["pex"]: add(PK, 2, "s_mov_b64 exec, vcc", pollB, "s_mov_b64 exec, -1")
        elif o["pskip"]: add(PK, 2, "s_cbranch_vccz L_np%d" % ph, pollB, "L_np%d:" % ph)
        elif o["pm"]: add(PK, 2, "s_mov_b64 exec, 0xff", pollB, "s_mov_b64 exec, -1")
        else: add(PK, 3, pollB)
        add(NK - 1, 2, "s_add_u32 s%d, s%d, 1" % (sIt, sIt), "s_cmp_le_u32 s%d, s%d" % (sIt, sNb))
        for ks in range(NK):
            between = any(((ks - D + d) % NK) == PK for d in range(D))
            a("s_waitcnt vmcnt(%d)", D - 1 + (1 if between and (o["pex"] or not o["pskip"]) else 0))
            M = []
            for t in range(4):
                c = "0" if ks == 0 else "v[%d:%d]" % (A2 + 4 * t, A2 + 4 * t + 3)
                d = src(t) if ks == NK - 1 else A2 + 4 * t
                k, w = w2reg(ks * 4 + t); h = RING + 4 * ((ks + ph) % NR)
                M.append("v_mfma_f32_16x16x32_bf16 v[%d:%d], %s[%d:%d], v[%d:%d], %s" % (d, d + 3, k, w, w + 3, h, h + 3, c))
            if ks == 0: M = M[2:] + M[:2]
            hg = 2 if ks == 0 else 1
            ex = {g: list(X.get((ks, g), [])) for g in range(4)}
            ex[hg] = [hload(ks + D, ph)] + hstep(ks + D) + ex[hg]
            weave(a, M, ex)
        if PROF and "p2st" in o["dbg"]:
            a("s_cselect_b32 s%d, 1, 0", sT)
            for b in ((1, 3, 5) if ph == 0 else (2, 4)):
                r = {1: 66, 2: 68, 3: 70, 4: 84, 5: 86}[b]
                a("s_cmp_lg_u32 s%d, %d", sIt, b + 1); a("s_cbranch_scc1 L_ps%d", b); a("s_memtime s[%d:%d]", r, r + 1); a.label("L_ps%d" % b)
            a("s_cmp_eq_u32 s%d, 1", sT)
    a("s_mov_b32 s%d, 0x%x", sNx, OOB); a("s_mov_b64 s[%d:%d], -1", sC1, sC1 + 1)
    a(".p2align 3")
    a.label("L_p2")
    trip(0)
    a("s_cbranch_scc0 L_p2e")
    a(".p2align 3")
    trip(4)
    a("s_cbranch_scc1 L_p2")
    a.label("L_p2e")
    a("s_nop 3")
    for w in W: a(w)
    for e in sig: a(e)
    stamp()
    if PROF and "p1st" in o["dbg"]:
        a("s_mov_b32 s70, s84"); a("s_mov_b32 s72, s86")
    pad_to(NSTAMP)
    if PROF and ("gst" in o["dbg"] or "p2st" in o["dbg"]):
        a("s_mov_b32 s76, s84"); a("s_mov_b32 s78, s86")
    if PROF: a("s_branch L_fin")
    else: a("s_endpgm")
    for ph in (0, 4):
        a.label("L_spb%d" % ph)
        if o["pm"]: a("s_mov_b64 exec, 0xff")
        spin("L_spb%dl" % ph, pollB)
        if o["pm"]: a("s_mov_b64 exec, -1")
        a("s_branch L_spb%d_r", ph)
    a.L.append("@F")
    a.label("L_fin")
    if PROF:
        n = NSTAMP
        a("s_waitcnt vmcnt(0)")
        a("s_memtime s[%d:%d]", 64 + 2 * n, 65 + 2 * n); a("s_memrealtime s[62:63]"); a("s_waitcnt lgkmcnt(0)")
        a("s_add_u32 s8, s54, %d", 128 << 20); a("s_addc_u32 s9, s55, 0"); a("s_mov_b32 s10, 0x100000"); a("s_mov_b32 s11, 0x20000")
        a("s_lshl_b32 s28, s2, 3"); a("s_add_u32 s28, s28, s%d", sWv); a("s_lshl_b32 s28, s28, 6")
        a("v_mov_b32 v0, s28")
        a("s_getreg_b32 s29, hwreg(HW_REG_XCC_ID)")
        vals = ["s60", "s62", "s29"] + ["s%d" % (64 + 2 * i) for i in range(n + 1)]
        vals += ["0"] * (16 - len(vals))
        for i, v in enumerate(vals): a("v_mov_b32 v%d, %s", 4 + i, v)
        a("s_mov_b64 exec, 1")
        for i in range(4): a("buffer_store_dwordx4 v[%d:%d], v0, s[8:11], 0 offen offset:%d", 4 + 4 * i, 7 + 4 * i, 16 * i)
    if PROF and o.get("probe") is not None:
        pw, pv, pi = o["probe"]
        a("s_cmp_lg_u32 s2, %d", pw); a("s_cbranch_scc1 L_end")
        a("s_cmp_lg_u32 s%d, %d", sWv, pv); a("s_cbranch_scc1 L_end")
        if pi == "start": a("s_sub_u32 s30, s60, s%d", sNonce); a("s_add_u32 s30, s30, 200"); a("s_lshl_b32 s30, s30, 2")
        else: a("s_sub_u32 s30, s%d, s64", 64 + 2 * pi); a("s_lshl_b32 s30, s30, 2"); a("s_add_u32 s30, s30, 300")
        a("s_min_u32 s30, s30, 20000")
        a.label("L_spin")
        a("s_memrealtime s[32:33]"); a("s_waitcnt lgkmcnt(0)")
        a("s_sub_u32 s32, s32, s62"); a("s_cmp_lt_u32 s32, s30"); a("s_cbranch_scc1 L_spin")
    a.label("L_end")
    a("s_endpgm")
    a(".p2align 6")
    a(".type L_table,@object")
    a.label("L_table")
    W = make_table(o)
    for k in range(0, 256, 8): a(".long " + ", ".join("0x%x" % w for w in W[k:k + 8]))
    a.label("L_codeend")
    sec = {"E": []}; cur = "E"
    for l in a.L:
        if l.startswith("@"): cur = l[1]; sec[cur] = []
        else: sec[cur].append(l)
    a.L = []
    for c in o["lay"] + "F":
        if c == "|": a.L.append("    .p2align 12")
        if c in sec: a.L += sec[c]
    a.L = [l for i, l in enumerate(a.L) if not (l.startswith("    s_branch ") and i + 1 < len(a.L) and a.L[i + 1] == l.split()[1] + ":")]
    if o["dfl"]: a.L = [l[:-4] + " " + o["dfl"] + " lds" if l.endswith(" lds") else l for l in a.L]
    if "rt" in o["dbg"].split(): a.L = [l.replace("s_memtime", "s_memrealtime") if "s[1" not in l else l for l in a.L]
    s = HEAD + "; @launch grid=(256,1,1) block=(512,1,1) lds=163840\n"
    s += '.amdgcn_target "amdgcn-amd-amdhsa--gfx950"\n.text\n'
    n = NAME + "_kernel"
    if o["pad"] is not None: s += ".p2align 12\n.fill %d, 4, 0xbf800000\n" % (o["pad"] // 4)
    s += ".globl %s\n.p2align 8\n.type %s,@function\n%s:\n%s" % (n, n, n, a.text())
    s += '''.section .rodata,"a"
.p2align 6
.amdhsa_kernel %s
  .amdhsa_next_free_vgpr 256
  .amdhsa_next_free_sgpr 102
  .amdhsa_accum_offset 128
  .amdhsa_group_segment_fixed_size 0
  .amdhsa_kernarg_size 64
  .amdhsa_user_sgpr_count 2
  .amdhsa_user_sgpr_kernarg_segment_ptr 1
  .amdhsa_system_sgpr_workgroup_id_x 1
  .amdhsa_float_denorm_mode_32 3
  .amdhsa_float_denorm_mode_16_64 3
.end_amdhsa_kernel
''' % n
    return s
if __name__ == "__main__":
    kw = json.loads(sys.argv[2]) if len(sys.argv) > 2 else {}
    open(sys.argv[1], "w").write(gen(**kw))
```

```python
import struct, sys, json
def f2u(x): return struct.unpack("<I", struct.pack("<f", x))[0]
C0 = -2.0 * 0.7978845608028654 * 1.4426950408889634
C1 = C0 * 0.044715
NAME = "standalone__dense_activation_gelu__prompt"
HEAD = open("cdna_kernels/%s.s.ref" % NAME).read().split("; Override launch geometry")[0]
FLAGOFF = 8 << 20
OOB = 0x7f000000
DEF = dict(prof=False, a1=4, a2=4, rot1="x", pf=(1, 10), w2pf=True, hst="sc1", ost="nt", dist=7, spin=1000000, codepf=True,
           out=8, prio=1, hsame=False, psleep=4, dbg="", gpace=1, gpend=9, rsleep=3, p2prio=1, swap46=False, krot=True, hdelay=0,
           pollg=10, puba=8, nsl=3, hs=49152, lprio=0, ng=4, swapx=True, rotx=0, hbal=False, pad=0xD00, lay="EGHRPST|W|C", tmap="half", alt=0, light=0, snake=True, barpos=16, nw=2, bp=0, fl=1, poll0=0, spub=False, rprio=0, l1prio=0, lwait=8, spec=False, lfrom=2, lstep=1, gpb=5, pre9=2, sup=3, np=8, dbl=0, tog2=1, mv=2, w64=0, pex=1, nocls=False, a1at=6, pm=0, mid=False, hwait=0, pr=3, polx=0, pskip=True, rlast=True, wpos=(2, 3), hld="sc1", tfl="", dfl="", kks=(0, 1, 2, 3, 4, 5))

class A:
    def __init__(self): self.L = []
    def __call__(self, s, *args): self.L.append("    " + (s % args if args else s))
    def label(self, s): self.L.append(s + ":")
    def text(self): return "\n".join(self.L) + "\n"

def weave(a, main, extra):
    for i, m in enumerate(main):
        a(m)
        for e in extra.get(i, []): a(e)

def make_table(o):
    T = {}
    for x in range(8):
        par, q = x & 1, x >> 1
        tiles = []
        if o["a2"] == 8:
            par = 0
            if o["tmap"] == "cur":
                for i in range(32):
                    dl, rb, n = i >> 1, 6 + 5 * (i & 1), 5
                    if i >= 16: dl, rb, n = (i >> 2) + 4, 4 * (i & 3), 4
                    if i >= 24: dl, rb, n = i - 24, 0, 6
                    tiles.append((dl, rb + 16 * x, n))
            else:
                four = {0: (0, 4), 1: (1, 5), 2: (2, 6), 3: (3, 7), 4: (0, 4), 5: (2, 6), 6: (1,), 7: (3,), 8: (5,), 9: (7,)}
                six = {6: (3, 5, 7), 7: (0, 5, 7), 8: (1, 2, 6), 9: (1, 3, 4)}
                for dl in range(10):
                    c = lambda k: 4 if k in four[dl] else 3
                    d = lambda k: (-1 if (dl < 6 and k in four[dl]) else (1 if k in six.get(dl, ()) else 0))
                    rb = sum(5 * c(k) + d(k) for k in range(x))
                    for k in range(c(x)):
                        n = 5 + (d(x) if k == 0 else 0)
                        tiles.append((dl, rb, n)); rb += n
                t6 = [t for t in tiles if t[2] == 6]; t4 = [t for t in tiles if t[2] == 4]; t5 = [t for t in tiles if t[2] == 5]
                nh = 8 - len(t6) - len(t4)
                tiles = t5[nh:] + t4 + t5[:nh] + t6
        elif o["tmap"] == "cur":
            for i in range(32):
                dl, rb, n = i >> 2, 12 + 5 * (i & 3), 5
                if i >= 20: dl, rb, n = 3 + (i & 1), ((i - 20) >> 1) * 4, 4
                if i >= 26: dl, rb, n = (i - 26) >> 1, 6 * (i & 1), 6
                tiles.append((dl, rb + 32 * q, n))
        else:
            cnt = [[7, 6, 7, 6], [6, 7, 6, 7], [7, 6, 6, 7], [6, 7, 6, 6], [6, 6, 7, 6]]
            odd = [[-1, 0, -1, 0], [0, -1, 0, -1], [-1, 0, 0, -1], [1, 0, 1, 1], [1, 1, 0, 1]]
            if o["tmap"] == "half":
                cnt = [[7, 6, 7, 6], [6, 7, 6, 7], [7, 6, 7, 6], [6, 7, 6, 7], [6, 6, 6, 6]]
                odd = [[-1, 0, -1, 0], [0, -1, 0, -1], [-1, 0, -1, 0], [0, -1, 0, -1], [2, 2, 2, 2]]
            for dl in range(5):
                rb = sum(5 * cnt[dl][k] + odd[dl][k] for k in range(q))
                for k in range(cnt[dl][q]):
                    n = 5 + (odd[dl][q] if k == 0 else 0)
                    if odd[dl][q] == 2: n = 6 if k in (0, 2) else 5
                    tiles.append((dl, rb, n)); rb += n
            t6 = [t for t in tiles if t[2] == 6]; t4 = [t for t in tiles if t[2] == 4]; t5 = [t for t in tiles if t[2] == 5]
            nh = 8 - len(t6) - len(t4)
            tiles = t5[nh:] + t4 + t5[:nh] + t6
        assert len(tiles) == 32
        for i, (dl, rb, n) in enumerate(tiles):
            E = [b for b in range(rb, rb + n) if not b & 2]; Lt = [b for b in range(rb, rb + n) if b & 2]
            if o["alt"] == 1 and dl & 1: E.reverse(); Lt.reverse()
            if o["alt"] == 2:
                r = dl % len(E); E = E[r:] + E[:r]; r = dl % len(Lt); Lt = Lt[r:] + Lt[:r]
            k = next(k for k, b in enumerate(E) if b % 4 == 0)
            E = [E[k]] + E[:k] + E[k + 1:]
            assert len(E) >= 2
            T[x + 8 * i] = (dl + 5 * par, rb, E + Lt)
    cov = set()
    W = []
    for wg in range(256):
        dl, rb, seq = T[wg]
        for b in seq:
            assert (dl, b) not in cov; cov.add((dl, b))
        w = dl | (rb << 4) | (len(seq) << 11)
        for k, b in enumerate(seq): w |= (b - rb) << (14 + 3 * k)
        W.append(w)
    assert len(cov) == 1280
    return W

def gen(**kw):
    o = dict(DEF); o.update(kw)
    a = A()
    PROF = o["prof"]
    nst = [1]
    def stamp():
        if not PROF: return
        a("s_memtime s[%d:%d]", 64 + 2 * nst[0], 65 + 2 * nst[0]); nst[0] += 1
        a("s_waitcnt lgkmcnt(0)")
    def pad_to(n):
        assert nst[0] <= n, nst[0]
        while PROF and nst[0] < n: stamp()
    NSTAMP = 8
    sX, sW1, sW2, sH, sO = 8, 12, 16, 20, 24
    sWv, sXcd, sI, sMT, sFT = 3, 4, 5, 6, 7
    sXoff, sWoff, sM0, sKb, sDelta, sIt, sT, sT2, sT3, sRd = 28, 29, 30, 31, 32, 33, 34, 35, 36, 37
    sC1 = 38
    sNonce = 56
    sRb, sNb, sDl, sG, sGm, sHcur, sCnt, sOst, sNx, sNw, sPw, sW = 58, 59, 92, 93, 94, 95, 96, 97, 98, 99, 100, 101
    sCur, sEnd, sBase, sO0, sO1, sO2, sInc, sGw, sKr = 0, 1, 82, 88, 89, 90, 91, 97, 96
    vL, vZ = 1, 2
    vT = 8
    vPl = 4
    vH, vFl, vRw, vCa = 0, 3, 6, 7
    vXd, vWd, vGd, vGr = 16, 20, 24, 56
    RING, A2, B2 = 8, 40, 56
    def w2reg(i): return ("a", 4 * i) if i < 32 else ("v", 64 + 4 * (i - 32))
    vHi, vXr, vWr, vC0, vONE, vHst = 3, 16, 20, 22, 24, 26
    vRr, vOst, vB2 = 6, 7, 28
    ACC, TMP, OUT = 32, 96, 112
    RD = 32
    NSL = o["nsl"]; REDSZ = 17408; SYNC = 9 * REDSZ
    SLO = [REDSZ, 2 * REDSZ, 3 * REDSZ, 0]
    SLOT = 32768; S = 3
    def srd(d, lo, nbytes):
        a("s_mov_b64 s[%d:%d], s[%d:%d]", d, d + 1, lo, lo + 1)
        a("s_mov_b32 s%d, %d", d + 2, nbytes); a("s_mov_b32 s%d, 0x20000", d + 3)
    def mod3(dst, src):
        a("s_mul_i32 s%d, s%d, 86", sT, src); a("s_lshr_b32 s%d, s%d, 8", sT, sT); a("s_mul_i32 s%d, s%d, 3", sT, sT); a("s_sub_u32 s%d, s%d, s%d", dst, src, sT)
    def krot(dst):
        if o["krot"]:
            if o["a2"] == 4: a("s_lshr_b32 s%d, s%d, 1", dst, sXcd); a("s_cmp_eq_u32 s%d, 3", dst); a("s_cselect_b32 s%d, 0, s%d", dst, dst)
            else: mod3(dst, sXcd)
        else: a("s_mov_b32 s%d, 0", dst)

    a("s_load_dwordx16 s[40:55], s[0:1], 0")
    a("s_cmp_ge_u32 s2, 256"); a("s_cbranch_scc1 L_end")
    if PROF:
        a("s_memrealtime s[60:61]"); a("s_memtime s[64:65]")
    a("v_lshrrev_b32 v%d, 6, v0", vT)
    a("v_and_b32 v%d, 63, v0", vL)
    a("v_readfirstlane_b32 s%d, v%d", sWv, vT)
    a("s_and_b32 s%d, s2, 7", sXcd); a("s_lshr_b32 s%d, s2, 3", sI)
    a("v_lshrrev_b32 v%d, 3, v%d", vT, vL)
    a("v_and_b32 v%d, 7, v%d", vT + 1, vL)
    a("v_lshrrev_b32 v%d, 1, v%d", vT + 2, vT)
    a("v_mov_b32 v%d, 0", vZ)
    a("s_and_b32 s%d, s%d, 3", sW, sWv)
    def jitter(lab, sh):
        if "drand" not in o["dbg"]: return
        a("s_memtime s[60:61]"); a("s_waitcnt lgkmcnt(0)"); a("s_lshr_b32 s60, s60, %d", sh); a("s_mul_i32 s61, s2, 7"); a("s_add_u32 s60, s60, s61"); a("s_add_u32 s60, s60, s3")
        a("s_and_b32 s60, s60, 15"); a("s_cmp_lg_u32 s60, 0"); a("s_cbranch_scc1 %s", lab); a("s_sleep 60"); a.label(lab)
    jitter("L_j0", 4)
    if o["rotx"] == 0: a("s_mul_i32 s%d, s%d, 10", sKb, sXcd); a("s_lshr_b32 s%d, s%d, 3", sKb, sKb)
    else:
        tab = {1: [0, 5, 2, 7, 5, 0, 7, 2], 2: [0, 5, 3, 8, 5, 0, 8, 3], 3: [0, 6, 2, 8, 5, 1, 7, 3]}[o["rotx"]]
        a("s_lshl_b32 s%d, s%d, 2", sKb, sXcd); a("s_lshr_b32 s%d, 0x%x, s%d", sKb, sum(v << (4 * i) for i, v in enumerate(tab)), sKb); a("s_and_b32 s%d, s%d, 15", sKb, sKb)
    a("s_mov_b32 s%d, %d", sX + 2, 2048 * 640 * 2); a("s_mov_b32 s%d, 0x20000", sX + 3)
    a("s_mov_b32 s%d, %d", sW1 + 2, 640 * 1536 * 2); a("s_mov_b32 s%d, 0x20000", sW1 + 3)
    a("s_cmp_ge_u32 s%d, 24", sI); a("s_cbranch_scc1 L_helper")
    if o["a1"] == 4:
        a("s_lshr_b32 s%d, s%d, 1", sMT, sXcd); a("s_lshl_b32 s%d, s%d, 2", sMT, sMT)
        a("s_and_b32 s%d, s%d, 3", sT, sI); a("s_add_u32 s%d, s%d, s%d", sMT, sMT, sT)
        a("s_and_b32 s%d, s%d, 1", sFT, sXcd); a("s_mul_i32 s%d, s%d, 6", sFT, sFT)
        a("s_lshr_b32 s%d, s%d, 2", sT2, sI); a("s_add_u32 s%d, s%d, s%d", sFT, sFT, sT2)
    else:
        a("s_lshl_b32 s%d, s%d, 1", sMT, sXcd); a("s_and_b32 s%d, s%d, 1", sT, sI); a("s_add_u32 s%d, s%d, s%d", sMT, sMT, sT)
        a("s_lshr_b32 s%d, s%d, 1", sT2, sI); a("s_mov_b32 s%d, s%d", sFT, sT2)
    a("s_cmp_lt_u32 s%d, 4", sWv); a("s_cbranch_scc1 L_c0")
    a.label("L_ldr")

    sTab = 83; sPol = 63
    HBYTES = 8 << 20
    def hbase(dst, rb, tmp):
        return ["s_lshr_b32 s%d, s%d, 4" % (tmp, rb), "s_lshr_b32 s%d, s%d, s%d" % (tmp, sPol, tmp), "s_and_b32 s%d, s%d, 8192" % (tmp, tmp),
                "s_and_b32 s%d, s%d, 63" % (dst, rb), "s_lshl_b32 s%d, s%d, 17" % (dst, dst), "s_or_b32 s%d, s%d, s%d" % (dst, dst, tmp)]
    def setpol(hi):
        a("s_bfe_u32 s%d, s%d, 0x40018", sPol, hi); a("s_mul_i32 s%d, s%d, 17", sPol, sPol); a("s_xor_b32 s%d, s%d, %d", sPol, sPol, 15 ^ o["polx"]); a("s_lshl_b32 s%d, s%d, 13", sPol, sPol)
    def hptr(d):
        a("s_sub_u32 s%d, 0, s54", d); a("s_and_b32 s%d, s%d, 0x1fffff", d, d); a("s_add_u32 s%d, s54, s%d", d, d); a("s_addc_u32 s%d, s55, 0", d + 1)
    def srdH():
        hptr(sH); a("s_mov_b32 s%d, %d", sH + 2, HBYTES); a("s_mov_b32 s%d, 0x20000", sH + 3)
    def tab_load(lab):
        a("s_getpc_b64 s[%d:%d]", sT, sT + 1)
        a.label(lab)
        a("s_add_u32 s%d, s%d, L_table-%s", sT, sT, lab); a("s_addc_u32 s%d, s%d, 0", sT + 1, sT + 1)
        a("s_lshl_b32 s%d, s2, 2", sTab)
        a("s_load_dword s%d, s[%d:%d], s%d", sTab, sT, sT + 1, sTab)
    def tile_assign():
        a("s_and_b32 s%d, s%d, 15", sDl, sTab); a("s_bfe_u32 s%d, s%d, 0x70004", sRb, sTab); a("s_bfe_u32 s%d, s%d, 0x3000b", sNb, sTab)
        a("s_lshr_b32 s%d, s%d, 14", sTab, sTab)
    def order_init():
        a("s_add_u32 s%d, s%d, s%d", sEnd, sRb, sNb)
        a("s_and_b32 s%d, s%d, 7", sCur, sTab); a("s_add_u32 s%d, s%d, s%d", sCur, sCur, sRb)
    order_next = ["s_lshr_b32 s%d, s%d, 3" % (sTab, sTab), "s_and_b32 s%d, s%d, 7" % (sCur, sTab), "s_add_u32 s%d, s%d, s%d" % (sCur, sCur, sRb), "s_bitcmp1_b32 s%d, 1" % sCur]
    log = []
    def vmcount(tag):
        idx = max(i for i, t in enumerate(log) if t == tag)
        return len(log) - 1 - idx
    def vmwait(tag): return "s_waitcnt vmcnt(%d)" % vmcount(tag)
    nload = "buffer_load_dwordx2 v[%d:%d], v%d, s[%d:%d], 0 offen sc1" % (vPl, vPl + 1, vZ, sO, sO + 3)
    def get_nonce(lab):
        a("s_mov_b32 s%d, 0", sIt)
        a.label(lab)
        a("v_readfirstlane_b32 s%d, v%d", sNonce, vPl); a("v_readfirstlane_b32 s%d, v%d", sNonce + 1, vPl + 1)
        a("s_add_u32 s%d, s%d, 1", sIt, sIt); a("s_nop 1")
        a("s_bitcmp1_b32 s%d, 30", sNonce + 1); a("s_cbranch_scc1 %s_ok", lab)
        a("s_cmp_gt_u32 s%d, %d", sIt, o["spin"]); a("s_cbranch_scc1 %s_ok", lab)
        a(nload); a("s_waitcnt vmcnt(0)"); a("s_branch %s", lab)
        a.label(lab + "_ok")

    def lsetup():
        a("v_lshlrev_b32 v%d, 1, v%d", vT + 3, vT + 2)
        a("v_xor_b32 v%d, v%d, v%d", vT + 3, vT + 1, vT + 3)
        a("v_mul_u32_u24 v%d, 1280, v%d", vGd, vT)
        a("v_lshl_add_u32 v%d, v%d, 4, v%d", vGd, vT + 3, vGd)
        for i in range(1, 4): a("v_add_u32 v%d, %d, v%d", vGd + i, i * (8 * 1280 - 1024), vGd)
        krot(sRd)
        a("s_mul_i32 s%d, s%d, 4352", sGm, sW); a("s_add_u32 s%d, s%d, %d", sGm, sGm, 5 * REDSZ)
        a("v_lshrrev_b32 v%d, 2, v%d", vT + 3, vL)
        a("v_lshlrev_b32 v%d, 7, v%d", vT + 3, vT + 3)
        a("v_bfe_u32 v%d, v%d, 3, 2", vT + 4, vL)
        a("v_lshl_add_u32 v%d, v%d, 5, v%d", vT + 3, vT + 4, vT + 3)
        a("v_and_b32 v%d, 3, v%d", vT + 4, vL)
        a("v_lshl_add_u32 v%d, v%d, 3, v%d", vT + 3, vT + 4, vT + 3)
        a("v_add_u32 v%d, s%d, v%d", vGr, sGm, vT + 3)
        for t in range(1, 4): a("v_xor_b32 v%d, %d, v%d", vGr + t, 32 * t, vGr)
        a("v_lshlrev_b32 v%d, 4, v%d", vH, vL)
        a("s_mul_i32 s%d, s%d, 3", sT3, sW); a("s_add_u32 s%d, s%d, s%d", sO0, sT3, sRd)
        a("s_add_u32 s%d, s%d, 1", sO1, sO0); a("s_cmp_eq_u32 s%d, 2", sRd); a("s_cselect_b32 s%d, s%d, s%d", sO1, sT3, sO1)
        a("s_add_u32 s%d, s%d, 1", sO2, sO1); a("s_cmp_eq_u32 s%d, 1", sRd); a("s_cselect_b32 s%d, s%d, s%d", sO2, sT3, sO2)
        for r in (sO0, sO1, sO2):
            a("s_and_b32 s%d, s%d, 14", sT, r); a("s_add_u32 s%d, s%d, s%d", r, r, sT); a("s_lshl_b32 s%d, s%d, 12", r, r)
        a("v_and_b32 v%d, 15, v%d", vT + 3, vL); a("v_lshrrev_b32 v%d, 4, v%d", vT + 4, vL)
        a("v_mul_u32_u24 v%d, 272, v%d", vRw, vT + 3)
        a("v_lshl_add_u32 v%d, v%d, 4, v%d", vRw, vT + 4, vRw)
        a("s_mul_i32 s%d, s%d, 4352", sT, sW); a("v_add_u32 v%d, s%d, v%d", vRw, sT, vRw)
        a("s_lshl_b32 s%d, s%d, 8", sT, sW); a("s_add_u32 s%d, s%d, %d", sT, sT, SYNC + 256)
        a("v_lshl_add_u32 v%d, v%d, 2, s%d", vCa, vL, sT)
        a("s_waitcnt lgkmcnt(0)")
        tile_assign()
        a("s_mul_i32 s%d, s%d, %d", sGw, sW, 384 * 1280); a("s_lshl_b32 s%d, s%d, 7", sT, sDl); a("s_add_u32 s%d, s%d, s%d", sGw, sGw, sT)
        a("s_mul_i32 s%d, s%d, %d", sT, sRd, 128 * 1280); a("s_add_u32 s%d, s%d, s%d", sG, sGw, sT)
        order_init()
    def lsetup2():
        setpol(sNonce + 1)
        a("s_mul_i32 s%d, s%d, 3", sT3, sW)
        a("s_and_b32 s%d, s%d, 0x78", sInc, sRb)
        for e in hbase(sBase, sInc, sT): a(e)
        a("s_sub_u32 s%d, s%d, 1", sInc, sEnd); a("s_and_b32 s%d, s%d, 0x78", sInc, sInc)
        for e in hbase(sT2, sInc, sT): a(e)
        a("v_mov_b32 v%d, s%d", vT + 3, sBase); a("v_mov_b32 v%d, s%d", vT + 4, sT2); a("v_cmp_lt_u32 vcc, 31, v%d", vL)
        a("v_bfe_u32 v%d, v%d, 3, 2", vFl, vL); a("v_min_u32 v%d, 2, v%d", vFl, vFl); a("v_add_u32 v%d, s%d, v%d", vFl, sT3, vFl)
        a("v_cndmask_b32 v%d, v%d, v%d, vcc", vT + 3, vT + 3, vT + 4)
        a("v_lshl_add_u32 v%d, v%d, 9, v%d", vFl, vFl, vT + 3); a("v_add_u32 v%d, 98304, v%d", vFl, vFl)
        for e in hbase(sBase, sCur, sT): a(e)
        a("s_add_u32 s%d, s%d, s%d", sHcur, sBase, sO0)
        a("s_mov_b32 s%d, 0", sInc); a("s_mov_b32 s%d, 0", sKr)
        a("s_lshl_b32 s%d, s%d, 9", sT, sT3); a("s_add_u32 s%d, s%d, s%d", sT, sT, sBase); a("s_add_u32 s%d, s%d, 114688", sT, sT)
        a("v_min_u32 v62, 5, v%d", vT); a("v_lshl_add_u32 v62, v62, 8, s%d", sT)
    sSa, sSb, sMb = sG, sGm, sC1
    a("s_add_u32 s%d, s%d, s%d", sRd, sT, sT2); a("s_and_b32 s%d, s%d, %d", sRd, sRd, 1 if o["swapx"] else 0)
    a("s_lshl2_add_u32 s%d, s%d, s%d", sXoff, sMT, sW); a("s_mul_i32 s%d, s%d, 320", sXoff, sXoff); a("s_add_u32 s%d, s%d, s%d", sXoff, sXoff, sKb)
    a("s_and_b32 s%d, s%d, 1", sT, sW); a("s_lshl1_add_u32 s%d, s%d, s%d", sT, sKb, sT); a("s_mul_i32 s%d, s%d, 768", sT, sT)
    a("s_lshr_b32 s%d, s%d, 1", sT2, sW); a("s_lshl1_add_u32 s%d, s%d, s%d", sT2, sFT, sT2); a("s_add_u32 s%d, s%d, s%d", sT, sT, sT2)
    a("s_movk_i32 s%d, 1280", sMT); a("s_movk_i32 s%d, 3072", sFT)
    a("s_cmp_eq_u32 s%d, 1", sRd)
    a("s_cselect_b32 s%d, s%d, s%d", sWoff, sXoff, sT); a("s_cselect_b32 s%d, s%d, s%d", sXoff, sT, sXoff)
    a("s_cselect_b32 s%d, s%d, s%d", sT, sFT, sMT); a("s_cselect_b32 s%d, s%d, s%d", sT2, sMT, sFT)
    a("s_cselect_b32 s%d, s%d, s%d", sT3, sW1 + 2, sX + 2); a("s_cselect_b32 s%d, s%d, s%d", sW1 + 2, sX + 2, sW1 + 2); a("s_mov_b32 s%d, s%d", sX + 2, sT3)
    a("s_lshl_b32 s%d, s%d, 7", sXoff, sXoff); a("s_lshl_b32 s%d, s%d, 7", sWoff, sWoff)
    a("s_lshl2_add_u32 s%d, s%d, s%d", sM0, sRd, sW); a("s_lshl_b32 s%d, s%d, 12", sM0, sM0); a("s_mov_b32 m0, s%d", sM0)
    def offs(v, pitch, sh):
        a("v_lshlrev_b32 v%d, s%d, v%d", vT + 3, sh, vT + 2); a("v_and_b32 v%d, 3, v%d", vT + 3, vT + 3); a("v_xor_b32 v%d, v%d, v%d", vT + 3, vT + 1, vT + 3)
        a("v_mul_u32_u24 v%d, s%d, v%d", v, pitch, vT); a("v_lshl_add_u32 v%d, v%d, 4, v%d", v, vT + 3, v)
        a("s_lshl_b32 s%d, s%d, 3", pitch, pitch); a("s_addk_i32 s%d, -1024", pitch)
        a("v_xor_b32 v%d, 64, v%d", v + 1, v); a("v_add_u32 v%d, s%d, v%d", v + 1, pitch, v + 1)
        a("s_lshl_b32 s%d, s%d, 1", pitch, pitch)
        a("v_add_u32 v%d, s%d, v%d", v + 2, pitch, v); a("v_add_u32 v%d, s%d, v%d", v + 3, pitch, v + 1)
    offs(vXd, sT, sRd)
    a("s_xor_b32 s%d, s%d, 1", sT3, sRd)
    offs(vWd, sT2, sT3)
    a("s_movk_i32 s%d, 128", sT); a("s_mov_b32 s%d, %d", sT2, 64 * 3072); a("s_mov_b32 s%d, -1", sIt)
    a("s_cmp_eq_u32 s%d, 1", sRd)
    a("s_cselect_b32 s%d, s%d, s%d", sMT, sT2, sT); a("s_cselect_b32 s%d, s%d, s%d", sFT, sT, sT2)
    sSa, sSb = sMT, sFT
    a("s_mul_i32 s%d, s%d, -9", sNx, sSa); a("s_mul_i32 s%d, s%d, -9", sNw, sSb)
    a("s_waitcnt lgkmcnt(0)")
    a("s_cselect_b64 s[%d:%d], s[42:43], s[40:41]", sX, sX + 1); a("s_cselect_b64 s[%d:%d], s[40:41], s[42:43]", sW1, sW1 + 1)
    def dma(i):
        if "nodma" in o["dbg"]: return "s_nop 0"
        if i < 4: return "buffer_load_dwordx4 v%d, s[%d:%d], s%d offen offset:%d lds" % (vXd + i, sX, sX + 3, sXoff, 1024 * i)
        return "buffer_load_dwordx4 v%d, s[%d:%d], s%d offen offset:%d lds" % (vWd + i - 4, sW1, sW1 + 3, sWoff, 1024 * (i - 4))
    if o["l1prio"]: a("s_setprio %d", o["l1prio"])
    stamp()
    def ldloop(lab, first, last_it):
        a.label(lab)
        thr = (not first) and o["lwait"] < 8
        for i in range(4):
            if thr: a("s_waitcnt vmcnt(%d)", o["lwait"] - 1)
            a(dma(i))
        a("s_xor_b32 m0, s%d, 16384", sM0)
        if first and o["mid"]:
            a("s_cmp_lt_i32 s%d, 0", sIt); a("s_cbranch_scc1 L_ldn"); a("s_waitcnt vmcnt(4)"); a("s_barrier"); a.label("L_ldn")
        a("s_add_u32 s%d, s%d, 1", sKb, sKb); a("s_cmp_eq_u32 s%d, 10", sKb)
        a("s_cselect_b32 s%d, s%d, s%d", sDelta, sNx, sSa); a("s_cselect_b32 s%d, s%d, s%d", sPw, sNw, sSb); a("s_cselect_b32 s%d, 0, s%d", sKb, sKb)
        for i in range(4, 8):
            if thr: a("s_waitcnt vmcnt(%d)", o["lwait"] - 1)
            a(dma(i))
        a("s_add_u32 s%d, s%d, s%d", sXoff, sXoff, sDelta); a("s_add_u32 s%d, s%d, s%d", sWoff, sWoff, sPw)
        a("s_add_u32 s%d, s%d, %d", sM0, sM0, SLOT); a("s_cmp_ge_u32 s%d, %d", sM0, S * SLOT)
        a("s_cselect_b32 s%d, %d, 0", sT, S * SLOT); a("s_sub_u32 s%d, s%d, s%d", sM0, sM0, sT); a("s_mov_b32 m0, s%d", sM0)
        a("s_add_u32 s%d, s%d, 1", sIt, sIt)
        if first and o["mid"]:
            a("s_cmp_lt_u32 s%d, %d", sIt, last_it - 1); a("s_cbranch_scc1 %s", lab)
            a("s_branch L_su")
        elif first:
            a("s_cbranch_scc1 %s", lab)
            a("s_cmp_eq_u32 s%d, %d", sIt, last_it); a("s_cbranch_scc1 L_su")
            a("s_waitcnt vmcnt(8)"); a("s_barrier")
            a("s_branch %s", lab)
        else:
            a("s_cmp_lg_u32 s%d, s%d", sIt, sNonce); a("s_cbranch_scc1 %sw", lab); a(nload)
            a.label(lab + "w")
            a("s_cmp_lt_u32 s%d, %d", sIt, last_it)
            a("s_waitcnt vmcnt(8)"); a("s_barrier")
            a("s_cbranch_scc1 %s", lab)
    ldloop("L_ld", True, o["sup"])
    a.label("L_c0")
    a("v_and_b32 v%d, 15, v%d", vT + 3, vL)
    a("v_lshlrev_b32 v%d, 1, v%d", vT + 5, vT + 3)
    a("s_bfe_u32 s%d, s%d, 0x10000", sT, sW); a("s_lshl1_add_u32 s%d, s%d, s%d", sT3, sFT, sT); a("s_lshl_b32 s%d, s%d, 7", sT3, sT3)
    a("s_movk_i32 s%d, %d", sO + 2, 1536 * 2); a("s_mov_b32 s%d, s%d", sO + 3, sX + 3)
    a("s_waitcnt lgkmcnt(0)")
    a("s_mov_b64 s[%d:%d], s[44:45]", sO, sO + 1)
    for f in range(4): a("buffer_load_ushort v%d, v%d, s[%d:%d], s%d offen offset:%d", TMP + 4 * f, vT + 5, sO, sO + 3, sT3, 32 * f)
    a("s_branch L_comp")
    a.L.append("@S")
    a.label("L_su")
    tab_load("L_t0")
    lsetup()
    srd(sO, 52, 256)
    a("s_cmp_eq_u32 s%d, 0", sW); a("s_cselect_b32 s%d, %d, -1", sNonce, o["np"])
    a("s_cmp_lt_u32 s5, 24"); a("s_cbranch_scc1 L_ld2w")
    a("s_barrier")
    a(nload)
    nst[0] = 1; stamp()
    a("s_branch L_lw")
    a.L.append("@T")
    ldloop("L_ld2", False, 9)
    a("s_branch L_lw")
    nst[0] = 1
    a.L.append("@H")
    a.label("L_helper")
    a("s_cmp_lt_u32 s%d, 4", sWv); a("s_cbranch_scc0 L_hl")
    a("v_mul_u32_u24 v%d, 1280, v%d", vXd, vL); a("v_mul_u32_u24 v%d, 3072, v%d", vWd, vL)
    sCl = sNx
    k0, k1 = o["pf"]
    a("s_bfe_u32 s%d, s%d, 0x20001", sM0, sI)
    a("s_and_b32 s%d, s%d, 1", sCl, sI); a("s_lshl_b32 s%d, s%d, 13", sCl, sCl)
    a("s_add_u32 s%d, s%d, %d", sKb, sKb, k0); a("s_cmp_ge_u32 s%d, 10", sKb); a("s_cselect_b32 s%d, 10, 0", sT); a("s_sub_u32 s%d, s%d, s%d", sKb, sKb, sT)
    a("s_lshr_b32 s%d, s%d, 1", sT, sXcd); a("s_lshl2_add_u32 s%d, s%d, s%d", sXoff, sT, sM0); a("s_mul_i32 s%d, s%d, %d", sXoff, sXoff, 128 * 1280)
    a("s_and_b32 s%d, s%d, 1", sT, sXcd); a("s_lshl2_add_u32 s%d, s%d, s%d", sWoff, sT, sM0); a("s_mul_i32 s%d, s%d, 384", sWoff, sWoff)
    def touch(v, srdn, off):
        a("v_add3_u32 v%d, s%d, v%d, %s", TMP + 1, sT, v, "0") if off == 0 else a("v_add_u32 v%d, %d, v%d", TMP + 1, off, TMP + 1)
        a("v_and_b32 v%d, 8192, v%d", TMP + 2, TMP + 1)
        a("v_cmpx_eq_u32 vcc, s%d, v%d", sCl, TMP + 2)
        a("buffer_load_dword v%d, v%d, s[%d:%d], 0 offen", TMP, TMP + 1, srdn, srdn + 3)
        a("s_mov_b64 exec, -1")
    def wstep(kb):
        a("s_mul_i32 s%d, s%d, %d", sT, kb, 64 * 3072); a("s_add_u32 s%d, s%d, s%d", sT, sT, sWoff)
        for q in range(3): touch(vWd, sW1, 128 if q else 0)
    def xstep(kb):
        a("s_lshl_b32 s%d, s%d, 7", sT, kb); a("s_add_u32 s%d, s%d, s%d", sT, sT, sXoff)
        for q in range(2): touch(vXd, sX, 64 * 1280 if q else 0)
    def knext(d, sr): a("s_add_u32 s%d, s%d, 1", d, sr); a("s_cmp_eq_u32 s%d, 10", d); a("s_cselect_b32 s%d, 0, s%d", d, d)
    flip = lambda: a("s_xor_b32 s%d, s%d, 8192", sCl, sCl)
    a("s_mov_b32 s%d, %d", sIt, k0)
    a("s_waitcnt lgkmcnt(0)")
    a("s_mov_b64 s[%d:%d], s[40:41]", sX, sX + 1); a("s_mov_b64 s[%d:%d], s[42:43]", sW1, sW1 + 1)
    a("s_cmp_ge_u32 s%d, 1", sWv); a("s_cbranch_scc1 L_pfe")
    if o["dbl"]:
        assert (k1 - k0) % 2 == 1
        a("s_mov_b32 s%d, s%d", sRd, sKb); a("s_sub_u32 s%d, s%d, 1", sIt, sIt)
        a("s_branch L_pfm")
        a.label("L_pf")
        wstep(sKb); knext(sRd, sKb)
        a.label("L_pfm")
        wstep(sRd); flip()
        a("s_cmp_eq_u32 s%d, s%d", sRd, sKb); a("s_cbranch_scc1 L_pfx")
        xstep(sKb)
        a.label("L_pfx")
        xstep(sRd); knext(sKb, sRd)
        a("s_add_u32 s%d, s%d, 2", sIt, sIt)
    else:
        a.label("L_pf")
        wstep(sKb); xstep(sKb); flip(); knext(sKb, sKb)
        a("s_add_u32 s%d, s%d, 1", sIt, sIt)
    a("s_cmp_lt_u32 s%d, %d", sIt, k1); a("s_cbranch_scc1 L_pf")
    a.label("L_pfe")
    stamp()
    a("s_branch L_hc2")
    a.L.append("@G")
    a.label("L_hl")
    if o["codepf"]:
        a("s_getpc_b64 s[%d:%d]", sT, sT + 1)
        a("s_sub_u32 s%d, s%d, L_hl-%s_kernel+4", sT, sT, NAME); a("s_subb_u32 s%d, s%d, 0", sT + 1, sT + 1)
        a("v_and_b32 v%d, 255, v0", vT + 3)
        a("v_lshlrev_b32 v%d, 7, v%d", vT + 3, vT + 3)
        a("v_cmp_gt_u32 vcc, L_codeend-%s_kernel, v%d", NAME, vT + 3)
        a("s_and_saveexec_b64 s[%d:%d], vcc", sC1, sC1 + 1)
        a("s_cbranch_execz L_nocode")
        a("s_cmp_lg_u32 s%d, 24", sI); a("s_cbranch_scc1 L_nocode")
        a("global_load_dword v%d, v%d, s[%d:%d]", A2, vT + 3, sT, sT + 1)
        a.label("L_nocode")
        a("s_mov_b64 exec, -1")
    a("s_branch L_hl2")
    a.L.append("@P")
    a.label("L_hl2")
    a("s_memrealtime s[%d:%d]", sNonce, sNonce + 1)
    a("v_lshlrev_b32 v%d, 2, v%d", vT + 4, vL)
    a("v_add_u32 v%d, %d, v%d", vT + 4, SYNC, vT + 4)
    for r in range(5): a("ds_write_b32 v%d, v%d offset:%d", vT + 4, vZ, 256 * r)
    a("s_waitcnt lgkmcnt(0)")
    a("s_cmp_lg_u32 s2, 255"); a("s_cbranch_scc1 L_nolead")
    if "dlead" in o["dbg"]:
        for _ in range(4): a("s_sleep 100")
    hptr(8)
    a("s_lshl_b32 s%d, s%d, 2", sT, sW); a("s_add_u32 s%d, s%d, %d", sT, sT, SYNC + 1280); a("v_mov_b32 v%d, s%d", vT + 3, sT)
    a("ds_write_b32 v%d, v%d", vT + 3, vZ)
    a("s_mov_b64 s[10:11], 0")
    a("s_cmp_lg_u32 s%d, 0", sW); a("s_cbranch_scc1 L_noclr"); a("s_atomic_swap_x2 s[10:11], s[52:53], 0"); a.label("L_noclr")
    a("s_lshl_b32 s%d, s%d, 21", sT, sW); a("s_add_u32 s%d, s%d, %d", sT, sT, 98304 + 7168); a("s_add_u32 s%d, s%d, 8192", sT2, sT)
    a("s_load_dword s12, s[8:9], s%d glc", sT); a("s_load_dword s13, s[8:9], s%d glc", sT2)
    a("s_mov_b32 s14, -1"); a("s_mov_b32 s15, -1"); a("s_mov_b32 s%d, %d", sIt, o["pr"])
    a("s_waitcnt lgkmcnt(0)")
    a.label("L_pr")
    for q in range(2):
        a("s_memtime s[16:17]"); a("s_load_dword s12, s[8:9], s%d glc", sT + q); a("s_waitcnt lgkmcnt(0)")
        a("s_memtime s[18:19]"); a("s_waitcnt lgkmcnt(0)"); a("s_sub_u32 s13, s18, s16"); a("s_min_u32 s%d, s%d, s13", 14 + q, 14 + q)
    a("s_sub_u32 s%d, s%d, 1", sIt, sIt); a("s_cmp_lg_u32 s%d, 0", sIt); a("s_cbranch_scc1 L_pr")
    a("s_cmp_lt_u32 s15, s14"); a("s_cselect_b32 s%d, 2, 1", sT); a("v_mov_b32 v%d, s%d", vT + 4, sT)
    a("ds_write_b32 v%d, v%d", vT + 3, vT + 4)
    a("s_cmp_lg_u32 s%d, 0", sW); a("s_cbranch_scc1 L_nolead")
    a("v_and_b32 v%d, 3, v%d", vT + 4, vL); a("v_lshl_add_u32 v%d, v%d, 2, v%d", vT + 3, vT + 4, vT + 3)
    a.label("L_pc")
    a("ds_read_b32 v%d, v%d", vT + 4, vT + 3)
    a("s_add_u32 s%d, s%d, 1", sIt, sIt); a("s_cmp_gt_u32 s%d, 1000", sIt)
    a("s_waitcnt lgkmcnt(0)")
    a("s_cbranch_scc1 L_pc_x")
    a("v_cmp_eq_u32 vcc, 0, v%d", vT + 4)
    a("s_cbranch_vccnz L_pc")
    a.label("L_pc_x")
    a("v_cmp_eq_u32 vcc, 2, v%d", vT + 4)
    a("s_and_b32 s%d, s%d, 0xffffff", sNonce + 1, sNonce + 1); a("s_bitset1_b32 s%d, 30", sNonce + 1); a("s_nop 1")
    a("s_getreg_b32 s%d, hwreg(HW_REG_XCC_ID)", sT2); a("s_bitcmp1_b32 s%d, 1", sT2); a("s_cselect_b32 s%d, 0, 3", sT2)
    a("s_and_b32 s%d, vcc_lo, 15", sT); a("s_xor_b32 s%d, s%d, s%d", sT, sT, sT2); a("s_lshl_b32 s%d, s%d, 24", sT, sT); a("s_or_b32 s%d, s%d, s%d", sNonce + 1, sNonce + 1, sT)
    a("s_atomic_swap_x2 s[%d:%d], s[52:53], 0", sNonce, sNonce + 1)
    a.label("L_nolead")
    a("s_branch L_su")

    a.L.append("@C")
    nst[0] = 1
    a.label("L_comp")
    FR = 0
    tab_load("L_t1")
    vXr, vWr = 16, 18
    for f in range(4):
        for r in range(1, 4): a("v_mov_b32 v%d, 0", TMP + 4 * f + r)
    for r in range(1, 4): a("v_mov_b32 v%d, 0", vB2 + r)
    a("v_lshrrev_b32 v%d, 4, v%d", vHi, vL)
    a("v_mov_b32 v%d, 0x3f80", vT + 5)
    a("v_cmp_eq_u32 vcc, 0, v%d", vHi)
    a("s_lshr_b32 s%d, s%d, 1", sT, sW); a("s_lshl_b32 s%d, s%d, 6", sT, sT)
    a("v_add_u32 v%d, s%d, v%d", vT + 3, sT, vT + 3)
    a("v_lshlrev_b32 v%d, 7, v%d", vT + 3, vT + 3)
    a("v_bfe_u32 v%d, v%d, 1, 3", vT + 4, vL)
    a("v_xor_b32 v%d, v%d, v%d", vT + 4, vT + 4, vHi)
    a("v_lshl_add_u32 v%d, v%d, 4, v%d", vXr, vT + 4, vT + 3)
    a("v_xor_b32 v%d, 64, v%d", vXr + 1, vXr)
    a("v_bfe_u32 v%d, v%d, 2, 2", vT + 3, vL)
    a("v_lshl_add_u32 v%d, v%d, 3, v%d", vT + 3, vHi, vT + 3)
    a("v_lshlrev_b32 v%d, 7, v%d", vT + 3, vT + 3)
    a("v_bfe_u32 v%d, v%d, 3, 2", vT + 4, vL)
    a("v_lshl_add_u32 v%d, v%d, 5, v%d", vT + 3, vT + 4, vT + 3)
    a("v_and_b32 v%d, 3, v%d", vT + 4, vL)
    a("v_lshl_add_u32 v%d, v%d, 3, v%d", vT + 3, vT + 4, vT + 3)
    a("s_and_b32 s%d, s%d, 1", sT, sW); a("s_lshl_b32 s%d, s%d, 13", sT, sT); a("s_add_u32 s%d, s%d, 16384", sT, sT)
    a("v_add_u32 v%d, s%d, v%d", vWr, sT, vT + 3)
    for f in range(1, 4): a("v_xor_b32 v%d, %d, v%d", vWr + f, 32 * f, vWr)
    a("v_lshlrev_b32 v%d, 2, v%d", vT + 4, vL)
    a("v_add_u32 v%d, %d, v%d", vT + 4, SYNC, vT + 4)
    for r in range(5): a("ds_write_b32 v%d, v%d offset:%d", vT + 4, vZ, 256 * r)
    a("v_cndmask_b32 v%d, 0, v%d, vcc", vB2, vT + 5)
    a("v_mov_b32 v%d, 0x%x", vC0, f2u(C0)); a("v_mov_b32 v%d, v%d", vC0 + 1, vC0)
    a("v_mov_b32 v%d, 1.0", vONE); a("v_mov_b32 v%d, 1.0", vONE + 1)
    a("s_mov_b32 s%d, 0x%x", sC1, f2u(C1)); a("s_mov_b32 s%d, s%d", sC1 + 1, sC1)
    srdH()
    a("s_and_b32 s%d, s%d, 7", sG, sMT); a("s_lshl_b32 s%d, s%d, 20", sG, sG)
    a("s_and_b32 s%d, s%d, 2", sT, sW); a("s_lshl_b32 s%d, s%d, 18", sT, sT); a("s_add_u32 s%d, s%d, s%d", sXoff, sG, sT)
    a("s_lshl_b32 s%d, s%d, 1", sT, sT3); a("s_add_u32 s%d, s%d, s%d", sWoff, sXoff, sT); a("s_add_u32 s%d, s%d, 114688", sWoff, sWoff)
    a("s_lshl_b32 s%d, s%d, 4", sT3, sT3); a("s_and_b32 s%d, s%d, 0xe000", sT, sT3); a("s_add_u32 s%d, s%d, s%d", sT3, sT3, sT); a("s_add_u32 s%d, s%d, s%d", sXoff, sXoff, sT3)
    a("s_lshl_b32 s%d, s%d, 9", sT, sFT); a("s_add_u32 s%d, s%d, s%d", sG, sG, sT); a("s_add_u32 s%d, s%d, 98304", sG, sG)
    a("v_lshlrev_b32 v%d, 4, v%d", vHst, vL)
    a("v_mov_b32 v%d, 1", vT); a("v_mov_b32 v%d, %d", vT + 1, SYNC); a("v_lshlrev_b32 v%d, 3, v%d", vT + 2, vL)
    a("s_mov_b32 s%d, 0", sRd); a("s_mov_b32 s%d, 0", sIt)
    a("s_mov_b32 s%d, %d", sPw, (-(S - 1) * SLOT) & 0xffffffff)
    if o["prio"]: a("s_setprio %d", o["prio"])
    a("s_waitcnt vmcnt(0) lgkmcnt(0)")
    for m in range(4):
        for f in range(4):
            r = ACC + (m * 4 + f) * 4
            a("v_mfma_f32_16x16x32_bf16 v[%d:%d], v[%d:%d], v[%d:%d], 0", r, r + 3, TMP + 4 * f, TMP + 4 * f + 3, vB2, vB2 + 3)
    stamp()
    a("s_barrier")
    stamp()
    def reads(s):
        b = 32 * s
        w = lambda f, u: "ds_read_b64_tr_b16 a[%d:%d], v%d offset:%d" % (b + 4 * f + 2 * u, b + 4 * f + 2 * u + 1, vWr + f, s * 4096 + u * 512)
        x = lambda m: "ds_read_b128 a[%d:%d], v%d offset:%d" % (b + 16 + 4 * m, b + 19 + 4 * m, vXr + s, m * 2048)
        return [w(0, 0), w(0, 1), x(0), x(1), x(2), x(3), w(1, 0), w(1, 1), w(2, 0), w(2, 1), w(3, 0), w(3, 1)]
    def mf(buf, f, m):
        b = 32 * buf; r = ACC + (m * 4 + f) * 4
        return "v_mfma_f32_16x16x32_bf16 v[%d:%d], a[%d:%d], a[%d:%d], v[%d:%d]" % (r, r + 3, b + 4 * f, b + 4 * f + 3, b + 16 + 4 * m, b + 19 + 4 * m, r, r + 3)
    def order(): return [(f, m) for f in range(4) for m in (range(4) if (f % 2 == 0 or not o["snake"]) else range(3, -1, -1))]
    upd = lambda r: "v_add_u32 v%d, s%d, v%d" % (r, sDelta, r)
    slot = ["s_add_u32 s%d, s%d, %d" % (sRd, sRd, SLOT), "s_cmp_ge_u32 s%d, %d" % (sRd, S * SLOT), "s_cselect_b32 s%d, s%d, %d" % (sDelta, sPw, SLOT),
            "s_cselect_b32 s%d, 0, s%d" % (sRd, sRd), upd(vXr), "s_add_u32 s%d, s%d, 1" % (sIt, sIt), "s_cmp_lt_u32 s%d, 10" % sIt]
    for r in reads(0): a(r)
    a("@PRE")
    a("s_branch L_p1m")
    a(".p2align 3")
    a("s_nop 0")
    a.label("L_p1b")
    a("s_barrier")
    a.label("L_p1")
    BP = o["bp"]
    O = order()
    def place(R, gaps, fl):
        d = {g: [] for g in gaps}; i = 0
        for g in gaps:
            if i < len(R): d[g].append(R[i]); i += 1
            if fl and i < len(R) and "tr_b16" in d[g][0] and "tr_b16" in R[i]: d[g].append(R[i]); i += 1
        assert i == len(R)
        return d
    u1 = [upd(vXr + 1), upd(vWr), upd(vWr + 1), upd(vWr + 2), upd(vWr + 3)]
    P0 = place(reads(0), list(range(BP, 16)), o["fl"])
    P1 = place(reads(1), list(range(16)), o["fl"])
    def fill(P, gaps, items):
        items = list(items)
        for g in gaps:
            while items and len(P.setdefault(g, [])) < 2 - (1 if any("b128" in e for e in P[g]) else 0) and not any(q > g and any("ds_read" in e for e in P[q]) for q in P):
                P[g].append(items.pop(0))
        return items
    left = fill(P0, range(BP, 15), slot)
    nleft = len(left)
    pre = slot[:len(slot) - nleft]
    for n in range(BP, 16):
        f, m = O[n]
        a(mf(1, f, m))
        for e in P0.get(n, []): a(e)
    a.label("L_p1m")
    rest = fill(P1, range(16), left[:0] + u1)
    need = {0: 6, 4: 8, 8: 10, 12: 12}
    if o["nw"] == 3: need = {0: 8, 8: 10, 12: 12}
    if o["nw"] == 2: need = {0: 10, 12: 12}
    issued = 0
    for n in range(16):
        f, m = O[n]
        if n in need: a("s_waitcnt lgkmcnt(%d)", min(15, 12 - need[n] + issued))
        a(mf(0, f, m))
        for e in P1.get(n, []):
            a(e); issued += "ds_read" in e
    rest = rest + left
    for n in range(BP):
        f, m = O[n]
        if n in (0, 4): a("s_waitcnt lgkmcnt(%d)", 6 if n == 0 else 4)
        a(mf(1, f, m))
        for _ in range(2):
            if rest and n < BP - 1: a(rest.pop(0))
    for e in rest: a(e)
    a("s_waitcnt lgkmcnt(0)")
    a("s_cbranch_scc1 L_p1b")
    for n, (f, m) in enumerate(sorted(O[BP:], key=lambda t: (t[1], t[0]))):
        a(mf(1, f, m))
        if n == 0: a("ds_read_b64 v[%d:%d], v%d offset:8", vPl, vPl + 1, vT + 1)
        if n == 8: a("s_waitcnt lgkmcnt(0)"); a("v_readfirstlane_b32 s%d, v%d", sNonce + 1, vPl + 1)
        if n == 9: a("s_lshr_b32 s%d, s%d, 1", sT, sMT)
        if n == 10: setpol(sNonce + 1)
        if n == 12: a("s_lshr_b32 s%d, s%d, s%d", sT, sPol, sT); a("s_and_b32 s%d, s%d, 8192", sT, sT)
        if n == 13: a("s_add_u32 s%d, s%d, s%d", sXoff, sXoff, sT); a("s_add_u32 s%d, s%d, s%d", sWoff, sWoff, sT)
        if n == 14: a("s_add_u32 s%d, s%d, s%d", sG, sG, sT)
    k0_ = a.L.index("    @PRE"); a.L[k0_:k0_ + 1] = ["    " + e for e in pre]
    jitter("L_j1", 5)
    log[:] = []
    assert BP == 0
    stamp()
    def gelu_list(acc, tmp, outr, n):
        L = []; P = range(n // 2)
        pk = lambda op, d, x, y: "%s v[%d:%d], v[%d:%d], v[%d:%d]" % (op, d, d + 1, x, x + 1, y, y + 1)
        for p in P: L.append(pk("v_pk_mul_f32", tmp + 2 * p, acc + 2 * p, acc + 2 * p))
        for p in P: L.append("v_pk_fma_f32 v[%d:%d], v[%d:%d], s[%d:%d], v[%d:%d]" % (tmp + 2 * p, tmp + 2 * p + 1, tmp + 2 * p, tmp + 2 * p + 1, sC1, sC1 + 1, vC0, vC0 + 1))
        for p in P: L.append(pk("v_pk_mul_f32", tmp + 2 * p, tmp + 2 * p, acc + 2 * p))
        for i in range(n): L.append("v_exp_f32 v%d, v%d" % (tmp + i, tmp + i))
        for p in P: L.append(pk("v_pk_add_f32", tmp + 2 * p, tmp + 2 * p, vONE))
        for i in range(n): L.append("v_rcp_f32 v%d, v%d" % (tmp + i, tmp + i))
        for p in P: L.append(pk("v_pk_mul_f32", tmp + 2 * p, tmp + 2 * p, acc + 2 * p))
        for p in P: L.append("v_cvt_pk_bf16_f32 v%d, v%d, v%d" % (outr + p, tmp + 2 * p, tmp + 2 * p + 1))
        return L
    def publish(part):
        a(vmwait("st%d" % part))
        a("s_mov_b64 exec, 1")
        a("ds_add_rtn_u32 v%d, v%d, v%d offset:%d", vT + 5, vT + 1, vT, 4 * part)
        a("s_waitcnt lgkmcnt(0)")
        a("v_readfirstlane_b32 s%d, v%d", sT2, vT + 5)
        a("s_mov_b64 exec, 0xffff")
        a("s_nop 0")
        a("s_cmp_lg_u32 s%d, 3", sT2); a("s_cbranch_scc1 L_nopub%d", part)
        if o["spub"]: a("s_atomic_swap_x2 s[%d:%d], s[%d:%d], %d", sNonce, sNonce + 1, 80 if not PROF else 84, 81 if not PROF else 85, 256 * part)
        else: a("buffer_store_dwordx2 v[%d:%d], v%d, s[%d:%d], s%d offen offset:%d sc1", vPl, vPl + 1, vT + 2, sH, sH + 3, sG, 256 * part)
        a.label("L_nopub%d" % part)
        a("s_mov_b64 exec, -1")
    a(".p2align 3")
    for hh in range(8):
        ob = OUT + 4 * (hh & 3)
        for e in gelu_list(ACC + 8 * hh, TMP, ob, 8): a(e)
        mt = hh >> 2
        if "nohst" in o["dbg"]: a("s_mov_b64 exec, 1")
        a("buffer_store_dwordx4 v[%d:%d], v%d, s[%d:%d], s%d offen offset:%d %s", ob, ob + 3, vHst, sH, sH + 3, sXoff, (hh & 1) * 1024, o["hst"])
        if hh & 1: a("s_add_u32 s%d, s%d, %d", sXoff, sXoff, 1 << 17)
        if "nohst" in o["dbg"]: a("s_mov_b64 exec, -1")
        log.append("st%d" % mt if hh != 1 else "s1")
        if hh + 1 == o["a1at"]:
            a(vmwait("s1"))
            a("s_mov_b64 exec, 0xffff")
            a("buffer_store_dwordx2 v[%d:%d], v%d, s[%d:%d], s%d offen sc1", vPl, vPl + 1, vT + 2, sH, sH + 3, sWoff); log.append("f1")
            a("s_mov_b64 exec, -1")
            a(".p2align 3")
        if hh + 1 == o["puba"]:
            if hh == 7: stamp(); a("s_setprio 0")
            jitter("L_j3", 6)
            publish(0)
            jitter("L_j4", 4)
            if hh == 7: stamp()
            else: a(".p2align 3")
    if o["puba"] < 8: stamp(); a("s_setprio 0"); stamp()
    if o["puba"] == 8 and not o["spub"]:
        a("s_cmp_lg_u32 s%d, 3", sT2); a("s_cbranch_scc1 L_pw0"); a("s_waitcnt vmcnt(1)"); a("s_branch L_pw1"); a.label("L_pw0"); a("s_waitcnt vmcnt(0)"); a.label("L_pw1")
        log.extend(["x"] * 60)
    publish(1)
    stamp()
    a.label("L_red")
    a("s_waitcnt lgkmcnt(0)")
    tile_assign(); order_init()
    srd(sO, 48, 640 * 2)
    a("v_and_b32 v%d, 15, v%d", vT + 3, vL); a("v_lshrrev_b32 v%d, 4, v%d", vT + 4, vL)
    a("v_lshlrev_b32 v%d, 3, v%d", vT + 5, vT + 3); a("s_lshl_b32 s%d, s%d, 7", sDl, sDl)
    a("buffer_load_dwordx2 v[%d:%d], v%d, s[%d:%d], s%d offen", vB2 + 2, vB2 + 3, vT + 5, sO, sO + 3, sDl)
    a("s_lshl_b32 s%d, s%d, 2", sT, sW); a("v_add_u32 v%d, s%d, v%d", vT + 4, sT, vT + 4)
    a("v_mul_u32_u24 v%d, 272, v%d", vRr, vT + 4)
    a("v_lshl_add_u32 v%d, v%d, 4, v%d", vRr, vT + 3, vRr)
    a("v_mul_u32_u24 v%d, 1280, v%d", vOst, vT + 4)
    a("v_add3_u32 v%d, v%d, v%d, s%d", vOst, vOst, vT + 5, sDl)
    a("v_and_b32 v%d, 3, v%d", vT + 2, vL); a("v_lshlrev_b32 v%d, 8, v%d", vT + 2, vT + 2); a("v_lshl_add_u32 v%d, v%d, 2, v%d", vT + 2, vL, vT + 2)
    a("v_add_u32 v%d, %d, v%d", vT + 2, SYNC + 256, vT + 2)
    a("s_mov_b32 s%d, %d", sCnt, REDSZ); a("s_mul_i32 s%d, s%d, %d", sNb, sNb, REDSZ); a("s_mov_b32 s%d, 0", sIt)
    a("s_waitcnt vmcnt(0)")
    srd(sO, 50, 2048 * 640 * 2)
    a("v_lshlrev_b32 v%d, 16, v%d", vB2, vB2 + 2); a("v_and_b32 v%d, 0xffff0000, v%d", vB2 + 1, vB2 + 2)
    a("v_lshlrev_b32 v%d, 16, v%d", vB2 + 2, vB2 + 3); a("v_and_b32 v%d, 0xffff0000, v%d", vB2 + 3, vB2 + 3)
    if o["rprio"]: a("s_setprio %d", o["rprio"])
    a.label("L_rw")
    a("ds_read_b32 v%d, v%d", vT + 3, vT + 2)
    if o["spec"]:
        for p in range(4): a("ds_read_b128 v[%d:%d], v%d offset:%d", RD + 4 * p, RD + 4 * p + 3, vRr, 4352 * p)
    a("s_add_u32 s%d, s%d, 1", sIt, sIt); a("s_cmp_gt_u32 s%d, %d", sIt, o["spin"] * 8)
    a("s_waitcnt lgkmcnt(%d)", 4 if o["spec"] else 0)
    a("s_cbranch_scc1 L_rgo")
    a("v_cmp_gt_u32 vcc, s%d, v%d", sCnt, vT + 3)
    a("s_cbranch_vccz L_rgo")
    if o["rlast"]: a("s_cmp_eq_u32 s%d, s%d", sCnt, sNb); a("s_cbranch_scc1 L_rw")
    if o["rsleep"]: a("s_sleep %d", o["rsleep"])
    a("s_branch L_rw")
    a.label("L_rgo")
    jitter("L_j6", 4)
    if not o["spec"]:
        for p in range(4): a("ds_read_b128 v[%d:%d], v%d offset:%d", RD + 4 * p, RD + 4 * p + 3, vRr, 4352 * p)
    a("v_add_u32 v%d, %d, v%d", vRr, REDSZ, vRr)
    a("s_mul_i32 s%d, s%d, %d", sOst, sCur, 16 * 1280)
    for e in order_next: a(e)
    a("s_add_u32 s%d, s%d, %d", sCnt, sCnt, REDSZ)
    def pk(d, x, y):
        a("v_add_f32 v%d, v%d, v%d", d, x, y); a("v_add_f32 v%d, v%d, v%d", d + 1, x + 1, y + 1)
    a("s_waitcnt lgkmcnt(3)")
    pk(RD, RD, vB2); pk(RD + 2, RD + 2, vB2 + 2)
    a("s_waitcnt lgkmcnt(1)")
    pk(RD + 4, RD + 4, RD + 8); pk(RD + 6, RD + 6, RD + 10)
    a("s_waitcnt lgkmcnt(0)")
    pk(RD, RD, RD + 12); pk(RD + 2, RD + 2, RD + 14)
    pk(RD, RD, RD + 4); pk(RD + 2, RD + 2, RD + 6)
    a("v_cvt_pk_bf16_f32 v%d, v%d, v%d", vPl, RD, RD + 1); a("v_cvt_pk_bf16_f32 v%d, v%d, v%d", vPl + 1, RD + 2, RD + 3)
    a("s_cmp_le_u32 s%d, s%d", sCnt, sNb)
    a("buffer_store_dwordx2 v[%d:%d], v%d, s[%d:%d], s%d offen %s", vPl, vPl + 1, vOst, sO, sO + 3, sOst, o["ost"])
    a("s_cbranch_scc1 L_rw")
    pad_to(NSTAMP)
    if PROF: a("s_branch L_fin")
    else: a("s_endpgm")

    a.L.append("@R")
    nst[0] = 2
    a.label("L_hc2")
    tab_load("L_t2")
    if o["w2pf"]:
        srd(sW2, 46, 1536 * 640 * 2)
        a("s_cmp_ge_u32 s%d, 1", sWv); a("s_cbranch_scc1 L_pf2e")
        a("s_and_b32 s%d, s%d, 1", sWoff, sXcd); a("s_mul_i32 s%d, s%d, 640", sWoff, sWoff)
        a("s_mul_i32 s%d, s%d, %d", sT, sM0, 384 * 1280); a("s_add_u32 s%d, s%d, s%d", sWoff, sWoff, sT)
        krot(sRd); a("s_lshl_b32 s%d, s%d, 1", sRd, sRd)
        NKK = len(o["kks"]); MV = o["mv"]
        lst = list(o["kks"]) + list(o["kks"])[NKK - MV:]
        assert len(lst) <= 8
        a("s_mov_b32 s%d, 0x%x", sKb, sum(v << (4 * i) for i, v in enumerate(lst))); a("s_mov_b32 s%d, 0", sIt)
        a("s_cmp_eq_u32 s%d, 0", sM0); a("s_cselect_b32 s%d, %d, %d", sXoff, NKK + MV, NKK)
        a("s_cmp_eq_u32 s%d, 3", sM0); a("s_cselect_b32 s%d, %d, s%d", sXoff, NKK - MV, sXoff)
        a.label("L_pf2")
        a("s_and_b32 s%d, s%d, 15", sT, sKb); a("s_lshr_b32 s%d, s%d, 4", sKb, sKb)
        a("s_add_u32 s%d, s%d, s%d", sT, sT, sRd); a("s_cmp_ge_u32 s%d, 6", sT); a("s_cselect_b32 s%d, 6, 0", sT3); a("s_sub_u32 s%d, s%d, s%d", sT, sT, sT3)
        a("s_mul_i32 s%d, s%d, %d", sT, sT, 64 * 1280); a("s_add_u32 s%d, s%d, s%d", sT, sT, sWoff)
        for q in range(5): touch(vXd, sW2, 128 if q else 0)
        a("s_add_u32 s%d, s%d, 1", sIt, sIt)
        if o["tog2"] == 1: flip()
        else: a("s_lshl_b32 s%d, s%d, 13", sT, sIt); a("s_and_b32 s%d, s%d, 8192", sT, sT); a("s_xor_b32 s%d, s%d, s%d", sCl, sCl, sT)
        a("s_cmp_eq_u32 s%d, %d", sIt, NKK); a("s_cselect_b32 s%d, %d, 0", sT, 3 * 384 * 1280); a("s_add_u32 s%d, s%d, s%d", sWoff, sWoff, sT)
        a("s_cmp_lt_u32 s%d, s%d", sIt, sXoff); a("s_cbranch_scc1 L_pf2")
        a.label("L_pf2e")
    a("s_barrier")
    stamp()
    if PROF: a("s_waitcnt vmcnt(0)")
    pad_to(7)
    a("s_branch L_red")

    a.L.append("@W")
    nst[0] = 2
    a.label("L_lw")
    def gissue(g):
        a("s_add_u32 m0, s%d, %d", sGm, SLO[g % NSL]); a("s_nop 0")
        for i in range(4):
            a("buffer_load_dwordx4 v%d, s[%d:%d], s%d offen offset:%d lds", vGd + i, sW2, sW2 + 3, sG, 1024 * i); log.append("g%d" % g)
        a("s_add_u32 s%d, s%d, %d", sG, sG, 32 * 1280 if "w2same" not in o["dbg"] else (32 * 1280 if g % 2 == 0 else (-32 * 1280) & 0xffffffff))
        if g in (3, 7):
            a("s_cmp_eq_u32 s%d, %d", sRd, 2 if g == 3 else 1); a("s_cselect_b32 s%d, s%d, s%d", sG, sGw, sG)
    def greads(g):
        L = []
        for t in range(4):
            k, r = w2reg(g * 4 + t)
            for u in range(2): L.append("ds_read_b64_tr_b16 %s[%d:%d], v%d offset:%d" % (k, r + 2 * u, r + 2 * u + 1, vGr + t, SLO[g % NSL] + u * 2048))
        return L
    log[:] = ["p1"]
    srd(sW2, 46, 1536 * 640 * 2)
    gissue(0)
    a("v_mov_b32 v%d, %d", vT + 5, SYNC + 8)
    a("s_cmp_ge_u32 s5, 24"); a("s_cbranch_scc1 L_cb0")
    a("s_cmp_lg_u32 s%d, 0", sW); a("s_cbranch_scc1 L_cb0")
    get_nonce("L_n0")
    a("ds_write_b64 v%d, v[%d:%d]", vT + 5, vPl, vPl + 1)
    a.label("L_cb0")
    for g in range(1, o["pre9"]): gissue(g)
    srdH()
    a("s_waitcnt vmcnt(%d) lgkmcnt(0)", vmcount("p1"))
    a("s_cmp_ge_u32 s5, 24"); a("s_cbranch_scc1 L_cb1")
    a("s_barrier")
    a("ds_read_b64 v[%d:%d], v%d", vPl, vPl + 1, vT + 5)
    a.label("L_cb1")
    stamp()
    a("s_setprio %d", o["lprio"])
    jitter("L_j2", 3)
    pollA = "buffer_load_dwordx2 v[%d:%d], v62, s[%d:%d], 0 offen sc1" % (vPl, vPl + 1, sH, sH + 3)
    pollB = "buffer_load_dwordx2 v[%d:%d], v%d, s[%d:%d], s%d offen sc1" % (vPl, vPl + 1, vFl, sH, sH + 3, sKr)
    chk = "v_cmp_ne_u64 vcc, s[%d:%d], v[%d:%d]" % (sNonce, sNonce + 1, vPl, vPl + 1)
    LAG = NSL - 1
    assert NSL == 3
    for g in range(o["pre9"], LAG): gissue(g)
    for g in range(LAG, 12):
        a(vmwait("g%d" % (g - LAG)))
        a("s_waitcnt lgkmcnt(0)")
        for r in greads(g - LAG): a(r)
        if o["gpace"] < 4 * (LAG - 1) and o["gpb"] <= g < o["gpend"]:
            a("s_cmp_ge_u32 s5, 24"); a("s_cbranch_scc1 L_gp%d", g); a("s_waitcnt vmcnt(%d)", o["gpace"]); a.label("L_gp%d" % g)
        gissue(g)
        if g == o["ng"]: get_nonce("L_n1"); lsetup2()
        if g == o["poll0"]: a(pollA.replace("v[%d:%d]" % (vPl, vPl + 1), "v[60:61]")); log.append("p0")
        if g == o["pollg"]: a(pollA); log.append("pa")
        if g == 11 and o["poll0"]:
            a(vmwait("p0")); a(chk.replace("v[%d:%d]" % (vPl, vPl + 1), "v[60:61]")); a("s_cbranch_vccz L_spa_x")
        if PROF and "gst" in o["dbg"] and g in (4, 8): a("s_memtime s[%d:%d]", 82 + g // 2, 83 + g // 2)
    stamp()
    def spin(lab, poll):
        a("s_mov_b32 s%d, 0", sT3)
        a.label(lab)
        if o["psleep"]: a("s_sleep %d", o["psleep"])
        a(poll)
        a("s_add_u32 s%d, s%d, 1", sT3, sT3); a("s_cmp_gt_u32 s%d, %d", sT3, o["spin"])
        a("s_waitcnt vmcnt(0)")
        a("s_cbranch_scc1 %s_x", lab)
        a(chk)
        a("s_cbranch_vccnz %s", lab)
        a.label(lab + "_x")
    a(vmwait("pa"))
    a(chk)
    a("s_cbranch_vccz L_spa_x")
    spin("L_spa", pollA)
    stamp()
    D = o["dist"]; NK = 12; NR = 8; PK = 8
    assert D == 7
    def hload(k, ph):
        r = RING + 4 * ((k + ph) % NR)
        return "buffer_load_dwordx4 v[%d:%d], v%d, s[%d:%d], s%d offen offset:%d %s" % (r, r + 3, vH, sH, sH + 3, sHcur, (k & 3) * 1024, o["hld"])
    def hstep(k): return ["s_add_u32 s%d, s%d, s%d" % (sHcur, sBase, sO1 if k % NK == 3 else sO2)] if k % NK in (3, 7) else []
    for k in range(D):
        a(hload(k, 0)); log.append("h")
        for e in hstep(k): a(e)
        if k == (PK + D) % NK:
            if o["pm"]: a("s_mov_b64 exec, 0xff")
            a(pollB); log.append("pb")
            if o["pm"]: a("s_mov_b64 exec, -1")
    for g in range(12 - LAG, 12):
        a(vmwait("g%d" % g))
        for r in greads(g): a(r)
    a("s_cmp_ge_u32 s5, 24"); a("s_cbranch_scc1 L_cd_x")
    a("v_mov_b32 v62, %d", SYNC); a("s_mov_b32 s%d, 0", sIt)
    a.label("L_cd")
    a("ds_read_b32 v63, v62")
    a("s_add_u32 s%d, s%d, 1", sIt, sIt); a("s_cmp_gt_u32 s%d, %d", sIt, o["spin"] * 8)
    a("s_waitcnt lgkmcnt(0)")
    a("s_cbranch_scc1 L_cd_x")
    a("v_cmp_gt_u32 vcc, 4, v63")
    a("s_cbranch_vccnz L_cd")
    a.label("L_cd_x")
    a("s_mov_b32 s%d, 1", sIt)
    a("s_setprio %d", o["p2prio"])
    a("s_waitcnt lgkmcnt(0)")
    src = lambda t: (A2 + 4 * t) if t < 2 else (B2 + 4 * (t - 2))
    W = ["ds_write_b128 v%d, v[%d:%d] offset:%d" % (vRw, src(t), src(t) + 3, 64 * t) for t in range(4)]
    sig = ["v_add_u32 v%d, s%d, v%d" % (vRw, sInc, vRw), "ds_write_b32 v%d, v%d" % (vCa, vRw)]
    def trip(ph):
        X = {}
        add = lambda ks, g, *e: X.setdefault((ks, g), []).extend(e)
        H = lambda t, u: "ds_write_b64 v%d, v[%d:%d] offset:%d" % (vRw, src(t) + 2 * u, src(t) + 2 * u + 1, 64 * t + 8 * u)
        if o["w64"] == 0:
            add(0, 0, W[0]); add(0, 1, W[1])
            add(o["wpos"][0], 0, W[2]); add(o["wpos"][1], 0, W[3])
            add(o["wpos"][1], 2, sig[0]); add(o["wpos"][1], 3, sig[1])
        else:
            if o["w64"] == 1: add(0, 0, W[0]); add(0, 1, W[1])
            else: add(0, 0, H(0, 0), H(0, 1)); add(0, 1, H(1, 0), H(1, 1))
            add(2, 0, H(2, 0)); add(3, 0, H(2, 1)); add(3, 2, H(3, 0)); add(6, 0, H(3, 1)); add(6, 2, sig[0], sig[1]); add(7, 0, "s_mov_b32 s%d, %d" % (sInc, REDSZ))
        HB = hbase(sBase, sCur, sT2)
        add(0, 3, order_next[0]); add(1, 0, order_next[1], order_next[2]); add(1, 1, HB[0]); add(1, 2, HB[1], HB[2]); add(1, 3, HB[3])
        add(2, 1, HB[4]); add(2, 2, HB[5], "s_lshl_b32 s%d, s%d, 7" % (sT, sCur)); add(2, 3, "s_cmp_ge_u32 s%d, s%d" % (sIt, sNb))
        add(3, 1, "s_cselect_b32 s%d, s%d, s%d" % (sBase, sNx, sBase))
        add(4, 0, chk, "s_andn2_b32 s%d, s%d, s%d" % (sT, sKr, sT))
        if o["pskip"]:
            add(4, 1, "s_cselect_b64 s[%d:%d], 0, -1" % (sT, sT + 1))
            add(4, 2, "s_and_b64 s[%d:%d], s[%d:%d], vcc" % (sT, sT + 1, sT, sT + 1), "s_cbranch_scc1 L_spb%d" % ph, "L_spb%d_r:" % ph)
            add(5, 2, "s_or_b64 vcc, vcc, s[%d:%d]" % (sC1, sC1 + 1), "s_mov_b64 s[%d:%d], 0" % (sC1, sC1 + 1))
        elif o["pm"]: add(4, 1, "s_cselect_b32 s%d, 0, 0xff" % sT)
        if o["pskip"]: pass
        elif o["pm"]: add(4, 2, "s_and_b32 s%d, s%d, vcc_lo" % (sT, sT), "s_cbranch_scc1 L_spb%d" % ph, "L_spb%d_r:" % ph)
        else: add(4, 2, "s_cselect_b64 vcc, 0, vcc", "s_cbranch_vccnz L_spb%d" % ph, "L_spb%d_r:" % ph)
        add(4, 3, "s_add_u32 s%d, s%d, s%d" % (sHcur, sBase, sO0))
        add(5, 0, "s_movk_i32 s%d, 256" % sKr)
        if o["w64"] == 0: add(5, 0, "s_mov_b32 s%d, %d" % (sInc, REDSZ))
        if o["pskip"] and o["pex"]: add(PK, 2, "s_mov_b64 exec, vcc", pollB, "s_mov_b64 exec, -1")
        elif o["pskip"]: add(PK, 2, "s_cbranch_vccz L_np%d" % ph, pollB, "L_np%d:" % ph)
        elif o["pm"]: add(PK, 2, "s_mov_b64 exec, 0xff", pollB, "s_mov_b64 exec, -1")
        else: add(PK, 3, pollB)
        add(NK - 1, 2, "s_add_u32 s%d, s%d, 1" % (sIt, sIt), "s_cmp_le_u32 s%d, s%d" % (sIt, sNb))
        for ks in range(NK):
            between = any(((ks - D + d) % NK) == PK for d in range(D))
            a("s_waitcnt vmcnt(%d)", D - 1 + (1 if between and (o["pex"] or not o["pskip"]) else 0))
            M = []
            for t in range(4):
                c = "0" if ks == 0 else "v[%d:%d]" % (A2 + 4 * t, A2 + 4 * t + 3)
                d = src(t) if ks == NK - 1 else A2 + 4 * t
                k, w = w2reg(ks * 4 + t); h = RING + 4 * ((ks + ph) % NR)
                M.append("v_mfma_f32_16x16x32_bf16 v[%d:%d], %s[%d:%d], v[%d:%d], %s" % (d, d + 3, k, w, w + 3, h, h + 3, c))
            if ks == 0: M = M[2:] + M[:2]
            hg = 2 if ks == 0 else 1
            ex = {g: list(X.get((ks, g), [])) for g in range(4)}
            ex[hg] = [hload(ks + D, ph)] + hstep(ks + D) + ex[hg]
            weave(a, M, ex)
        if PROF and "p2st" in o["dbg"]:
            a("s_cselect_b32 s%d, 1, 0", sT)
            for b in ((1, 3, 5) if ph == 0 else (2, 4)):
                r = {1: 66, 2: 68, 3: 70, 4: 84, 5: 86}[b]
                a("s_cmp_lg_u32 s%d, %d", sIt, b + 1); a("s_cbranch_scc1 L_ps%d", b); a("s_memtime s[%d:%d]", r, r + 1); a.label("L_ps%d" % b)
            a("s_cmp_eq_u32 s%d, 1", sT)
    jitter("L_j5", 5)
    a("s_mov_b32 s%d, 0x%x", sNx, OOB); a("s_mov_b64 s[%d:%d], -1", sC1, sC1 + 1)
    a(".p2align 3")
    a.label("L_p2")
    trip(0)
    a("s_cbranch_scc0 L_p2e")
    a(".p2align 3")
    trip(4)
    a("s_cbranch_scc1 L_p2")
    a.label("L_p2e")
    a("s_nop 3")
    for w in W: a(w)
    for e in sig: a(e)
    stamp()
    if PROF and "p1st" in o["dbg"]:
        a("s_mov_b32 s70, s84"); a("s_mov_b32 s72, s86")
    pad_to(NSTAMP)
    if PROF and ("gst" in o["dbg"] or "p2st" in o["dbg"]):
        a("s_mov_b32 s76, s84"); a("s_mov_b32 s78, s86")
    if PROF: a("s_branch L_fin")
    else: a("s_endpgm")
    for ph in (0, 4):
        a.label("L_spb%d" % ph)
        if o["pm"]: a("s_mov_b64 exec, 0xff")
        spin("L_spb%dl" % ph, pollB)
        if o["pm"]: a("s_mov_b64 exec, -1")
        a("s_branch L_spb%d_r", ph)
    a.L.append("@F")
    a.label("L_fin")
    if PROF:
        n = NSTAMP
        a("s_waitcnt vmcnt(0)")
        a("s_memtime s[%d:%d]", 64 + 2 * n, 65 + 2 * n); a("s_memrealtime s[62:63]"); a("s_waitcnt lgkmcnt(0)")
        a("s_add_u32 s8, s54, %d", 128 << 20); a("s_addc_u32 s9, s55, 0"); a("s_mov_b32 s10, 0x100000"); a("s_mov_b32 s11, 0x20000")
        a("s_lshl_b32 s28, s2, 3"); a("s_add_u32 s28, s28, s%d", sWv); a("s_lshl_b32 s28, s28, 6")
        a("v_mov_b32 v0, s28")
        a("s_getreg_b32 s29, hwreg(HW_REG_XCC_ID)")
        vals = ["s60", "s62", "s29"] + ["s%d" % (64 + 2 * i) for i in range(n + 1)]
        vals += ["0"] * (16 - len(vals))
        for i, v in enumerate(vals): a("v_mov_b32 v%d, %s", 4 + i, v)
        a("s_mov_b64 exec, 1")
        for i in range(4): a("buffer_store_dwordx4 v[%d:%d], v0, s[8:11], 0 offen offset:%d", 4 + 4 * i, 7 + 4 * i, 16 * i)
    if PROF and o.get("probe") is not None:
        pw, pv, pi = o["probe"]
        a("s_cmp_lg_u32 s2, %d", pw); a("s_cbranch_scc1 L_end")
        a("s_cmp_lg_u32 s%d, %d", sWv, pv); a("s_cbranch_scc1 L_end")
        if pi == "start": a("s_sub_u32 s30, s60, s%d", sNonce); a("s_add_u32 s30, s30, 200"); a("s_lshl_b32 s30, s30, 2")
        else: a("s_sub_u32 s30, s%d, s64", 64 + 2 * pi); a("s_lshl_b32 s30, s30, 2"); a("s_add_u32 s30, s30, 300")
        a("s_min_u32 s30, s30, 20000")
        a.label("L_spin")
        a("s_memrealtime s[32:33]"); a("s_waitcnt lgkmcnt(0)")
        a("s_sub_u32 s32, s32, s62"); a("s_cmp_lt_u32 s32, s30"); a("s_cbranch_scc1 L_spin")
    a.label("L_end")
    a("s_endpgm")
    a(".p2align 6")
    a(".type L_table,@object")
    a.label("L_table")
    W = make_table(o)
    for k in range(0, 256, 8): a(".long " + ", ".join("0x%x" % w for w in W[k:k + 8]))
    a.label("L_codeend")
    sec = {"E": []}; cur = "E"
    for l in a.L:
        if l.startswith("@"): cur = l[1]; sec[cur] = []
        else: sec[cur].append(l)
    a.L = []
    for c in o["lay"] + "F":
        if c == "|": a.L.append("    .p2align 12")
        if c in sec: a.L += sec[c]
    a.L = [l for i, l in enumerate(a.L) if not (l.startswith("    s_branch ") and i + 1 < len(a.L) and a.L[i + 1] == l.split()[1] + ":")]
    if o["dfl"]: a.L = [l[:-4] + " " + o["dfl"] + " lds" if l.endswith(" lds") else l for l in a.L]
    if "rt" in o["dbg"].split(): a.L = [l.replace("s_memtime", "s_memrealtime") if "s[1" not in l else l for l in a.L]
    s = HEAD + "; @launch grid=(256,1,1) block=(512,1,1) lds=163840\n"
    s += '.amdgcn_target "amdgcn-amd-amdhsa--gfx950"\n.text\n'
    n = NAME + "_kernel"
    if o["pad"] is not None: s += ".p2align 12\n.fill %d, 4, 0xbf800000\n" % (o["pad"] // 4)
    s += ".globl %s\n.p2align 8\n.type %s,@function\n%s:\n%s" % (n, n, n, a.text())
    s += '''.section .rodata,"a"
.p2align 6
.amdhsa_kernel %s
  .amdhsa_next_free_vgpr 256
  .amdhsa_next_free_sgpr 102
  .amdhsa_accum_offset 128
  .amdhsa_group_segment_fixed_size 0
  .amdhsa_kernarg_size 64
  .amdhsa_user_sgpr_count 2
  .amdhsa_user_sgpr_kernarg_segment_ptr 1
  .amdhsa_system_sgpr_workgroup_id_x 1
  .amdhsa_float_denorm_mode_32 3
  .amdhsa_float_denorm_mode_16_64 3
.end_amdhsa_kernel
''' % n
    return s
if __name__ == "__main__":
    kw = json.loads(sys.argv[2]) if len(sys.argv) > 2 else {}
    open(sys.argv[1], "w").write(gen(**kw))
```

```python
import struct, sys, json
def f2u(x): return struct.unpack("<I", struct.pack("<f", x))[0]
C0 = -2.0 * 0.7978845608028654 * 1.4426950408889634
C1 = C0 * 0.044715
NAME = "standalone__dense_activation_gelu__prompt"
HEAD = open("cdna_kernels/%s.s.ref" % NAME).read().split("; Override launch geometry")[0]
FLAGOFF = 8 << 20
OOB = 0x7f000000
DEF = dict(prof=False, a1=4, a2=4, rot1="x", pf=(1, 10), w2pf=True, hst="sc1", ost="nt", dist=7, spin=1000000, codepf=True,
           out=8, prio=1, hsame=False, psleep=4, dbg="", gpace=1, gpend=9, rsleep=3, p2prio=1, swap46=False, krot=True, hdelay=0,
           pollg=10, puba=8, nsl=3, hs=49152, lprio=0, ng=4, swapx=True, rotx=0, hbal=False, pad=0xD00, lay="EGHRBPST|W|C", tmap="half", alt=0, light=0, snake=True, barpos=16, nw=2, bp=0, fl=1, poll0=0, spub=False, rprio=0, l1prio=0, lwait=8, spec=False, lfrom=2, lstep=1, gpb=4, pre9=1, sup=3, np=8, dbl=0, tog2=1, mv=2, xf=0, b2e=0, tlb=0, sn2=1, noa2=0, pbk=3, slide=0, w64=0, pex=1, nocls=False, a1at=6, pm=0, mid=False, hwait=0, pr=3, polx=0, pskip=True, rlast=True, wpos=(2, 3), hld="sc1", tfl="", dfl="", kks=(0, 1, 2, 3, 4, 5))

class A:
    def __init__(self): self.L = []
    def __call__(self, s, *args): self.L.append("    " + (s % args if args else s))
    def label(self, s): self.L.append(s + ":")
    def text(self): return "\n".join(self.L) + "\n"

def weave(a, main, extra):
    for i, m in enumerate(main):
        a(m)
        for e in extra.get(i, []): a(e)

def make_table(o):
    T = {}
    for x in range(8):
        par, q = x & 1, x >> 1
        tiles = []
        if o["a2"] == 8:
            par = 0
            if o["tmap"] == "cur":
                for i in range(32):
                    dl, rb, n = i >> 1, 6 + 5 * (i & 1), 5
                    if i >= 16: dl, rb, n = (i >> 2) + 4, 4 * (i & 3), 4
                    if i >= 24: dl, rb, n = i - 24, 0, 6
                    tiles.append((dl, rb + 16 * x, n))
            else:
                four = {0: (0, 4), 1: (1, 5), 2: (2, 6), 3: (3, 7), 4: (0, 4), 5: (2, 6), 6: (1,), 7: (3,), 8: (5,), 9: (7,)}
                six = {6: (3, 5, 7), 7: (0, 5, 7), 8: (1, 2, 6), 9: (1, 3, 4)}
                for dl in range(10):
                    c = lambda k: 4 if k in four[dl] else 3
                    d = lambda k: (-1 if (dl < 6 and k in four[dl]) else (1 if k in six.get(dl, ()) else 0))
                    rb = sum(5 * c(k) + d(k) for k in range(x))
                    for k in range(c(x)):
                        n = 5 + (d(x) if k == 0 else 0)
                        tiles.append((dl, rb, n)); rb += n
                t6 = [t for t in tiles if t[2] == 6]; t4 = [t for t in tiles if t[2] == 4]; t5 = [t for t in tiles if t[2] == 5]
                nh = 8 - len(t6) - len(t4)
                tiles = t5[nh:] + t4 + t5[:nh] + t6
        elif o["tmap"] == "cur":
            for i in range(32):
                dl, rb, n = i >> 2, 12 + 5 * (i & 3), 5
                if i >= 20: dl, rb, n = 3 + (i & 1), ((i - 20) >> 1) * 4, 4
                if i >= 26: dl, rb, n = (i - 26) >> 1, 6 * (i & 1), 6
                tiles.append((dl, rb + 32 * q, n))
        else:
            cnt = [[7, 6, 7, 6], [6, 7, 6, 7], [7, 6, 6, 7], [6, 7, 6, 6], [6, 6, 7, 6]]
            odd = [[-1, 0, -1, 0], [0, -1, 0, -1], [-1, 0, 0, -1], [1, 0, 1, 1], [1, 1, 0, 1]]
            if o["tmap"] == "half":
                cnt = [[7, 6, 7, 6], [6, 7, 6, 7], [7, 6, 7, 6], [6, 7, 6, 7], [6, 6, 6, 6]]
                odd = [[-1, 0, -1, 0], [0, -1, 0, -1], [-1, 0, -1, 0], [0, -1, 0, -1], [2, 2, 2, 2]]
            for dl in range(5):
                rb = sum(5 * cnt[dl][k] + odd[dl][k] for k in range(q))
                for k in range(cnt[dl][q]):
                    n = 5 + (odd[dl][q] if k == 0 else 0)
                    if odd[dl][q] == 2: n = 6 if k in (0, 2) else 5
                    tiles.append((dl, rb, n)); rb += n
            t6 = [t for t in tiles if t[2] == 6]; t4 = [t for t in tiles if t[2] == 4]; t5 = [t for t in tiles if t[2] == 5]
            nh = 8 - len(t6) - len(t4)
            tiles = t5[nh:] + t4 + t5[:nh] + t6
        assert len(tiles) == 32
        for i, (dl, rb, n) in enumerate(tiles):
            E = [b for b in range(rb, rb + n) if not b & 2]; Lt = [b for b in range(rb, rb + n) if b & 2]
            if o["alt"] == 1 and dl & 1: E.reverse(); Lt.reverse()
            if o["alt"] == 2:
                r = dl % len(E); E = E[r:] + E[:r]; r = dl % len(Lt); Lt = Lt[r:] + Lt[:r]
            k = next(k for k, b in enumerate(E) if b % 4 == 0)
            E = [E[k]] + E[:k] + E[k + 1:]
            assert len(E) >= 2
            T[x + 8 * i] = (dl + 5 * par, rb, E + Lt)
    cov = set()
    W = []
    for wg in range(256):
        dl, rb, seq = T[wg]
        for b in seq:
            assert (dl, b) not in cov; cov.add((dl, b))
        w = dl | (rb << 4) | (len(seq) << 11)
        for k, b in enumerate(seq): w |= (b - rb) << (14 + 3 * k)
        W.append(w)
    assert len(cov) == 1280
    return W

def gen(**kw):
    o = dict(DEF); o.update(kw)
    a = A()
    PROF = o["prof"]
    nst = [1]
    def stamp():
        if not PROF: return
        a("s_memtime s[%d:%d]", 64 + 2 * nst[0], 65 + 2 * nst[0]); nst[0] += 1
        a("s_waitcnt lgkmcnt(0)")
    def pad_to(n):
        assert nst[0] <= n, nst[0]
        while PROF and nst[0] < n: stamp()
    NSTAMP = 8
    sX, sW1, sW2, sH, sO = 8, 12, 16, 20, 24
    sWv, sXcd, sI, sMT, sFT = 3, 4, 5, 6, 7
    sXoff, sWoff, sM0, sKb, sDelta, sIt, sT, sT2, sT3, sRd = 28, 29, 30, 31, 32, 33, 34, 35, 36, 37
    sC1 = 38
    sNonce = 56
    sRb, sNb, sDl, sG, sGm, sHcur, sCnt, sOst, sNx, sNw, sPw, sW = 58, 59, 92, 93, 94, 95, 96, 97, 98, 99, 100, 101
    sCur, sEnd, sBase, sO0, sO1, sO2, sInc, sGw, sKr = 0, 1, 82, 88, 89, 90, 91, 97, 96
    vL, vZ = 1, 2
    vT = 8
    vPl = 4
    vH, vFl, vRw, vCa = 0, 3, 6, 7
    vXd, vWd, vGd, vGr = 16, 20, 24, 56
    RING, A2, B2 = 8, 40, 56
    def w2reg(i): return ("a", 4 * i) if i < 32 else ("v", 64 + 4 * (i - 32))
    vHi, vXr, vWr, vC0, vONE, vHst = 3, 16, 20, 22, 24, 26
    vRr, vOst, vB2 = 6, 7, 28
    ACC, TMP, OUT = 32, 96, 112
    RD = 32
    NSL = o["nsl"]; REDSZ = 17408; SYNC = 9 * REDSZ
    SLO = [REDSZ, 2 * REDSZ, 3 * REDSZ, 0]
    SLOT = 32768; S = 3
    def srd(d, lo, nbytes):
        a("s_mov_b64 s[%d:%d], s[%d:%d]", d, d + 1, lo, lo + 1)
        a("s_mov_b32 s%d, %d", d + 2, nbytes); a("s_mov_b32 s%d, 0x20000", d + 3)
    def mod3(dst, src):
        a("s_mul_i32 s%d, s%d, 86", sT, src); a("s_lshr_b32 s%d, s%d, 8", sT, sT); a("s_mul_i32 s%d, s%d, 3", sT, sT); a("s_sub_u32 s%d, s%d, s%d", dst, src, sT)
    def krot(dst):
        if o["krot"]:
            if o["a2"] == 4: a("s_lshr_b32 s%d, s%d, 1", dst, sXcd); a("s_cmp_eq_u32 s%d, 3", dst); a("s_cselect_b32 s%d, 0, s%d", dst, dst)
            else: mod3(dst, sXcd)
        else: a("s_mov_b32 s%d, 0", dst)

    a("s_load_dwordx16 s[40:55], s[0:1], 0")
    a("s_cmp_ge_u32 s2, 256"); a("s_cbranch_scc1 L_end")
    if PROF:
        a("s_memrealtime s[60:61]"); a("s_memtime s[64:65]")
    a("v_lshrrev_b32 v%d, 6, v0", vT)
    a("v_and_b32 v%d, 63, v0", vL)
    a("v_readfirstlane_b32 s%d, v%d", sWv, vT)
    a("s_and_b32 s%d, s2, 7", sXcd); a("s_lshr_b32 s%d, s2, 3", sI)
    a("v_lshrrev_b32 v%d, 3, v%d", vT, vL)
    a("v_and_b32 v%d, 7, v%d", vT + 1, vL)
    a("v_lshrrev_b32 v%d, 1, v%d", vT + 2, vT)
    a("v_mov_b32 v%d, 0", vZ)
    a("s_and_b32 s%d, s%d, 3", sW, sWv)
    def jitter(lab, sh):
        if "drand" not in o["dbg"]: return
        a("s_memtime s[60:61]"); a("s_waitcnt lgkmcnt(0)"); a("s_lshr_b32 s60, s60, %d", sh); a("s_mul_i32 s61, s2, 7"); a("s_add_u32 s60, s60, s61"); a("s_add_u32 s60, s60, s3")
        a("s_and_b32 s60, s60, 15"); a("s_cmp_lg_u32 s60, 0"); a("s_cbranch_scc1 %s", lab); a("s_sleep 60"); a.label(lab)
    jitter("L_j0", 4)
    if o["rotx"] == 0: a("s_mul_i32 s%d, s%d, 10", sKb, sXcd); a("s_lshr_b32 s%d, s%d, 3", sKb, sKb)
    else:
        tab = {1: [0, 5, 2, 7, 5, 0, 7, 2], 2: [0, 5, 3, 8, 5, 0, 8, 3], 3: [0, 6, 2, 8, 5, 1, 7, 3]}[o["rotx"]]
        a("s_lshl_b32 s%d, s%d, 2", sKb, sXcd); a("s_lshr_b32 s%d, 0x%x, s%d", sKb, sum(v << (4 * i) for i, v in enumerate(tab)), sKb); a("s_and_b32 s%d, s%d, 15", sKb, sKb)
    a("s_mov_b32 s%d, %d", sX + 2, 2048 * 640 * 2); a("s_mov_b32 s%d, 0x20000", sX + 3)
    a("s_mov_b32 s%d, %d", sW1 + 2, 640 * 1536 * 2); a("s_mov_b32 s%d, 0x20000", sW1 + 3)
    a("s_cmp_ge_u32 s%d, 24", sI); a("s_cbranch_scc1 L_helper")
    if o["a1"] == 4:
        a("s_lshr_b32 s%d, s%d, 1", sMT, sXcd); a("s_lshl_b32 s%d, s%d, 2", sMT, sMT)
        a("s_and_b32 s%d, s%d, 3", sT, sI); a("s_add_u32 s%d, s%d, s%d", sMT, sMT, sT)
        a("s_and_b32 s%d, s%d, 1", sFT, sXcd); a("s_mul_i32 s%d, s%d, 6", sFT, sFT)
        a("s_lshr_b32 s%d, s%d, 2", sT2, sI); a("s_add_u32 s%d, s%d, s%d", sFT, sFT, sT2)
    else:
        a("s_lshl_b32 s%d, s%d, 1", sMT, sXcd); a("s_and_b32 s%d, s%d, 1", sT, sI); a("s_add_u32 s%d, s%d, s%d", sMT, sMT, sT)
        a("s_lshr_b32 s%d, s%d, 1", sT2, sI); a("s_mov_b32 s%d, s%d", sFT, sT2)
    a("s_cmp_lt_u32 s%d, 4", sWv); a("s_cbranch_scc1 L_c0")
    a.label("L_ldr")

    sTab = 83; sPol = 63
    HBYTES = 8 << 20
    def hbase(dst, rb, tmp):
        return ["s_lshr_b32 s%d, s%d, 4" % (tmp, rb), "s_lshr_b32 s%d, s%d, s%d" % (tmp, sPol, tmp), "s_and_b32 s%d, s%d, 8192" % (tmp, tmp),
                "s_and_b32 s%d, s%d, 63" % (dst, rb), "s_lshl_b32 s%d, s%d, 17" % (dst, dst), "s_or_b32 s%d, s%d, s%d" % (dst, dst, tmp)]
    def setpol(hi):
        a("s_bfe_u32 s%d, s%d, 0x40018", sPol, hi); a("s_mul_i32 s%d, s%d, 17", sPol, sPol); a("s_xor_b32 s%d, s%d, %d", sPol, sPol, 15 ^ o["polx"]); a("s_lshl_b32 s%d, s%d, 13", sPol, sPol)
    def hptr(d):
        a("s_sub_u32 s%d, 0, s54", d); a("s_and_b32 s%d, s%d, 0x1fffff", d, d); a("s_add_u32 s%d, s54, s%d", d, d); a("s_addc_u32 s%d, s55, 0", d + 1)
    def srdH():
        hptr(sH); a("s_mov_b32 s%d, %d", sH + 2, HBYTES); a("s_mov_b32 s%d, 0x20000", sH + 3)
    def tab_load(lab):
        a("s_getpc_b64 s[%d:%d]", sT, sT + 1)
        a.label(lab)
        a("s_add_u32 s%d, s%d, L_table-%s", sT, sT, lab); a("s_addc_u32 s%d, s%d, 0", sT + 1, sT + 1)
        a("s_lshl_b32 s%d, s2, 2", sTab)
        a("s_load_dword s%d, s[%d:%d], s%d", sTab, sT, sT + 1, sTab)
    def tile_assign():
        a("s_and_b32 s%d, s%d, 15", sDl, sTab); a("s_bfe_u32 s%d, s%d, 0x70004", sRb, sTab); a("s_bfe_u32 s%d, s%d, 0x3000b", sNb, sTab)
        a("s_lshr_b32 s%d, s%d, 14", sTab, sTab)
    def order_init():
        a("s_add_u32 s%d, s%d, s%d", sEnd, sRb, sNb)
        a("s_and_b32 s%d, s%d, 7", sCur, sTab); a("s_add_u32 s%d, s%d, s%d", sCur, sCur, sRb)
    order_next = ["s_lshr_b32 s%d, s%d, 3" % (sTab, sTab), "s_and_b32 s%d, s%d, 7" % (sCur, sTab), "s_add_u32 s%d, s%d, s%d" % (sCur, sCur, sRb), "s_bitcmp1_b32 s%d, 1" % sCur]
    log = []
    def vmcount(tag):
        idx = max(i for i, t in enumerate(log) if t == tag)
        return len(log) - 1 - idx
    def vmwait(tag): return "s_waitcnt vmcnt(%d)" % vmcount(tag)
    nload = "buffer_load_dwordx2 v[%d:%d], v%d, s[%d:%d], 0 offen sc1" % (vPl, vPl + 1, vZ, sO, sO + 3)
    def get_nonce(lab):
        a("s_mov_b32 s%d, 0", sIt)
        a.label(lab)
        a("v_readfirstlane_b32 s%d, v%d", sNonce, vPl); a("v_readfirstlane_b32 s%d, v%d", sNonce + 1, vPl + 1)
        a("s_add_u32 s%d, s%d, 1", sIt, sIt); a("s_nop 1")
        a("s_bitcmp1_b32 s%d, 30", sNonce + 1); a("s_cbranch_scc1 %s_ok", lab)
        a("s_cmp_gt_u32 s%d, %d", sIt, o["spin"]); a("s_cbranch_scc1 %s_ok", lab)
        a(nload); a("s_waitcnt vmcnt(0)"); a("s_branch %s", lab)
        a.label(lab + "_ok")

    def lsetup():
        a("v_lshlrev_b32 v%d, 1, v%d", vT + 3, vT + 2)
        a("v_xor_b32 v%d, v%d, v%d", vT + 3, vT + 1, vT + 3)
        a("v_mul_u32_u24 v%d, 1280, v%d", vGd, vT)
        a("v_lshl_add_u32 v%d, v%d, 4, v%d", vGd, vT + 3, vGd)
        for i in range(1, 4): a("v_add_u32 v%d, %d, v%d", vGd + i, i * (8 * 1280 - 1024), vGd)
        krot(sRd)
        a("s_mul_i32 s%d, s%d, 4352", sGm, sW); a("s_add_u32 s%d, s%d, %d", sGm, sGm, 5 * REDSZ)
        a("v_lshrrev_b32 v%d, 2, v%d", vT + 3, vL)
        a("v_lshlrev_b32 v%d, 7, v%d", vT + 3, vT + 3)
        a("v_bfe_u32 v%d, v%d, 3, 2", vT + 4, vL)
        a("v_lshl_add_u32 v%d, v%d, 5, v%d", vT + 3, vT + 4, vT + 3)
        a("v_and_b32 v%d, 3, v%d", vT + 4, vL)
        a("v_lshl_add_u32 v%d, v%d, 3, v%d", vT + 3, vT + 4, vT + 3)
        a("v_add_u32 v%d, s%d, v%d", vGr, sGm, vT + 3)
        for t in range(1, 4): a("v_xor_b32 v%d, %d, v%d", vGr + t, 32 * t, vGr)
        a("v_lshlrev_b32 v%d, 4, v%d", vH, vL)
        a("s_mul_i32 s%d, s%d, 3", sT3, sW); a("s_add_u32 s%d, s%d, s%d", sO0, sT3, sRd)
        a("s_add_u32 s%d, s%d, 1", sO1, sO0); a("s_cmp_eq_u32 s%d, 2", sRd); a("s_cselect_b32 s%d, s%d, s%d", sO1, sT3, sO1)
        a("s_add_u32 s%d, s%d, 1", sO2, sO1); a("s_cmp_eq_u32 s%d, 1", sRd); a("s_cselect_b32 s%d, s%d, s%d", sO2, sT3, sO2)
        for r in (sO0, sO1, sO2):
            a("s_and_b32 s%d, s%d, 14", sT, r); a("s_add_u32 s%d, s%d, s%d", r, r, sT); a("s_lshl_b32 s%d, s%d, 12", r, r)
        a("v_and_b32 v%d, 15, v%d", vT + 3, vL); a("v_lshrrev_b32 v%d, 4, v%d", vT + 4, vL)
        a("v_mul_u32_u24 v%d, 272, v%d", vRw, vT + 3)
        a("v_lshl_add_u32 v%d, v%d, 4, v%d", vRw, vT + 4, vRw)
        a("s_mul_i32 s%d, s%d, 4352", sT, sW); a("v_add_u32 v%d, s%d, v%d", vRw, sT, vRw)
        a("s_lshl_b32 s%d, s%d, 8", sT, sW); a("s_add_u32 s%d, s%d, %d", sT, sT, SYNC + 256)
        a("v_lshl_add_u32 v%d, v%d, 2, s%d", vCa, vL, sT)
        a("s_waitcnt lgkmcnt(0)")
        tile_assign()
        a("s_mul_i32 s%d, s%d, %d", sGw, sW, 384 * 1280); a("s_lshl_b32 s%d, s%d, 7", sT, sDl); a("s_add_u32 s%d, s%d, s%d", sGw, sGw, sT)
        a("s_mul_i32 s%d, s%d, %d", sT, sRd, 128 * 1280); a("s_add_u32 s%d, s%d, s%d", sG, sGw, sT)
        order_init()
    def lsetup2():
        setpol(sNonce + 1)
        a("s_mul_i32 s%d, s%d, 3", sT3, sW)
        a("s_and_b32 s%d, s%d, 0x78", sInc, sRb)
        for e in hbase(sBase, sInc, sT): a(e)
        a("s_sub_u32 s%d, s%d, 1", sInc, sEnd); a("s_and_b32 s%d, s%d, 0x78", sInc, sInc)
        for e in hbase(sT2, sInc, sT): a(e)
        a("v_mov_b32 v%d, s%d", vT + 3, sBase); a("v_mov_b32 v%d, s%d", vT + 4, sT2); a("v_cmp_lt_u32 vcc, 31, v%d", vL)
        a("v_bfe_u32 v%d, v%d, 3, 2", vFl, vL); a("v_min_u32 v%d, 2, v%d", vFl, vFl); a("v_add_u32 v%d, s%d, v%d", vFl, sT3, vFl)
        a("v_cndmask_b32 v%d, v%d, v%d, vcc", vT + 3, vT + 3, vT + 4)
        a("v_lshl_add_u32 v%d, v%d, 9, v%d", vFl, vFl, vT + 3); a("v_add_u32 v%d, 98304, v%d", vFl, vFl)
        for e in hbase(sBase, sCur, sT): a(e)
        a("s_add_u32 s%d, s%d, s%d", sHcur, sBase, sO0)
        a("s_mov_b32 s%d, 0", sInc); a("s_mov_b32 s%d, %d", sKr, 256 if o["noa2"] else 0)
        a("s_lshl_b32 s%d, s%d, 9", sT, sT3); a("s_add_u32 s%d, s%d, s%d", sT, sT, sBase); a("s_add_u32 s%d, s%d, 114688", sT, sT)
        a("v_min_u32 v62, 5, v%d", vT); a("v_lshl_add_u32 v62, v62, 8, s%d", sT)
    sSa, sSb, sMb = sG, sGm, sC1
    a("s_add_u32 s%d, s%d, s%d", sRd, sT, sT2); a("s_and_b32 s%d, s%d, %d", sRd, sRd, 1 if o["swapx"] else 0)
    a("s_lshl2_add_u32 s%d, s%d, s%d", sXoff, sMT, sW); a("s_mul_i32 s%d, s%d, 320", sXoff, sXoff); a("s_add_u32 s%d, s%d, s%d", sXoff, sXoff, sKb)
    a("s_and_b32 s%d, s%d, 1", sT, sW); a("s_lshl1_add_u32 s%d, s%d, s%d", sT, sKb, sT); a("s_mul_i32 s%d, s%d, 768", sT, sT)
    a("s_lshr_b32 s%d, s%d, 1", sT2, sW); a("s_lshl1_add_u32 s%d, s%d, s%d", sT2, sFT, sT2); a("s_add_u32 s%d, s%d, s%d", sT, sT, sT2)
    a("s_movk_i32 s%d, 1280", sMT); a("s_movk_i32 s%d, 3072", sFT)
    a("s_cmp_eq_u32 s%d, 1", sRd)
    a("s_cselect_b32 s%d, s%d, s%d", sWoff, sXoff, sT); a("s_cselect_b32 s%d, s%d, s%d", sXoff, sT, sXoff)
    a("s_cselect_b32 s%d, s%d, s%d", sT, sFT, sMT); a("s_cselect_b32 s%d, s%d, s%d", sT2, sMT, sFT)
    a("s_cselect_b32 s%d, s%d, s%d", sT3, sW1 + 2, sX + 2); a("s_cselect_b32 s%d, s%d, s%d", sW1 + 2, sX + 2, sW1 + 2); a("s_mov_b32 s%d, s%d", sX + 2, sT3)
    a("s_lshl_b32 s%d, s%d, 7", sXoff, sXoff); a("s_lshl_b32 s%d, s%d, 7", sWoff, sWoff)
    a("s_lshl2_add_u32 s%d, s%d, s%d", sM0, sRd, sW); a("s_lshl_b32 s%d, s%d, 12", sM0, sM0); a("s_mov_b32 m0, s%d", sM0)
    def offs(v, pitch, sh):
        a("v_lshlrev_b32 v%d, s%d, v%d", vT + 3, sh, vT + 2); a("v_and_b32 v%d, 3, v%d", vT + 3, vT + 3); a("v_xor_b32 v%d, v%d, v%d", vT + 3, vT + 1, vT + 3)
        a("v_mul_u32_u24 v%d, s%d, v%d", v, pitch, vT); a("v_lshl_add_u32 v%d, v%d, 4, v%d", v, vT + 3, v)
        a("s_lshl_b32 s%d, s%d, 3", pitch, pitch); a("s_addk_i32 s%d, -1024", pitch)
        a("v_xor_b32 v%d, 64, v%d", v + 1, v); a("v_add_u32 v%d, s%d, v%d", v + 1, pitch, v + 1)
        a("s_lshl_b32 s%d, s%d, 1", pitch, pitch)
        a("v_add_u32 v%d, s%d, v%d", v + 2, pitch, v); a("v_add_u32 v%d, s%d, v%d", v + 3, pitch, v + 1)
    offs(vXd, sT, sRd)
    a("s_xor_b32 s%d, s%d, 1", sT3, sRd)
    offs(vWd, sT2, sT3)
    a("s_movk_i32 s%d, 128", sT); a("s_mov_b32 s%d, %d", sT2, 64 * 3072); a("s_mov_b32 s%d, -1", sIt)
    a("s_cmp_eq_u32 s%d, 1", sRd)
    a("s_cselect_b32 s%d, s%d, s%d", sMT, sT2, sT); a("s_cselect_b32 s%d, s%d, s%d", sFT, sT, sT2)
    sSa, sSb = sMT, sFT
    a("s_mul_i32 s%d, s%d, -9", sNx, sSa); a("s_mul_i32 s%d, s%d, -9", sNw, sSb)
    a("s_waitcnt lgkmcnt(0)")
    a("s_cselect_b64 s[%d:%d], s[42:43], s[40:41]", sX, sX + 1); a("s_cselect_b64 s[%d:%d], s[40:41], s[42:43]", sW1, sW1 + 1)
    def dma(i):
        if "nodma" in o["dbg"]: return "s_nop 0"
        if i < 4: return "buffer_load_dwordx4 v%d, s[%d:%d], s%d offen offset:%d lds" % (vXd + i, sX, sX + 3, sXoff, 1024 * i)
        return "buffer_load_dwordx4 v%d, s[%d:%d], s%d offen offset:%d lds" % (vWd + i - 4, sW1, sW1 + 3, sWoff, 1024 * (i - 4))
    if o["l1prio"]: a("s_setprio %d", o["l1prio"])
    stamp()
    def ldloop(lab, first, last_it):
        a.label(lab)
        thr = (not first) and o["lwait"] < 8
        for i in range(4):
            if thr: a("s_waitcnt vmcnt(%d)", o["lwait"] - 1)
            a(dma(i))
        a("s_xor_b32 m0, s%d, 16384", sM0)
        if first and o["mid"]:
            a("s_cmp_lt_i32 s%d, 0", sIt); a("s_cbranch_scc1 L_ldn"); a("s_waitcnt vmcnt(4)"); a("s_barrier"); a.label("L_ldn")
        a("s_add_u32 s%d, s%d, 1", sKb, sKb); a("s_cmp_eq_u32 s%d, 10", sKb)
        a("s_cselect_b32 s%d, s%d, s%d", sDelta, sNx, sSa); a("s_cselect_b32 s%d, s%d, s%d", sPw, sNw, sSb); a("s_cselect_b32 s%d, 0, s%d", sKb, sKb)
        for i in range(4, 8):
            if thr: a("s_waitcnt vmcnt(%d)", o["lwait"] - 1)
            a(dma(i))
        a("s_add_u32 s%d, s%d, s%d", sXoff, sXoff, sDelta); a("s_add_u32 s%d, s%d, s%d", sWoff, sWoff, sPw)
        a("s_add_u32 s%d, s%d, %d", sM0, sM0, SLOT); a("s_cmp_ge_u32 s%d, %d", sM0, S * SLOT)
        a("s_cselect_b32 s%d, %d, 0", sT, S * SLOT); a("s_sub_u32 s%d, s%d, s%d", sM0, sM0, sT); a("s_mov_b32 m0, s%d", sM0)
        a("s_add_u32 s%d, s%d, 1", sIt, sIt)
        if first and o["mid"]:
            a("s_cmp_lt_u32 s%d, %d", sIt, last_it - 1); a("s_cbranch_scc1 %s", lab)
            a("s_branch L_su")
        elif first:
            a("s_cbranch_scc1 %s", lab)
            a("s_cmp_eq_u32 s%d, %d", sIt, last_it); a("s_cbranch_scc1 L_su")
            a("s_waitcnt vmcnt(8)"); a("s_barrier")
            a("s_branch %s", lab)
        else:
            a("s_cmp_lg_u32 s%d, s%d", sIt, sNonce); a("s_cbranch_scc1 %sw", lab); a(nload)
            a.label(lab + "w")
            a("s_cmp_lt_u32 s%d, %d", sIt, last_it)
            a("s_waitcnt vmcnt(8)"); a("s_barrier")
            a("s_cbranch_scc1 %s", lab)
    ldloop("L_ld", True, o["sup"])
    a.label("L_c0")
    a("v_and_b32 v%d, 15, v%d", vT + 3, vL)
    a("v_lshlrev_b32 v%d, 1, v%d", vT + 5, vT + 3)
    a("s_bfe_u32 s%d, s%d, 0x10000", sT, sW); a("s_lshl1_add_u32 s%d, s%d, s%d", sT3, sFT, sT); a("s_lshl_b32 s%d, s%d, 7", sT3, sT3)
    a("s_movk_i32 s%d, %d", sO + 2, 1536 * 2); a("s_mov_b32 s%d, s%d", sO + 3, sX + 3)
    a("s_waitcnt lgkmcnt(0)")
    a("s_mov_b64 s[%d:%d], s[44:45]", sO, sO + 1)
    for f in range(4): a("buffer_load_ushort v%d, v%d, s[%d:%d], s%d offen offset:%d", TMP + 4 * f, vT + 5, sO, sO + 3, sT3, 32 * f)
    a("s_branch L_comp")
    a.L.append("@S")
    a.label("L_su")
    tab_load("L_t0")
    lsetup()
    srd(sO, 52, 256)
    a("s_cmp_eq_u32 s%d, 0", sW); a("s_cselect_b32 s%d, %d, -1", sNonce, o["np"])
    a("s_cmp_lt_u32 s5, 24"); a("s_cbranch_scc1 L_ld2w")
    a("s_barrier")
    a(nload)
    nst[0] = 1; stamp()
    a("s_branch L_lw")
    a.L.append("@T")
    ldloop("L_ld2", False, 9)
    a("s_branch L_lw")
    nst[0] = 1
    a.L.append("@H")
    a.label("L_helper")
    a("s_cmp_lt_u32 s%d, 4", sWv); a("s_cbranch_scc0 L_hl")
    a("v_mul_u32_u24 v%d, 1280, v%d", vXd, vL); a("v_mul_u32_u24 v%d, 3072, v%d", vWd, vL)
    sCl = sNx
    k0, k1 = o["pf"]
    a("s_bfe_u32 s%d, s%d, 0x20001", sM0, sI)
    a("s_and_b32 s%d, s%d, 1", sCl, sI); a("s_lshl_b32 s%d, s%d, 13", sCl, sCl)
    a("s_add_u32 s%d, s%d, %d", sKb, sKb, k0); a("s_cmp_ge_u32 s%d, 10", sKb); a("s_cselect_b32 s%d, 10, 0", sT); a("s_sub_u32 s%d, s%d, s%d", sKb, sKb, sT)
    a("s_lshr_b32 s%d, s%d, 1", sT, sXcd); a("s_lshl2_add_u32 s%d, s%d, s%d", sXoff, sT, sM0); a("s_mul_i32 s%d, s%d, %d", sXoff, sXoff, 128 * 1280)
    a("s_and_b32 s%d, s%d, 1", sT, sXcd); a("s_lshl2_add_u32 s%d, s%d, s%d", sWoff, sT, sM0); a("s_mul_i32 s%d, s%d, 384", sWoff, sWoff)
    def touch(v, srdn, off):
        a("v_add3_u32 v%d, s%d, v%d, %s", TMP + 1, sT, v, "0") if off == 0 else a("v_add_u32 v%d, %d, v%d", TMP + 1, off, TMP + 1)
        a("v_and_b32 v%d, 8192, v%d", TMP + 2, TMP + 1)
        a("v_cmpx_eq_u32 vcc, s%d, v%d", sCl, TMP + 2)
        a("buffer_load_dword v%d, v%d, s[%d:%d], 0 offen", TMP, TMP + 1, srdn, srdn + 3)
        a("s_mov_b64 exec, -1")
    def wstep(kb):
        a("s_mul_i32 s%d, s%d, %d", sT, kb, 64 * 3072); a("s_add_u32 s%d, s%d, s%d", sT, sT, sWoff)
        for q in range(3): touch(vWd, sW1, 128 if q else 0)
    def xstep(kb):
        a("s_lshl_b32 s%d, s%d, 7", sT, kb); a("s_add_u32 s%d, s%d, s%d", sT, sT, sXoff)
        for q in range(2): touch(vXd, sX, 64 * 1280 if q else 0)
    def knext(d, sr): a("s_add_u32 s%d, s%d, 1", d, sr); a("s_cmp_eq_u32 s%d, 10", d); a("s_cselect_b32 s%d, 0, s%d", d, d)
    flip = lambda: a("s_xor_b32 s%d, s%d, 8192", sCl, sCl)
    a("s_mov_b32 s%d, %d", sIt, k0)
    a("s_waitcnt lgkmcnt(0)")
    a("s_mov_b64 s[%d:%d], s[40:41]", sX, sX + 1); a("s_mov_b64 s[%d:%d], s[42:43]", sW1, sW1 + 1)
    a("s_cmp_ge_u32 s%d, 1", sWv); a("s_cbranch_scc1 L_pfb" if o["b2e"] else "s_cbranch_scc1 L_pfe")
    if o["dbl"]:
        assert (k1 - k0) % 2 == 1
        a("s_mov_b32 s%d, s%d", sRd, sKb); a("s_sub_u32 s%d, s%d, 1", sIt, sIt)
        a("s_branch L_pfm")
        a.label("L_pf")
        wstep(sKb); knext(sRd, sKb)
        a.label("L_pfm")
        wstep(sRd); flip()
        a("s_cmp_eq_u32 s%d, s%d", sRd, sKb); a("s_cbranch_scc1 L_pfx")
        xstep(sKb)
        a.label("L_pfx")
        xstep(sRd); knext(sKb, sRd)
        a("s_add_u32 s%d, s%d, 2", sIt, sIt)
    else:
        a.label("L_pf")
        if o["xf"]: wstep(sKb); flip(); xstep(sKb); knext(sKb, sKb)
        else: wstep(sKb); xstep(sKb); flip(); knext(sKb, sKb)
        a("s_add_u32 s%d, s%d, 1", sIt, sIt)
    a("s_cmp_lt_u32 s%d, %d", sIt, k1); a("s_cbranch_scc1 L_pf")
    a.label("L_pfe")
    stamp()
    a("s_branch L_hc2")
    if o["b2e"]:
        a.L.append("@B")
        a.label("L_pfb")
        a("s_cmp_lg_u32 s%d, 1", sWv); a("s_cbranch_scc1 L_pfe")
        a("s_cmp_lg_u32 s%d, 25", sI); a("s_cbranch_scc1 L_pfe")
        srd(sO, 48, 640 * 2)
        a("v_lshlrev_b32 v%d, 7, v%d", TMP + 1, vL)
        a("buffer_load_dword v%d, v%d, s[%d:%d], 0 offen", TMP, TMP + 1, sO, sO + 3)
        a("s_branch L_pfe")
    a.L.append("@G")
    a.label("L_hl")
    if o["codepf"]:
        a("s_getpc_b64 s[%d:%d]", sT, sT + 1)
        a("s_sub_u32 s%d, s%d, L_hl-%s_kernel+4", sT, sT, NAME); a("s_subb_u32 s%d, s%d, 0", sT + 1, sT + 1)
        a("v_and_b32 v%d, 255, v0", vT + 3)
        a("v_lshlrev_b32 v%d, 7, v%d", vT + 3, vT + 3)
        a("v_cmp_gt_u32 vcc, L_codeend-%s_kernel, v%d", NAME, vT + 3)
        a("s_and_saveexec_b64 s[%d:%d], vcc", sC1, sC1 + 1)
        a("s_cbranch_execz L_nocode")
        a("s_cmp_lg_u32 s%d, 24", sI); a("s_cbranch_scc1 L_nocode")
        a("global_load_dword v%d, v%d, s[%d:%d]", A2, vT + 3, sT, sT + 1)
        a.label("L_nocode")
        a("s_mov_b64 exec, -1")
    a("s_branch L_hl2")
    a.L.append("@P")
    a.label("L_hl2")
    a("s_memrealtime s[%d:%d]", sNonce, sNonce + 1)
    a("v_lshlrev_b32 v%d, 2, v%d", vT + 4, vL)
    a("v_add_u32 v%d, %d, v%d", vT + 4, SYNC, vT + 4)
    for r in range(5): a("ds_write_b32 v%d, v%d offset:%d", vT + 4, vZ, 256 * r)
    a("s_waitcnt lgkmcnt(0)")
    a("s_cmp_lg_u32 s2, 255"); a("s_cbranch_scc1 L_nolead")
    if "dlead" in o["dbg"]:
        for _ in range(4): a("s_sleep 100")
    hptr(8)
    a("s_lshl_b32 s%d, s%d, 2", sT, sW); a("s_add_u32 s%d, s%d, %d", sT, sT, SYNC + 1280); a("v_mov_b32 v%d, s%d", vT + 3, sT)
    a("ds_write_b32 v%d, v%d", vT + 3, vZ)
    a("s_mov_b64 s[10:11], 0")
    a("s_cmp_lg_u32 s%d, 0", sW); a("s_cbranch_scc1 L_noclr"); a("s_atomic_swap_x2 s[10:11], s[52:53], 0"); a.label("L_noclr")
    a("s_lshl_b32 s%d, s%d, 21", sT, sW); a("s_add_u32 s%d, s%d, %d", sT, sT, 98304 + 7168); a("s_add_u32 s%d, s%d, 8192", sT2, sT)
    a("s_load_dword s12, s[8:9], s%d glc", sT); a("s_load_dword s13, s[8:9], s%d glc", sT2)
    a("s_mov_b32 s14, -1"); a("s_mov_b32 s15, -1"); a("s_mov_b32 s%d, %d", sIt, o["pr"])
    a("s_waitcnt lgkmcnt(0)")
    a.label("L_pr")
    for q in range(2):
        a("s_memtime s[16:17]"); a("s_load_dword s12, s[8:9], s%d glc", sT + q); a("s_waitcnt lgkmcnt(0)")
        a("s_memtime s[18:19]"); a("s_waitcnt lgkmcnt(0)"); a("s_sub_u32 s13, s18, s16"); a("s_min_u32 s%d, s%d, s13", 14 + q, 14 + q)
    a("s_sub_u32 s%d, s%d, 1", sIt, sIt); a("s_cmp_lg_u32 s%d, 0", sIt); a("s_cbranch_scc1 L_pr")
    a("s_cmp_lt_u32 s15, s14"); a("s_cselect_b32 s%d, 2, 1", sT); a("v_mov_b32 v%d, s%d", vT + 4, sT)
    a("ds_write_b32 v%d, v%d", vT + 3, vT + 4)
    a("s_cmp_lg_u32 s%d, 0", sW); a("s_cbranch_scc1 L_nolead")
    a("v_and_b32 v%d, 3, v%d", vT + 4, vL); a("v_lshl_add_u32 v%d, v%d, 2, v%d", vT + 3, vT + 4, vT + 3)
    a.label("L_pc")
    a("ds_read_b32 v%d, v%d", vT + 4, vT + 3)
    a("s_add_u32 s%d, s%d, 1", sIt, sIt); a("s_cmp_gt_u32 s%d, 1000", sIt)
    a("s_waitcnt lgkmcnt(0)")
    a("s_cbranch_scc1 L_pc_x")
    a("v_cmp_eq_u32 vcc, 0, v%d", vT + 4)
    a("s_cbranch_vccnz L_pc")
    a.label("L_pc_x")
    a("v_cmp_eq_u32 vcc, 2, v%d", vT + 4)
    a("s_and_b32 s%d, s%d, 0xffffff", sNonce + 1, sNonce + 1); a("s_bitset1_b32 s%d, 30", sNonce + 1); a("s_nop 1")
    a("s_getreg_b32 s%d, hwreg(HW_REG_XCC_ID)", sT2); a("s_bitcmp1_b32 s%d, 1", sT2); a("s_cselect_b32 s%d, 0, 3", sT2)
    a("s_and_b32 s%d, vcc_lo, 15", sT); a("s_xor_b32 s%d, s%d, s%d", sT, sT, sT2); a("s_lshl_b32 s%d, s%d, 24", sT, sT); a("s_or_b32 s%d, s%d, s%d", sNonce + 1, sNonce + 1, sT)
    a("s_atomic_swap_x2 s[%d:%d], s[52:53], 0", sNonce, sNonce + 1)
    a.label("L_nolead")
    a("s_branch L_su")

    a.L.append("@C")
    nst[0] = 1
    a.label("L_comp")
    FR = 0
    tab_load("L_t1")
    vXr, vWr = 16, 18
    for f in range(4):
        for r in range(1, 4): a("v_mov_b32 v%d, 0", TMP + 4 * f + r)
    for r in range(1, 4): a("v_mov_b32 v%d, 0", vB2 + r)
    a("v_lshrrev_b32 v%d, 4, v%d", vHi, vL)
    a("v_mov_b32 v%d, 0x3f80", vT + 5)
    a("v_cmp_eq_u32 vcc, 0, v%d", vHi)
    a("s_lshr_b32 s%d, s%d, 1", sT, sW); a("s_lshl_b32 s%d, s%d, 6", sT, sT)
    a("v_add_u32 v%d, s%d, v%d", vT + 3, sT, vT + 3)
    a("v_lshlrev_b32 v%d, 7, v%d", vT + 3, vT + 3)
    a("v_bfe_u32 v%d, v%d, 1, 3", vT + 4, vL)
    a("v_xor_b32 v%d, v%d, v%d", vT + 4, vT + 4, vHi)
    a("v_lshl_add_u32 v%d, v%d, 4, v%d", vXr, vT + 4, vT + 3)
    a("v_xor_b32 v%d, 64, v%d", vXr + 1, vXr)
    a("v_bfe_u32 v%d, v%d, 2, 2", vT + 3, vL)
    a("v_lshl_add_u32 v%d, v%d, 3, v%d", vT + 3, vHi, vT + 3)
    a("v_lshlrev_b32 v%d, 7, v%d", vT + 3, vT + 3)
    a("v_bfe_u32 v%d, v%d, 3, 2", vT + 4, vL)
    a("v_lshl_add_u32 v%d, v%d, 5, v%d", vT + 3, vT + 4, vT + 3)
    a("v_and_b32 v%d, 3, v%d", vT + 4, vL)
    a("v_lshl_add_u32 v%d, v%d, 3, v%d", vT + 3, vT + 4, vT + 3)
    a("s_and_b32 s%d, s%d, 1", sT, sW); a("s_lshl_b32 s%d, s%d, 13", sT, sT); a("s_add_u32 s%d, s%d, 16384", sT, sT)
    a("v_add_u32 v%d, s%d, v%d", vWr, sT, vT + 3)
    for f in range(1, 4): a("v_xor_b32 v%d, %d, v%d", vWr + f, 32 * f, vWr)
    a("v_lshlrev_b32 v%d, 2, v%d", vT + 4, vL)
    a("v_add_u32 v%d, %d, v%d", vT + 4, SYNC, vT + 4)
    for r in range(5): a("ds_write_b32 v%d, v%d offset:%d", vT + 4, vZ, 256 * r)
    a("v_cndmask_b32 v%d, 0, v%d, vcc", vB2, vT + 5)
    a("v_mov_b32 v%d, 0x%x", vC0, f2u(C0)); a("v_mov_b32 v%d, v%d", vC0 + 1, vC0)
    a("v_mov_b32 v%d, 1.0", vONE); a("v_mov_b32 v%d, 1.0", vONE + 1)
    a("s_mov_b32 s%d, 0x%x", sC1, f2u(C1)); a("s_mov_b32 s%d, s%d", sC1 + 1, sC1)
    srdH()
    a("s_and_b32 s%d, s%d, 7", sG, sMT); a("s_lshl_b32 s%d, s%d, 20", sG, sG)
    a("s_and_b32 s%d, s%d, 2", sT, sW); a("s_lshl_b32 s%d, s%d, 18", sT, sT); a("s_add_u32 s%d, s%d, s%d", sXoff, sG, sT)
    a("s_lshl_b32 s%d, s%d, 1", sT, sT3); a("s_add_u32 s%d, s%d, s%d", sWoff, sXoff, sT); a("s_add_u32 s%d, s%d, 114688", sWoff, sWoff)
    a("s_lshl_b32 s%d, s%d, 4", sT3, sT3); a("s_and_b32 s%d, s%d, 0xe000", sT, sT3); a("s_add_u32 s%d, s%d, s%d", sT3, sT3, sT); a("s_add_u32 s%d, s%d, s%d", sXoff, sXoff, sT3)
    a("s_lshl_b32 s%d, s%d, 9", sT, sFT); a("s_add_u32 s%d, s%d, s%d", sG, sG, sT); a("s_add_u32 s%d, s%d, 98304", sG, sG)
    a("v_lshlrev_b32 v%d, 4, v%d", vHst, vL)
    if o["tlb"]:
        a("v_lshlrev_b32 v%d, 17, v%d", vT + 4, vL)
        a("s_mov_b64 exec, 15")
        if o["tlb"] == 1:
            a("s_and_b32 s%d, s%d, 0xfffe0000", sT, sXoff); a("s_add_u32 s%d, s%d, %d", sT, sT, 98304 + 7424)
            a("buffer_load_dword v14, v%d, s[%d:%d], s%d offen", vT + 4, sH, sH + 3, sT)
        else:
            a("buffer_load_dword v14, v%d, s[%d:%d], s%d offen sc1", vT + 4, sH, sH + 3, sXoff)
            a("s_add_u32 s%d, s%d, 8192", sT, sXoff)
            a("buffer_load_dword v15, v%d, s[%d:%d], s%d offen sc1", vT + 4, sH, sH + 3, sT)
        a("s_mov_b64 exec, -1")
    a("v_mov_b32 v%d, 1", vT); a("v_mov_b32 v%d, %d", vT + 1, SYNC); a("v_lshlrev_b32 v%d, 3, v%d", vT + 2, vL)
    a("s_mov_b32 s%d, 0", sRd); a("s_mov_b32 s%d, 0", sIt)
    a("s_mov_b32 s%d, %d", sPw, (-(S - 1) * SLOT) & 0xffffffff)
    if o["prio"]: a("s_setprio %d", o["prio"])
    a("s_waitcnt vmcnt(%d) lgkmcnt(0)", o["tlb"])
    for m in range(4):
        for f in range(4):
            r = ACC + (m * 4 + f) * 4
            a("v_mfma_f32_16x16x32_bf16 v[%d:%d], v[%d:%d], v[%d:%d], 0", r, r + 3, TMP + 4 * f, TMP + 4 * f + 3, vB2, vB2 + 3)
    stamp()
    a("s_barrier")
    stamp()
    def reads(s):
        b = 32 * s
        w = lambda f, u: "ds_read_b64_tr_b16 a[%d:%d], v%d offset:%d" % (b + 4 * f + 2 * u, b + 4 * f + 2 * u + 1, vWr + f, s * 4096 + u * 512)
        x = lambda m: "ds_read_b128 a[%d:%d], v%d offset:%d" % (b + 16 + 4 * m, b + 19 + 4 * m, vXr + s, m * 2048)
        return [w(0, 0), w(0, 1), x(0), x(1), x(2), x(3), w(1, 0), w(1, 1), w(2, 0), w(2, 1), w(3, 0), w(3, 1)]
    def mf(buf, f, m):
        b = 32 * buf; r = ACC + (m * 4 + f) * 4
        return "v_mfma_f32_16x16x32_bf16 v[%d:%d], a[%d:%d], a[%d:%d], v[%d:%d]" % (r, r + 3, b + 4 * f, b + 4 * f + 3, b + 16 + 4 * m, b + 19 + 4 * m, r, r + 3)
    def order(): return [(f, m) for f in range(4) for m in (range(4) if (f % 2 == 0 or not o["snake"]) else range(3, -1, -1))]
    upd = lambda r: "v_add_u32 v%d, s%d, v%d" % (r, sDelta, r)
    slot = ["s_add_u32 s%d, s%d, %d" % (sRd, sRd, SLOT), "s_cmp_ge_u32 s%d, %d" % (sRd, S * SLOT), "s_cselect_b32 s%d, s%d, %d" % (sDelta, sPw, SLOT),
            "s_cselect_b32 s%d, 0, s%d" % (sRd, sRd), upd(vXr), "s_add_u32 s%d, s%d, 1" % (sIt, sIt), "s_cmp_lt_u32 s%d, 10" % sIt]
    for r in reads(0): a(r)
    a("@PRE")
    a("s_branch L_p1m")
    a(".p2align 3")
    a("s_nop 0")
    a.label("L_p1b")
    a("s_barrier")
    a.label("L_p1")
    BP = o["bp"]
    O = order()
    def place(R, gaps, fl):
        d = {g: [] for g in gaps}; i = 0
        for g in gaps:
            if i < len(R): d[g].append(R[i]); i += 1
            if fl and i < len(R) and "tr_b16" in d[g][0] and "tr_b16" in R[i]: d[g].append(R[i]); i += 1
        assert i == len(R)
        return d
    u1 = [upd(vXr + 1), upd(vWr), upd(vWr + 1), upd(vWr + 2), upd(vWr + 3)]
    P0 = place(reads(0), list(range(BP, 16)), o["fl"])
    P1 = place(reads(1), list(range(16)), o["fl"])
    def fill(P, gaps, items):
        items = list(items)
        for g in gaps:
            while items and len(P.setdefault(g, [])) < 2 - (1 if any("b128" in e for e in P[g]) else 0) and not any(q > g and any("ds_read" in e for e in P[q]) for q in P):
                P[g].append(items.pop(0))
        return items
    left = fill(P0, range(BP, 15), slot)
    nleft = len(left)
    pre = slot[:len(slot) - nleft]
    for n in range(BP, 16):
        f, m = O[n]
        a(mf(1, f, m))
        for e in P0.get(n, []): a(e)
    a.label("L_p1m")
    rest = fill(P1, range(16), left[:0] + u1)
    need = {0: 6, 4: 8, 8: 10, 12: 12}
    if o["nw"] == 3: need = {0: 8, 8: 10, 12: 12}
    if o["nw"] == 2: need = {0: 10, 12: 12}
    issued = 0
    for n in range(16):
        f, m = O[n]
        if n in need: a("s_waitcnt lgkmcnt(%d)", min(15, 12 - need[n] + issued))
        a(mf(0, f, m))
        for e in P1.get(n, []):
            a(e); issued += "ds_read" in e
    rest = rest + left
    for n in range(BP):
        f, m = O[n]
        if n in (0, 4): a("s_waitcnt lgkmcnt(%d)", 6 if n == 0 else 4)
        a(mf(1, f, m))
        for _ in range(2):
            if rest and n < BP - 1: a(rest.pop(0))
    for e in rest: a(e)
    a("s_waitcnt lgkmcnt(0)")
    a("s_cbranch_scc1 L_p1b")
    for n, (f, m) in enumerate(sorted(O[BP:], key=lambda t: (t[1], t[0]))):
        a(mf(1, f, m))
        if n == 0: a("ds_read_b64 v[%d:%d], v%d offset:8", vPl, vPl + 1, vT + 1)
        if n == 8: a("s_waitcnt lgkmcnt(0)"); a("v_readfirstlane_b32 s%d, v%d", sNonce + 1, vPl + 1)
        if n == 9: a("s_lshr_b32 s%d, s%d, 1", sT, sMT)
        if n == 10: setpol(sNonce + 1)
        if n == 12: a("s_lshr_b32 s%d, s%d, s%d", sT, sPol, sT); a("s_and_b32 s%d, s%d, 8192", sT, sT)
        if n == 13: a("s_add_u32 s%d, s%d, s%d", sXoff, sXoff, sT); a("s_add_u32 s%d, s%d, s%d", sWoff, sWoff, sT)
        if n == 14: a("s_add_u32 s%d, s%d, s%d", sG, sG, sT)
    k0_ = a.L.index("    @PRE"); a.L[k0_:k0_ + 1] = ["    " + e for e in pre]
    jitter("L_j1", 5)
    log[:] = []
    assert BP == 0
    stamp()
    def gelu_list(acc, tmp, outr, n):
        L = []; P = range(n // 2)
        pk = lambda op, d, x, y: "%s v[%d:%d], v[%d:%d], v[%d:%d]" % (op, d, d + 1, x, x + 1, y, y + 1)
        for p in P: L.append(pk("v_pk_mul_f32", tmp + 2 * p, acc + 2 * p, acc + 2 * p))
        for p in P: L.append("v_pk_fma_f32 v[%d:%d], v[%d:%d], s[%d:%d], v[%d:%d]" % (tmp + 2 * p, tmp + 2 * p + 1, tmp + 2 * p, tmp + 2 * p + 1, sC1, sC1 + 1, vC0, vC0 + 1))
        for p in P: L.append(pk("v_pk_mul_f32", tmp + 2 * p, tmp + 2 * p, acc + 2 * p))
        for i in range(n): L.append("v_exp_f32 v%d, v%d" % (tmp + i, tmp + i))
        for p in P: L.append(pk("v_pk_add_f32", tmp + 2 * p, tmp + 2 * p, vONE))
        for i in range(n): L.append("v_rcp_f32 v%d, v%d" % (tmp + i, tmp + i))
        for p in P: L.append(pk("v_pk_mul_f32", tmp + 2 * p, tmp + 2 * p, acc + 2 * p))
        for p in P: L.append("v_cvt_pk_bf16_f32 v%d, v%d, v%d" % (outr + p, tmp + 2 * p, tmp + 2 * p + 1))
        return L
    def publish(part):
        a(vmwait("st%d" % part))
        a("s_mov_b64 exec, 1")
        a("ds_add_rtn_u32 v%d, v%d, v%d offset:%d", vT + 5, vT + 1, vT, 4 * part)
        a("s_waitcnt lgkmcnt(0)")
        a("v_readfirstlane_b32 s%d, v%d", sT2, vT + 5)
        a("s_mov_b64 exec, 0xffff")
        a("s_nop 0")
        a("s_cmp_lg_u32 s%d, 3", sT2); a("s_cbranch_scc1 L_nopub%d", part)
        if o["spub"]: a("s_atomic_swap_x2 s[%d:%d], s[%d:%d], %d", sNonce, sNonce + 1, 80 if not PROF else 84, 81 if not PROF else 85, 256 * part)
        else: a("buffer_store_dwordx2 v[%d:%d], v%d, s[%d:%d], s%d offen offset:%d sc1", vPl, vPl + 1, vT + 2, sH, sH + 3, sG, 256 * part)
        a.label("L_nopub%d" % part)
        a("s_mov_b64 exec, -1")
    a(".p2align 3")
    for hh in range(8):
        ob = OUT + 4 * (hh & 3)
        for e in gelu_list(ACC + 8 * hh, TMP, ob, 8): a(e)
        mt = hh >> 2
        if "nohst" in o["dbg"]: a("s_mov_b64 exec, 1")
        a("buffer_store_dwordx4 v[%d:%d], v%d, s[%d:%d], s%d offen offset:%d %s", ob, ob + 3, vHst, sH, sH + 3, sXoff, (hh & 1) * 1024, o["hst"])
        if hh & 1: a("s_add_u32 s%d, s%d, %d", sXoff, sXoff, 1 << 17)
        if "nohst" in o["dbg"]: a("s_mov_b64 exec, -1")
        log.append("st%d" % mt if hh != 1 else "s1")
        if hh + 1 == o["a1at"]:
            a(vmwait("s1"))
            a("s_mov_b64 exec, 0xffff")
            a("buffer_store_dwordx2 v[%d:%d], v%d, s[%d:%d], s%d offen sc1", vPl, vPl + 1, vT + 2, sH, sH + 3, sWoff); log.append("f1")
            a("s_mov_b64 exec, -1")
            a(".p2align 3")
        if hh + 1 == o["puba"]:
            if hh == 7: stamp(); a("s_setprio 0")
            jitter("L_j3", 6)
            if not o["noa2"]: publish(0)
            jitter("L_j4", 4)
            if hh == 7: stamp()
            else: a(".p2align 3")
    if o["puba"] < 8: stamp(); a("s_setprio 0"); stamp()
    if o["puba"] == 8 and not o["spub"] and not o["noa2"]:
        a("s_cmp_lg_u32 s%d, 3", sT2); a("s_cbranch_scc1 L_pw0"); a("s_waitcnt vmcnt(1)"); a("s_branch L_pw1"); a.label("L_pw0"); a("s_waitcnt vmcnt(0)"); a.label("L_pw1")
        log.extend(["x"] * 60)
    publish(1)
    stamp()
    a.label("L_red")
    a("s_waitcnt lgkmcnt(0)")
    tile_assign(); order_init()
    srd(sO, 48, 640 * 2)
    a("v_and_b32 v%d, 15, v%d", vT + 3, vL); a("v_lshrrev_b32 v%d, 4, v%d", vT + 4, vL)
    a("v_lshlrev_b32 v%d, 3, v%d", vT + 5, vT + 3); a("s_lshl_b32 s%d, s%d, 7", sDl, sDl)
    a("buffer_load_dwordx2 v[%d:%d], v%d, s[%d:%d], s%d offen", vB2 + 2, vB2 + 3, vT + 5, sO, sO + 3, sDl)
    a("s_lshl_b32 s%d, s%d, 2", sT, sW); a("v_add_u32 v%d, s%d, v%d", vT + 4, sT, vT + 4)
    a("v_mul_u32_u24 v%d, 272, v%d", vRr, vT + 4)
    a("v_lshl_add_u32 v%d, v%d, 4, v%d", vRr, vT + 3, vRr)
    a("v_mul_u32_u24 v%d, 1280, v%d", vOst, vT + 4)
    a("v_add3_u32 v%d, v%d, v%d, s%d", vOst, vOst, vT + 5, sDl)
    a("v_and_b32 v%d, 3, v%d", vT + 2, vL); a("v_lshlrev_b32 v%d, 8, v%d", vT + 2, vT + 2); a("v_lshl_add_u32 v%d, v%d, 2, v%d", vT + 2, vL, vT + 2)
    a("v_add_u32 v%d, %d, v%d", vT + 2, SYNC + 256, vT + 2)
    a("s_mov_b32 s%d, %d", sCnt, REDSZ); a("s_mul_i32 s%d, s%d, %d", sNb, sNb, REDSZ); a("s_mov_b32 s%d, 0", sIt)
    a("s_waitcnt vmcnt(0)")
    srd(sO, 50, 2048 * 640 * 2)
    a("v_lshlrev_b32 v%d, 16, v%d", vB2, vB2 + 2); a("v_and_b32 v%d, 0xffff0000, v%d", vB2 + 1, vB2 + 2)
    a("v_lshlrev_b32 v%d, 16, v%d", vB2 + 2, vB2 + 3); a("v_and_b32 v%d, 0xffff0000, v%d", vB2 + 3, vB2 + 3)
    if o["rprio"]: a("s_setprio %d", o["rprio"])
    a.label("L_rw")
    a("ds_read_b32 v%d, v%d", vT + 3, vT + 2)
    if o["spec"]:
        for p in range(4): a("ds_read_b128 v[%d:%d], v%d offset:%d", RD + 4 * p, RD + 4 * p + 3, vRr, 4352 * p)
    a("s_add_u32 s%d, s%d, 1", sIt, sIt); a("s_cmp_gt_u32 s%d, %d", sIt, o["spin"] * 8)
    a("s_waitcnt lgkmcnt(%d)", 4 if o["spec"] else 0)
    a("s_cbranch_scc1 L_rgo")
    a("v_cmp_gt_u32 vcc, s%d, v%d", sCnt, vT + 3)
    a("s_cbranch_vccz L_rgo")
    if o["rlast"]: a("s_cmp_eq_u32 s%d, s%d", sCnt, sNb); a("s_cbranch_scc1 L_rw")
    if o["rsleep"]: a("s_sleep %d", o["rsleep"])
    a("s_branch L_rw")
    a.label("L_rgo")
    jitter("L_j6", 4)
    if not o["spec"]:
        for p in range(4): a("ds_read_b128 v[%d:%d], v%d offset:%d", RD + 4 * p, RD + 4 * p + 3, vRr, 4352 * p)
    a("v_add_u32 v%d, %d, v%d", vRr, REDSZ, vRr)
    a("s_mul_i32 s%d, s%d, %d", sOst, sCur, 16 * 1280)
    for e in order_next: a(e)
    a("s_add_u32 s%d, s%d, %d", sCnt, sCnt, REDSZ)
    def pk(d, x, y):
        a("v_add_f32 v%d, v%d, v%d", d, x, y); a("v_add_f32 v%d, v%d, v%d", d + 1, x + 1, y + 1)
    a("s_waitcnt lgkmcnt(3)")
    pk(RD, RD, vB2); pk(RD + 2, RD + 2, vB2 + 2)
    a("s_waitcnt lgkmcnt(1)")
    pk(RD + 4, RD + 4, RD + 8); pk(RD + 6, RD + 6, RD + 10)
    a("s_waitcnt lgkmcnt(0)")
    pk(RD, RD, RD + 12); pk(RD + 2, RD + 2, RD + 14)
    pk(RD, RD, RD + 4); pk(RD + 2, RD + 2, RD + 6)
    a("v_cvt_pk_bf16_f32 v%d, v%d, v%d", vPl, RD, RD + 1); a("v_cvt_pk_bf16_f32 v%d, v%d, v%d", vPl + 1, RD + 2, RD + 3)
    a("s_cmp_le_u32 s%d, s%d", sCnt, sNb)
    a("buffer_store_dwordx2 v[%d:%d], v%d, s[%d:%d], s%d offen %s", vPl, vPl + 1, vOst, sO, sO + 3, sOst, o["ost"])
    a("s_cbranch_scc1 L_rw")
    pad_to(NSTAMP)
    if PROF: a("s_branch L_fin")
    else: a("s_endpgm")

    a.L.append("@R")
    nst[0] = 2
    a.label("L_hc2")
    tab_load("L_t2")
    if o["w2pf"]:
        srd(sW2, 46, 1536 * 640 * 2)
        a("s_cmp_ge_u32 s%d, 1", sWv); a("s_cbranch_scc1 L_pf2e")
        a("s_and_b32 s%d, s%d, 1", sWoff, sXcd); a("s_mul_i32 s%d, s%d, 640", sWoff, sWoff)
        a("s_mul_i32 s%d, s%d, %d", sT, sM0, 384 * 1280); a("s_add_u32 s%d, s%d, s%d", sWoff, sWoff, sT)
        krot(sRd); a("s_lshl_b32 s%d, s%d, 1", sRd, sRd)
        NKK = len(o["kks"]); MV = o["mv"]
        lst = list(o["kks"]) + list(o["kks"])[NKK - MV:]
        assert len(lst) <= 8
        a("s_mov_b32 s%d, 0x%x", sKb, sum(v << (4 * i) for i, v in enumerate(lst))); a("s_mov_b32 s%d, 0", sIt)
        a("s_cmp_eq_u32 s%d, 0", sM0); a("s_cselect_b32 s%d, %d, %d", sXoff, NKK + MV, NKK)
        a("s_cmp_eq_u32 s%d, 3", sM0); a("s_cselect_b32 s%d, %d, s%d", sXoff, NKK - MV, sXoff)
        a.label("L_pf2")
        a("s_and_b32 s%d, s%d, 15", sT, sKb); a("s_lshr_b32 s%d, s%d, 4", sKb, sKb)
        a("s_add_u32 s%d, s%d, s%d", sT, sT, sRd); a("s_cmp_ge_u32 s%d, 6", sT); a("s_cselect_b32 s%d, 6, 0", sT3); a("s_sub_u32 s%d, s%d, s%d", sT, sT, sT3)
        a("s_mul_i32 s%d, s%d, %d", sT, sT, 64 * 1280); a("s_add_u32 s%d, s%d, s%d", sT, sT, sWoff)
        for q in range(5): touch(vXd, sW2, 128 if q else 0)
        a("s_add_u32 s%d, s%d, 1", sIt, sIt)
        if o["tog2"] == 1: flip()
        else: a("s_lshl_b32 s%d, s%d, 13", sT, sIt); a("s_and_b32 s%d, s%d, 8192", sT, sT); a("s_xor_b32 s%d, s%d, s%d", sCl, sCl, sT)
        a("s_cmp_eq_u32 s%d, %d", sIt, NKK); a("s_cselect_b32 s%d, %d, 0", sT, 3 * 384 * 1280); a("s_add_u32 s%d, s%d, s%d", sWoff, sWoff, sT)
        a("s_cmp_lt_u32 s%d, s%d", sIt, sXoff); a("s_cbranch_scc1 L_pf2")
        a.label("L_pf2e")
    a("s_barrier")
    stamp()
    if PROF: a("s_waitcnt vmcnt(0)")
    pad_to(7)
    a("s_branch L_red")

    a.L.append("@W")
    nst[0] = 2
    a.label("L_lw")
    def gissue(g):
        a("s_add_u32 m0, s%d, %d", sGm, SLO[g % NSL]); a("s_nop 0")
        for i in range(4):
            if o["slide"] and o["gpb"] <= g < o["gpend"]: a("s_waitcnt vmcnt(%d)", o["slide"] - 1)
            a("buffer_load_dwordx4 v%d, s[%d:%d], s%d offen offset:%d lds", vGd + i, sW2, sW2 + 3, sG, 1024 * i); log.append("g%d" % g)
        a("s_add_u32 s%d, s%d, %d", sG, sG, 32 * 1280 if "w2same" not in o["dbg"] else (32 * 1280 if g % 2 == 0 else (-32 * 1280) & 0xffffffff))
        if g in (3, 7):
            a("s_cmp_eq_u32 s%d, %d", sRd, 2 if g == 3 else 1); a("s_cselect_b32 s%d, s%d, s%d", sG, sGw, sG)
    def greads(g):
        L = []
        for t in range(4):
            k, r = w2reg(g * 4 + t)
            for u in range(2): L.append("ds_read_b64_tr_b16 %s[%d:%d], v%d offset:%d" % (k, r + 2 * u, r + 2 * u + 1, vGr + t, SLO[g % NSL] + u * 2048))
        return L
    log[:] = ["p1"]
    srd(sW2, 46, 1536 * 640 * 2)
    gissue(0)
    a("v_mov_b32 v%d, %d", vT + 5, SYNC + 8)
    a("s_cmp_ge_u32 s5, 24"); a("s_cbranch_scc1 L_cb0")
    a("s_cmp_lg_u32 s%d, 0", sW); a("s_cbranch_scc1 L_cb0")
    get_nonce("L_n0")
    a("ds_write_b64 v%d, v[%d:%d]", vT + 5, vPl, vPl + 1)
    a.label("L_cb0")
    for g in range(1, o["pre9"]): gissue(g)
    srdH()
    a("s_waitcnt vmcnt(%d) lgkmcnt(0)", vmcount("p1"))
    a("s_cmp_ge_u32 s5, 24"); a("s_cbranch_scc1 L_cb1")
    a("s_barrier")
    a("ds_read_b64 v[%d:%d], v%d", vPl, vPl + 1, vT + 5)
    a.label("L_cb1")
    stamp()
    a("s_setprio %d", o["lprio"])
    jitter("L_j2", 3)
    pollA = "buffer_load_dwordx2 v[%d:%d], v62, s[%d:%d], 0 offen sc1" % (vPl, vPl + 1, sH, sH + 3)
    pollB = "buffer_load_dwordx2 v[%d:%d], v%d, s[%d:%d], s%d offen sc1" % (vPl, vPl + 1, vFl, sH, sH + 3, sKr)
    chk = "v_cmp_ne_u64 vcc, s[%d:%d], v[%d:%d]" % (sNonce, sNonce + 1, vPl, vPl + 1)
    LAG = NSL - 1
    assert NSL == 3
    for g in range(o["pre9"], LAG): gissue(g)
    for g in range(LAG, 12):
        a(vmwait("g%d" % (g - LAG)))
        a("s_waitcnt lgkmcnt(0)")
        for r in greads(g - LAG): a(r)
        if not o["slide"] and o["gpace"] < 4 * (LAG - 1) and o["gpb"] <= g < o["gpend"]:
            a("s_cmp_ge_u32 s5, 24"); a("s_cbranch_scc1 L_gp%d", g); a("s_waitcnt vmcnt(%d)", o["gpace"]); a.label("L_gp%d" % g)
        gissue(g)
        if g == o["ng"]: get_nonce("L_n1"); lsetup2()
        if g == o["poll0"]: a(pollA.replace("v[%d:%d]" % (vPl, vPl + 1), "v[60:61]")); log.append("p0")
        if g == o["pollg"]: a(pollA); log.append("pa")
        if g == 11 and o["poll0"]:
            a(vmwait("p0")); a(chk.replace("v[%d:%d]" % (vPl, vPl + 1), "v[60:61]")); a("s_cbranch_vccz L_spa_x")
        if PROF and "gall" in o["dbg"] and g in (3, 5, 6, 7, 8, 9, 10): a("s_memtime s[%d:%d]", 8 + 2 * (3, 5, 6, 7, 8, 9, 10).index(g) + (18 if g > 7 else 0), 9 + 2 * (3, 5, 6, 7, 8, 9, 10).index(g) + (18 if g > 7 else 0)) if False else a("s_memtime s[%d:%d]", {3: 8, 5: 10, 6: 12, 7: 14, 8: 28, 9: 30, 10: 40}[g], {3: 9, 5: 11, 6: 13, 7: 15, 8: 29, 9: 31, 10: 41}[g])
        if PROF and "gst" in o["dbg"] and g in (4, 8): a("s_memtime s[%d:%d]", 82 + g // 2, 83 + g // 2)
    stamp()
    def spin(lab, poll):
        a("s_mov_b32 s%d, 0", sT3)
        a.label(lab)
        if o["psleep"]: a("s_sleep %d", o["psleep"])
        a(poll)
        a("s_add_u32 s%d, s%d, 1", sT3, sT3); a("s_cmp_gt_u32 s%d, %d", sT3, o["spin"])
        a("s_waitcnt vmcnt(0)")
        a("s_cbranch_scc1 %s_x", lab)
        a(chk)
        a("s_cbranch_vccnz %s", lab)
        a.label(lab + "_x")
    a(vmwait("pa"))
    a(chk)
    a("s_cbranch_vccz L_spa_x")
    spin("L_spa", pollA)
    stamp()
    D = o["dist"]; NK = 12; NR = 8; PK = 8
    D = 6; PK = 9
    def hload(k, ph):
        r = RING + 4 * ((k + ph) % NR)
        return "buffer_load_dwordx4 v[%d:%d], v%d, s[%d:%d], s%d offen offset:%d %s" % (r, r + 3, vH, sH, sH + 3, sHcur, (k & 3) * 1024, o["hld"])
    def hstep(k): return ["s_add_u32 s%d, s%d, s%d" % (sHcur, sBase, sO1 if k % NK == 3 else sO2)] if k % NK in (3, 7) else []
    for k in range(D):
        a(hload(k, 0)); log.append("h")
        for e in hstep(k): a(e)
        if k == ((PK + D) % NK if not o["noa2"] else o["pbk"]):
            if o["pm"]: a("s_mov_b64 exec, 0xff")
            a(pollB); log.append("pb")
            if o["pm"]: a("s_mov_b64 exec, -1")
    for g in range(12 - LAG, 12):
        a(vmwait("g%d" % g))
        for r in greads(g): a(r)
    a("s_cmp_ge_u32 s5, 24"); a("s_cbranch_scc1 L_cd_x")
    a("v_mov_b32 v62, %d", SYNC + (4 if o["noa2"] else 0)); a("s_mov_b32 s%d, 0", sIt)
    a.label("L_cd")
    a("ds_read_b32 v63, v62")
    a("s_add_u32 s%d, s%d, 1", sIt, sIt); a("s_cmp_gt_u32 s%d, %d", sIt, o["spin"] * 8)
    a("s_waitcnt lgkmcnt(0)")
    a("s_cbranch_scc1 L_cd_x")
    a("v_cmp_gt_u32 vcc, 4, v63")
    a("s_cbranch_vccnz L_cd")
    a.label("L_cd_x")
    a("s_mov_b32 s%d, 1", sIt)
    a("s_setprio %d", o["p2prio"])
    a("s_waitcnt lgkmcnt(0)")
    src = lambda t: (A2 + 4 * t) if t < 2 else (B2 + 4 * (t - 2))
    W = ["ds_write_b128 v%d, v[%d:%d] offset:%d" % (vRw, src(t), src(t) + 3, 64 * t) for t in range(4)]
    sig = ["v_add_u32 v%d, s%d, v%d" % (vRw, sInc, vRw), "ds_write_b32 v%d, v%d" % (vCa, vRw)]
    def mm(t, k, ph, prev=False):
        c = "0" if k == 0 else "v[%d:%d]" % (A2 + 4 * t, A2 + 4 * t + 3)
        d = src(t) if k == NK - 1 else A2 + 4 * t
        kind, w = w2reg(k * 4 + t); h = RING + 4 * ((k - (NK if prev else 0) + ph) % NR)
        return "v_mfma_f32_16x16x32_bf16 v[%d:%d], %s[%d:%d], v[%d:%d], %s" % (d, d + 3, kind, w, w + 3, h, h + 3, c)
    def trip(ph):
        X = {}
        add = lambda ks, g, *e: X.setdefault((ks, g), []).extend(e)
        add(0, 1, W[0]); add(0, 3, W[1]); add(3, 0, W[2]); add(4, 0, W[3]); add(4, 2, sig[0]); add(4, 3, sig[1])
        HB = hbase(sBase, sCur, sT2)
        add(1, 0, order_next[0], order_next[1]); add(1, 2, order_next[2], HB[0]); add(1, 3, HB[1])
        add(2, 0, HB[2], HB[3]); add(2, 1, HB[4]); add(2, 2, HB[5], "s_lshl_b32 s%d, s%d, 7" % (sT, sCur)); add(2, 3, "s_cmp_ge_u32 s%d, s%d" % (sIt, sNb))
        add(3, 1, "s_cselect_b32 s%d, s%d, s%d" % (sBase, sNx, sBase))
        add(5, 0, chk, "s_andn2_b32 s%d, s%d, s%d" % (sT, sKr, sT))
        add(5, 1, "s_cselect_b64 s[%d:%d], 0, -1" % (sT, sT + 1))
        add(5, 2, "s_and_b64 s[%d:%d], s[%d:%d], vcc" % (sT, sT + 1, sT, sT + 1), "s_cbranch_scc1 L_spb%d" % ph, "L_spb%d_r:" % ph)
        add(5, 3, "s_add_u32 s%d, s%d, s%d" % (sHcur, sBase, sO0))
        add(6, 0, "s_movk_i32 s%d, 256" % sKr, "s_mov_b32 s%d, %d" % (sInc, REDSZ))
        add(6, 2, "s_or_b64 vcc, vcc, s[%d:%d]" % (sC1, sC1 + 1), "s_mov_b64 s[%d:%d], 0" % (sC1, sC1 + 1))
        add(PK, 2, "s_mov_b64 exec, vcc", pollB, "s_mov_b64 exec, -1")
        add(NK - 1, 2, "s_add_u32 s%d, s%d, 1" % (sIt, sIt), "s_cmp_le_u32 s%d, s%d" % (sIt, sNb))
        for ks in range(NK):
            between = any(((ks - D + d) % NK) == PK for d in range(D))
            wt = "s_waitcnt vmcnt(%d)" % (D - 1 + (1 if between else 0))
            t0 = 0 if ks & 1 else 2
            if ks == 0: M = [mm(2, NK - 1, ph, True), mm(3, NK - 1, ph, True), mm(2, 0, ph), mm(3, 0, ph)]
            elif o["sn2"] and ks not in (1, NK - 1): M = [mm(t0, ks - 1, ph), mm(t0, ks, ph), mm(t0 + 1, ks, ph), mm(t0 + 1, ks - 1, ph)]
            else: M = [mm(t0, ks - 1, ph), mm(t0, ks, ph), mm(t0 + 1, ks - 1, ph), mm(t0 + 1, ks, ph)]
            ex = {g: list(X.get((ks, g), [])) for g in range(4)}
            if ks == 0: ex[0] = [wt] + ex[0]
            else: a(wt)
            hg = 2 if ks == 0 else 1
            ex[hg] = [hload(ks + D, ph)] + hstep(ks + D) + ex[hg]
            weave(a, M, ex)
        if PROF and "p2st" in o["dbg"]:
            a("s_cselect_b32 s%d, 1, 0", sT)
            for b in ((1, 3, 5) if ph == 0 else (2, 4)):
                r = {1: 66, 2: 68, 3: 70, 4: 84, 5: 86}[b]
                a("s_cmp_lg_u32 s%d, %d", sIt, b + 1); a("s_cbranch_scc1 L_ps%d", b); a("s_memtime s[%d:%d]", r, r + 1); a.label("L_ps%d" % b)
            a("s_cmp_eq_u32 s%d, 1", sT)
    jitter("L_j5", 5)
    a("s_mov_b32 s%d, 0x%x", sNx, OOB); a("s_mov_b64 s[%d:%d], -1", sC1, sC1 + 1)
    a(".p2align 3")
    a.label("L_p2")
    trip(0)
    a("s_cbranch_scc0 L_p2f")
    a(".p2align 3")
    trip(4)
    a("s_cbranch_scc1 L_p2")
    a(mm(2, NK - 1, 4)); a(mm(3, NK - 1, 4)); a("s_branch L_p2e")
    a.label("L_p2f")
    a(mm(2, NK - 1, 0)); a(mm(3, NK - 1, 0)); a("s_nop 0")
    a.label("L_p2e")
    a("s_nop 2"); a(W[0]); a("s_nop 0"); a(W[1]); a("s_nop 0"); a(W[2]); a(W[3])
    for e in sig: a(e)
    stamp()
    if PROF and "p1st" in o["dbg"]:
        a("s_mov_b32 s70, s84"); a("s_mov_b32 s72, s86")
    pad_to(NSTAMP)
    if PROF and "gall" in o["dbg"]:
        for i, r in enumerate((8, 10, 12, 14, 28, 30, 40)): a("s_mov_b32 s%d, s%d", 66 + 2 * i, r)
    if PROF and ("gst" in o["dbg"] or "p2st" in o["dbg"]):
        a("s_mov_b32 s76, s84"); a("s_mov_b32 s78, s86")
    if PROF: a("s_branch L_fin")
    else: a("s_endpgm")
    for ph in (0, 4):
        a.label("L_spb%d" % ph)
        if o["pm"]: a("s_mov_b64 exec, 0xff")
        spin("L_spb%dl" % ph, pollB)
        if o["pm"]: a("s_mov_b64 exec, -1")
        a("s_branch L_spb%d_r", ph)
    a.L.append("@F")
    a.label("L_fin")
    if PROF:
        n = NSTAMP
        a("s_waitcnt vmcnt(0)")
        a("s_memtime s[%d:%d]", 64 + 2 * n, 65 + 2 * n); a("s_memrealtime s[62:63]"); a("s_waitcnt lgkmcnt(0)")
        a("s_add_u32 s8, s54, %d", 128 << 20); a("s_addc_u32 s9, s55, 0"); a("s_mov_b32 s10, 0x100000"); a("s_mov_b32 s11, 0x20000")
        a("s_lshl_b32 s28, s2, 3"); a("s_add_u32 s28, s28, s%d", sWv); a("s_lshl_b32 s28, s28, 6")
        a("v_mov_b32 v0, s28")
        a("s_getreg_b32 s29, hwreg(HW_REG_XCC_ID)")
        vals = ["s60", "s62", "s29"] + ["s%d" % (64 + 2 * i) for i in range(n + 1)]
        vals += ["0"] * (16 - len(vals))
        for i, v in enumerate(vals): a("v_mov_b32 v%d, %s", 4 + i, v)
        a("s_mov_b64 exec, 1")
        for i in range(4): a("buffer_store_dwordx4 v[%d:%d], v0, s[8:11], 0 offen offset:%d", 4 + 4 * i, 7 + 4 * i, 16 * i)
    if PROF and o.get("probe") is not None:
        pw, pv, pi = o["probe"]
        a("s_cmp_lg_u32 s2, %d", pw); a("s_cbranch_scc1 L_end")
        a("s_cmp_lg_u32 s%d, %d", sWv, pv); a("s_cbranch_scc1 L_end")
        if pi == "start": a("s_sub_u32 s30, s60, s%d", sNonce); a("s_add_u32 s30, s30, 200"); a("s_lshl_b32 s30, s30, 2")
        else: a("s_sub_u32 s30, s%d, s64", 64 + 2 * pi); a("s_lshl_b32 s30, s30, 2"); a("s_add_u32 s30, s30, 300")
        a("s_min_u32 s30, s30, 20000")
        a.label("L_spin")
        a("s_memrealtime s[32:33]"); a("s_waitcnt lgkmcnt(0)")
        a("s_sub_u32 s32, s32, s62"); a("s_cmp_lt_u32 s32, s30"); a("s_cbranch_scc1 L_spin")
    a.label("L_end")
    a("s_endpgm")
    a(".p2align 6")
    a(".type L_table,@object")
    a.label("L_table")
    W = make_table(o)
    for k in range(0, 256, 8): a(".long " + ", ".join("0x%x" % w for w in W[k:k + 8]))
    a.label("L_codeend")
    sec = {"E": []}; cur = "E"
    for l in a.L:
        if l.startswith("@"): cur = l[1]; sec[cur] = []
        else: sec[cur].append(l)
    a.L = []
    for c in o["lay"] + "F":
        if c == "|": a.L.append("    .p2align 12")
        if c in sec: a.L += sec[c]
    a.L = [l for i, l in enumerate(a.L) if not (l.startswith("    s_branch ") and i + 1 < len(a.L) and a.L[i + 1] == l.split()[1] + ":")]
    if o["dfl"]: a.L = [l[:-4] + " " + o["dfl"] + " lds" if l.endswith(" lds") else l for l in a.L]
    if "rt" in o["dbg"].split(): a.L = [l.replace("s_memtime", "s_memrealtime") if "s[1" not in l else l for l in a.L]
    s = HEAD + "; @launch grid=(256,1,1) block=(512,1,1) lds=163840\n"
    s += '.amdgcn_target "amdgcn-amd-amdhsa--gfx950"\n.text\n'
    n = NAME + "_kernel"
    if o["pad"] is not None: s += ".p2align 12\n.fill %d, 4, 0xbf800000\n" % (o["pad"] // 4)
    s += ".globl %s\n.p2align 8\n.type %s,@function\n%s:\n%s" % (n, n, n, a.text())
    s += '''.section .rodata,"a"
.p2align 6
.amdhsa_kernel %s
  .amdhsa_next_free_vgpr 256
  .amdhsa_next_free_sgpr 102
  .amdhsa_accum_offset 128
  .amdhsa_group_segment_fixed_size 0
  .amdhsa_kernarg_size 64
  .amdhsa_user_sgpr_count 2
  .amdhsa_user_sgpr_kernarg_segment_ptr 1
  .amdhsa_system_sgpr_workgroup_id_x 1
  .amdhsa_float_denorm_mode_32 3
  .amdhsa_float_denorm_mode_16_64 3
.end_amdhsa_kernel
''' % n
    return s
if __name__ == "__main__":
    kw = json.loads(sys.argv[2]) if len(sys.argv) > 2 else {}
    open(sys.argv[1], "w").write(gen(**kw))
```

```python
import struct, sys, json
def f2u(x): return struct.unpack("<I", struct.pack("<f", x))[0]
C0 = -2.0 * 0.7978845608028654 * 1.4426950408889634
C1 = C0 * 0.044715
NAME = "standalone__dense_activation_gelu__prompt"
HEAD = open("cdna_kernels/%s.s.ref" % NAME).read().split("; Override launch geometry")[0]
FLAGOFF = 8 << 20
OOB = 0x7f000000
DEF = dict(prof=False, a1=4, a2=4, rot1="x", pf=(1, 10), w2pf=True, hst="sc1", ost="nt", dist=7, spin=1000000, codepf=True,
           out=8, prio=1, hsame=False, psleep=4, dbg="", gpace=1, gpend=9, rsleep=3, p2prio=1, swap46=False, krot=True, hdelay=0,
           pollg=11, puba=8, nsl=3, hs=49152, lprio=0, ng=4, swapx=True, rotx=0, hbal=False, pad=0xD00, lay="EGHRBPST|W|C", tmap="half", alt=0, light=0, snake=True, barpos=16, nw=2, bp=0, fl=1, poll0=0, spub=False, rprio=0, l1prio=0, lwait=8, spec=False, lfrom=2, lstep=1, gpb=4, pre9=1, sup=3, np=8, dbl=0, tog2=1, mv=2, xf=0, b2e=0, tlb=0, sn2=1, pgb=9, noa2=0, pbk=3, slide=0, w64=0, pex=1, nocls=False, a1at=6, pm=0, mid=False, hwait=0, pr=3, polx=0, pskip=True, rlast=True, wpos=(2, 3), hld="sc1", tfl="", dfl="", kks=(0, 1, 2, 3, 4, 5))

DOC = """; Fused MLP, one launch, 256 workgroups of 8 waves (one per CU; generated by a script of my own).
;           four ways) and stream h, waves 0-3 sum the four partial tiles, add b2 and store.
;  h is laid out in the 8 KB chunks of d_ws that are close to the dies using it (found anew in every launch; this
"""
class A:
    def __init__(self): self.L = []
    def __call__(self, s, *args): self.L.append("    " + (s % args if args else s))
    def label(self, s): self.L.append(s + ":")
    def text(self): return "\n".join(self.L) + "\n"

def weave(a, main, extra):
    for i, m in enumerate(main):
        a(m)
        for e in extra.get(i, []): a(e)

def make_table(o):
    T = {}
    for x in range(8):
        par, q = x & 1, x >> 1
        tiles = []
        if o["a2"] == 8:
            par = 0
            if o["tmap"] == "cur":
                for i in range(32):
                    dl, rb, n = i >> 1, 6 + 5 * (i & 1), 5
                    if i >= 16: dl, rb, n = (i >> 2) + 4, 4 * (i & 3), 4
                    if i >= 24: dl, rb, n = i - 24, 0, 6
                    tiles.append((dl, rb + 16 * x, n))
            else:
                four = {0: (0, 4), 1: (1, 5), 2: (2, 6), 3: (3, 7), 4: (0, 4), 5: (2, 6), 6: (1,), 7: (3,), 8: (5,), 9: (7,)}
                six = {6: (3, 5, 7), 7: (0, 5, 7), 8: (1, 2, 6), 9: (1, 3, 4)}
                for dl in range(10):
                    c = lambda k: 4 if k in four[dl] else 3
                    d = lambda k: (-1 if (dl < 6 and k in four[dl]) else (1 if k in six.get(dl, ()) else 0))
                    rb = sum(5 * c(k) + d(k) for k in range(x))
                    for k in range(c(x)):
                        n = 5 + (d(x) if k == 0 else 0)
                        tiles.append((dl, rb, n)); rb += n
                t6 = [t for t in tiles if t[2] == 6]; t4 = [t for t in tiles if t[2] == 4]; t5 = [t for t in tiles if t[2] == 5]
                nh = 8 - len(t6) - len(t4)
                tiles = t5[nh:] + t4 + t5[:nh] + t6
        elif o["tmap"] == "cur":
            for i in range(32):
                dl, rb, n = i >> 2, 12 + 5 * (i & 3), 5
                if i >= 20: dl, rb, n = 3 + (i & 1), ((i - 20) >> 1) * 4, 4
                if i >= 26: dl, rb, n = (i - 26) >> 1, 6 * (i & 1), 6
                tiles.append((dl, rb + 32 * q, n))
        else:
            cnt = [[7, 6, 7, 6], [6, 7, 6, 7], [7, 6, 6, 7], [6, 7, 6, 6], [6, 6, 7, 6]]
            odd = [[-1, 0, -1, 0], [0, -1, 0, -1], [-1, 0, 0, -1], [1, 0, 1, 1], [1, 1, 0, 1]]
            if o["tmap"] == "half":
                cnt = [[7, 6, 7, 6], [6, 7, 6, 7], [7, 6, 7, 6], [6, 7, 6, 7], [6, 6, 6, 6]]
                odd = [[-1, 0, -1, 0], [0, -1, 0, -1], [-1, 0, -1, 0], [0, -1, 0, -1], [2, 2, 2, 2]]
            for dl in range(5):
                rb = sum(5 * cnt[dl][k] + odd[dl][k] for k in range(q))
                for k in range(cnt[dl][q]):
                    n = 5 + (odd[dl][q] if k == 0 else 0)
                    if odd[dl][q] == 2: n = 6 if k in (0, 2) else 5
                    tiles.append((dl, rb, n)); rb += n
            t6 = [t for t in tiles if t[2] == 6]; t4 = [t for t in tiles if t[2] == 4]; t5 = [t for t in tiles if t[2] == 5]
            nh = 8 - len(t6) - len(t4)
            tiles = t5[nh:] + t4 + t5[:nh] + t6
        assert len(tiles) == 32
        for i, (dl, rb, n) in enumerate(tiles):
            E = [b for b in range(rb, rb + n) if not b & 2]; Lt = [b for b in range(rb, rb + n) if b & 2]
            if o["alt"] == 1 and dl & 1: E.reverse(); Lt.reverse()
            if o["alt"] == 2:
                r = dl % len(E); E = E[r:] + E[:r]; r = dl % len(Lt); Lt = Lt[r:] + Lt[:r]
            k = next(k for k, b in enumerate(E) if b % 4 == 0)
            E = [E[k]] + E[:k] + E[k + 1:]
            assert len(E) >= 2
            T[x + 8 * i] = (dl + 5 * par, rb, E + Lt)
    cov = set()
    W = []
    for wg in range(256):
        dl, rb, seq = T[wg]
        for b in seq:
            assert (dl, b) not in cov; cov.add((dl, b))
        w = dl | (rb << 4) | (len(seq) << 11)
        for k, b in enumerate(seq): w |= (b - rb) << (14 + 3 * k)
        W.append(w)
    assert len(cov) == 1280
    return W

def gen(**kw):
    o = dict(DEF); o.update(kw)
    a = A()
    PROF = o["prof"]
    nst = [1]
    def stamp():
        if not PROF: return
        a("s_memtime s[%d:%d]", 64 + 2 * nst[0], 65 + 2 * nst[0]); nst[0] += 1
        a("s_waitcnt lgkmcnt(0)")
    def pad_to(n):
        assert nst[0] <= n, nst[0]
        while PROF and nst[0] < n: stamp()
    NSTAMP = 8
    sX, sW1, sW2, sH, sO = 8, 12, 16, 20, 24
    sWv, sXcd, sI, sMT, sFT = 3, 4, 5, 6, 7
    sXoff, sWoff, sM0, sKb, sDelta, sIt, sT, sT2, sT3, sRd = 28, 29, 30, 31, 32, 33, 34, 35, 36, 37
    sC1 = 38
    sNonce = 56
    sRb, sNb, sDl, sG, sGm, sHcur, sCnt, sOst, sNx, sNw, sPw, sW = 58, 59, 92, 93, 94, 95, 96, 97, 98, 99, 100, 101
    sCur, sEnd, sBase, sO0, sO1, sO2, sInc, sGw, sKr = 0, 1, 82, 88, 89, 90, 91, 97, 96
    vL, vZ = 1, 2
    vT = 8
    vPl = 4
    vH, vFl, vRw, vCa = 0, 3, 6, 7
    vXd, vWd, vGd, vGr = 16, 20, 24, 56
    RING, A2, B2 = 8, 40, 56
    def w2reg(i): return ("a", 4 * i) if i < 32 else ("v", 64 + 4 * (i - 32))
    vHi, vXr, vWr, vC0, vONE, vHst = 3, 16, 20, 22, 24, 26
    vRr, vOst, vB2 = 6, 7, 28
    ACC, TMP, OUT = 32, 96, 112
    RD = 32
    NSL = o["nsl"]; REDSZ = 17408; SYNC = 9 * REDSZ
    SLO = [REDSZ, 2 * REDSZ, 3 * REDSZ, 0]
    SLOT = 32768; S = 3
    def srd(d, lo, nbytes):
        a("s_mov_b64 s[%d:%d], s[%d:%d]", d, d + 1, lo, lo + 1)
        a("s_mov_b32 s%d, %d", d + 2, nbytes); a("s_mov_b32 s%d, 0x20000", d + 3)
    def mod3(dst, src):
        a("s_mul_i32 s%d, s%d, 86", sT, src); a("s_lshr_b32 s%d, s%d, 8", sT, sT); a("s_mul_i32 s%d, s%d, 3", sT, sT); a("s_sub_u32 s%d, s%d, s%d", dst, src, sT)
    def krot(dst):
        if o["krot"]:
            if o["a2"] == 4: a("s_lshr_b32 s%d, s%d, 1", dst, sXcd); a("s_cmp_eq_u32 s%d, 3", dst); a("s_cselect_b32 s%d, 0, s%d", dst, dst)
            else: mod3(dst, sXcd)
        else: a("s_mov_b32 s%d, 0", dst)

    a("s_load_dwordx16 s[40:55], s[0:1], 0")
    a("s_cmp_ge_u32 s2, 256"); a("s_cbranch_scc1 L_end")
    if PROF:
        a("s_memrealtime s[60:61]"); a("s_memtime s[64:65]")
    a("v_lshrrev_b32 v%d, 6, v0", vT)
    a("v_and_b32 v%d, 63, v0", vL)
    a("v_readfirstlane_b32 s%d, v%d", sWv, vT)
    a("s_and_b32 s%d, s2, 7", sXcd); a("s_lshr_b32 s%d, s2, 3", sI)
    a("v_lshrrev_b32 v%d, 3, v%d", vT, vL)
    a("v_and_b32 v%d, 7, v%d", vT + 1, vL)
    a("v_lshrrev_b32 v%d, 1, v%d", vT + 2, vT)
    a("v_mov_b32 v%d, 0", vZ)
    a("s_and_b32 s%d, s%d, 3", sW, sWv)
    def jitter(lab, sh):
        if "drand" not in o["dbg"]: return
        a("s_memtime s[60:61]"); a("s_waitcnt lgkmcnt(0)"); a("s_lshr_b32 s60, s60, %d", sh); a("s_mul_i32 s61, s2, 7"); a("s_add_u32 s60, s60, s61"); a("s_add_u32 s60, s60, s3")
        a("s_and_b32 s60, s60, 15"); a("s_cmp_lg_u32 s60, 0"); a("s_cbranch_scc1 %s", lab); a("s_sleep 60"); a.label(lab)
    jitter("L_j0", 4)
    if o["rotx"] == 0: a("s_mul_i32 s%d, s%d, 10", sKb, sXcd); a("s_lshr_b32 s%d, s%d, 3", sKb, sKb)
    else:
        tab = {1: [0, 5, 2, 7, 5, 0, 7, 2], 2: [0, 5, 3, 8, 5, 0, 8, 3], 3: [0, 6, 2, 8, 5, 1, 7, 3]}[o["rotx"]]
        a("s_lshl_b32 s%d, s%d, 2", sKb, sXcd); a("s_lshr_b32 s%d, 0x%x, s%d", sKb, sum(v << (4 * i) for i, v in enumerate(tab)), sKb); a("s_and_b32 s%d, s%d, 15", sKb, sKb)
    a("s_mov_b32 s%d, %d", sX + 2, 2048 * 640 * 2); a("s_mov_b32 s%d, 0x20000", sX + 3)
    a("s_mov_b32 s%d, %d", sW1 + 2, 640 * 1536 * 2); a("s_mov_b32 s%d, 0x20000", sW1 + 3)
    a("s_cmp_ge_u32 s%d, 24", sI); a("s_cbranch_scc1 L_helper")
    if o["a1"] == 4:
        a("s_lshr_b32 s%d, s%d, 1", sMT, sXcd); a("s_lshl_b32 s%d, s%d, 2", sMT, sMT)
        a("s_and_b32 s%d, s%d, 3", sT, sI); a("s_add_u32 s%d, s%d, s%d", sMT, sMT, sT)
        a("s_and_b32 s%d, s%d, 1", sFT, sXcd); a("s_mul_i32 s%d, s%d, 6", sFT, sFT)
        a("s_lshr_b32 s%d, s%d, 2", sT2, sI); a("s_add_u32 s%d, s%d, s%d", sFT, sFT, sT2)
    else:
        a("s_lshl_b32 s%d, s%d, 1", sMT, sXcd); a("s_and_b32 s%d, s%d, 1", sT, sI); a("s_add_u32 s%d, s%d, s%d", sMT, sMT, sT)
        a("s_lshr_b32 s%d, s%d, 1", sT2, sI); a("s_mov_b32 s%d, s%d", sFT, sT2)
    a("s_cmp_lt_u32 s%d, 4", sWv); a("s_cbranch_scc1 L_c0")
    a.label("L_ldr")

    sTab = 83; sPol = 63
    HBYTES = 8 << 20
    def hbase(dst, rb, tmp):
        return ["s_lshr_b32 s%d, s%d, 4" % (tmp, rb), "s_lshr_b32 s%d, s%d, s%d" % (tmp, sPol, tmp), "s_and_b32 s%d, s%d, 8192" % (tmp, tmp),
                "s_and_b32 s%d, s%d, 63" % (dst, rb), "s_lshl_b32 s%d, s%d, 17" % (dst, dst), "s_or_b32 s%d, s%d, s%d" % (dst, dst, tmp)]
    def setpol(hi):
        a("s_bfe_u32 s%d, s%d, 0x40018", sPol, hi); a("s_mul_i32 s%d, s%d, 17", sPol, sPol); a("s_xor_b32 s%d, s%d, %d", sPol, sPol, 15 ^ o["polx"]); a("s_lshl_b32 s%d, s%d, 13", sPol, sPol)
    def hptr(d):
        a("s_sub_u32 s%d, 0, s54", d); a("s_and_b32 s%d, s%d, 0x1fffff", d, d); a("s_add_u32 s%d, s54, s%d", d, d); a("s_addc_u32 s%d, s55, 0", d + 1)
    def srdH():
        hptr(sH); a("s_mov_b32 s%d, %d", sH + 2, HBYTES); a("s_mov_b32 s%d, 0x20000", sH + 3)
    def tab_load(lab):
        a("s_getpc_b64 s[%d:%d]", sT, sT + 1)
        a.label(lab)
        a("s_add_u32 s%d, s%d, L_table-%s", sT, sT, lab); a("s_addc_u32 s%d, s%d, 0", sT + 1, sT + 1)
        a("s_lshl_b32 s%d, s2, 2", sTab)
        a("s_load_dword s%d, s[%d:%d], s%d", sTab, sT, sT + 1, sTab)
    def tile_assign():
        a("s_and_b32 s%d, s%d, 15", sDl, sTab); a("s_bfe_u32 s%d, s%d, 0x70004", sRb, sTab); a("s_bfe_u32 s%d, s%d, 0x3000b", sNb, sTab)
        a("s_lshr_b32 s%d, s%d, 14", sTab, sTab)
    def order_init():
        a("s_add_u32 s%d, s%d, s%d", sEnd, sRb, sNb)
        a("s_and_b32 s%d, s%d, 7", sCur, sTab); a("s_add_u32 s%d, s%d, s%d", sCur, sCur, sRb)
    order_next = ["s_lshr_b32 s%d, s%d, 3" % (sTab, sTab), "s_and_b32 s%d, s%d, 7" % (sCur, sTab), "s_add_u32 s%d, s%d, s%d" % (sCur, sCur, sRb), "s_bitcmp1_b32 s%d, 1" % sCur]
    log = []
    def vmcount(tag):
        idx = max(i for i, t in enumerate(log) if t == tag)
        return len(log) - 1 - idx
    def vmwait(tag): return "s_waitcnt vmcnt(%d)" % vmcount(tag)
    nload = "buffer_load_dwordx2 v[%d:%d], v%d, s[%d:%d], 0 offen sc1" % (vPl, vPl + 1, vZ, sO, sO + 3)
    def get_nonce(lab):
        a("s_mov_b32 s%d, 0", sIt)
        a.label(lab)
        a("v_readfirstlane_b32 s%d, v%d", sNonce, vPl); a("v_readfirstlane_b32 s%d, v%d", sNonce + 1, vPl + 1)
        a("s_add_u32 s%d, s%d, 1", sIt, sIt); a("s_nop 1")
        a("s_bitcmp1_b32 s%d, 30", sNonce + 1); a("s_cbranch_scc1 %s_ok", lab)
        a("s_cmp_gt_u32 s%d, %d", sIt, o["spin"]); a("s_cbranch_scc1 %s_ok", lab)
        a(nload); a("s_waitcnt vmcnt(0)"); a("s_branch %s", lab)
        a.label(lab + "_ok")

    def lsetup():
        a("v_lshlrev_b32 v%d, 1, v%d", vT + 3, vT + 2)
        a("v_xor_b32 v%d, v%d, v%d", vT + 3, vT + 1, vT + 3)
        a("v_mul_u32_u24 v%d, 1280, v%d", vGd, vT)
        a("v_lshl_add_u32 v%d, v%d, 4, v%d", vGd, vT + 3, vGd)
        for i in range(1, 4): a("v_add_u32 v%d, %d, v%d", vGd + i, i * (8 * 1280 - 1024), vGd)
        krot(sRd)
        a("s_mul_i32 s%d, s%d, 4352", sGm, sW); a("s_add_u32 s%d, s%d, %d", sGm, sGm, 5 * REDSZ)
        a("v_lshrrev_b32 v%d, 2, v%d", vT + 3, vL)
        a("v_lshlrev_b32 v%d, 7, v%d", vT + 3, vT + 3)
        a("v_bfe_u32 v%d, v%d, 3, 2", vT + 4, vL)
        a("v_lshl_add_u32 v%d, v%d, 5, v%d", vT + 3, vT + 4, vT + 3)
        a("v_and_b32 v%d, 3, v%d", vT + 4, vL)
        a("v_lshl_add_u32 v%d, v%d, 3, v%d", vT + 3, vT + 4, vT + 3)
        a("v_add_u32 v%d, s%d, v%d", vGr, sGm, vT + 3)
        for t in range(1, 4): a("v_xor_b32 v%d, %d, v%d", vGr + t, 32 * t, vGr)
        a("v_lshlrev_b32 v%d, 4, v%d", vH, vL)
        a("s_mul_i32 s%d, s%d, 3", sT3, sW); a("s_add_u32 s%d, s%d, s%d", sO0, sT3, sRd)
        a("s_add_u32 s%d, s%d, 1", sO1, sO0); a("s_cmp_eq_u32 s%d, 2", sRd); a("s_cselect_b32 s%d, s%d, s%d", sO1, sT3, sO1)
        a("s_add_u32 s%d, s%d, 1", sO2, sO1); a("s_cmp_eq_u32 s%d, 1", sRd); a("s_cselect_b32 s%d, s%d, s%d", sO2, sT3, sO2)
        for r in (sO0, sO1, sO2):
            a("s_and_b32 s%d, s%d, 14", sT, r); a("s_add_u32 s%d, s%d, s%d", r, r, sT); a("s_lshl_b32 s%d, s%d, 12", r, r)
        a("v_and_b32 v%d, 15, v%d", vT + 3, vL); a("v_lshrrev_b32 v%d, 4, v%d", vT + 4, vL)
        a("v_mul_u32_u24 v%d, 272, v%d", vRw, vT + 3)
        a("v_lshl_add_u32 v%d, v%d, 4, v%d", vRw, vT + 4, vRw)
        a("s_mul_i32 s%d, s%d, 4352", sT, sW); a("v_add_u32 v%d, s%d, v%d", vRw, sT, vRw)
        a("s_lshl_b32 s%d, s%d, 8", sT, sW); a("s_add_u32 s%d, s%d, %d", sT, sT, SYNC + 256)
        a("v_lshl_add_u32 v%d, v%d, 2, s%d", vCa, vL, sT)
        a("s_waitcnt lgkmcnt(0)")
        tile_assign()
        a("s_mul_i32 s%d, s%d, %d", sGw, sW, 384 * 1280); a("s_lshl_b32 s%d, s%d, 7", sT, sDl); a("s_add_u32 s%d, s%d, s%d", sGw, sGw, sT)
        a("s_mul_i32 s%d, s%d, %d", sT, sRd, 128 * 1280); a("s_add_u32 s%d, s%d, s%d", sG, sGw, sT)
        order_init()
    def lsetup2():
        setpol(sNonce + 1)
        a("s_mul_i32 s%d, s%d, 3", sT3, sW)
        a("s_and_b32 s%d, s%d, 0x78", sInc, sRb)
        for e in hbase(sBase, sInc, sT): a(e)
        a("s_sub_u32 s%d, s%d, 1", sInc, sEnd); a("s_and_b32 s%d, s%d, 0x78", sInc, sInc)
        for e in hbase(sT2, sInc, sT): a(e)
        a("v_mov_b32 v%d, s%d", vT + 3, sBase); a("v_mov_b32 v%d, s%d", vT + 4, sT2); a("v_cmp_lt_u32 vcc, 31, v%d", vL)
        a("v_bfe_u32 v%d, v%d, 3, 2", vFl, vL); a("v_min_u32 v%d, 2, v%d", vFl, vFl); a("v_add_u32 v%d, s%d, v%d", vFl, sT3, vFl)
        a("v_cndmask_b32 v%d, v%d, v%d, vcc", vT + 3, vT + 3, vT + 4)
        a("v_lshl_add_u32 v%d, v%d, 9, v%d", vFl, vFl, vT + 3); a("v_add_u32 v%d, 98304, v%d", vFl, vFl)
        for e in hbase(sBase, sCur, sT): a(e)
        a("s_add_u32 s%d, s%d, s%d", sHcur, sBase, sO0)
        a("s_mov_b32 s%d, 0", sInc); a("s_mov_b32 s%d, %d", sKr, 256 if o["noa2"] else 0)
        a("s_lshl_b32 s%d, s%d, 9", sT, sT3); a("s_add_u32 s%d, s%d, s%d", sT, sT, sBase); a("s_add_u32 s%d, s%d, 114688", sT, sT)
        a("v_min_u32 v62, 5, v%d", vT); a("v_lshl_add_u32 v62, v62, 8, s%d", sT)
    sSa, sSb, sMb = sG, sGm, sC1
    a("s_add_u32 s%d, s%d, s%d", sRd, sT, sT2); a("s_and_b32 s%d, s%d, %d", sRd, sRd, 1 if o["swapx"] else 0)
    a("s_lshl2_add_u32 s%d, s%d, s%d", sXoff, sMT, sW); a("s_mul_i32 s%d, s%d, 320", sXoff, sXoff); a("s_add_u32 s%d, s%d, s%d", sXoff, sXoff, sKb)
    a("s_and_b32 s%d, s%d, 1", sT, sW); a("s_lshl1_add_u32 s%d, s%d, s%d", sT, sKb, sT); a("s_mul_i32 s%d, s%d, 768", sT, sT)
    a("s_lshr_b32 s%d, s%d, 1", sT2, sW); a("s_lshl1_add_u32 s%d, s%d, s%d", sT2, sFT, sT2); a("s_add_u32 s%d, s%d, s%d", sT, sT, sT2)
    a("s_movk_i32 s%d, 1280", sMT); a("s_movk_i32 s%d, 3072", sFT)
    a("s_cmp_eq_u32 s%d, 1", sRd)
    a("s_cselect_b32 s%d, s%d, s%d", sWoff, sXoff, sT); a("s_cselect_b32 s%d, s%d, s%d", sXoff, sT, sXoff)
    a("s_cselect_b32 s%d, s%d, s%d", sT, sFT, sMT); a("s_cselect_b32 s%d, s%d, s%d", sT2, sMT, sFT)
    a("s_cselect_b32 s%d, s%d, s%d", sT3, sW1 + 2, sX + 2); a("s_cselect_b32 s%d, s%d, s%d", sW1 + 2, sX + 2, sW1 + 2); a("s_mov_b32 s%d, s%d", sX + 2, sT3)
    a("s_lshl_b32 s%d, s%d, 7", sXoff, sXoff); a("s_lshl_b32 s%d, s%d, 7", sWoff, sWoff)
    a("s_lshl2_add_u32 s%d, s%d, s%d", sM0, sRd, sW); a("s_lshl_b32 s%d, s%d, 12", sM0, sM0); a("s_mov_b32 m0, s%d", sM0)
    def offs(v, pitch, sh):
        a("v_lshlrev_b32 v%d, s%d, v%d", vT + 3, sh, vT + 2); a("v_and_b32 v%d, 3, v%d", vT + 3, vT + 3); a("v_xor_b32 v%d, v%d, v%d", vT + 3, vT + 1, vT + 3)
        a("v_mul_u32_u24 v%d, s%d, v%d", v, pitch, vT); a("v_lshl_add_u32 v%d, v%d, 4, v%d", v, vT + 3, v)
        a("s_lshl_b32 s%d, s%d, 3", pitch, pitch); a("s_addk_i32 s%d, -1024", pitch)
        a("v_xor_b32 v%d, 64, v%d", v + 1, v); a("v_add_u32 v%d, s%d, v%d", v + 1, pitch, v + 1)
        a("s_lshl_b32 s%d, s%d, 1", pitch, pitch)
        a("v_add_u32 v%d, s%d, v%d", v + 2, pitch, v); a("v_add_u32 v%d, s%d, v%d", v + 3, pitch, v + 1)
    offs(vXd, sT, sRd)
    a("s_xor_b32 s%d, s%d, 1", sT3, sRd)
    offs(vWd, sT2, sT3)
    a("s_movk_i32 s%d, 128", sT); a("s_mov_b32 s%d, %d", sT2, 64 * 3072); a("s_mov_b32 s%d, -1", sIt)
    a("s_cmp_eq_u32 s%d, 1", sRd)
    a("s_cselect_b32 s%d, s%d, s%d", sMT, sT2, sT); a("s_cselect_b32 s%d, s%d, s%d", sFT, sT, sT2)
    sSa, sSb = sMT, sFT
    a("s_mul_i32 s%d, s%d, -9", sNx, sSa); a("s_mul_i32 s%d, s%d, -9", sNw, sSb)
    a("s_waitcnt lgkmcnt(0)")
    a("s_cselect_b64 s[%d:%d], s[42:43], s[40:41]", sX, sX + 1); a("s_cselect_b64 s[%d:%d], s[40:41], s[42:43]", sW1, sW1 + 1)
    def dma(i):
        if "nodma" in o["dbg"]: return "s_nop 0"
        if i < 4: return "buffer_load_dwordx4 v%d, s[%d:%d], s%d offen offset:%d lds" % (vXd + i, sX, sX + 3, sXoff, 1024 * i)
        return "buffer_load_dwordx4 v%d, s[%d:%d], s%d offen offset:%d lds" % (vWd + i - 4, sW1, sW1 + 3, sWoff, 1024 * (i - 4))
    if o["l1prio"]: a("s_setprio %d", o["l1prio"])
    stamp()
    def ldloop(lab, first, last_it):
        a.label(lab)
        thr = (not first) and o["lwait"] < 8
        for i in range(4):
            if thr: a("s_waitcnt vmcnt(%d)", o["lwait"] - 1)
            a(dma(i))
        a("s_xor_b32 m0, s%d, 16384", sM0)
        if first and o["mid"]:
            a("s_cmp_lt_i32 s%d, 0", sIt); a("s_cbranch_scc1 L_ldn"); a("s_waitcnt vmcnt(4)"); a("s_barrier"); a.label("L_ldn")
        a("s_add_u32 s%d, s%d, 1", sKb, sKb); a("s_cmp_eq_u32 s%d, 10", sKb)
        a("s_cselect_b32 s%d, s%d, s%d", sDelta, sNx, sSa); a("s_cselect_b32 s%d, s%d, s%d", sPw, sNw, sSb); a("s_cselect_b32 s%d, 0, s%d", sKb, sKb)
        for i in range(4, 8):
            if thr: a("s_waitcnt vmcnt(%d)", o["lwait"] - 1)
            a(dma(i))
        a("s_add_u32 s%d, s%d, s%d", sXoff, sXoff, sDelta); a("s_add_u32 s%d, s%d, s%d", sWoff, sWoff, sPw)
        a("s_add_u32 s%d, s%d, %d", sM0, sM0, SLOT); a("s_cmp_ge_u32 s%d, %d", sM0, S * SLOT)
        a("s_cselect_b32 s%d, %d, 0", sT, S * SLOT); a("s_sub_u32 s%d, s%d, s%d", sM0, sM0, sT); a("s_mov_b32 m0, s%d", sM0)
        a("s_add_u32 s%d, s%d, 1", sIt, sIt)
        if first and o["mid"]:
            a("s_cmp_lt_u32 s%d, %d", sIt, last_it - 1); a("s_cbranch_scc1 %s", lab)
            a("s_branch L_su")
        elif first:
            a("s_cbranch_scc1 %s", lab)
            a("s_cmp_eq_u32 s%d, %d", sIt, last_it); a("s_cbranch_scc1 L_su")
            a("s_waitcnt vmcnt(8)"); a("s_barrier")
            a("s_branch %s", lab)
        else:
            a("s_cmp_lg_u32 s%d, s%d", sIt, sNonce); a("s_cbranch_scc1 %sw", lab); a(nload)
            a.label(lab + "w")
            a("s_cmp_lt_u32 s%d, %d", sIt, last_it)
            a("s_waitcnt vmcnt(8)"); a("s_barrier")
            a("s_cbranch_scc1 %s", lab)
    ldloop("L_ld", True, o["sup"])
    a.label("L_c0")
    a("v_and_b32 v%d, 15, v%d", vT + 3, vL)
    a("v_lshlrev_b32 v%d, 1, v%d", vT + 5, vT + 3)
    a("s_bfe_u32 s%d, s%d, 0x10000", sT, sW); a("s_lshl1_add_u32 s%d, s%d, s%d", sT3, sFT, sT); a("s_lshl_b32 s%d, s%d, 7", sT3, sT3)
    a("s_movk_i32 s%d, %d", sO + 2, 1536 * 2); a("s_mov_b32 s%d, s%d", sO + 3, sX + 3)
    a("s_waitcnt lgkmcnt(0)")
    a("s_mov_b64 s[%d:%d], s[44:45]", sO, sO + 1)
    for f in range(4): a("buffer_load_ushort v%d, v%d, s[%d:%d], s%d offen offset:%d", TMP + 4 * f, vT + 5, sO, sO + 3, sT3, 32 * f)
    a("s_branch L_comp")
    a.L.append("@S")
    a.label("L_su")
    tab_load("L_t0")
    lsetup()
    srd(sO, 52, 256)
    a("s_cmp_eq_u32 s%d, 0", sW); a("s_cselect_b32 s%d, %d, -1", sNonce, o["np"])
    a("s_cmp_lt_u32 s5, 24"); a("s_cbranch_scc1 L_ld2w")
    a("s_barrier")
    a(nload)
    nst[0] = 1; stamp()
    a("s_branch L_lw")
    a.L.append("@T")
    ldloop("L_ld2", False, 9)
    a("s_branch L_lw")
    nst[0] = 1
    a.L.append("@H")
    a.label("L_helper")
    a("s_cmp_lt_u32 s%d, 4", sWv); a("s_cbranch_scc0 L_hl")
    a("v_mul_u32_u24 v%d, 1280, v%d", vXd, vL); a("v_mul_u32_u24 v%d, 3072, v%d", vWd, vL)
    sCl = sNx
    k0, k1 = o["pf"]
    a("s_bfe_u32 s%d, s%d, 0x20001", sM0, sI)
    a("s_and_b32 s%d, s%d, 1", sCl, sI); a("s_lshl_b32 s%d, s%d, 13", sCl, sCl)
    a("s_add_u32 s%d, s%d, %d", sKb, sKb, k0); a("s_cmp_ge_u32 s%d, 10", sKb); a("s_cselect_b32 s%d, 10, 0", sT); a("s_sub_u32 s%d, s%d, s%d", sKb, sKb, sT)
    a("s_lshr_b32 s%d, s%d, 1", sT, sXcd); a("s_lshl2_add_u32 s%d, s%d, s%d", sXoff, sT, sM0); a("s_mul_i32 s%d, s%d, %d", sXoff, sXoff, 128 * 1280)
    a("s_and_b32 s%d, s%d, 1", sT, sXcd); a("s_lshl2_add_u32 s%d, s%d, s%d", sWoff, sT, sM0); a("s_mul_i32 s%d, s%d, 384", sWoff, sWoff)
    def touch(v, srdn, off):
        a("v_add3_u32 v%d, s%d, v%d, %s", TMP + 1, sT, v, "0") if off == 0 else a("v_add_u32 v%d, %d, v%d", TMP + 1, off, TMP + 1)
        a("v_and_b32 v%d, 8192, v%d", TMP + 2, TMP + 1)
        a("v_cmpx_eq_u32 vcc, s%d, v%d", sCl, TMP + 2)
        a("buffer_load_dword v%d, v%d, s[%d:%d], 0 offen", TMP, TMP + 1, srdn, srdn + 3)
        a("s_mov_b64 exec, -1")
    def wstep(kb):
        a("s_mul_i32 s%d, s%d, %d", sT, kb, 64 * 3072); a("s_add_u32 s%d, s%d, s%d", sT, sT, sWoff)
        for q in range(3): touch(vWd, sW1, 128 if q else 0)
    def xstep(kb):
        a("s_lshl_b32 s%d, s%d, 7", sT, kb); a("s_add_u32 s%d, s%d, s%d", sT, sT, sXoff)
        for q in range(2): touch(vXd, sX, 64 * 1280 if q else 0)
    def knext(d, sr): a("s_add_u32 s%d, s%d, 1", d, sr); a("s_cmp_eq_u32 s%d, 10", d); a("s_cselect_b32 s%d, 0, s%d", d, d)
    flip = lambda: a("s_xor_b32 s%d, s%d, 8192", sCl, sCl)
    a("s_mov_b32 s%d, %d", sIt, k0)
    a("s_waitcnt lgkmcnt(0)")
    a("s_mov_b64 s[%d:%d], s[40:41]", sX, sX + 1); a("s_mov_b64 s[%d:%d], s[42:43]", sW1, sW1 + 1)
    a("s_cmp_ge_u32 s%d, 1", sWv); a("s_cbranch_scc1 L_pfb" if o["b2e"] else "s_cbranch_scc1 L_pfe")
    if o["dbl"]:
        assert (k1 - k0) % 2 == 1
        a("s_mov_b32 s%d, s%d", sRd, sKb); a("s_sub_u32 s%d, s%d, 1", sIt, sIt)
        a("s_branch L_pfm")
        a.label("L_pf")
        wstep(sKb); knext(sRd, sKb)
        a.label("L_pfm")
        wstep(sRd); flip()
        a("s_cmp_eq_u32 s%d, s%d", sRd, sKb); a("s_cbranch_scc1 L_pfx")
        xstep(sKb)
        a.label("L_pfx")
        xstep(sRd); knext(sKb, sRd)
        a("s_add_u32 s%d, s%d, 2", sIt, sIt)
    else:
        a.label("L_pf")
        if o["xf"]: wstep(sKb); flip(); xstep(sKb); knext(sKb, sKb)
        else: wstep(sKb); xstep(sKb); flip(); knext(sKb, sKb)
        a("s_add_u32 s%d, s%d, 1", sIt, sIt)
    a("s_cmp_lt_u32 s%d, %d", sIt, k1); a("s_cbranch_scc1 L_pf")
    a.label("L_pfe")
    stamp()
    a("s_branch L_hc2")
    if o["b2e"]:
        a.L.append("@B")
        a.label("L_pfb")
        a("s_cmp_lg_u32 s%d, 1", sWv); a("s_cbranch_scc1 L_pfe")
        a("s_cmp_lg_u32 s%d, 25", sI); a("s_cbranch_scc1 L_pfe")
        srd(sO, 48, 640 * 2)
        a("v_lshlrev_b32 v%d, 7, v%d", TMP + 1, vL)
        a("buffer_load_dword v%d, v%d, s[%d:%d], 0 offen", TMP, TMP + 1, sO, sO + 3)
        a("s_branch L_pfe")
    a.L.append("@G")
    a.label("L_hl")
    if o["codepf"]:
        a("s_getpc_b64 s[%d:%d]", sT, sT + 1)
        a("s_sub_u32 s%d, s%d, L_hl-%s_kernel+4", sT, sT, NAME); a("s_subb_u32 s%d, s%d, 0", sT + 1, sT + 1)
        a("v_and_b32 v%d, 255, v0", vT + 3)
        a("v_lshlrev_b32 v%d, 7, v%d", vT + 3, vT + 3)
        a("v_cmp_gt_u32 vcc, L_codeend-%s_kernel, v%d", NAME, vT + 3)
        a("s_and_saveexec_b64 s[%d:%d], vcc", sC1, sC1 + 1)
        a("s_cbranch_execz L_nocode")
        a("s_cmp_lg_u32 s%d, 24", sI); a("s_cbranch_scc1 L_nocode")
        a("global_load_dword v%d, v%d, s[%d:%d]", A2, vT + 3, sT, sT + 1)
        a.label("L_nocode")
        a("s_mov_b64 exec, -1")
    a("s_branch L_hl2")
    a.L.append("@P")
    a.label("L_hl2")
    a("s_memrealtime s[%d:%d]", sNonce, sNonce + 1)
    a("v_lshlrev_b32 v%d, 2, v%d", vT + 4, vL)
    a("v_add_u32 v%d, %d, v%d", vT + 4, SYNC, vT + 4)
    for r in range(5): a("ds_write_b32 v%d, v%d offset:%d", vT + 4, vZ, 256 * r)
    a("s_waitcnt lgkmcnt(0)")
    a("s_cmp_lg_u32 s2, 255"); a("s_cbranch_scc1 L_nolead")
    if "dlead" in o["dbg"]:
        for _ in range(4): a("s_sleep 100")
    hptr(8)
    a("s_lshl_b32 s%d, s%d, 2", sT, sW); a("s_add_u32 s%d, s%d, %d", sT, sT, SYNC + 1280); a("v_mov_b32 v%d, s%d", vT + 3, sT)
    a("ds_write_b32 v%d, v%d", vT + 3, vZ)
    a("s_mov_b64 s[10:11], 0")
    a("s_cmp_lg_u32 s%d, 0", sW); a("s_cbranch_scc1 L_noclr"); a("s_atomic_swap_x2 s[10:11], s[52:53], 0"); a.label("L_noclr")
    a("s_lshl_b32 s%d, s%d, 21", sT, sW); a("s_add_u32 s%d, s%d, %d", sT, sT, 98304 + 7168); a("s_add_u32 s%d, s%d, 8192", sT2, sT)
    a("s_load_dword s12, s[8:9], s%d glc", sT); a("s_load_dword s13, s[8:9], s%d glc", sT2)
    a("s_mov_b32 s14, -1"); a("s_mov_b32 s15, -1"); a("s_mov_b32 s%d, %d", sIt, o["pr"])
    a("s_waitcnt lgkmcnt(0)")
    a.label("L_pr")
    for q in range(2):
        a("s_memtime s[16:17]"); a("s_load_dword s12, s[8:9], s%d glc", sT + q); a("s_waitcnt lgkmcnt(0)")
        a("s_memtime s[18:19]"); a("s_waitcnt lgkmcnt(0)"); a("s_sub_u32 s13, s18, s16"); a("s_min_u32 s%d, s%d, s13", 14 + q, 14 + q)
    a("s_sub_u32 s%d, s%d, 1", sIt, sIt); a("s_cmp_lg_u32 s%d, 0", sIt); a("s_cbranch_scc1 L_pr")
    a("s_cmp_lt_u32 s15, s14"); a("s_cselect_b32 s%d, 2, 1", sT); a("v_mov_b32 v%d, s%d", vT + 4, sT)
    a("ds_write_b32 v%d, v%d", vT + 3, vT + 4)
    a("s_cmp_lg_u32 s%d, 0", sW); a("s_cbranch_scc1 L_nolead")
    a("v_and_b32 v%d, 3, v%d", vT + 4, vL); a("v_lshl_add_u32 v%d, v%d, 2, v%d", vT + 3, vT + 4, vT + 3)
    a.label("L_pc")
    a("ds_read_b32 v%d, v%d", vT + 4, vT + 3)
    a("s_add_u32 s%d, s%d, 1", sIt, sIt); a("s_cmp_gt_u32 s%d, 1000", sIt)
    a("s_waitcnt lgkmcnt(0)")
    a("s_cbranch_scc1 L_pc_x")
    a("v_cmp_eq_u32 vcc, 0, v%d", vT + 4)
    a("s_cbranch_vccnz L_pc")
    a.label("L_pc_x")
    a("v_cmp_eq_u32 vcc, 2, v%d", vT + 4)
    a("s_and_b32 s%d, s%d, 0xffffff", sNonce + 1, sNonce + 1); a("s_bitset1_b32 s%d, 30", sNonce + 1); a("s_nop 1")
    a("s_getreg_b32 s%d, hwreg(HW_REG_XCC_ID)", sT2); a("s_bitcmp1_b32 s%d, 1", sT2); a("s_cselect_b32 s%d, 0, 3", sT2)
    a("s_and_b32 s%d, vcc_lo, 15", sT); a("s_xor_b32 s%d, s%d, s%d", sT, sT, sT2); a("s_lshl_b32 s%d, s%d, 24", sT, sT); a("s_or_b32 s%d, s%d, s%d", sNonce + 1, sNonce + 1, sT)
    a("s_atomic_swap_x2 s[%d:%d], s[52:53], 0", sNonce, sNonce + 1)
    a.label("L_nolead")
    a("s_branch L_su")

    a.L.append("@C")
    nst[0] = 1
    a.label("L_comp")
    FR = 0
    tab_load("L_t1")
    vXr, vWr = 16, 18
    for f in range(4):
        for r in range(1, 4): a("v_mov_b32 v%d, 0", TMP + 4 * f + r)
    for r in range(1, 4): a("v_mov_b32 v%d, 0", vB2 + r)
    a("v_lshrrev_b32 v%d, 4, v%d", vHi, vL)
    a("v_mov_b32 v%d, 0x3f80", vT + 5)
    a("v_cmp_eq_u32 vcc, 0, v%d", vHi)
    a("s_lshr_b32 s%d, s%d, 1", sT, sW); a("s_lshl_b32 s%d, s%d, 6", sT, sT)
    a("v_add_u32 v%d, s%d, v%d", vT + 3, sT, vT + 3)
    a("v_lshlrev_b32 v%d, 7, v%d", vT + 3, vT + 3)
    a("v_bfe_u32 v%d, v%d, 1, 3", vT + 4, vL)
    a("v_xor_b32 v%d, v%d, v%d", vT + 4, vT + 4, vHi)
    a("v_lshl_add_u32 v%d, v%d, 4, v%d", vXr, vT + 4, vT + 3)
    a("v_xor_b32 v%d, 64, v%d", vXr + 1, vXr)
    a("v_bfe_u32 v%d, v%d, 2, 2", vT + 3, vL)
    a("v_lshl_add_u32 v%d, v%d, 3, v%d", vT + 3, vHi, vT + 3)
    a("v_lshlrev_b32 v%d, 7, v%d", vT + 3, vT + 3)
    a("v_bfe_u32 v%d, v%d, 3, 2", vT + 4, vL)
    a("v_lshl_add_u32 v%d, v%d, 5, v%d", vT + 3, vT + 4, vT + 3)
    a("v_and_b32 v%d, 3, v%d", vT + 4, vL)
    a("v_lshl_add_u32 v%d, v%d, 3, v%d", vT + 3, vT + 4, vT + 3)
    a("s_and_b32 s%d, s%d, 1", sT, sW); a("s_lshl_b32 s%d, s%d, 13", sT, sT); a("s_add_u32 s%d, s%d, 16384", sT, sT)
    a("v_add_u32 v%d, s%d, v%d", vWr, sT, vT + 3)
    for f in range(1, 4): a("v_xor_b32 v%d, %d, v%d", vWr + f, 32 * f, vWr)
    a("v_lshlrev_b32 v%d, 2, v%d", vT + 4, vL)
    a("v_add_u32 v%d, %d, v%d", vT + 4, SYNC, vT + 4)
    for r in range(5): a("ds_write_b32 v%d, v%d offset:%d", vT + 4, vZ, 256 * r)
    a("v_cndmask_b32 v%d, 0, v%d, vcc", vB2, vT + 5)
    a("v_mov_b32 v%d, 0x%x", vC0, f2u(C0)); a("v_mov_b32 v%d, v%d", vC0 + 1, vC0)
    a("v_mov_b32 v%d, 1.0", vONE); a("v_mov_b32 v%d, 1.0", vONE + 1)
    a("s_mov_b32 s%d, 0x%x", sC1, f2u(C1)); a("s_mov_b32 s%d, s%d", sC1 + 1, sC1)
    srdH()
    a("s_and_b32 s%d, s%d, 7", sG, sMT); a("s_lshl_b32 s%d, s%d, 20", sG, sG)
    a("s_and_b32 s%d, s%d, 2", sT, sW); a("s_lshl_b32 s%d, s%d, 18", sT, sT); a("s_add_u32 s%d, s%d, s%d", sXoff, sG, sT)
    a("s_lshl_b32 s%d, s%d, 1", sT, sT3); a("s_add_u32 s%d, s%d, s%d", sWoff, sXoff, sT); a("s_add_u32 s%d, s%d, 114688", sWoff, sWoff)
    a("s_lshl_b32 s%d, s%d, 4", sT3, sT3); a("s_and_b32 s%d, s%d, 0xe000", sT, sT3); a("s_add_u32 s%d, s%d, s%d", sT3, sT3, sT); a("s_add_u32 s%d, s%d, s%d", sXoff, sXoff, sT3)
    a("s_lshl_b32 s%d, s%d, 9", sT, sFT); a("s_add_u32 s%d, s%d, s%d", sG, sG, sT); a("s_add_u32 s%d, s%d, 98304", sG, sG)
    a("v_lshlrev_b32 v%d, 4, v%d", vHst, vL)
    if o["tlb"]:
        a("v_lshlrev_b32 v%d, 17, v%d", vT + 4, vL)
        a("s_mov_b64 exec, 15")
        if o["tlb"] == 1:
            a("s_and_b32 s%d, s%d, 0xfffe0000", sT, sXoff); a("s_add_u32 s%d, s%d, %d", sT, sT, 98304 + 7424)
            a("buffer_load_dword v14, v%d, s[%d:%d], s%d offen", vT + 4, sH, sH + 3, sT)
        else:
            a("buffer_load_dword v14, v%d, s[%d:%d], s%d offen sc1", vT + 4, sH, sH + 3, sXoff)
            a("s_add_u32 s%d, s%d, 8192", sT, sXoff)
            a("buffer_load_dword v15, v%d, s[%d:%d], s%d offen sc1", vT + 4, sH, sH + 3, sT)
        a("s_mov_b64 exec, -1")
    a("v_mov_b32 v%d, 1", vT); a("v_mov_b32 v%d, %d", vT + 1, SYNC); a("v_lshlrev_b32 v%d, 3, v%d", vT + 2, vL)
    a("s_mov_b32 s%d, 0", sRd); a("s_mov_b32 s%d, 0", sIt)
    a("s_mov_b32 s%d, %d", sPw, (-(S - 1) * SLOT) & 0xffffffff)
    if o["prio"]: a("s_setprio %d", o["prio"])
    a("s_waitcnt vmcnt(%d) lgkmcnt(0)", o["tlb"])
    for f in range(4): a("v_cndmask_b32 v%d, 0, v%d, vcc", TMP + 4 * f, TMP + 4 * f)
    for m in range(4):
        for f in range(4):
            r = ACC + (m * 4 + f) * 4
            a("v_mfma_f32_16x16x32_bf16 v[%d:%d], v[%d:%d], v[%d:%d], 0", r, r + 3, TMP + 4 * f, TMP + 4 * f + 3, vB2, vB2 + 3)
    stamp()
    a("s_barrier")
    stamp()
    def reads(s):
        b = 32 * s
        w = lambda f, u: "ds_read_b64_tr_b16 a[%d:%d], v%d offset:%d" % (b + 4 * f + 2 * u, b + 4 * f + 2 * u + 1, vWr + f, s * 4096 + u * 512)
        x = lambda m: "ds_read_b128 a[%d:%d], v%d offset:%d" % (b + 16 + 4 * m, b + 19 + 4 * m, vXr + s, m * 2048)
        return [w(0, 0), w(0, 1), x(0), x(1), x(2), x(3), w(1, 0), w(1, 1), w(2, 0), w(2, 1), w(3, 0), w(3, 1)]
    def mf(buf, f, m):
        b = 32 * buf; r = ACC + (m * 4 + f) * 4
        return "v_mfma_f32_16x16x32_bf16 v[%d:%d], a[%d:%d], a[%d:%d], v[%d:%d]" % (r, r + 3, b + 4 * f, b + 4 * f + 3, b + 16 + 4 * m, b + 19 + 4 * m, r, r + 3)
    def order(): return [(f, m) for f in range(4) for m in (range(4) if (f % 2 == 0 or not o["snake"]) else range(3, -1, -1))]
    upd = lambda r: "v_add_u32 v%d, s%d, v%d" % (r, sDelta, r)
    slot = ["s_add_u32 s%d, s%d, %d" % (sRd, sRd, SLOT), "s_cmp_ge_u32 s%d, %d" % (sRd, S * SLOT), "s_cselect_b32 s%d, s%d, %d" % (sDelta, sPw, SLOT),
            "s_cselect_b32 s%d, 0, s%d" % (sRd, sRd), upd(vXr), "s_add_u32 s%d, s%d, 1" % (sIt, sIt), "s_cmp_lt_u32 s%d, 10" % sIt]
    for r in reads(0): a(r)
    a("@PRE")
    a("s_branch L_p1m")
    a(".p2align 3")
    a("s_nop 0")
    a.label("L_p1b")
    a("s_barrier")
    a.label("L_p1")
    BP = o["bp"]
    O = order()
    def place(R, gaps, fl):
        d = {g: [] for g in gaps}; i = 0
        for g in gaps:
            if i < len(R): d[g].append(R[i]); i += 1
            if fl and i < len(R) and "tr_b16" in d[g][0] and "tr_b16" in R[i]: d[g].append(R[i]); i += 1
        assert i == len(R)
        return d
    u1 = [upd(vXr + 1), upd(vWr), upd(vWr + 1), upd(vWr + 2), upd(vWr + 3)]
    P0 = place(reads(0), list(range(BP, 16)), o["fl"])
    P1 = place(reads(1), list(range(16)), o["fl"])
    def fill(P, gaps, items):
        items = list(items)
        for g in gaps:
            while items and len(P.setdefault(g, [])) < 2 - (1 if any("b128" in e for e in P[g]) else 0) and not any(q > g and any("ds_read" in e for e in P[q]) for q in P):
                P[g].append(items.pop(0))
        return items
    left = fill(P0, range(BP, 15), slot)
    nleft = len(left)
    pre = slot[:len(slot) - nleft]
    for n in range(BP, 16):
        f, m = O[n]
        a(mf(1, f, m))
        for e in P0.get(n, []): a(e)
    a.label("L_p1m")
    rest = fill(P1, range(16), left[:0] + u1)
    need = {0: 6, 4: 8, 8: 10, 12: 12}
    if o["nw"] == 3: need = {0: 8, 8: 10, 12: 12}
    if o["nw"] == 2: need = {0: 10, 12: 12}
    issued = 0
    for n in range(16):
        f, m = O[n]
        if n in need: a("s_waitcnt lgkmcnt(%d)", min(15, 12 - need[n] + issued))
        a(mf(0, f, m))
        for e in P1.get(n, []):
            a(e); issued += "ds_read" in e
    rest = rest + left
    for n in range(BP):
        f, m = O[n]
        if n in (0, 4): a("s_waitcnt lgkmcnt(%d)", 6 if n == 0 else 4)
        a(mf(1, f, m))
        for _ in range(2):
            if rest and n < BP - 1: a(rest.pop(0))
    for e in rest: a(e)
    a("s_waitcnt lgkmcnt(0)")
    a("s_cbranch_scc1 L_p1b")
    for n, (f, m) in enumerate(sorted(O[BP:], key=lambda t: (t[1], t[0]))):
        a(mf(1, f, m))
        if n == 0: a("ds_read_b64 v[%d:%d], v%d offset:8", vPl, vPl + 1, vT + 1)
        if n == 8: a("s_waitcnt lgkmcnt(0)"); a("v_readfirstlane_b32 s%d, v%d", sNonce + 1, vPl + 1)
        if n == 9: a("s_lshr_b32 s%d, s%d, 1", sT, sMT)
        if n == 10: setpol(sNonce + 1)
        if n == 12: a("s_lshr_b32 s%d, s%d, s%d", sT, sPol, sT); a("s_and_b32 s%d, s%d, 8192", sT, sT)
        if n == 13: a("s_add_u32 s%d, s%d, s%d", sXoff, sXoff, sT); a("s_add_u32 s%d, s%d, s%d", sWoff, sWoff, sT)
        if n == 14: a("s_add_u32 s%d, s%d, s%d", sG, sG, sT)
    k0_ = a.L.index("    @PRE"); a.L[k0_:k0_ + 1] = ["    " + e for e in pre]
    jitter("L_j1", 5)
    log[:] = []
    assert BP == 0
    stamp()
    def gelu_list(acc, tmp, outr, n):
        L = []; P = range(n // 2)
        pk = lambda op, d, x, y: "%s v[%d:%d], v[%d:%d], v[%d:%d]" % (op, d, d + 1, x, x + 1, y, y + 1)
        for p in P: L.append(pk("v_pk_mul_f32", tmp + 2 * p, acc + 2 * p, acc + 2 * p))
        for p in P: L.append("v_pk_fma_f32 v[%d:%d], v[%d:%d], s[%d:%d], v[%d:%d]" % (tmp + 2 * p, tmp + 2 * p + 1, tmp + 2 * p, tmp + 2 * p + 1, sC1, sC1 + 1, vC0, vC0 + 1))
        for p in P: L.append(pk("v_pk_mul_f32", tmp + 2 * p, tmp + 2 * p, acc + 2 * p))
        for i in range(n): L.append("v_exp_f32 v%d, v%d" % (tmp + i, tmp + i))
        for p in P: L.append(pk("v_pk_add_f32", tmp + 2 * p, tmp + 2 * p, vONE))
        for i in range(n): L.append("v_rcp_f32 v%d, v%d" % (tmp + i, tmp + i))
        for p in P: L.append(pk("v_pk_mul_f32", tmp + 2 * p, tmp + 2 * p, acc + 2 * p))
        for p in P: L.append("v_cvt_pk_bf16_f32 v%d, v%d, v%d" % (outr + p, tmp + 2 * p, tmp + 2 * p + 1))
        return L
    def publish(part):
        a(vmwait("st%d" % part))
        a("s_mov_b64 exec, 1")
        a("ds_add_rtn_u32 v%d, v%d, v%d offset:%d", vT + 5, vT + 1, vT, 4 * part)
        a("s_waitcnt lgkmcnt(0)")
        a("v_readfirstlane_b32 s%d, v%d", sT2, vT + 5)
        a("s_mov_b64 exec, 0xffff")
        a("s_nop 0")
        a("s_cmp_lg_u32 s%d, 3", sT2); a("s_cbranch_scc1 L_nopub%d", part)
        if o["spub"]: a("s_atomic_swap_x2 s[%d:%d], s[%d:%d], %d", sNonce, sNonce + 1, 80 if not PROF else 84, 81 if not PROF else 85, 256 * part)
        else: a("buffer_store_dwordx2 v[%d:%d], v%d, s[%d:%d], s%d offen offset:%d sc1", vPl, vPl + 1, vT + 2, sH, sH + 3, sG, 256 * part)
        a.label("L_nopub%d" % part)
        a("s_mov_b64 exec, -1")
    a(".p2align 3")
    for hh in range(8):
        ob = OUT + 4 * (hh & 3)
        for e in gelu_list(ACC + 8 * hh, TMP, ob, 8): a(e)
        mt = hh >> 2
        if "nohst" in o["dbg"]: a("s_mov_b64 exec, 1")
        a("buffer_store_dwordx4 v[%d:%d], v%d, s[%d:%d], s%d offen offset:%d %s", ob, ob + 3, vHst, sH, sH + 3, sXoff, (hh & 1) * 1024, o["hst"])
        if hh & 1: a("s_add_u32 s%d, s%d, %d", sXoff, sXoff, 1 << 17)
        if "nohst" in o["dbg"]: a("s_mov_b64 exec, -1")
        log.append("st%d" % mt if hh != 1 else "s1")
        if hh + 1 == o["a1at"]:
            a(vmwait("s1"))
            a("s_mov_b64 exec, 0xffff")
            a("buffer_store_dwordx2 v[%d:%d], v%d, s[%d:%d], s%d offen sc1", vPl, vPl + 1, vT + 2, sH, sH + 3, sWoff); log.append("f1")
            a("s_mov_b64 exec, -1")
            a(".p2align 3")
        if hh + 1 == o["puba"]:
            if hh == 7: stamp(); a("s_setprio 0")
            jitter("L_j3", 6)
            if not o["noa2"]: publish(0)
            jitter("L_j4", 4)
            if hh == 7: stamp()
            else: a(".p2align 3")
    if o["puba"] < 8: stamp(); a("s_setprio 0"); stamp()
    if o["puba"] == 8 and not o["spub"] and not o["noa2"]:
        a("s_cmp_lg_u32 s%d, 3", sT2); a("s_cbranch_scc1 L_pw0"); a("s_waitcnt vmcnt(1)"); a("s_branch L_pw1"); a.label("L_pw0"); a("s_waitcnt vmcnt(0)"); a.label("L_pw1")
        log.extend(["x"] * 60)
    publish(1)
    stamp()
    a.label("L_red")
    a("s_waitcnt lgkmcnt(0)")
    tile_assign(); order_init()
    srd(sO, 48, 640 * 2)
    a("v_and_b32 v%d, 15, v%d", vT + 3, vL); a("v_lshrrev_b32 v%d, 4, v%d", vT + 4, vL)
    a("v_lshlrev_b32 v%d, 3, v%d", vT + 5, vT + 3); a("s_lshl_b32 s%d, s%d, 7", sDl, sDl)
    a("buffer_load_dwordx2 v[%d:%d], v%d, s[%d:%d], s%d offen", vB2 + 2, vB2 + 3, vT + 5, sO, sO + 3, sDl)
    a("s_lshl_b32 s%d, s%d, 2", sT, sW); a("v_add_u32 v%d, s%d, v%d", vT + 4, sT, vT + 4)
    a("v_mul_u32_u24 v%d, 272, v%d", vRr, vT + 4)
    a("v_lshl_add_u32 v%d, v%d, 4, v%d", vRr, vT + 3, vRr)
    a("v_mul_u32_u24 v%d, 1280, v%d", vOst, vT + 4)
    a("v_add3_u32 v%d, v%d, v%d, s%d", vOst, vOst, vT + 5, sDl)
    a("v_and_b32 v%d, 3, v%d", vT + 2, vL); a("v_lshlrev_b32 v%d, 8, v%d", vT + 2, vT + 2); a("v_lshl_add_u32 v%d, v%d, 2, v%d", vT + 2, vL, vT + 2)
    a("v_add_u32 v%d, %d, v%d", vT + 2, SYNC + 256, vT + 2)
    a("s_mov_b32 s%d, %d", sCnt, REDSZ); a("s_mul_i32 s%d, s%d, %d", sNb, sNb, REDSZ); a("s_mov_b32 s%d, 0", sIt)
    a("s_waitcnt vmcnt(0)")
    srd(sO, 50, 2048 * 640 * 2)
    a("v_lshlrev_b32 v%d, 16, v%d", vB2, vB2 + 2); a("v_and_b32 v%d, 0xffff0000, v%d", vB2 + 1, vB2 + 2)
    a("v_lshlrev_b32 v%d, 16, v%d", vB2 + 2, vB2 + 3); a("v_and_b32 v%d, 0xffff0000, v%d", vB2 + 3, vB2 + 3)
    if o["rprio"]: a("s_setprio %d", o["rprio"])
    a.label("L_rw")
    a("ds_read_b32 v%d, v%d", vT + 3, vT + 2)
    if o["spec"]:
        for p in range(4): a("ds_read_b128 v[%d:%d], v%d offset:%d", RD + 4 * p, RD + 4 * p + 3, vRr, 4352 * p)
    a("s_add_u32 s%d, s%d, 1", sIt, sIt); a("s_cmp_gt_u32 s%d, %d", sIt, o["spin"] * 8)
    a("s_waitcnt lgkmcnt(%d)", 4 if o["spec"] else 0)
    a("s_cbranch_scc1 L_rgo")
    a("v_cmp_gt_u32 vcc, s%d, v%d", sCnt, vT + 3)
    a("s_cbranch_vccz L_rgo")
    if o["rlast"]: a("s_cmp_eq_u32 s%d, s%d", sCnt, sNb); a("s_cbranch_scc1 L_rw")
    if o["rsleep"]: a("s_sleep %d", o["rsleep"])
    a("s_branch L_rw")
    a.label("L_rgo")
    jitter("L_j6", 4)
    if not o["spec"]:
        for p in range(4): a("ds_read_b128 v[%d:%d], v%d offset:%d", RD + 4 * p, RD + 4 * p + 3, vRr, 4352 * p)
    a("v_add_u32 v%d, %d, v%d", vRr, REDSZ, vRr)
    a("s_mul_i32 s%d, s%d, %d", sOst, sCur, 16 * 1280)
    for e in order_next: a(e)
    a("s_add_u32 s%d, s%d, %d", sCnt, sCnt, REDSZ)
    def pk(d, x, y):
        a("v_add_f32 v%d, v%d, v%d", d, x, y); a("v_add_f32 v%d, v%d, v%d", d + 1, x + 1, y + 1)
    a("s_waitcnt lgkmcnt(3)")
    pk(RD, RD, vB2); pk(RD + 2, RD + 2, vB2 + 2)
    a("s_waitcnt lgkmcnt(1)")
    pk(RD + 4, RD + 4, RD + 8); pk(RD + 6, RD + 6, RD + 10)
    a("s_waitcnt lgkmcnt(0)")
    pk(RD, RD, RD + 12); pk(RD + 2, RD + 2, RD + 14)
    pk(RD, RD, RD + 4); pk(RD + 2, RD + 2, RD + 6)
    a("v_cvt_pk_bf16_f32 v%d, v%d, v%d", vPl, RD, RD + 1); a("v_cvt_pk_bf16_f32 v%d, v%d, v%d", vPl + 1, RD + 2, RD + 3)
    a("s_cmp_le_u32 s%d, s%d", sCnt, sNb)
    a("buffer_store_dwordx2 v[%d:%d], v%d, s[%d:%d], s%d offen %s", vPl, vPl + 1, vOst, sO, sO + 3, sOst, o["ost"])
    a("s_cbranch_scc1 L_rw")
    pad_to(NSTAMP)
    if PROF: a("s_branch L_fin")
    else: a("s_endpgm")

    a.L.append("@R")
    nst[0] = 2
    a.label("L_hc2")
    tab_load("L_t2")
    if o["w2pf"]:
        srd(sW2, 46, 1536 * 640 * 2)
        a("s_cmp_ge_u32 s%d, 1", sWv); a("s_cbranch_scc1 L_pf2e")
        a("s_and_b32 s%d, s%d, 1", sWoff, sXcd); a("s_mul_i32 s%d, s%d, 640", sWoff, sWoff)
        a("s_mul_i32 s%d, s%d, %d", sT, sM0, 384 * 1280); a("s_add_u32 s%d, s%d, s%d", sWoff, sWoff, sT)
        krot(sRd); a("s_lshl_b32 s%d, s%d, 1", sRd, sRd)
        NKK = len(o["kks"]); MV = o["mv"]
        lst = list(o["kks"]) + list(o["kks"])[NKK - MV:]
        assert len(lst) <= 8
        a("s_mov_b32 s%d, 0x%x", sKb, sum(v << (4 * i) for i, v in enumerate(lst))); a("s_mov_b32 s%d, 0", sIt)
        a("s_cmp_eq_u32 s%d, 0", sM0); a("s_cselect_b32 s%d, %d, %d", sXoff, NKK + MV, NKK)
        a("s_cmp_eq_u32 s%d, 3", sM0); a("s_cselect_b32 s%d, %d, s%d", sXoff, NKK - MV, sXoff)
        a.label("L_pf2")
        a("s_and_b32 s%d, s%d, 15", sT, sKb); a("s_lshr_b32 s%d, s%d, 4", sKb, sKb)
        a("s_add_u32 s%d, s%d, s%d", sT, sT, sRd); a("s_cmp_ge_u32 s%d, 6", sT); a("s_cselect_b32 s%d, 6, 0", sT3); a("s_sub_u32 s%d, s%d, s%d", sT, sT, sT3)
        a("s_mul_i32 s%d, s%d, %d", sT, sT, 64 * 1280); a("s_add_u32 s%d, s%d, s%d", sT, sT, sWoff)
        for q in range(5): touch(vXd, sW2, 128 if q else 0)
        a("s_add_u32 s%d, s%d, 1", sIt, sIt)
        if o["tog2"] == 1: flip()
        else: a("s_lshl_b32 s%d, s%d, 13", sT, sIt); a("s_and_b32 s%d, s%d, 8192", sT, sT); a("s_xor_b32 s%d, s%d, s%d", sCl, sCl, sT)
        a("s_cmp_eq_u32 s%d, %d", sIt, NKK); a("s_cselect_b32 s%d, %d, 0", sT, 3 * 384 * 1280); a("s_add_u32 s%d, s%d, s%d", sWoff, sWoff, sT)
        a("s_cmp_lt_u32 s%d, s%d", sIt, sXoff); a("s_cbranch_scc1 L_pf2")
        a.label("L_pf2e")
    a("s_barrier")
    stamp()
    if PROF: a("s_waitcnt vmcnt(0)")
    pad_to(7)
    a("s_branch L_red")

    a.L.append("@W")
    nst[0] = 2
    a.label("L_lw")
    def gissue(g):
        a("s_add_u32 m0, s%d, %d", sGm, SLO[g % NSL]); a("s_nop 0")
        for i in range(4):
            if o["slide"] and o["gpb"] <= g < o["gpend"]: a("s_waitcnt vmcnt(%d)", o["slide"] - 1)
            a("buffer_load_dwordx4 v%d, s[%d:%d], s%d offen offset:%d lds", vGd + i, sW2, sW2 + 3, sG, 1024 * i); log.append("g%d" % g)
        a("s_add_u32 s%d, s%d, %d", sG, sG, 32 * 1280 if "w2same" not in o["dbg"] else (32 * 1280 if g % 2 == 0 else (-32 * 1280) & 0xffffffff))
        if g in (3, 7):
            a("s_cmp_eq_u32 s%d, %d", sRd, 2 if g == 3 else 1); a("s_cselect_b32 s%d, s%d, s%d", sG, sGw, sG)
    def greads(g):
        L = []
        for t in range(4):
            k, r = w2reg(g * 4 + t)
            for u in range(2): L.append("ds_read_b64_tr_b16 %s[%d:%d], v%d offset:%d" % (k, r + 2 * u, r + 2 * u + 1, vGr + t, SLO[g % NSL] + u * 2048))
        return L
    log[:] = ["p1"]
    srd(sW2, 46, 1536 * 640 * 2)
    gissue(0)
    a("v_mov_b32 v%d, %d", vT + 5, SYNC + 8)
    a("s_cmp_ge_u32 s5, 24"); a("s_cbranch_scc1 L_cb0")
    a("s_cmp_lg_u32 s%d, 0", sW); a("s_cbranch_scc1 L_cb0")
    get_nonce("L_n0")
    a("ds_write_b64 v%d, v[%d:%d]", vT + 5, vPl, vPl + 1)
    a.label("L_cb0")
    for g in range(1, o["pre9"]): gissue(g)
    srdH()
    a("s_waitcnt vmcnt(%d) lgkmcnt(0)", vmcount("p1"))
    a("s_cmp_ge_u32 s5, 24"); a("s_cbranch_scc1 L_cb1")
    a("s_barrier")
    a("ds_read_b64 v[%d:%d], v%d", vPl, vPl + 1, vT + 5)
    a.label("L_cb1")
    stamp()
    a("s_setprio %d", o["lprio"])
    jitter("L_j2", 3)
    pollA = "buffer_load_dwordx2 v[%d:%d], v62, s[%d:%d], 0 offen sc1" % (vPl, vPl + 1, sH, sH + 3)
    pollB = "buffer_load_dwordx2 v[%d:%d], v%d, s[%d:%d], s%d offen sc1" % (vPl, vPl + 1, vFl, sH, sH + 3, sKr)
    chk = "v_cmp_ne_u64 vcc, s[%d:%d], v[%d:%d]" % (sNonce, sNonce + 1, vPl, vPl + 1)
    LAG = NSL - 1
    assert NSL == 3
    for g in range(o["pre9"], LAG): gissue(g)
    for g in range(LAG, 12):
        a(vmwait("g%d" % (g - LAG)))
        a("s_waitcnt lgkmcnt(0)")
        for r in greads(g - LAG): a(r)
        if not o["slide"] and o["gpace"] < 4 * (LAG - 1) and o["gpb"] <= g < o["gpend"]:
            a("s_cmp_ge_u32 s5, 24"); a("s_cbranch_scc1 L_gp%d", g); a("s_waitcnt vmcnt(%d)", o["gpace"]); a.label("L_gp%d" % g)
        gissue(g)
        if g == o["ng"]: get_nonce("L_n1"); lsetup2()
        if g == o["poll0"]: a(pollA.replace("v[%d:%d]" % (vPl, vPl + 1), "v[60:61]")); log.append("p0")
        if o["pgb"] and g == o["pgb"]:
            a("s_cmp_ge_u32 s5, 24"); a("s_cbranch_scc1 L_pg1"); a(pollA); a.label("L_pg1"); pos_b = len(log)
        if o["pgb"] and g == o["pollg"]:
            a("s_cmp_lt_u32 s5, 24"); a("s_cbranch_scc1 L_pg2"); a(pollA); a.label("L_pg2"); pos_h = len(log)
        if not o["pgb"] and g == o["pollg"]: a(pollA); log.append("pa")
        if g == 11 and o["poll0"]:
            a(vmwait("p0")); a(chk.replace("v[%d:%d]" % (vPl, vPl + 1), "v[60:61]")); a("s_cbranch_vccz L_spa_x")
        if PROF and "gall" in o["dbg"] and g in (3, 5, 6, 7, 8, 9, 10): a("s_memtime s[%d:%d]", 8 + 2 * (3, 5, 6, 7, 8, 9, 10).index(g) + (18 if g > 7 else 0), 9 + 2 * (3, 5, 6, 7, 8, 9, 10).index(g) + (18 if g > 7 else 0)) if False else a("s_memtime s[%d:%d]", {3: 8, 5: 10, 6: 12, 7: 14, 8: 28, 9: 30, 10: 40}[g], {3: 9, 5: 11, 6: 13, 7: 15, 8: 29, 9: 31, 10: 41}[g])
        if PROF and "gst" in o["dbg"] and g in (4, 8): a("s_memtime s[%d:%d]", 82 + g // 2, 83 + g // 2)
    stamp()
    def spin(lab, poll):
        a("s_mov_b32 s%d, 0", sT3)
        a.label(lab)
        if o["psleep"]: a("s_sleep %d", o["psleep"])
        a(poll)
        a("s_add_u32 s%d, s%d, 1", sT3, sT3); a("s_cmp_gt_u32 s%d, %d", sT3, o["spin"])
        a("s_waitcnt vmcnt(0)")
        a("s_cbranch_scc1 %s_x", lab)
        a(chk)
        a("s_cbranch_vccnz %s", lab)
        a.label(lab + "_x")
    if o["pgb"]:
        a("s_waitcnt vmcnt(%d)", len(log) - pos_b)
        a("s_cmp_lt_u32 s5, 24"); a("s_cbranch_scc1 L_pg3"); a("s_waitcnt vmcnt(%d)", len(log) - pos_h); a.label("L_pg3")
    else: a(vmwait("pa"))
    a(chk)
    a("s_cbranch_vccz L_spa_x")
    spin("L_spa", pollA)
    stamp()
    D = o["dist"]; NK = 12; NR = 8; PK = 8
    D = 6; PK = 9
    def hload(k, ph):
        r = RING + 4 * ((k + ph) % NR)
        return "buffer_load_dwordx4 v[%d:%d], v%d, s[%d:%d], s%d offen offset:%d %s" % (r, r + 3, vH, sH, sH + 3, sHcur, (k & 3) * 1024, o["hld"])
    def hstep(k): return ["s_add_u32 s%d, s%d, s%d" % (sHcur, sBase, sO1 if k % NK == 3 else sO2)] if k % NK in (3, 7) else []
    for k in range(D):
        a(hload(k, 0)); log.append("h")
        for e in hstep(k): a(e)
        if k == ((PK + D) % NK if not o["noa2"] else o["pbk"]):
            if o["pm"]: a("s_mov_b64 exec, 0xff")
            a(pollB); log.append("pb")
            if o["pm"]: a("s_mov_b64 exec, -1")
    for g in range(12 - LAG, 12):
        a(vmwait("g%d" % g))
        for r in greads(g): a(r)
    a("s_cmp_ge_u32 s5, 24"); a("s_cbranch_scc1 L_cd_x")
    a("v_mov_b32 v62, %d", SYNC + (4 if o["noa2"] else 0)); a("s_mov_b32 s%d, 0", sIt)
    a.label("L_cd")
    a("ds_read_b32 v63, v62")
    a("s_add_u32 s%d, s%d, 1", sIt, sIt); a("s_cmp_gt_u32 s%d, %d", sIt, o["spin"] * 8)
    a("s_waitcnt lgkmcnt(0)")
    a("s_cbranch_scc1 L_cd_x")
    a("v_cmp_gt_u32 vcc, 4, v63")
    a("s_cbranch_vccnz L_cd")
    a.label("L_cd_x")
    a("s_mov_b32 s%d, 1", sIt)
    a("s_setprio %d", o["p2prio"])
    a("s_waitcnt lgkmcnt(0)")
    src = lambda t: (A2 + 4 * t) if t < 2 else (B2 + 4 * (t - 2))
    W = ["ds_write_b128 v%d, v[%d:%d] offset:%d" % (vRw, src(t), src(t) + 3, 64 * t) for t in range(4)]
    sig = ["v_add_u32 v%d, s%d, v%d" % (vRw, sInc, vRw), "ds_write_b32 v%d, v%d" % (vCa, vRw)]
    def mm(t, k, ph, prev=False):
        c = "0" if k == 0 else "v[%d:%d]" % (A2 + 4 * t, A2 + 4 * t + 3)
        d = src(t) if k == NK - 1 else A2 + 4 * t
        kind, w = w2reg(k * 4 + t); h = RING + 4 * ((k - (NK if prev else 0) + ph) % NR)
        return "v_mfma_f32_16x16x32_bf16 v[%d:%d], %s[%d:%d], v[%d:%d], %s" % (d, d + 3, kind, w, w + 3, h, h + 3, c)
    def trip(ph):
        X = {}
        add = lambda ks, g, *e: X.setdefault((ks, g), []).extend(e)
        add(0, 1, W[0]); add(0, 3, W[1]); add(3, 0, W[2]); add(4, 0, W[3]); add(4, 2, sig[0]); add(4, 3, sig[1])
        HB = hbase(sBase, sCur, sT2)
        add(1, 0, order_next[0], order_next[1]); add(1, 2, order_next[2], HB[0]); add(1, 3, HB[1])
        add(2, 0, HB[2], HB[3]); add(2, 1, HB[4]); add(2, 2, HB[5], "s_lshl_b32 s%d, s%d, 7" % (sT, sCur)); add(2, 3, "s_cmp_ge_u32 s%d, s%d" % (sIt, sNb))
        add(3, 1, "s_cselect_b32 s%d, s%d, s%d" % (sBase, sNx, sBase))
        add(5, 0, chk, "s_andn2_b32 s%d, s%d, s%d" % (sT, sKr, sT))
        add(5, 1, "s_cselect_b64 s[%d:%d], 0, -1" % (sT, sT + 1))
        add(5, 2, "s_and_b64 s[%d:%d], s[%d:%d], vcc" % (sT, sT + 1, sT, sT + 1), "s_cbranch_scc1 L_spb%d" % ph, "L_spb%d_r:" % ph)
        add(5, 3, "s_add_u32 s%d, s%d, s%d" % (sHcur, sBase, sO0))
        add(6, 0, "s_movk_i32 s%d, 256" % sKr, "s_mov_b32 s%d, %d" % (sInc, REDSZ))
        add(6, 2, "s_or_b64 vcc, vcc, s[%d:%d]" % (sC1, sC1 + 1), "s_mov_b64 s[%d:%d], 0" % (sC1, sC1 + 1))
        add(PK, 2, "s_mov_b64 exec, vcc", pollB, "s_mov_b64 exec, -1")
        add(NK - 1, 2, "s_add_u32 s%d, s%d, 1" % (sIt, sIt), "s_cmp_le_u32 s%d, s%d" % (sIt, sNb))
        for ks in range(NK):
            between = any(((ks - D + d) % NK) == PK for d in range(D))
            wt = "s_waitcnt vmcnt(%d)" % (D - 1 + (1 if between else 0))
            t0 = 0 if ks & 1 else 2
            if ks == 0: M = [mm(2, NK - 1, ph, True), mm(3, NK - 1, ph, True), mm(2, 0, ph), mm(3, 0, ph)]
            elif o["sn2"] and ks not in (1, NK - 1): M = [mm(t0, ks - 1, ph), mm(t0, ks, ph), mm(t0 + 1, ks, ph), mm(t0 + 1, ks - 1, ph)]
            else: M = [mm(t0, ks - 1, ph), mm(t0, ks, ph), mm(t0 + 1, ks - 1, ph), mm(t0 + 1, ks, ph)]
            ex = {g: list(X.get((ks, g), [])) for g in range(4)}
            if ks == 0: ex[0] = [wt] + ex[0]
            else: a(wt)
            hg = 2 if ks == 0 else 1
            ex[hg] = [hload(ks + D, ph)] + hstep(ks + D) + ex[hg]
            weave(a, M, ex)
        if PROF and "p2st" in o["dbg"]:
            a("s_cselect_b32 s%d, 1, 0", sT)
            for b in ((1, 3, 5) if ph == 0 else (2, 4)):
                r = {1: 66, 2: 68, 3: 70, 4: 84, 5: 86}[b]
                a("s_cmp_lg_u32 s%d, %d", sIt, b + 1); a("s_cbranch_scc1 L_ps%d", b); a("s_memtime s[%d:%d]", r, r + 1); a.label("L_ps%d" % b)
            a("s_cmp_eq_u32 s%d, 1", sT)
    jitter("L_j5", 5)
    a("s_mov_b32 s%d, 0x%x", sNx, OOB); a("s_mov_b64 s[%d:%d], -1", sC1, sC1 + 1)
    a(".p2align 3")
    a.label("L_p2")
    trip(0)
    a("s_cbranch_scc0 L_p2f")
    a(".p2align 3")
    trip(4)
    a("s_cbranch_scc1 L_p2")
    a(mm(2, NK - 1, 4)); a(mm(3, NK - 1, 4)); a("s_branch L_p2e")
    a.label("L_p2f")
    a(mm(2, NK - 1, 0)); a(mm(3, NK - 1, 0)); a("s_nop 0")
    a.label("L_p2e")
    a("s_nop 2"); a(W[0]); a("s_nop 0"); a(W[1]); a("s_nop 0"); a(W[2]); a(W[3])
    for e in sig: a(e)
    stamp()
    if PROF and "p1st" in o["dbg"]:
        a("s_mov_b32 s70, s84"); a("s_mov_b32 s72, s86")
    pad_to(NSTAMP)
    if PROF and "gall" in o["dbg"]:
        for i, r in enumerate((8, 10, 12, 14, 28, 30, 40)): a("s_mov_b32 s%d, s%d", 66 + 2 * i, r)
    if PROF and ("gst" in o["dbg"] or "p2st" in o["dbg"]):
        a("s_mov_b32 s76, s84"); a("s_mov_b32 s78, s86")
    if PROF: a("s_branch L_fin")
    else: a("s_endpgm")
    for ph in (0, 4):
        a.label("L_spb%d" % ph)
        if o["pm"]: a("s_mov_b64 exec, 0xff")
        spin("L_spb%dl" % ph, pollB)
        if o["pm"]: a("s_mov_b64 exec, -1")
        a("s_branch L_spb%d_r", ph)
    a.L.append("@F")
    a.label("L_fin")
    if PROF:
        n = NSTAMP
        a("s_waitcnt vmcnt(0)")
        a("s_memtime s[%d:%d]", 64 + 2 * n, 65 + 2 * n); a("s_memrealtime s[62:63]"); a("s_waitcnt lgkmcnt(0)")
        a("s_add_u32 s8, s54, %d", 128 << 20); a("s_addc_u32 s9, s55, 0"); a("s_mov_b32 s10, 0x100000"); a("s_mov_b32 s11, 0x20000")
        a("s_lshl_b32 s28, s2, 3"); a("s_add_u32 s28, s28, s%d", sWv); a("s_lshl_b32 s28, s28, 6")
        a("v_mov_b32 v0, s28")
        a("s_getreg_b32 s29, hwreg(HW_REG_XCC_ID)")
        vals = ["s60", "s62", "s29"] + ["s%d" % (64 + 2 * i) for i in range(n + 1)]
        vals += ["0"] * (16 - len(vals))
        for i, v in enumerate(vals): a("v_mov_b32 v%d, %s", 4 + i, v)
        a("s_mov_b64 exec, 1")
        for i in range(4): a("buffer_store_dwordx4 v[%d:%d], v0, s[8:11], 0 offen offset:%d", 4 + 4 * i, 7 + 4 * i, 16 * i)
    if PROF and o.get("probe") is not None:
        pw, pv, pi = o["probe"]
        a("s_cmp_lg_u32 s2, %d", pw); a("s_cbranch_scc1 L_end")
        a("s_cmp_lg_u32 s%d, %d", sWv, pv); a("s_cbranch_scc1 L_end")
        if pi == "start": a("s_sub_u32 s30, s60, s%d", sNonce); a("s_add_u32 s30, s30, 200"); a("s_lshl_b32 s30, s30, 2")
        else: a("s_sub_u32 s30, s%d, s64", 64 + 2 * pi); a("s_lshl_b32 s30, s30, 2"); a("s_add_u32 s30, s30, 300")
        a("s_min_u32 s30, s30, 20000")
        a.label("L_spin")
        a("s_memrealtime s[32:33]"); a("s_waitcnt lgkmcnt(0)")
        a("s_sub_u32 s32, s32, s62"); a("s_cmp_lt_u32 s32, s30"); a("s_cbranch_scc1 L_spin")
    a.label("L_end")
    a("s_endpgm")
    a(".p2align 6")
    a(".type L_table,@object")
    a.label("L_table")
    W = make_table(o)
    for k in range(0, 256, 8): a(".long " + ", ".join("0x%x" % w for w in W[k:k + 8]))
    a.label("L_codeend")
    sec = {"E": []}; cur = "E"
    for l in a.L:
        if l.startswith("@"): cur = l[1]; sec[cur] = []
        else: sec[cur].append(l)
    a.L = []
    for c in o["lay"] + "F":
        if c == "|": a.L.append("    .p2align 12")
        if c in sec: a.L += sec[c]
    a.L = [l for i, l in enumerate(a.L) if not (l.startswith("    s_branch ") and i + 1 < len(a.L) and a.L[i + 1] == l.split()[1] + ":")]
    if o["dfl"]: a.L = [l[:-4] + " " + o["dfl"] + " lds" if l.endswith(" lds") else l for l in a.L]
    if "rt" in o["dbg"].split(): a.L = [l.replace("s_memtime", "s_memrealtime") if "s[1" not in l else l for l in a.L]
    s = HEAD + DOC + "; @launch grid=(256,1,1) block=(512,1,1) lds=163840\n"
    s += '.amdgcn_target "amdgcn-amd-amdhsa--gfx950"\n.text\n'
    n = NAME + "_kernel"
    if o["pad"] is not None: s += ".p2align 12\n.fill %d, 4, 0xbf800000\n" % (o["pad"] // 4)
    s += ".globl %s\n.p2align 8\n.type %s,@function\n%s:\n%s" % (n, n, n, a.text())
    s += '''.section .rodata,"a"
.p2align 6
.amdhsa_kernel %s
  .amdhsa_next_free_vgpr 256
  .amdhsa_next_free_sgpr 102
  .amdhsa_accum_offset 128
  .amdhsa_group_segment_fixed_size 0
  .amdhsa_kernarg_size 64
  .amdhsa_user_sgpr_count 2
  .amdhsa_user_sgpr_kernarg_segment_ptr 1
  .amdhsa_system_sgpr_workgroup_id_x 1
  .amdhsa_float_denorm_mode_32 3
  .amdhsa_float_denorm_mode_16_64 3
.end_amdhsa_kernel
''' % n
    return s
if __name__ == "__main__":
    kw = json.loads(sys.argv[2]) if len(sys.argv) > 2 else {}
    open(sys.argv[1], "w").write(gen(**kw))
```

```python
import struct, sys, json
def f2u(x): return struct.unpack("<I", struct.pack("<f", x))[0]
C0 = -2.0 * 0.7978845608028654 * 1.4426950408889634
C1 = C0 * 0.044715
NAME = "standalone__dense_activation_gelu__prompt"
HEAD = open("cdna_kernels/%s.s.ref" % NAME).read().split("; Override launch geometry")[0]
FLAGOFF = 8 << 20
OOB = 0x7f000000
DEF = dict(prof=False, a1=4, a2=4, rot1="x", pf=(1, 10), w2pf=True, hst="sc1", ost="nt", dist=7, spin=1000000, codepf=True,
           out=8, prio=1, hsame=False, psleep=4, dbg="", gpace=1, gpend=9, rsleep=3, p2prio=1, swap46=False, krot=True, hdelay=0,
           pollg=10, puba=8, nsl=3, hs=49152, lprio=0, ng=4, swapx=True, rotx=0, hbal=False, pad=0xD00, lay="EGHRBPST|W|C", tmap="half", alt=0, light=0, snake=True, barpos=16, nw=2, bp=0, fl=1, poll0=0, spub=False, rprio=0, l1prio=0, lwait=8, spec=False, lfrom=2, lstep=1, gpb=4, pre9=1, sup=3, np=8, dbl=0, tog2=1, mv=2, xf=0, b2e=0, tlb=0, sn2=1, pgb=0, noa2=0, pbk=3, slide=0, w64=0, pex=1, nocls=False, a1at=6, pm=0, mid=False, hwait=0, pr=2, pmax=5, pth=22, bt=0, b1=1, hw=0, cw=0, polx=0, pskip=True, rlast=True, wpos=(2, 3), hld="sc1", tfl="", dfl="", kks=(0, 1, 2, 3, 4, 5))

DOC = """; Fused MLP, one launch, 256 workgroups of 8 waves (one per CU; generated by a script of my own).
;           four ways) and stream h, waves 0-3 sum the four partial tiles, add b2 and store.
;  h is laid out in the 8 KB chunks of d_ws that are close to the dies using it (found anew in every launch; this
"""
class A:
    def __init__(self): self.L = []
    def __call__(self, s, *args): self.L.append("    " + (s % args if args else s))
    def label(self, s): self.L.append(s + ":")
    def text(self): return "\n".join(self.L) + "\n"

def weave(a, main, extra):
    for i, m in enumerate(main):
        a(m)
        for e in extra.get(i, []): a(e)

def make_table(o):
    T = {}
    for x in range(8):
        par, q = x & 1, x >> 1
        tiles = []
        if o["a2"] == 8:
            par = 0
            if o["tmap"] == "cur":
                for i in range(32):
                    dl, rb, n = i >> 1, 6 + 5 * (i & 1), 5
                    if i >= 16: dl, rb, n = (i >> 2) + 4, 4 * (i & 3), 4
                    if i >= 24: dl, rb, n = i - 24, 0, 6
                    tiles.append((dl, rb + 16 * x, n))
            else:
                four = {0: (0, 4), 1: (1, 5), 2: (2, 6), 3: (3, 7), 4: (0, 4), 5: (2, 6), 6: (1,), 7: (3,), 8: (5,), 9: (7,)}
                six = {6: (3, 5, 7), 7: (0, 5, 7), 8: (1, 2, 6), 9: (1, 3, 4)}
                for dl in range(10):
                    c = lambda k: 4 if k in four[dl] else 3
                    d = lambda k: (-1 if (dl < 6 and k in four[dl]) else (1 if k in six.get(dl, ()) else 0))
                    rb = sum(5 * c(k) + d(k) for k in range(x))
                    for k in range(c(x)):
                        n = 5 + (d(x) if k == 0 else 0)
                        tiles.append((dl, rb, n)); rb += n
                t6 = [t for t in tiles if t[2] == 6]; t4 = [t for t in tiles if t[2] == 4]; t5 = [t for t in tiles if t[2] == 5]
                nh = 8 - len(t6) - len(t4)
                tiles = t5[nh:] + t4 + t5[:nh] + t6
        elif o["tmap"] == "cur":
            for i in range(32):
                dl, rb, n = i >> 2, 12 + 5 * (i & 3), 5
                if i >= 20: dl, rb, n = 3 + (i & 1), ((i - 20) >> 1) * 4, 4
                if i >= 26: dl, rb, n = (i - 26) >> 1, 6 * (i & 1), 6
                tiles.append((dl, rb + 32 * q, n))
        else:
            cnt = [[7, 6, 7, 6], [6, 7, 6, 7], [7, 6, 6, 7], [6, 7, 6, 6], [6, 6, 7, 6]]
            odd = [[-1, 0, -1, 0], [0, -1, 0, -1], [-1, 0, 0, -1], [1, 0, 1, 1], [1, 1, 0, 1]]
            if o["tmap"] == "half":
                cnt = [[7, 6, 7, 6], [6, 7, 6, 7], [7, 6, 7, 6], [6, 7, 6, 7], [6, 6, 6, 6]]
                odd = [[-1, 0, -1, 0], [0, -1, 0, -1], [-1, 0, -1, 0], [0, -1, 0, -1], [2, 2, 2, 2]]
            for dl in range(5):
                rb = sum(5 * cnt[dl][k] + odd[dl][k] for k in range(q))
                for k in range(cnt[dl][q]):
                    n = 5 + (odd[dl][q] if k == 0 else 0)
                    if odd[dl][q] == 2: n = 6 if k in (0, 2) else 5
                    tiles.append((dl, rb, n)); rb += n
            t6 = [t for t in tiles if t[2] == 6]; t4 = [t for t in tiles if t[2] == 4]; t5 = [t for t in tiles if t[2] == 5]
            nh = 8 - len(t6) - len(t4)
            tiles = t5[nh:] + t4 + t5[:nh] + t6
        assert len(tiles) == 32
        for i, (dl, rb, n) in enumerate(tiles):
            E = [b for b in range(rb, rb + n) if not b & 2]; Lt = [b for b in range(rb, rb + n) if b & 2]
            if o["alt"] == 1 and dl & 1: E.reverse(); Lt.reverse()
            if o["alt"] == 2:
                r = dl % len(E); E = E[r:] + E[:r]; r = dl % len(Lt); Lt = Lt[r:] + Lt[:r]
            k = next(k for k, b in enumerate(E) if b % 4 == 0)
            E = [E[k]] + E[:k] + E[k + 1:]
            assert len(E) >= 2
            T[x + 8 * i] = (dl + 5 * par, rb, E + Lt)
    cov = set()
    W = []
    for wg in range(256):
        dl, rb, seq = T[wg]
        for b in seq:
            assert (dl, b) not in cov; cov.add((dl, b))
        w = dl | (rb << 4) | (len(seq) << 11)
        for k, b in enumerate(seq): w |= (b - rb) << (14 + 3 * k)
        W.append(w)
    assert len(cov) == 1280
    return W

def gen(**kw):
    o = dict(DEF); o.update(kw)
    a = A()
    PROF = o["prof"]
    nst = [1]
    def stamp():
        if not PROF: return
        a("s_memtime s[%d:%d]", 64 + 2 * nst[0], 65 + 2 * nst[0]); nst[0] += 1
        a("s_waitcnt lgkmcnt(0)")
    def pad_to(n):
        assert nst[0] <= n, nst[0]
        while PROF and nst[0] < n: stamp()
    NSTAMP = 8
    sX, sW1, sW2, sH, sO = 8, 12, 16, 20, 24
    sWv, sXcd, sI, sMT, sFT = 3, 4, 5, 6, 7
    sXoff, sWoff, sM0, sKb, sDelta, sIt, sT, sT2, sT3, sRd = 28, 29, 30, 31, 32, 33, 34, 35, 36, 37
    sC1 = 38
    sNonce = 56
    sRb, sNb, sDl, sG, sGm, sHcur, sCnt, sOst, sNx, sNw, sPw, sW = 58, 59, 92, 93, 94, 95, 96, 97, 98, 99, 100, 101
    sCur, sEnd, sBase, sO0, sO1, sO2, sInc, sGw, sKr = 0, 1, 82, 88, 89, 90, 91, 97, 96
    vL, vZ = 1, 2
    vT = 8
    vPl = 4
    vH, vFl, vRw, vCa = 0, 3, 6, 7
    vXd, vWd, vGd, vGr = 16, 20, 24, 56
    RING, A2, B2 = 8, 40, 56
    def w2reg(i): return ("a", 4 * i) if i < 32 else ("v", 64 + 4 * (i - 32))
    vHi, vXr, vWr, vC0, vONE, vHst = 3, 16, 20, 22, 24, 26
    vRr, vOst, vB2 = 6, 7, 28
    ACC, TMP, OUT = 32, 96, 112
    RD = 32
    NSL = o["nsl"]; REDSZ = 17408; SYNC = 9 * REDSZ
    SLO = [REDSZ, 2 * REDSZ, 3 * REDSZ, 0]
    SLOT = 32768; S = 3
    def srd(d, lo, nbytes):
        a("s_mov_b64 s[%d:%d], s[%d:%d]", d, d + 1, lo, lo + 1)
        a("s_mov_b32 s%d, %d", d + 2, nbytes); a("s_mov_b32 s%d, 0x20000", d + 3)
    def mod3(dst, src):
        a("s_mul_i32 s%d, s%d, 86", sT, src); a("s_lshr_b32 s%d, s%d, 8", sT, sT); a("s_mul_i32 s%d, s%d, 3", sT, sT); a("s_sub_u32 s%d, s%d, s%d", dst, src, sT)
    def krot(dst):
        if o["krot"]:
            if o["a2"] == 4: a("s_lshr_b32 s%d, s%d, 1", dst, sXcd); a("s_cmp_eq_u32 s%d, 3", dst); a("s_cselect_b32 s%d, 0, s%d", dst, dst)
            else: mod3(dst, sXcd)
        else: a("s_mov_b32 s%d, 0", dst)

    a("s_load_dwordx16 s[40:55], s[0:1], 0")
    a("s_cmp_ge_u32 s2, 256"); a("s_cbranch_scc1 L_end")
    if PROF:
        a("s_memrealtime s[60:61]"); a("s_memtime s[64:65]")
    a("v_lshrrev_b32 v%d, 6, v0", vT)
    a("v_and_b32 v%d, 63, v0", vL)
    a("v_readfirstlane_b32 s%d, v%d", sWv, vT)
    a("s_and_b32 s%d, s2, 7", sXcd); a("s_lshr_b32 s%d, s2, 3", sI)
    a("v_lshrrev_b32 v%d, 3, v%d", vT, vL)
    a("v_and_b32 v%d, 7, v%d", vT + 1, vL)
    a("v_lshrrev_b32 v%d, 1, v%d", vT + 2, vT)
    a("v_mov_b32 v%d, 0", vZ)
    a("s_and_b32 s%d, s%d, 3", sW, sWv)
    def jitter(lab, sh):
        if "drand" not in o["dbg"]: return
        a("s_memtime s[60:61]"); a("s_waitcnt lgkmcnt(0)"); a("s_lshr_b32 s60, s60, %d", sh); a("s_mul_i32 s61, s2, 7"); a("s_add_u32 s60, s60, s61"); a("s_add_u32 s60, s60, s3")
        a("s_and_b32 s60, s60, 15"); a("s_cmp_lg_u32 s60, 0"); a("s_cbranch_scc1 %s", lab); a("s_sleep 60"); a.label(lab)
    jitter("L_j0", 4)
    if o["rotx"] == 0: a("s_mul_i32 s%d, s%d, 10", sKb, sXcd); a("s_lshr_b32 s%d, s%d, 3", sKb, sKb)
    else:
        tab = {1: [0, 5, 2, 7, 5, 0, 7, 2], 2: [0, 5, 3, 8, 5, 0, 8, 3], 3: [0, 6, 2, 8, 5, 1, 7, 3]}[o["rotx"]]
        a("s_lshl_b32 s%d, s%d, 2", sKb, sXcd); a("s_lshr_b32 s%d, 0x%x, s%d", sKb, sum(v << (4 * i) for i, v in enumerate(tab)), sKb); a("s_and_b32 s%d, s%d, 15", sKb, sKb)
    a("s_mov_b32 s%d, %d", sX + 2, 2048 * 640 * 2); a("s_mov_b32 s%d, 0x20000", sX + 3)
    a("s_mov_b32 s%d, %d", sW1 + 2, 640 * 1536 * 2); a("s_mov_b32 s%d, 0x20000", sW1 + 3)
    a("s_cmp_ge_u32 s%d, 24", sI); a("s_cbranch_scc1 L_helper")
    if o["a1"] == 4:
        a("s_lshr_b32 s%d, s%d, 1", sMT, sXcd); a("s_lshl_b32 s%d, s%d, 2", sMT, sMT)
        a("s_and_b32 s%d, s%d, 3", sT, sI); a("s_add_u32 s%d, s%d, s%d", sMT, sMT, sT)
        a("s_and_b32 s%d, s%d, 1", sFT, sXcd); a("s_mul_i32 s%d, s%d, 6", sFT, sFT)
        a("s_lshr_b32 s%d, s%d, 2", sT2, sI); a("s_add_u32 s%d, s%d, s%d", sFT, sFT, sT2)
    else:
        a("s_lshl_b32 s%d, s%d, 1", sMT, sXcd); a("s_and_b32 s%d, s%d, 1", sT, sI); a("s_add_u32 s%d, s%d, s%d", sMT, sMT, sT)
        a("s_lshr_b32 s%d, s%d, 1", sT2, sI); a("s_mov_b32 s%d, s%d", sFT, sT2)
    a("s_cmp_lt_u32 s%d, 4", sWv); a("s_cbranch_scc1 L_c0")
    a.label("L_ldr")

    sTab = 83; sPol = 63
    HBYTES = 8 << 20
    def hbase(dst, rb, tmp):
        return ["s_lshr_b32 s%d, s%d, 4" % (tmp, rb), "s_lshr_b32 s%d, s%d, s%d" % (tmp, sPol, tmp), "s_and_b32 s%d, s%d, 8192" % (tmp, tmp),
                "s_and_b32 s%d, s%d, 63" % (dst, rb), "s_lshl_b32 s%d, s%d, 17" % (dst, dst), "s_or_b32 s%d, s%d, s%d" % (dst, dst, tmp)]
    def setpol(hi):
        a("s_bfe_u32 s%d, s%d, 0x40018", sPol, hi); a("s_mul_i32 s%d, s%d, 17", sPol, sPol); a("s_xor_b32 s%d, s%d, %d", sPol, sPol, 15 ^ o["polx"]); a("s_lshl_b32 s%d, s%d, 13", sPol, sPol)
    def hptr(d):
        a("s_sub_u32 s%d, 0, s54", d); a("s_and_b32 s%d, s%d, 0x1fffff", d, d); a("s_add_u32 s%d, s54, s%d", d, d); a("s_addc_u32 s%d, s55, 0", d + 1)
    def srdH():
        hptr(sH); a("s_mov_b32 s%d, %d", sH + 2, HBYTES); a("s_mov_b32 s%d, 0x20000", sH + 3)
    def tab_load(lab):
        a("s_getpc_b64 s[%d:%d]", sT, sT + 1)
        a.label(lab)
        a("s_add_u32 s%d, s%d, L_table-%s", sT, sT, lab); a("s_addc_u32 s%d, s%d, 0", sT + 1, sT + 1)
        a("s_lshl_b32 s%d, s2, 2", sTab)
        a("s_load_dword s%d, s[%d:%d], s%d", sTab, sT, sT + 1, sTab)
    def tile_assign():
        a("s_and_b32 s%d, s%d, 15", sDl, sTab); a("s_bfe_u32 s%d, s%d, 0x70004", sRb, sTab); a("s_bfe_u32 s%d, s%d, 0x3000b", sNb, sTab)
        a("s_lshr_b32 s%d, s%d, 14", sTab, sTab)
    def order_init():
        a("s_add_u32 s%d, s%d, s%d", sEnd, sRb, sNb)
        a("s_and_b32 s%d, s%d, 7", sCur, sTab); a("s_add_u32 s%d, s%d, s%d", sCur, sCur, sRb)
    order_next = ["s_lshr_b32 s%d, s%d, 3" % (sTab, sTab), "s_and_b32 s%d, s%d, 7" % (sCur, sTab), "s_add_u32 s%d, s%d, s%d" % (sCur, sCur, sRb), "s_bitcmp1_b32 s%d, 1" % sCur]
    log = []
    def vmcount(tag):
        idx = max(i for i, t in enumerate(log) if t == tag)
        return len(log) - 1 - idx
    def vmwait(tag): return "s_waitcnt vmcnt(%d)" % vmcount(tag)
    nload = "buffer_load_dwordx2 v[%d:%d], v%d, s[%d:%d], 0 offen sc1" % (vPl, vPl + 1, vZ, sO, sO + 3)
    def get_nonce(lab):
        a("s_mov_b32 s%d, 0", sIt)
        a.label(lab)
        a("v_readfirstlane_b32 s%d, v%d", sNonce, vPl); a("v_readfirstlane_b32 s%d, v%d", sNonce + 1, vPl + 1)
        a("s_add_u32 s%d, s%d, 1", sIt, sIt); a("s_nop 1")
        a("s_bitcmp1_b32 s%d, 30", sNonce + 1); a("s_cbranch_scc1 %s_ok", lab)
        a("s_cmp_gt_u32 s%d, %d", sIt, o["spin"]); a("s_cbranch_scc1 %s_ok", lab)
        a(nload); a("s_waitcnt vmcnt(0)"); a("s_branch %s", lab)
        a.label(lab + "_ok")

    def lsetup():
        a("v_lshlrev_b32 v%d, 1, v%d", vT + 3, vT + 2)
        a("v_xor_b32 v%d, v%d, v%d", vT + 3, vT + 1, vT + 3)
        a("v_mul_u32_u24 v%d, 1280, v%d", vGd, vT)
        a("v_lshl_add_u32 v%d, v%d, 4, v%d", vGd, vT + 3, vGd)
        for i in range(1, 4): a("v_add_u32 v%d, %d, v%d", vGd + i, i * (8 * 1280 - 1024), vGd)
        krot(sRd)
        a("s_mul_i32 s%d, s%d, 4352", sGm, sW); a("s_add_u32 s%d, s%d, %d", sGm, sGm, 5 * REDSZ)
        a("v_lshrrev_b32 v%d, 2, v%d", vT + 3, vL)
        a("v_lshlrev_b32 v%d, 7, v%d", vT + 3, vT + 3)
        a("v_bfe_u32 v%d, v%d, 3, 2", vT + 4, vL)
        a("v_lshl_add_u32 v%d, v%d, 5, v%d", vT + 3, vT + 4, vT + 3)
        a("v_and_b32 v%d, 3, v%d", vT + 4, vL)
        a("v_lshl_add_u32 v%d, v%d, 3, v%d", vT + 3, vT + 4, vT + 3)
        a("v_add_u32 v%d, s%d, v%d", vGr, sGm, vT + 3)
        for t in range(1, 4): a("v_xor_b32 v%d, %d, v%d", vGr + t, 32 * t, vGr)
        a("v_lshlrev_b32 v%d, 4, v%d", vH, vL)
        a("s_mul_i32 s%d, s%d, 3", sT3, sW); a("s_add_u32 s%d, s%d, s%d", sO0, sT3, sRd)
        a("s_add_u32 s%d, s%d, 1", sO1, sO0); a("s_cmp_eq_u32 s%d, 2", sRd); a("s_cselect_b32 s%d, s%d, s%d", sO1, sT3, sO1)
        a("s_add_u32 s%d, s%d, 1", sO2, sO1); a("s_cmp_eq_u32 s%d, 1", sRd); a("s_cselect_b32 s%d, s%d, s%d", sO2, sT3, sO2)
        for r in (sO0, sO1, sO2):
            a("s_and_b32 s%d, s%d, 14", sT, r); a("s_add_u32 s%d, s%d, s%d", r, r, sT); a("s_lshl_b32 s%d, s%d, 12", r, r)
        a("v_and_b32 v%d, 15, v%d", vT + 3, vL); a("v_lshrrev_b32 v%d, 4, v%d", vT + 4, vL)
        a("v_mul_u32_u24 v%d, 272, v%d", vRw, vT + 3)
        a("v_lshl_add_u32 v%d, v%d, 4, v%d", vRw, vT + 4, vRw)
        a("s_mul_i32 s%d, s%d, 4352", sT, sW); a("v_add_u32 v%d, s%d, v%d", vRw, sT, vRw)
        a("s_lshl_b32 s%d, s%d, 8", sT, sW); a("s_add_u32 s%d, s%d, %d", sT, sT, SYNC + 256)
        a("v_lshl_add_u32 v%d, v%d, 2, s%d", vCa, vL, sT)
        a("s_waitcnt lgkmcnt(0)")
        tile_assign()
        a("s_mul_i32 s%d, s%d, %d", sGw, sW, 384 * 1280); a("s_lshl_b32 s%d, s%d, 7", sT, sDl); a("s_add_u32 s%d, s%d, s%d", sGw, sGw, sT)
        a("s_mul_i32 s%d, s%d, %d", sT, sRd, 128 * 1280); a("s_add_u32 s%d, s%d, s%d", sG, sGw, sT)
        order_init()
    def lsetup2():
        setpol(sNonce + 1)
        a("s_mul_i32 s%d, s%d, 3", sT3, sW)
        a("s_and_b32 s%d, s%d, 0x78", sInc, sRb)
        for e in hbase(sBase, sInc, sT): a(e)
        a("s_sub_u32 s%d, s%d, 1", sInc, sEnd); a("s_and_b32 s%d, s%d, 0x78", sInc, sInc)
        for e in hbase(sT2, sInc, sT): a(e)
        a("v_mov_b32 v%d, s%d", vT + 3, sBase); a("v_mov_b32 v%d, s%d", vT + 4, sT2); a("v_cmp_lt_u32 vcc, 31, v%d", vL)
        a("v_bfe_u32 v%d, v%d, 3, 2", vFl, vL); a("v_min_u32 v%d, 2, v%d", vFl, vFl); a("v_add_u32 v%d, s%d, v%d", vFl, sT3, vFl)
        a("v_cndmask_b32 v%d, v%d, v%d, vcc", vT + 3, vT + 3, vT + 4)
        a("v_lshl_add_u32 v%d, v%d, 9, v%d", vFl, vFl, vT + 3); a("v_add_u32 v%d, 98304, v%d", vFl, vFl)
        for e in hbase(sBase, sCur, sT): a(e)
        a("s_add_u32 s%d, s%d, s%d", sHcur, sBase, sO0)
        a("s_mov_b32 s%d, 0", sInc); a("s_mov_b32 s%d, %d", sKr, 256 if o["noa2"] else 0)
        a("s_lshl_b32 s%d, s%d, 9", sT, sT3); a("s_add_u32 s%d, s%d, s%d", sT, sT, sBase); a("s_add_u32 s%d, s%d, 114688", sT, sT)
        a("v_min_u32 v62, 5, v%d", vT); a("v_lshl_add_u32 v62, v62, 8, s%d", sT)
    sSa, sSb, sMb = sG, sGm, sC1
    a("s_add_u32 s%d, s%d, s%d", sRd, sT, sT2); a("s_and_b32 s%d, s%d, %d", sRd, sRd, 1 if o["swapx"] else 0)
    a("s_lshl2_add_u32 s%d, s%d, s%d", sXoff, sMT, sW); a("s_mul_i32 s%d, s%d, 320", sXoff, sXoff); a("s_add_u32 s%d, s%d, s%d", sXoff, sXoff, sKb)
    a("s_and_b32 s%d, s%d, 1", sT, sW); a("s_lshl1_add_u32 s%d, s%d, s%d", sT, sKb, sT); a("s_mul_i32 s%d, s%d, 768", sT, sT)
    a("s_lshr_b32 s%d, s%d, 1", sT2, sW); a("s_lshl1_add_u32 s%d, s%d, s%d", sT2, sFT, sT2); a("s_add_u32 s%d, s%d, s%d", sT, sT, sT2)
    a("s_movk_i32 s%d, 1280", sMT); a("s_movk_i32 s%d, 3072", sFT)
    a("s_cmp_eq_u32 s%d, 1", sRd)
    a("s_cselect_b32 s%d, s%d, s%d", sWoff, sXoff, sT); a("s_cselect_b32 s%d, s%d, s%d", sXoff, sT, sXoff)
    a("s_cselect_b32 s%d, s%d, s%d", sT, sFT, sMT); a("s_cselect_b32 s%d, s%d, s%d", sT2, sMT, sFT)
    a("s_cselect_b32 s%d, s%d, s%d", sT3, sW1 + 2, sX + 2); a("s_cselect_b32 s%d, s%d, s%d", sW1 + 2, sX + 2, sW1 + 2); a("s_mov_b32 s%d, s%d", sX + 2, sT3)
    a("s_lshl_b32 s%d, s%d, 7", sXoff, sXoff); a("s_lshl_b32 s%d, s%d, 7", sWoff, sWoff)
    a("s_lshl2_add_u32 s%d, s%d, s%d", sM0, sRd, sW); a("s_lshl_b32 s%d, s%d, 12", sM0, sM0); a("s_mov_b32 m0, s%d", sM0)
    def offs(v, pitch, sh):
        a("v_lshlrev_b32 v%d, s%d, v%d", vT + 3, sh, vT + 2); a("v_and_b32 v%d, 3, v%d", vT + 3, vT + 3); a("v_xor_b32 v%d, v%d, v%d", vT + 3, vT + 1, vT + 3)
        a("v_mul_u32_u24 v%d, s%d, v%d", v, pitch, vT); a("v_lshl_add_u32 v%d, v%d, 4, v%d", v, vT + 3, v)
        a("s_lshl_b32 s%d, s%d, 3", pitch, pitch); a("s_addk_i32 s%d, -1024", pitch)
        a("v_xor_b32 v%d, 64, v%d", v + 1, v); a("v_add_u32 v%d, s%d, v%d", v + 1, pitch, v + 1)
        a("s_lshl_b32 s%d, s%d, 1", pitch, pitch)
        a("v_add_u32 v%d, s%d, v%d", v + 2, pitch, v); a("v_add_u32 v%d, s%d, v%d", v + 3, pitch, v + 1)
    offs(vXd, sT, sRd)
    a("s_xor_b32 s%d, s%d, 1", sT3, sRd)
    offs(vWd, sT2, sT3)
    a("s_movk_i32 s%d, 128", sT); a("s_mov_b32 s%d, %d", sT2, 64 * 3072); a("s_mov_b32 s%d, -1", sIt)
    a("s_cmp_eq_u32 s%d, 1", sRd)
    a("s_cselect_b32 s%d, s%d, s%d", sMT, sT2, sT); a("s_cselect_b32 s%d, s%d, s%d", sFT, sT, sT2)
    sSa, sSb = sMT, sFT
    a("s_mul_i32 s%d, s%d, -9", sNx, sSa); a("s_mul_i32 s%d, s%d, -9", sNw, sSb)
    a("s_waitcnt lgkmcnt(0)")
    a("s_cselect_b64 s[%d:%d], s[42:43], s[40:41]", sX, sX + 1); a("s_cselect_b64 s[%d:%d], s[40:41], s[42:43]", sW1, sW1 + 1)
    def dma(i):
        if "nodma" in o["dbg"]: return "s_nop 0"
        if i < 4: return "buffer_load_dwordx4 v%d, s[%d:%d], s%d offen offset:%d lds" % (vXd + i, sX, sX + 3, sXoff, 1024 * i)
        return "buffer_load_dwordx4 v%d, s[%d:%d], s%d offen offset:%d lds" % (vWd + i - 4, sW1, sW1 + 3, sWoff, 1024 * (i - 4))
    if o["l1prio"]: a("s_setprio %d", o["l1prio"])
    stamp()
    def ldloop(lab, first, last_it):
        a.label(lab)
        thr = (not first) and o["lwait"] < 8
        for i in range(4):
            if thr: a("s_waitcnt vmcnt(%d)", o["lwait"] - 1)
            a(dma(i))
        a("s_xor_b32 m0, s%d, 16384", sM0)
        if first and o["mid"]:
            a("s_cmp_lt_i32 s%d, 0", sIt); a("s_cbranch_scc1 L_ldn"); a("s_waitcnt vmcnt(4)"); a("s_barrier"); a.label("L_ldn")
        a("s_add_u32 s%d, s%d, 1", sKb, sKb); a("s_cmp_eq_u32 s%d, 10", sKb)
        a("s_cselect_b32 s%d, s%d, s%d", sDelta, sNx, sSa); a("s_cselect_b32 s%d, s%d, s%d", sPw, sNw, sSb); a("s_cselect_b32 s%d, 0, s%d", sKb, sKb)
        for i in range(4, 8):
            if thr: a("s_waitcnt vmcnt(%d)", o["lwait"] - 1)
            a(dma(i))
        a("s_add_u32 s%d, s%d, s%d", sXoff, sXoff, sDelta); a("s_add_u32 s%d, s%d, s%d", sWoff, sWoff, sPw)
        a("s_add_u32 s%d, s%d, %d", sM0, sM0, SLOT); a("s_cmp_ge_u32 s%d, %d", sM0, S * SLOT)
        a("s_cselect_b32 s%d, %d, 0", sT, S * SLOT); a("s_sub_u32 s%d, s%d, s%d", sM0, sM0, sT); a("s_mov_b32 m0, s%d", sM0)
        a("s_add_u32 s%d, s%d, 1", sIt, sIt)
        if first and o["mid"]:
            a("s_cmp_lt_u32 s%d, %d", sIt, last_it - 1); a("s_cbranch_scc1 %s", lab)
            a("s_branch L_su")
        elif first:
            a("s_cbranch_scc1 %s", lab)
            a("s_cmp_eq_u32 s%d, %d", sIt, last_it); a("s_cbranch_scc1 L_su")
            a("s_waitcnt vmcnt(8)"); a("s_barrier")
            a("s_branch %s", lab)
        else:
            a("s_cmp_lg_u32 s%d, s%d", sIt, sNonce); a("s_cbranch_scc1 %sw", lab); a(nload)
            a.label(lab + "w")
            a("s_cmp_lt_u32 s%d, %d", sIt, last_it)
            a("s_waitcnt vmcnt(8)"); a("s_barrier")
            a("s_cbranch_scc1 %s", lab)
    ldloop("L_ld", True, o["sup"])
    a.label("L_c0")
    a("v_and_b32 v%d, 15, v%d", vT + 3, vL)
    a("v_lshlrev_b32 v%d, 1, v%d", vT + 5, vL if o["b1"] else vT + 3)
    a("s_bfe_u32 s%d, s%d, 0x10000", sT, sW); a("s_lshl1_add_u32 s%d, s%d, s%d", sT3, sFT, sT); a("s_lshl_b32 s%d, s%d, 7", sT3, sT3)
    a("s_movk_i32 s%d, %d", sO + 2, 1536 * 2); a("s_mov_b32 s%d, s%d", sO + 3, sX + 3)
    a("s_waitcnt lgkmcnt(0)")
    a("s_mov_b64 s[%d:%d], s[44:45]", sO, sO + 1)
    if o["b1"]: a("buffer_load_ushort v14, v%d, s[%d:%d], s%d offen", vT + 5, sO, sO + 3, sT3)
    else:
        for f in range(4): a("buffer_load_ushort v%d, v%d, s[%d:%d], s%d offen offset:%d", TMP + 4 * f, vT + 5, sO, sO + 3, sT3, 32 * f)
    if o["bt"]:
        a("s_cmp_lg_u32 s%d, 0", sWv); a("s_cbranch_scc1 L_comp")
        a("s_cmp_ge_u32 s%d, 20", sI); a("s_cbranch_scc1 L_comp")
        a("s_add_u32 s%d, s%d, %d", sT, sKb, o["bt"]); a("s_cmp_ge_u32 s%d, 10", sT); a("s_cselect_b32 s%d, 10, 0", sT2); a("s_sub_u32 s%d, s%d, s%d", sT, sT, sT2)
        a("s_cmp_ge_u32 s%d, 8", sI); a("s_cbranch_scc1 L_btw")
        a("s_mov_b64 s[%d:%d], s[40:41]", sX, sX + 1)
        a("s_lshr_b32 s%d, s%d, 1", sT2, sXcd); a("s_lshl3_add_u32 s%d, s%d, s%d", sT2, sT2, sI); a("s_mul_i32 s%d, s%d, 640", sT2, sT2); a("s_add_u32 s%d, s%d, s%d", sT, sT, sT2); a("s_lshl_b32 s%d, s%d, 7", sT, sT)
        a("v_mul_u32_u24 v14, 1280, v%d", vL)
        a("buffer_load_dword v15, v14, s[%d:%d], s%d offen", sX, sX + 3, sT)
        a("s_branch L_comp")
        a.label("L_btw")
        a("s_mov_b64 s[%d:%d], s[42:43]", sW1, sW1 + 1)
        a("s_mul_i32 s%d, s%d, 1536", sT, sT); a("s_and_b32 s%d, s%d, 1", sT2, sXcd); a("s_mul_i32 s%d, s%d, 12", sT2, sT2); a("s_add_u32 s%d, s%d, s%d", sT, sT, sT2)
        a("s_add_u32 s%d, s%d, s%d", sT, sT, sI); a("s_sub_u32 s%d, s%d, 8", sT, sT); a("s_lshl_b32 s%d, s%d, 7", sT, sT)
        a("v_mul_u32_u24 v14, 3072, v%d", vL)
        a("buffer_load_dword v15, v14, s[%d:%d], s%d offen", sW1, sW1 + 3, sT)
    a("s_branch L_comp")
    a.L.append("@S")
    a.label("L_su")
    tab_load("L_t0")
    lsetup()
    srd(sO, 52, 256)
    a("s_cmp_eq_u32 s%d, 0", sW); a("s_cselect_b32 s%d, %d, -1", sNonce, o["np"])
    a("s_cmp_lt_u32 s5, 24"); a("s_cbranch_scc1 L_ld2w")
    a("s_barrier")
    a(nload)
    nst[0] = 1; stamp()
    a("s_branch L_lw")
    a.L.append("@T")
    ldloop("L_ld2", False, 9)
    a("s_branch L_lw")
    nst[0] = 1
    a.L.append("@H")
    a.label("L_helper")
    a("s_cmp_lt_u32 s%d, 4", sWv); a("s_cbranch_scc0 L_hl")
    a("v_mul_u32_u24 v%d, 1280, v%d", vXd, vL); a("v_mul_u32_u24 v%d, 3072, v%d", vWd, vL)
    sCl = sNx
    k0, k1 = o["pf"]
    a("s_bfe_u32 s%d, s%d, 0x20001", sM0, sI)
    a("s_and_b32 s%d, s%d, 1", sCl, sI); a("s_lshl_b32 s%d, s%d, 13", sCl, sCl)
    a("s_add_u32 s%d, s%d, %d", sKb, sKb, k0); a("s_cmp_ge_u32 s%d, 10", sKb); a("s_cselect_b32 s%d, 10, 0", sT); a("s_sub_u32 s%d, s%d, s%d", sKb, sKb, sT)
    a("s_lshr_b32 s%d, s%d, 1", sT, sXcd); a("s_lshl2_add_u32 s%d, s%d, s%d", sXoff, sT, sM0); a("s_mul_i32 s%d, s%d, %d", sXoff, sXoff, 128 * 1280)
    a("s_and_b32 s%d, s%d, 1", sT, sXcd); a("s_lshl2_add_u32 s%d, s%d, s%d", sWoff, sT, sM0); a("s_mul_i32 s%d, s%d, 384", sWoff, sWoff)
    def touch(v, srdn, off):
        a("v_add3_u32 v%d, s%d, v%d, %s", TMP + 1, sT, v, "0") if off == 0 else a("v_add_u32 v%d, %d, v%d", TMP + 1, off, TMP + 1)
        a("v_and_b32 v%d, 8192, v%d", TMP + 2, TMP + 1)
        a("v_cmpx_eq_u32 vcc, s%d, v%d", sCl, TMP + 2)
        a("buffer_load_dword v%d, v%d, s[%d:%d], 0 offen", TMP, TMP + 1, srdn, srdn + 3)
        a("s_mov_b64 exec, -1")
    def wstep(kb):
        a("s_mul_i32 s%d, s%d, %d", sT, kb, 64 * 3072); a("s_add_u32 s%d, s%d, s%d", sT, sT, sWoff)
        for q in range(3): touch(vWd, sW1, 128 if q else 0)
    def xstep(kb):
        a("s_lshl_b32 s%d, s%d, 7", sT, kb); a("s_add_u32 s%d, s%d, s%d", sT, sT, sXoff)
        for q in range(2): touch(vXd, sX, 64 * 1280 if q else 0)
    def knext(d, sr): a("s_add_u32 s%d, s%d, 1", d, sr); a("s_cmp_eq_u32 s%d, 10", d); a("s_cselect_b32 s%d, 0, s%d", d, d)
    flip = lambda: a("s_xor_b32 s%d, s%d, 8192", sCl, sCl)
    a("s_mov_b32 s%d, %d", sIt, k0)
    a("s_waitcnt lgkmcnt(0)")
    a("s_mov_b64 s[%d:%d], s[40:41]", sX, sX + 1); a("s_mov_b64 s[%d:%d], s[42:43]", sW1, sW1 + 1)
    a("s_cmp_ge_u32 s%d, 1", sWv); a("s_cbranch_scc1 L_pfb" if o["b2e"] else "s_cbranch_scc1 L_pfe")
    if o["hw"]: a("s_sleep %d", o["hw"])
    if o["dbl"]:
        assert (k1 - k0) % 2 == 1
        a("s_mov_b32 s%d, s%d", sRd, sKb); a("s_sub_u32 s%d, s%d, 1", sIt, sIt)
        a("s_branch L_pfm")
        a.label("L_pf")
        wstep(sKb); knext(sRd, sKb)
        a.label("L_pfm")
        wstep(sRd); flip()
        a("s_cmp_eq_u32 s%d, s%d", sRd, sKb); a("s_cbranch_scc1 L_pfx")
        xstep(sKb)
        a.label("L_pfx")
        xstep(sRd); knext(sKb, sRd)
        a("s_add_u32 s%d, s%d, 2", sIt, sIt)
    else:
        a.label("L_pf")
        if o["xf"]: wstep(sKb); flip(); xstep(sKb); knext(sKb, sKb)
        else: wstep(sKb); xstep(sKb); flip(); knext(sKb, sKb)
        a("s_add_u32 s%d, s%d, 1", sIt, sIt)
        if o["bt"] > k0:
            a("s_cmp_lg_u32 s%d, %d", sIt, o["bt"]); a("s_cbranch_scc1 L_pfs"); knext(sKb, sKb); a("s_add_u32 s%d, s%d, 1", sIt, sIt); a.label("L_pfs")
    a("s_cmp_lt_u32 s%d, %d", sIt, k1); a("s_cbranch_scc1 L_pf")
    a.label("L_pfe")
    stamp()
    a("s_branch L_hc2")
    if o["b2e"]:
        a.L.append("@B")
        a.label("L_pfb")
        a("s_cmp_lg_u32 s%d, 1", sWv); a("s_cbranch_scc1 L_pfe")
        a("s_cmp_lg_u32 s%d, 25", sI); a("s_cbranch_scc1 L_pfe")
        srd(sO, 48, 640 * 2)
        a("v_lshlrev_b32 v%d, 7, v%d", TMP + 1, vL)
        a("buffer_load_dword v%d, v%d, s[%d:%d], 0 offen", TMP, TMP + 1, sO, sO + 3)
        a("s_branch L_pfe")
    a.L.append("@G")
    a.label("L_hl")
    if o["codepf"]:
        a("s_getpc_b64 s[%d:%d]", sT, sT + 1)
        a("s_sub_u32 s%d, s%d, L_hl-%s_kernel+4", sT, sT, NAME); a("s_subb_u32 s%d, s%d, 0", sT + 1, sT + 1)
        a("v_and_b32 v%d, 255, v0", vT + 3)
        a("v_lshlrev_b32 v%d, 7, v%d", vT + 3, vT + 3)
        a("v_cmp_gt_u32 vcc, L_codeend-%s_kernel, v%d", NAME, vT + 3)
        a("s_and_saveexec_b64 s[%d:%d], vcc", sC1, sC1 + 1)
        a("s_cbranch_execz L_nocode")
        a("s_cmp_lg_u32 s%d, 24", sI); a("s_cbranch_scc1 L_nocode")
        a("global_load_dword v%d, v%d, s[%d:%d]", A2, vT + 3, sT, sT + 1)
        a.label("L_nocode")
        a("s_mov_b64 exec, -1")
    a("s_branch L_hl2")
    a.L.append("@P")
    a.label("L_hl2")
    a("s_memrealtime s[%d:%d]", sNonce, sNonce + 1)
    a("v_lshlrev_b32 v%d, 2, v%d", vT + 4, vL)
    a("v_add_u32 v%d, %d, v%d", vT + 4, SYNC, vT + 4)
    for r in range(5): a("ds_write_b32 v%d, v%d offset:%d", vT + 4, vZ, 256 * r)
    a("s_waitcnt lgkmcnt(0)")
    a("s_mov_b64 s[%d:%d], s[40:41]", sX, sX + 1); a("s_mov_b64 s[%d:%d], s[42:43]", sW1, sW1 + 1)
    for r in range(8): a("v_mov_b32 v%d, 0", vXd + r)
    a("s_cmp_lg_u32 s2, 255"); a("s_cbranch_scc1 L_nolead")
    if "dlead" in o["dbg"]:
        for _ in range(4): a("s_sleep 100")
    hptr(20)
    a("s_lshl_b32 s%d, s%d, 2", sT, sW); a("s_add_u32 s%d, s%d, %d", sT, sT, SYNC + 1280); a("v_mov_b32 v%d, s%d", vT + 3, sT)
    a("ds_write_b32 v%d, v%d", vT + 3, vZ)
    a("s_mov_b64 s[22:23], 0")
    a("s_cmp_lg_u32 s%d, 0", sW); a("s_cbranch_scc1 L_noclr"); a("s_atomic_swap_x2 s[22:23], s[52:53], 0"); a.label("L_noclr")
    a("s_lshl_b32 s%d, s%d, 21", sT, sW); a("s_add_u32 s%d, s%d, %d", sT, sT, 98304 + 7168); a("s_add_u32 s%d, s%d, 8192", sT2, sT)
    a("s_load_dword s24, s[20:21], s%d glc", sT); a("s_load_dword s25, s[20:21], s%d glc", sT2)
    a("s_mov_b32 s26, -1"); a("s_mov_b32 s27, -1"); a("s_mov_b32 s%d, 0", sIt)
    a("s_waitcnt lgkmcnt(0)")
    a.label("L_pr")
    for q in range(2):
        a("s_memtime s[16:17]"); a("s_load_dword s24, s[20:21], s%d glc", sT + q); a("s_waitcnt lgkmcnt(0)")
        a("s_memtime s[18:19]"); a("s_waitcnt lgkmcnt(0)"); a("s_sub_u32 s25, s18, s16"); a("s_min_u32 s%d, s%d, s25", 26 + q, 26 + q)
    a("s_add_u32 s%d, s%d, 1", sIt, sIt); a("s_cmp_lt_u32 s%d, %d", sIt, o["pr"]); a("s_cbranch_scc1 L_pr")
    a("s_cmp_ge_u32 s%d, %d", sIt, o["pmax"]); a("s_cbranch_scc1 L_pre")
    a("s_min_u32 s24, s26, s27"); a("s_max_u32 s25, s26, s27"); a("s_mul_i32 s24, s24, %d", o["pth"]); a("s_lshl_b32 s25, s25, 4")
    a("s_cmp_lt_u32 s25, s24"); a("s_cbranch_scc1 L_pr")
    a.label("L_pre")
    a("s_cmp_lt_u32 s27, s26"); a("s_cselect_b32 s%d, 2, 1", sT); a("v_mov_b32 v%d, s%d", vT + 4, sT)
    a("ds_write_b32 v%d, v%d", vT + 3, vT + 4)
    a("s_cmp_lg_u32 s%d, 0", sW); a("s_cbranch_scc1 L_nolead")
    a("v_and_b32 v%d, 3, v%d", vT + 4, vL); a("v_lshl_add_u32 v%d, v%d, 2, v%d", vT + 3, vT + 4, vT + 3)
    a.label("L_pc")
    a("ds_read_b32 v%d, v%d", vT + 4, vT + 3)
    a("s_add_u32 s%d, s%d, 1", sIt, sIt); a("s_cmp_gt_u32 s%d, 1000", sIt)
    a("s_waitcnt lgkmcnt(0)")
    a("s_cbranch_scc1 L_pc_x")
    a("v_cmp_eq_u32 vcc, 0, v%d", vT + 4)
    a("s_cbranch_vccnz L_pc")
    a.label("L_pc_x")
    a("v_cmp_eq_u32 vcc, 2, v%d", vT + 4)
    a("s_and_b32 s%d, s%d, 0xffffff", sNonce + 1, sNonce + 1); a("s_bitset1_b32 s%d, 30", sNonce + 1); a("s_nop 1")
    a("s_getreg_b32 s%d, hwreg(HW_REG_XCC_ID)", sT2); a("s_bitcmp1_b32 s%d, 1", sT2); a("s_cselect_b32 s%d, 0, 3", sT2)
    a("s_and_b32 s%d, vcc_lo, 15", sT); a("s_xor_b32 s%d, s%d, s%d", sT, sT, sT2); a("s_lshl_b32 s%d, s%d, 24", sT, sT); a("s_or_b32 s%d, s%d, s%d", sNonce + 1, sNonce + 1, sT)
    a("s_atomic_swap_x2 s[%d:%d], s[52:53], 0", sNonce, sNonce + 1)
    a.label("L_nolead")
    a("s_branch L_su")

    a.L.append("@C")
    nst[0] = 1
    a.label("L_comp")
    FR = 0
    tab_load("L_t1")
    vXr, vWr = 16, 18
    for f in range(4):
        for r in range(1, 4): a("v_mov_b32 v%d, 0", TMP + 4 * f + r)
    for r in range(1, 4): a("v_mov_b32 v%d, 0", vB2 + r)
    a("v_lshrrev_b32 v%d, 4, v%d", vHi, vL)
    a("v_mov_b32 v%d, 0x3f80", vT + 5)
    a("v_cmp_eq_u32 vcc, 0, v%d", vHi)
    a("s_lshr_b32 s%d, s%d, 1", sT, sW); a("s_lshl_b32 s%d, s%d, 6", sT, sT)
    a("v_add_u32 v%d, s%d, v%d", vT + 3, sT, vT + 3)
    a("v_lshlrev_b32 v%d, 7, v%d", vT + 3, vT + 3)
    a("v_bfe_u32 v%d, v%d, 1, 3", vT + 4, vL)
    a("v_xor_b32 v%d, v%d, v%d", vT + 4, vT + 4, vHi)
    a("v_lshl_add_u32 v%d, v%d, 4, v%d", vXr, vT + 4, vT + 3)
    a("v_xor_b32 v%d, 64, v%d", vXr + 1, vXr)
    a("v_bfe_u32 v%d, v%d, 2, 2", vT + 3, vL)
    a("v_lshl_add_u32 v%d, v%d, 3, v%d", vT + 3, vHi, vT + 3)
    a("v_lshlrev_b32 v%d, 7, v%d", vT + 3, vT + 3)
    a("v_bfe_u32 v%d, v%d, 3, 2", vT + 4, vL)
    a("v_lshl_add_u32 v%d, v%d, 5, v%d", vT + 3, vT + 4, vT + 3)
    a("v_and_b32 v%d, 3, v%d", vT + 4, vL)
    a("v_lshl_add_u32 v%d, v%d, 3, v%d", vT + 3, vT + 4, vT + 3)
    a("s_and_b32 s%d, s%d, 1", sT, sW); a("s_lshl_b32 s%d, s%d, 13", sT, sT); a("s_add_u32 s%d, s%d, 16384", sT, sT)
    a("v_add_u32 v%d, s%d, v%d", vWr, sT, vT + 3)
    for f in range(1, 4): a("v_xor_b32 v%d, %d, v%d", vWr + f, 32 * f, vWr)
    a("v_lshlrev_b32 v%d, 2, v%d", vT + 4, vL)
    a("v_add_u32 v%d, %d, v%d", vT + 4, SYNC, vT + 4)
    for r in range(5): a("ds_write_b32 v%d, v%d offset:%d", vT + 4, vZ, 256 * r)
    if o["b1"]:
        a("v_mov_b32 v%d, 0x3f80", vB2)
        for f in range(4): a("v_cmp_eq_u32 s[%d:%d], %d, v%d", 8 + 2 * f, 9 + 2 * f, f, vHi)
    else: a("v_cndmask_b32 v%d, 0, v%d, vcc", vB2, vT + 5)
    a("v_mov_b32 v%d, 0x%x", vC0, f2u(C0)); a("v_mov_b32 v%d, v%d", vC0 + 1, vC0)
    a("v_mov_b32 v%d, 1.0", vONE); a("v_mov_b32 v%d, 1.0", vONE + 1)
    a("s_mov_b32 s%d, 0x%x", sC1, f2u(C1)); a("s_mov_b32 s%d, s%d", sC1 + 1, sC1)
    srdH()
    a("s_and_b32 s%d, s%d, 7", sG, sMT); a("s_lshl_b32 s%d, s%d, 20", sG, sG)
    a("s_and_b32 s%d, s%d, 2", sT, sW); a("s_lshl_b32 s%d, s%d, 18", sT, sT); a("s_add_u32 s%d, s%d, s%d", sXoff, sG, sT)
    a("s_lshl_b32 s%d, s%d, 1", sT, sT3); a("s_add_u32 s%d, s%d, s%d", sWoff, sXoff, sT); a("s_add_u32 s%d, s%d, 114688", sWoff, sWoff)
    a("s_lshl_b32 s%d, s%d, 4", sT3, sT3); a("s_and_b32 s%d, s%d, 0xe000", sT, sT3); a("s_add_u32 s%d, s%d, s%d", sT3, sT3, sT); a("s_add_u32 s%d, s%d, s%d", sXoff, sXoff, sT3)
    a("s_lshl_b32 s%d, s%d, 9", sT, sFT); a("s_add_u32 s%d, s%d, s%d", sG, sG, sT); a("s_add_u32 s%d, s%d, 98304", sG, sG)
    a("v_lshlrev_b32 v%d, 4, v%d", vHst, vL)
    if o["tlb"]:
        a("v_lshlrev_b32 v%d, 17, v%d", vT + 4, vL)
        a("s_mov_b64 exec, 15")
        if o["tlb"] == 1:
            a("s_and_b32 s%d, s%d, 0xfffe0000", sT, sXoff); a("s_add_u32 s%d, s%d, %d", sT, sT, 98304 + 7424)
            a("buffer_load_dword v14, v%d, s[%d:%d], s%d offen", vT + 4, sH, sH + 3, sT)
        else:
            a("buffer_load_dword v14, v%d, s[%d:%d], s%d offen sc1", vT + 4, sH, sH + 3, sXoff)
            a("s_add_u32 s%d, s%d, 8192", sT, sXoff)
            a("buffer_load_dword v15, v%d, s[%d:%d], s%d offen sc1", vT + 4, sH, sH + 3, sT)
        a("s_mov_b64 exec, -1")
    a("v_mov_b32 v%d, 1", vT); a("v_mov_b32 v%d, %d", vT + 1, SYNC); a("v_lshlrev_b32 v%d, 3, v%d", vT + 2, vL)
    a("s_mov_b32 s%d, 0", sRd); a("s_mov_b32 s%d, 0", sIt)
    a("s_mov_b32 s%d, %d", sPw, (-(S - 1) * SLOT) & 0xffffffff)
    if o["prio"]: a("s_setprio %d", o["prio"])
    a("s_waitcnt vmcnt(%d) lgkmcnt(0)", o["tlb"])
    for f in range(4):
        if o["b1"]: a("v_cndmask_b32 v%d, 0, v14, s[%d:%d]", TMP + 4 * f, 8 + 2 * f, 9 + 2 * f)
        else: a("v_cndmask_b32 v%d, 0, v%d, vcc", TMP + 4 * f, TMP + 4 * f)
    for m in range(4):
        for f in range(4):
            r = ACC + (m * 4 + f) * 4
            a("v_mfma_f32_16x16x32_bf16 v[%d:%d], v[%d:%d], v[%d:%d], 0", r, r + 3, TMP + 4 * f, TMP + 4 * f + 3, vB2, vB2 + 3)
    stamp()
    a("s_barrier")
    stamp()
    def reads(s):
        b = 32 * s
        w = lambda f, u: "ds_read_b64_tr_b16 a[%d:%d], v%d offset:%d" % (b + 4 * f + 2 * u, b + 4 * f + 2 * u + 1, vWr + f, s * 4096 + u * 512)
        x = lambda m: "ds_read_b128 a[%d:%d], v%d offset:%d" % (b + 16 + 4 * m, b + 19 + 4 * m, vXr + s, m * 2048)
        return [w(0, 0), w(0, 1), x(0), x(1), x(2), x(3), w(1, 0), w(1, 1), w(2, 0), w(2, 1), w(3, 0), w(3, 1)]
    def mf(buf, f, m):
        b = 32 * buf; r = ACC + (m * 4 + f) * 4
        return "v_mfma_f32_16x16x32_bf16 v[%d:%d], a[%d:%d], a[%d:%d], v[%d:%d]" % (r, r + 3, b + 4 * f, b + 4 * f + 3, b + 16 + 4 * m, b + 19 + 4 * m, r, r + 3)
    def order(): return [(f, m) for f in range(4) for m in (range(4) if (f % 2 == 0 or not o["snake"]) else range(3, -1, -1))]
    upd = lambda r: "v_add_u32 v%d, s%d, v%d" % (r, sDelta, r)
    slot = ["s_add_u32 s%d, s%d, %d" % (sRd, sRd, SLOT), "s_cmp_ge_u32 s%d, %d" % (sRd, S * SLOT), "s_cselect_b32 s%d, s%d, %d" % (sDelta, sPw, SLOT),
            "s_cselect_b32 s%d, 0, s%d" % (sRd, sRd), upd(vXr), "s_add_u32 s%d, s%d, 1" % (sIt, sIt), "s_cmp_lt_u32 s%d, 10" % sIt]
    for r in reads(0): a(r)
    a("@PRE")
    a("s_branch L_p1m")
    a(".p2align 3")
    a("s_nop 0")
    a.label("L_p1b")
    a("s_barrier")
    a.label("L_p1")
    BP = o["bp"]
    O = order()
    def place(R, gaps, fl):
        d = {g: [] for g in gaps}; i = 0
        for g in gaps:
            if i < len(R): d[g].append(R[i]); i += 1
            if fl and i < len(R) and "tr_b16" in d[g][0] and "tr_b16" in R[i]: d[g].append(R[i]); i += 1
        assert i == len(R)
        return d
    u1 = [upd(vXr + 1), upd(vWr), upd(vWr + 1), upd(vWr + 2), upd(vWr + 3)]
    P0 = place(reads(0), list(range(BP, 16)), o["fl"])
    P1 = place(reads(1), list(range(16)), o["fl"])
    def fill(P, gaps, items):
        items = list(items)
        for g in gaps:
            while items and len(P.setdefault(g, [])) < 2 - (1 if any("b128" in e for e in P[g]) else 0) and not any(q > g and any("ds_read" in e for e in P[q]) for q in P):
                P[g].append(items.pop(0))
        return items
    left = fill(P0, range(BP, 15), slot)
    nleft = len(left)
    pre = slot[:len(slot) - nleft]
    for n in range(BP, 16):
        f, m = O[n]
        a(mf(1, f, m))
        for e in P0.get(n, []): a(e)
    a.label("L_p1m")
    rest = fill(P1, range(16), left[:0] + u1)
    need = {0: 6, 4: 8, 8: 10, 12: 12}
    if o["nw"] == 3: need = {0: 8, 8: 10, 12: 12}
    if o["nw"] == 2: need = {0: 10, 12: 12}
    issued = 0
    for n in range(16):
        f, m = O[n]
        if n in need: a("s_waitcnt lgkmcnt(%d)", min(15, 12 - need[n] + issued))
        a(mf(0, f, m))
        for e in P1.get(n, []):
            a(e); issued += "ds_read" in e
    rest = rest + left
    for n in range(BP):
        f, m = O[n]
        if n in (0, 4): a("s_waitcnt lgkmcnt(%d)", 6 if n == 0 else 4)
        a(mf(1, f, m))
        for _ in range(2):
            if rest and n < BP - 1: a(rest.pop(0))
    for e in rest: a(e)
    a("s_waitcnt lgkmcnt(0)")
    a("s_cbranch_scc1 L_p1b")
    for n, (f, m) in enumerate(sorted(O[BP:], key=lambda t: (t[1], t[0]))):
        a(mf(1, f, m))
        if n == 0: a("ds_read_b64 v[%d:%d], v%d offset:8", vPl, vPl + 1, vT + 1)
        if n == 8: a("s_waitcnt lgkmcnt(0)"); a("v_readfirstlane_b32 s%d, v%d", sNonce + 1, vPl + 1)
        if n == 9: a("s_lshr_b32 s%d, s%d, 1", sT, sMT)
        if n == 10: setpol(sNonce + 1)
        if n == 12: a("s_lshr_b32 s%d, s%d, s%d", sT, sPol, sT); a("s_and_b32 s%d, s%d, 8192", sT, sT)
        if n == 13: a("s_add_u32 s%d, s%d, s%d", sXoff, sXoff, sT); a("s_add_u32 s%d, s%d, s%d", sWoff, sWoff, sT)
        if n == 14: a("s_add_u32 s%d, s%d, s%d", sG, sG, sT)
    k0_ = a.L.index("    @PRE"); a.L[k0_:k0_ + 1] = ["    " + e for e in pre]
    jitter("L_j1", 5)
    log[:] = []
    assert BP == 0
    stamp()
    def gelu_list(acc, tmp, outr, n):
        L = []; P = range(n // 2)
        pk = lambda op, d, x, y: "%s v[%d:%d], v[%d:%d], v[%d:%d]" % (op, d, d + 1, x, x + 1, y, y + 1)
        for p in P: L.append(pk("v_pk_mul_f32", tmp + 2 * p, acc + 2 * p, acc + 2 * p))
        for p in P: L.append("v_pk_fma_f32 v[%d:%d], v[%d:%d], s[%d:%d], v[%d:%d]" % (tmp + 2 * p, tmp + 2 * p + 1, tmp + 2 * p, tmp + 2 * p + 1, sC1, sC1 + 1, vC0, vC0 + 1))
        for p in P: L.append(pk("v_pk_mul_f32", tmp + 2 * p, tmp + 2 * p, acc + 2 * p))
        for i in range(n): L.append("v_exp_f32 v%d, v%d" % (tmp + i, tmp + i))
        for p in P: L.append(pk("v_pk_add_f32", tmp + 2 * p, tmp + 2 * p, vONE))
        for i in range(n): L.append("v_rcp_f32 v%d, v%d" % (tmp + i, tmp + i))
        for p in P: L.append(pk("v_pk_mul_f32", tmp + 2 * p, tmp + 2 * p, acc + 2 * p))
        for p in P: L.append("v_cvt_pk_bf16_f32 v%d, v%d, v%d" % (outr + p, tmp + 2 * p, tmp + 2 * p + 1))
        return L
    def publish(part):
        a(vmwait("st%d" % part))
        a("s_mov_b64 exec, 1")
        a("ds_add_rtn_u32 v%d, v%d, v%d offset:%d", vT + 5, vT + 1, vT, 4 * part)
        a("s_waitcnt lgkmcnt(0)")
        a("v_readfirstlane_b32 s%d, v%d", sT2, vT + 5)
        a("s_mov_b64 exec, 0xffff")
        a("s_nop 0")
        a("s_cmp_lg_u32 s%d, 3", sT2); a("s_cbranch_scc1 L_nopub%d", part)
        if o["spub"]: a("s_atomic_swap_x2 s[%d:%d], s[%d:%d], %d", sNonce, sNonce + 1, 80 if not PROF else 84, 81 if not PROF else 85, 256 * part)
        else: a("buffer_store_dwordx2 v[%d:%d], v%d, s[%d:%d], s%d offen offset:%d sc1", vPl, vPl + 1, vT + 2, sH, sH + 3, sG, 256 * part)
        a.label("L_nopub%d" % part)
        a("s_mov_b64 exec, -1")
    a(".p2align 3")
    for hh in range(8):
        ob = OUT + 4 * (hh & 3)
        for e in gelu_list(ACC + 8 * hh, TMP, ob, 8): a(e)
        mt = hh >> 2
        if "nohst" in o["dbg"]: a("s_mov_b64 exec, 1")
        a("buffer_store_dwordx4 v[%d:%d], v%d, s[%d:%d], s%d offen offset:%d %s", ob, ob + 3, vHst, sH, sH + 3, sXoff, (hh & 1) * 1024, o["hst"])
        if hh & 1: a("s_add_u32 s%d, s%d, %d", sXoff, sXoff, 1 << 17)
        if "nohst" in o["dbg"]: a("s_mov_b64 exec, -1")
        log.append("st%d" % mt if hh != 1 else "s1")
        if hh + 1 == o["a1at"]:
            a(vmwait("s1"))
            a("s_mov_b64 exec, 0xffff")
            a("buffer_store_dwordx2 v[%d:%d], v%d, s[%d:%d], s%d offen sc1", vPl, vPl + 1, vT + 2, sH, sH + 3, sWoff); log.append("f1")
            a("s_mov_b64 exec, -1")
            a(".p2align 3")
        if hh + 1 == o["puba"]:
            if hh == 7: stamp(); a("s_setprio 0")
            jitter("L_j3", 6)
            if not o["noa2"]: publish(0)
            jitter("L_j4", 4)
            if hh == 7: stamp()
            else: a(".p2align 3")
    if o["puba"] < 8: stamp(); a("s_setprio 0"); stamp()
    if o["puba"] == 8 and not o["spub"] and not o["noa2"]:
        a("s_cmp_lg_u32 s%d, 3", sT2); a("s_cbranch_scc1 L_pw0"); a("s_waitcnt vmcnt(1)"); a("s_branch L_pw1"); a.label("L_pw0"); a("s_waitcnt vmcnt(0)"); a.label("L_pw1")
        log.extend(["x"] * 60)
    publish(1)
    stamp()
    a.label("L_red")
    a("s_waitcnt lgkmcnt(0)")
    tile_assign(); order_init()
    srd(sO, 48, 640 * 2)
    a("v_and_b32 v%d, 15, v%d", vT + 3, vL); a("v_lshrrev_b32 v%d, 4, v%d", vT + 4, vL)
    a("v_lshlrev_b32 v%d, 3, v%d", vT + 5, vT + 3); a("s_lshl_b32 s%d, s%d, 7", sDl, sDl)
    a("buffer_load_dwordx2 v[%d:%d], v%d, s[%d:%d], s%d offen", vB2 + 2, vB2 + 3, vT + 5, sO, sO + 3, sDl)
    a("s_lshl_b32 s%d, s%d, 2", sT, sW); a("v_add_u32 v%d, s%d, v%d", vT + 4, sT, vT + 4)
    a("v_mul_u32_u24 v%d, 272, v%d", vRr, vT + 4)
    a("v_lshl_add_u32 v%d, v%d, 4, v%d", vRr, vT + 3, vRr)
    a("v_mul_u32_u24 v%d, 1280, v%d", vOst, vT + 4)
    a("v_add3_u32 v%d, v%d, v%d, s%d", vOst, vOst, vT + 5, sDl)
    a("v_and_b32 v%d, 3, v%d", vT + 2, vL); a("v_lshlrev_b32 v%d, 8, v%d", vT + 2, vT + 2); a("v_lshl_add_u32 v%d, v%d, 2, v%d", vT + 2, vL, vT + 2)
    a("v_add_u32 v%d, %d, v%d", vT + 2, SYNC + 256, vT + 2)
    a("s_mov_b32 s%d, %d", sCnt, REDSZ); a("s_mul_i32 s%d, s%d, %d", sNb, sNb, REDSZ); a("s_mov_b32 s%d, 0", sIt)
    a("s_waitcnt vmcnt(0)")
    srd(sO, 50, 2048 * 640 * 2)
    a("v_lshlrev_b32 v%d, 16, v%d", vB2, vB2 + 2); a("v_and_b32 v%d, 0xffff0000, v%d", vB2 + 1, vB2 + 2)
    a("v_lshlrev_b32 v%d, 16, v%d", vB2 + 2, vB2 + 3); a("v_and_b32 v%d, 0xffff0000, v%d", vB2 + 3, vB2 + 3)
    if o["rprio"]: a("s_setprio %d", o["rprio"])
    a.label("L_rw")
    a("ds_read_b32 v%d, v%d", vT + 3, vT + 2)
    if o["spec"]:
        for p in range(4): a("ds_read_b128 v[%d:%d], v%d offset:%d", RD + 4 * p, RD + 4 * p + 3, vRr, 4352 * p)
    a("s_add_u32 s%d, s%d, 1", sIt, sIt); a("s_cmp_gt_u32 s%d, %d", sIt, o["spin"] * 8)
    a("s_waitcnt lgkmcnt(%d)", 4 if o["spec"] else 0)
    a("s_cbranch_scc1 L_rgo")
    a("v_cmp_gt_u32 vcc, s%d, v%d", sCnt, vT + 3)
    a("s_cbranch_vccz L_rgo")
    if o["rlast"]: a("s_cmp_eq_u32 s%d, s%d", sCnt, sNb); a("s_cbranch_scc1 L_rw")
    if o["rsleep"]: a("s_sleep %d", o["rsleep"])
    a("s_branch L_rw")
    a.label("L_rgo")
    jitter("L_j6", 4)
    if not o["spec"]:
        for p in range(4): a("ds_read_b128 v[%d:%d], v%d offset:%d", RD + 4 * p, RD + 4 * p + 3, vRr, 4352 * p)
    a("v_add_u32 v%d, %d, v%d", vRr, REDSZ, vRr)
    a("s_mul_i32 s%d, s%d, %d", sOst, sCur, 16 * 1280)
    for e in order_next: a(e)
    a("s_add_u32 s%d, s%d, %d", sCnt, sCnt, REDSZ)
    def pk(d, x, y):
        a("v_add_f32 v%d, v%d, v%d", d, x, y); a("v_add_f32 v%d, v%d, v%d", d + 1, x + 1, y + 1)
    a("s_waitcnt lgkmcnt(3)")
    pk(RD, RD, vB2); pk(RD + 2, RD + 2, vB2 + 2)
    a("s_waitcnt lgkmcnt(1)")
    pk(RD + 4, RD + 4, RD + 8); pk(RD + 6, RD + 6, RD + 10)
    a("s_waitcnt lgkmcnt(0)")
    pk(RD, RD, RD + 12); pk(RD + 2, RD + 2, RD + 14)
    pk(RD, RD, RD + 4); pk(RD + 2, RD + 2, RD + 6)
    a("v_cvt_pk_bf16_f32 v%d, v%d, v%d", vPl, RD, RD + 1); a("v_cvt_pk_bf16_f32 v%d, v%d, v%d", vPl + 1, RD + 2, RD + 3)
    a("s_cmp_le_u32 s%d, s%d", sCnt, sNb)
    a("buffer_store_dwordx2 v[%d:%d], v%d, s[%d:%d], s%d offen %s", vPl, vPl + 1, vOst, sO, sO + 3, sOst, o["ost"])
    a("s_cbranch_scc1 L_rw")
    pad_to(NSTAMP)
    if PROF: a("s_branch L_fin")
    else: a("s_endpgm")

    a.L.append("@R")
    nst[0] = 2
    a.label("L_hc2")
    tab_load("L_t2")
    if o["w2pf"]:
        srd(sW2, 46, 1536 * 640 * 2)
        a("s_cmp_ge_u32 s%d, 1", sWv); a("s_cbranch_scc1 L_pf2e")
        a("s_and_b32 s%d, s%d, 1", sWoff, sXcd); a("s_mul_i32 s%d, s%d, 640", sWoff, sWoff)
        a("s_mul_i32 s%d, s%d, %d", sT, sM0, 384 * 1280); a("s_add_u32 s%d, s%d, s%d", sWoff, sWoff, sT)
        krot(sRd); a("s_lshl_b32 s%d, s%d, 1", sRd, sRd)
        NKK = len(o["kks"]); MV = o["mv"]
        lst = list(o["kks"]) + list(o["kks"])[NKK - MV:]
        assert len(lst) <= 8
        a("s_mov_b32 s%d, 0x%x", sKb, sum(v << (4 * i) for i, v in enumerate(lst))); a("s_mov_b32 s%d, 0", sIt)
        a("s_cmp_eq_u32 s%d, 0", sM0); a("s_cselect_b32 s%d, %d, %d", sXoff, NKK + MV, NKK)
        a("s_cmp_eq_u32 s%d, 3", sM0); a("s_cselect_b32 s%d, %d, s%d", sXoff, NKK - MV, sXoff)
        a.label("L_pf2")
        a("s_and_b32 s%d, s%d, 15", sT, sKb); a("s_lshr_b32 s%d, s%d, 4", sKb, sKb)
        a("s_add_u32 s%d, s%d, s%d", sT, sT, sRd); a("s_cmp_ge_u32 s%d, 6", sT); a("s_cselect_b32 s%d, 6, 0", sT3); a("s_sub_u32 s%d, s%d, s%d", sT, sT, sT3)
        a("s_mul_i32 s%d, s%d, %d", sT, sT, 64 * 1280); a("s_add_u32 s%d, s%d, s%d", sT, sT, sWoff)
        for q in range(5): touch(vXd, sW2, 128 if q else 0)
        a("s_add_u32 s%d, s%d, 1", sIt, sIt)
        if o["tog2"] == 1: flip()
        else: a("s_lshl_b32 s%d, s%d, 13", sT, sIt); a("s_and_b32 s%d, s%d, 8192", sT, sT); a("s_xor_b32 s%d, s%d, s%d", sCl, sCl, sT)
        a("s_cmp_eq_u32 s%d, %d", sIt, NKK); a("s_cselect_b32 s%d, %d, 0", sT, 3 * 384 * 1280); a("s_add_u32 s%d, s%d, s%d", sWoff, sWoff, sT)
        a("s_cmp_lt_u32 s%d, s%d", sIt, sXoff); a("s_cbranch_scc1 L_pf2")
        a.label("L_pf2e")
    a("s_barrier")
    stamp()
    if PROF: a("s_waitcnt vmcnt(0)")
    pad_to(7)
    a("s_branch L_red")

    a.L.append("@W")
    nst[0] = 2
    a.label("L_lw")
    def gissue(g):
        a("s_add_u32 m0, s%d, %d", sGm, SLO[g % NSL]); a("s_nop 0")
        for i in range(4):
            if o["slide"] and o["gpb"] <= g < o["gpend"]: a("s_waitcnt vmcnt(%d)", o["slide"] - 1)
            a("buffer_load_dwordx4 v%d, s[%d:%d], s%d offen offset:%d lds", vGd + i, sW2, sW2 + 3, sG, 1024 * i); log.append("g%d" % g)
        a("s_add_u32 s%d, s%d, %d", sG, sG, 32 * 1280 if "w2same" not in o["dbg"] else (32 * 1280 if g % 2 == 0 else (-32 * 1280) & 0xffffffff))
        if g in (3, 7):
            a("s_cmp_eq_u32 s%d, %d", sRd, 2 if g == 3 else 1); a("s_cselect_b32 s%d, s%d, s%d", sG, sGw, sG)
    def greads(g):
        L = []
        for t in range(4):
            k, r = w2reg(g * 4 + t)
            for u in range(2): L.append("ds_read_b64_tr_b16 %s[%d:%d], v%d offset:%d" % (k, r + 2 * u, r + 2 * u + 1, vGr + t, SLO[g % NSL] + u * 2048))
        return L
    log[:] = ["p1"]
    srd(sW2, 46, 1536 * 640 * 2)
    gissue(0)
    a("v_mov_b32 v%d, %d", vT + 5, SYNC + 8)
    a("s_cmp_ge_u32 s5, 24"); a("s_cbranch_scc1 L_cb0")
    a("s_cmp_lg_u32 s%d, 0", sW); a("s_cbranch_scc1 L_cb0")
    get_nonce("L_n0")
    a("ds_write_b64 v%d, v[%d:%d]", vT + 5, vPl, vPl + 1)
    a.label("L_cb0")
    for g in range(1, o["pre9"]): gissue(g)
    srdH()
    a("s_waitcnt vmcnt(%d) lgkmcnt(0)", vmcount("p1"))
    a("s_cmp_ge_u32 s5, 24"); a("s_cbranch_scc1 L_cb1")
    a("s_barrier")
    a("ds_read_b64 v[%d:%d], v%d", vPl, vPl + 1, vT + 5)
    a.label("L_cb1")
    stamp()
    a("s_setprio %d", o["lprio"])
    jitter("L_j2", 3)
    pollA = "buffer_load_dwordx2 v[%d:%d], v62, s[%d:%d], 0 offen sc1" % (vPl, vPl + 1, sH, sH + 3)
    pollB = "buffer_load_dwordx2 v[%d:%d], v%d, s[%d:%d], s%d offen sc1" % (vPl, vPl + 1, vFl, sH, sH + 3, sKr)
    chk = "v_cmp_ne_u64 vcc, s[%d:%d], v[%d:%d]" % (sNonce, sNonce + 1, vPl, vPl + 1)
    LAG = NSL - 1
    assert NSL == 3
    for g in range(o["pre9"], LAG): gissue(g)
    for g in range(LAG, 12):
        a(vmwait("g%d" % (g - LAG)))
        a("s_waitcnt lgkmcnt(0)")
        for r in greads(g - LAG): a(r)
        if not o["slide"] and o["gpace"] < 4 * (LAG - 1) and o["gpb"] <= g < o["gpend"]:
            a("s_cmp_ge_u32 s5, 24"); a("s_cbranch_scc1 L_gp%d", g); a("s_waitcnt vmcnt(%d)", o["gpace"]); a.label("L_gp%d" % g)
        gissue(g)
        if g == o["ng"]: get_nonce("L_n1"); lsetup2()
        if g == o["poll0"]: a(pollA.replace("v[%d:%d]" % (vPl, vPl + 1), "v[60:61]")); log.append("p0")
        if o["pgb"] and g == o["pgb"]:
            a("s_cmp_ge_u32 s5, 24"); a("s_cbranch_scc1 L_pg1"); a(pollA); a.label("L_pg1"); pos_b = len(log)
        if o["pgb"] and g == o["pollg"]:
            a("s_cmp_lt_u32 s5, 24"); a("s_cbranch_scc1 L_pg2"); a(pollA); a.label("L_pg2"); pos_h = len(log)
        if not o["pgb"] and g == o["pollg"]: a(pollA); log.append("pa")
        if g == 11 and o["poll0"]:
            a(vmwait("p0")); a(chk.replace("v[%d:%d]" % (vPl, vPl + 1), "v[60:61]")); a("s_cbranch_vccz L_spa_x")
        if PROF and "gall" in o["dbg"] and g in (3, 5, 6, 7, 8, 9, 10): a("s_memtime s[%d:%d]", 8 + 2 * (3, 5, 6, 7, 8, 9, 10).index(g) + (18 if g > 7 else 0), 9 + 2 * (3, 5, 6, 7, 8, 9, 10).index(g) + (18 if g > 7 else 0)) if False else a("s_memtime s[%d:%d]", {3: 8, 5: 10, 6: 12, 7: 14, 8: 28, 9: 30, 10: 40}[g], {3: 9, 5: 11, 6: 13, 7: 15, 8: 29, 9: 31, 10: 41}[g])
        if PROF and "gst" in o["dbg"] and g in (4, 8): a("s_memtime s[%d:%d]", 82 + g // 2, 83 + g // 2)
    stamp()
    def spin(lab, poll):
        a("s_mov_b32 s%d, 0", sT3)
        a.label(lab)
        if o["psleep"]: a("s_sleep %d", o["psleep"])
        a(poll)
        a("s_add_u32 s%d, s%d, 1", sT3, sT3); a("s_cmp_gt_u32 s%d, %d", sT3, o["spin"])
        a("s_waitcnt vmcnt(0)")
        a("s_cbranch_scc1 %s_x", lab)
        a(chk)
        a("s_cbranch_vccnz %s", lab)
        a.label(lab + "_x")
    if o["pgb"]:
        a("s_waitcnt vmcnt(%d)", len(log) - pos_b)
        a("s_cmp_lt_u32 s5, 24"); a("s_cbranch_scc1 L_pg3"); a("s_waitcnt vmcnt(%d)", len(log) - pos_h); a.label("L_pg3")
    else: a(vmwait("pa"))
    a(chk)
    a("s_cbranch_vccz L_spa_x")
    spin("L_spa", pollA)
    stamp()
    D = o["dist"]; NK = 12; NR = 8; PK = 8
    D = 6; PK = 9
    def hload(k, ph):
        r = RING + 4 * ((k + ph) % NR)
        return "buffer_load_dwordx4 v[%d:%d], v%d, s[%d:%d], s%d offen offset:%d %s" % (r, r + 3, vH, sH, sH + 3, sHcur, (k & 3) * 1024, o["hld"])
    def hstep(k): return ["s_add_u32 s%d, s%d, s%d" % (sHcur, sBase, sO1 if k % NK == 3 else sO2)] if k % NK in (3, 7) else []
    for k in range(D):
        a(hload(k, 0)); log.append("h")
        for e in hstep(k): a(e)
        if k == ((PK + D) % NK if not o["noa2"] else o["pbk"]):
            if o["pm"]: a("s_mov_b64 exec, 0xff")
            a(pollB); log.append("pb")
            if o["pm"]: a("s_mov_b64 exec, -1")
    for g in range(12 - LAG, 12):
        a(vmwait("g%d" % g))
        for r in greads(g): a(r)
    a("s_cmp_ge_u32 s5, 24"); a("s_cbranch_scc1 L_cd_x")
    a("v_mov_b32 v62, %d", SYNC + (4 if o["noa2"] else 0)); a("s_mov_b32 s%d, 0", sIt)
    a.label("L_cd")
    a("ds_read_b32 v63, v62")
    a("s_add_u32 s%d, s%d, 1", sIt, sIt); a("s_cmp_gt_u32 s%d, %d", sIt, o["spin"] * 8)
    a("s_waitcnt lgkmcnt(0)")
    a("s_cbranch_scc1 L_cd_x")
    a("v_cmp_gt_u32 vcc, 4, v63")
    a("s_cbranch_vccnz L_cd")
    a.label("L_cd_x")
    a("s_mov_b32 s%d, 1", sIt)
    a("s_setprio %d", o["p2prio"])
    a("s_waitcnt lgkmcnt(0)")
    src = lambda t: (A2 + 4 * t) if t < 2 else (B2 + 4 * (t - 2))
    W = ["ds_write_b128 v%d, v[%d:%d] offset:%d" % (vRw, src(t), src(t) + 3, 64 * t) for t in range(4)]
    sig = ["v_add_u32 v%d, s%d, v%d" % (vRw, sInc, vRw), "ds_write_b32 v%d, v%d" % (vCa, vRw)]
    def mm(t, k, ph, prev=False):
        c = "0" if k == 0 else "v[%d:%d]" % (A2 + 4 * t, A2 + 4 * t + 3)
        d = src(t) if k == NK - 1 else A2 + 4 * t
        kind, w = w2reg(k * 4 + t); h = RING + 4 * ((k - (NK if prev else 0) + ph) % NR)
        return "v_mfma_f32_16x16x32_bf16 v[%d:%d], %s[%d:%d], v[%d:%d], %s" % (d, d + 3, kind, w, w + 3, h, h + 3, c)
    def trip(ph):
        X = {}
        add = lambda ks, g, *e: X.setdefault((ks, g), []).extend(e)
        add(0, 1, W[0]); add(0, 3, W[1]); add(3, 0, W[2]); add(4, 0, W[3]); add(4, 2, sig[0]); add(4, 3, sig[1])
        HB = hbase(sBase, sCur, sT2)
        add(1, 0, order_next[0], order_next[1]); add(1, 2, order_next[2], HB[0]); add(1, 3, HB[1])
        add(2, 0, HB[2], HB[3]); add(2, 1, HB[4]); add(2, 2, HB[5], "s_lshl_b32 s%d, s%d, 7" % (sT, sCur)); add(2, 3, "s_cmp_ge_u32 s%d, s%d" % (sIt, sNb))
        add(3, 1, "s_cselect_b32 s%d, s%d, s%d" % (sBase, sNx, sBase))
        add(5, 0, chk, "s_andn2_b32 s%d, s%d, s%d" % (sT, sKr, sT))
        add(5, 1, "s_cselect_b64 s[%d:%d], 0, -1" % (sT, sT + 1))
        add(5, 2, "s_and_b64 s[%d:%d], s[%d:%d], vcc" % (sT, sT + 1, sT, sT + 1), "s_cbranch_scc1 L_spb%d" % ph, "L_spb%d_r:" % ph)
        add(5, 3, "s_add_u32 s%d, s%d, s%d" % (sHcur, sBase, sO0))
        add(6, 0, "s_movk_i32 s%d, 256" % sKr, "s_mov_b32 s%d, %d" % (sInc, REDSZ))
        add(6, 2, "s_or_b64 vcc, vcc, s[%d:%d]" % (sC1, sC1 + 1), "s_mov_b64 s[%d:%d], 0" % (sC1, sC1 + 1))
        add(PK, 2, "s_mov_b64 exec, vcc", pollB, "s_mov_b64 exec, -1")
        add(NK - 1, 2, "s_add_u32 s%d, s%d, 1" % (sIt, sIt), "s_cmp_le_u32 s%d, s%d" % (sIt, sNb))
        for ks in range(NK):
            between = any(((ks - D + d) % NK) == PK for d in range(D))
            wt = "s_waitcnt vmcnt(%d)" % (D - 1 + (1 if between else 0))
            t0 = 0 if ks & 1 else 2
            if ks == 0: M = [mm(2, NK - 1, ph, True), mm(3, NK - 1, ph, True), mm(2, 0, ph), mm(3, 0, ph)]
            elif o["sn2"] and ks not in (1, NK - 1): M = [mm(t0, ks - 1, ph), mm(t0, ks, ph), mm(t0 + 1, ks, ph), mm(t0 + 1, ks - 1, ph)]
            else: M = [mm(t0, ks - 1, ph), mm(t0, ks, ph), mm(t0 + 1, ks - 1, ph), mm(t0 + 1, ks, ph)]
            ex = {g: list(X.get((ks, g), [])) for g in range(4)}
            if ks == 0: ex[0] = [wt] + ex[0]
            else: a(wt)
            hg = 2 if ks == 0 else 1
            ex[hg] = [hload(ks + D, ph)] + hstep(ks + D) + ex[hg]
            weave(a, M, ex)
        if PROF and "p2st" in o["dbg"]:
            a("s_cselect_b32 s%d, 1, 0", sT)
            for b in ((1, 3, 5) if ph == 0 else (2, 4)):
                r = {1: 66, 2: 68, 3: 70, 4: 84, 5: 86}[b]
                a("s_cmp_lg_u32 s%d, %d", sIt, b + 1); a("s_cbranch_scc1 L_ps%d", b); a("s_memtime s[%d:%d]", r, r + 1); a.label("L_ps%d" % b)
            a("s_cmp_eq_u32 s%d, 1", sT)
    jitter("L_j5", 5)
    a("s_mov_b32 s%d, 0x%x", sNx, OOB); a("s_mov_b64 s[%d:%d], -1", sC1, sC1 + 1)
    a(".p2align 3")
    a.label("L_p2")
    trip(0)
    a("s_cbranch_scc0 L_p2f")
    a(".p2align 3")
    trip(4)
    a("s_cbranch_scc1 L_p2")
    a(mm(2, NK - 1, 4)); a(mm(3, NK - 1, 4)); a("s_branch L_p2e")
    a.label("L_p2f")
    a(mm(2, NK - 1, 0)); a(mm(3, NK - 1, 0)); a("s_nop 0")
    a.label("L_p2e")
    a("s_nop 2"); a(W[0]); a("s_nop 0"); a(W[1]); a("s_nop 0"); a(W[2]); a(W[3])
    for e in sig: a(e)
    stamp()
    if PROF and "p1st" in o["dbg"]:
        a("s_mov_b32 s70, s84"); a("s_mov_b32 s72, s86")
    pad_to(NSTAMP)
    if PROF and "gall" in o["dbg"]:
        for i, r in enumerate((8, 10, 12, 14, 28, 30, 40)): a("s_mov_b32 s%d, s%d", 66 + 2 * i, r)
    if PROF and ("gst" in o["dbg"] or "p2st" in o["dbg"]):
        a("s_mov_b32 s76, s84"); a("s_mov_b32 s78, s86")
    if PROF: a("s_branch L_fin")
    else: a("s_endpgm")
    for ph in (0, 4):
        a.label("L_spb%d" % ph)
        if o["pm"]: a("s_mov_b64 exec, 0xff")
        spin("L_spb%dl" % ph, pollB)
        if o["pm"]: a("s_mov_b64 exec, -1")
        a("s_branch L_spb%d_r", ph)
    a.L.append("@F")
    a.label("L_fin")
    if PROF:
        n = NSTAMP
        a("s_waitcnt vmcnt(0)")
        a("s_memtime s[%d:%d]", 64 + 2 * n, 65 + 2 * n); a("s_memrealtime s[62:63]"); a("s_waitcnt lgkmcnt(0)")
        a("s_add_u32 s8, s54, %d", 128 << 20); a("s_addc_u32 s9, s55, 0"); a("s_mov_b32 s10, 0x100000"); a("s_mov_b32 s11, 0x20000")
        a("s_lshl_b32 s28, s2, 3"); a("s_add_u32 s28, s28, s%d", sWv); a("s_lshl_b32 s28, s28, 6")
        a("v_mov_b32 v0, s28")
        a("s_getreg_b32 s29, hwreg(HW_REG_XCC_ID)")
        vals = ["s60", "s62", "s29"] + ["s%d" % (64 + 2 * i) for i in range(n + 1)]
        vals += ["0"] * (16 - len(vals))
        for i, v in enumerate(vals): a("v_mov_b32 v%d, %s", 4 + i, v)
        a("s_mov_b64 exec, 1")
        for i in range(4): a("buffer_store_dwordx4 v[%d:%d], v0, s[8:11], 0 offen offset:%d", 4 + 4 * i, 7 + 4 * i, 16 * i)
    if PROF and o.get("probe") is not None:
        pw, pv, pi = o["probe"]
        a("s_cmp_lg_u32 s2, %d", pw); a("s_cbranch_scc1 L_end")
        a("s_cmp_lg_u32 s%d, %d", sWv, pv); a("s_cbranch_scc1 L_end")
        if pi == "start": a("s_sub_u32 s30, s60, s%d", sNonce); a("s_add_u32 s30, s30, 200"); a("s_lshl_b32 s30, s30, 2")
        else: a("s_sub_u32 s30, s%d, s64", 64 + 2 * pi); a("s_lshl_b32 s30, s30, 2"); a("s_add_u32 s30, s30, 300")
        a("s_min_u32 s30, s30, 20000")
        a.label("L_spin")
        a("s_memrealtime s[32:33]"); a("s_waitcnt lgkmcnt(0)")
        a("s_sub_u32 s32, s32, s62"); a("s_cmp_lt_u32 s32, s30"); a("s_cbranch_scc1 L_spin")
    a.label("L_end")
    a("s_endpgm")
    a(".p2align 6")
    a(".type L_table,@object")
    a.label("L_table")
    W = make_table(o)
    for k in range(0, 256, 8): a(".long " + ", ".join("0x%x" % w for w in W[k:k + 8]))
    a.label("L_codeend")
    sec = {"E": []}; cur = "E"
    for l in a.L:
        if l.startswith("@"): cur = l[1]; sec[cur] = []
        else: sec[cur].append(l)
    a.L = []
    for c in o["lay"] + "F":
        if c == "|": a.L.append("    .p2align 12")
        if c in sec: a.L += sec[c]
    a.L = [l for i, l in enumerate(a.L) if not (l.startswith("    s_branch ") and i + 1 < len(a.L) and a.L[i + 1] == l.split()[1] + ":")]
    if o["dfl"]: a.L = [l[:-4] + " " + o["dfl"] + " lds" if l.endswith(" lds") else l for l in a.L]
    if "rt" in o["dbg"].split(): a.L = [l.replace("s_memtime", "s_memrealtime") if "s[1" not in l else l for l in a.L]
    s = HEAD + DOC + "; @launch grid=(256,1,1) block=(512,1,1) lds=163840\n"
    s += '.amdgcn_target "amdgcn-amd-amdhsa--gfx950"\n.text\n'
    n = NAME + "_kernel"
    if o["pad"] is not None: s += ".p2align 12\n.fill %d, 4, 0xbf800000\n" % (o["pad"] // 4)
    s += ".globl %s\n.p2align 8\n.type %s,@function\n%s:\n%s" % (n, n, n, a.text())
    s += '''.section .rodata,"a"
.p2align 6
.amdhsa_kernel %s
  .amdhsa_next_free_vgpr 256
  .amdhsa_next_free_sgpr 102
  .amdhsa_accum_offset 128
  .amdhsa_group_segment_fixed_size 0
  .amdhsa_kernarg_size 64
  .amdhsa_user_sgpr_count 2
  .amdhsa_user_sgpr_kernarg_segment_ptr 1
  .amdhsa_system_sgpr_workgroup_id_x 1
  .amdhsa_float_denorm_mode_32 3
  .amdhsa_float_denorm_mode_16_64 3
.end_amdhsa_kernel
''' % n
    return s
if __name__ == "__main__":
    kw = json.loads(sys.argv[2]) if len(sys.argv) > 2 else {}
    open(sys.argv[1], "w").write(gen(**kw))
```

```python
import struct, sys, json
def f2u(x): return struct.unpack("<I", struct.pack("<f", x))[0]
C0 = -2.0 * 0.7978845608028654 * 1.4426950408889634
C1 = C0 * 0.044715
NAME = "standalone__dense_activation_gelu__prompt"
HEAD = open("cdna_kernels/%s.s.ref" % NAME).read().split("; Override launch geometry")[0]
FLAGOFF = 8 << 20
OOB = 0x7f000000
DEF = dict(prof=False, a1=4, a2=4, rot1="x", pf=(1, 10), w2pf=True, hst="sc1", ost="nt", dist=7, spin=1000000, codepf=True,
           out=8, prio=1, hsame=False, psleep=4, dbg="", gpace=1, gpend=9, rsleep=3, p2prio=1, swap46=False, krot=True, hdelay=0,
           pollg=10, puba=8, nsl=3, hs=49152, lprio=0, ng=4, swapx=True, rotx=0, hbal=False, pad=0xD00, lay="EGHRBPSTC|W|D", tmap="half", alt=0, light=0, snake=True, barpos=16, nw=2, bp=0, fl=1, poll0=0, spub=False, rprio=0, l1prio=0, lwait=8, spec=False, lfrom=2, lstep=1, gpb=4, pre9=1, sup=3, np=8, dbl=0, tog2=1, mv=2, xf=0, b2e=0, tlb=0, sn2=1, pgb=0, noa2=0, pbk=3, slide=0, w64=0, pex=1, nocls=False, a1at=6, pm=0, mid=False, hwait=0, pr=2, pmax=5, pth=22, bt=0, b1=1, ov=1, wn=(12, 12, 16), al=0, hw=0, cw=0, polx=0, pskip=True, rlast=True, wpos=(2, 3), hld="sc1", tfl="", dfl="", kks=(0, 1, 2, 3, 4, 5))

DOC = """; Fused MLP, one launch, 256 workgroups of 8 waves (one per CU; generated by a script of my own).
;           four ways) and stream h, waves 0-3 sum the four partial tiles, add b2 and store.
;  h is laid out in the 8 KB chunks of d_ws that are close to the dies using it (found anew in every launch; this
"""
class A:
    def __init__(self): self.L = []
    def __call__(self, s, *args): self.L.append("    " + (s % args if args else s))
    def label(self, s): self.L.append(s + ":")
    def text(self): return "\n".join(self.L) + "\n"

def weave(a, main, extra):
    for i, m in enumerate(main):
        a(m)
        for e in extra.get(i, []): a(e)

def make_table(o):
    T = {}
    for x in range(8):
        par, q = x & 1, x >> 1
        tiles = []
        if o["a2"] == 8:
            par = 0
            if o["tmap"] == "cur":
                for i in range(32):
                    dl, rb, n = i >> 1, 6 + 5 * (i & 1), 5
                    if i >= 16: dl, rb, n = (i >> 2) + 4, 4 * (i & 3), 4
                    if i >= 24: dl, rb, n = i - 24, 0, 6
                    tiles.append((dl, rb + 16 * x, n))
            else:
                four = {0: (0, 4), 1: (1, 5), 2: (2, 6), 3: (3, 7), 4: (0, 4), 5: (2, 6), 6: (1,), 7: (3,), 8: (5,), 9: (7,)}
                six = {6: (3, 5, 7), 7: (0, 5, 7), 8: (1, 2, 6), 9: (1, 3, 4)}
                for dl in range(10):
                    c = lambda k: 4 if k in four[dl] else 3
                    d = lambda k: (-1 if (dl < 6 and k in four[dl]) else (1 if k in six.get(dl, ()) else 0))
                    rb = sum(5 * c(k) + d(k) for k in range(x))
                    for k in range(c(x)):
                        n = 5 + (d(x) if k == 0 else 0)
                        tiles.append((dl, rb, n)); rb += n
                t6 = [t for t in tiles if t[2] == 6]; t4 = [t for t in tiles if t[2] == 4]; t5 = [t for t in tiles if t[2] == 5]
                nh = 8 - len(t6) - len(t4)
                tiles = t5[nh:] + t4 + t5[:nh] + t6
        elif o["tmap"] == "cur":
            for i in range(32):
                dl, rb, n = i >> 2, 12 + 5 * (i & 3), 5
                if i >= 20: dl, rb, n = 3 + (i & 1), ((i - 20) >> 1) * 4, 4
                if i >= 26: dl, rb, n = (i - 26) >> 1, 6 * (i & 1), 6
                tiles.append((dl, rb + 32 * q, n))
        else:
            cnt = [[7, 6, 7, 6], [6, 7, 6, 7], [7, 6, 6, 7], [6, 7, 6, 6], [6, 6, 7, 6]]
            odd = [[-1, 0, -1, 0], [0, -1, 0, -1], [-1, 0, 0, -1], [1, 0, 1, 1], [1, 1, 0, 1]]
            if o["tmap"] == "half":
                cnt = [[7, 6, 7, 6], [6, 7, 6, 7], [7, 6, 7, 6], [6, 7, 6, 7], [6, 6, 6, 6]]
                odd = [[-1, 0, -1, 0], [0, -1, 0, -1], [-1, 0, -1, 0], [0, -1, 0, -1], [2, 2, 2, 2]]
            for dl in range(5):
                rb = sum(5 * cnt[dl][k] + odd[dl][k] for k in range(q))
                for k in range(cnt[dl][q]):
                    n = 5 + (odd[dl][q] if k == 0 else 0)
                    if odd[dl][q] == 2: n = 6 if k in (0, 2) else 5
                    tiles.append((dl, rb, n)); rb += n
            t6 = [t for t in tiles if t[2] == 6]; t4 = [t for t in tiles if t[2] == 4]; t5 = [t for t in tiles if t[2] == 5]
            nh = 8 - len(t6) - len(t4)
            tiles = t5[nh:] + t4 + t5[:nh] + t6
        assert len(tiles) == 32
        for i, (dl, rb, n) in enumerate(tiles):
            E = [b for b in range(rb, rb + n) if not b & 2]; Lt = [b for b in range(rb, rb + n) if b & 2]
            if o["alt"] == 1 and dl & 1: E.reverse(); Lt.reverse()
            if o["alt"] == 2:
                r = dl % len(E); E = E[r:] + E[:r]; r = dl % len(Lt); Lt = Lt[r:] + Lt[:r]
            k = next(k for k, b in enumerate(E) if b % 4 == 0)
            E = [E[k]] + E[:k] + E[k + 1:]
            assert len(E) >= 2
            T[x + 8 * i] = (dl + 5 * par, rb, E + Lt)
    cov = set()
    W = []
    for wg in range(256):
        dl, rb, seq = T[wg]
        for b in seq:
            assert (dl, b) not in cov; cov.add((dl, b))
        w = dl | (rb << 4) | (len(seq) << 11)
        for k, b in enumerate(seq): w |= (b - rb) << (14 + 3 * k)
        W.append(w)
    assert len(cov) == 1280
    return W

def gen(**kw):
    o = dict(DEF); o.update(kw)
    a = A()
    PROF = o["prof"]
    nst = [1]
    def stamp():
        if not PROF: return
        a("s_memtime s[%d:%d]", 64 + 2 * nst[0], 65 + 2 * nst[0]); nst[0] += 1
        a("s_waitcnt lgkmcnt(0)")
    def pad_to(n):
        assert nst[0] <= n, nst[0]
        while PROF and nst[0] < n: stamp()
    NSTAMP = 8
    sX, sW1, sW2, sH, sO = 8, 12, 16, 20, 24
    sWv, sXcd, sI, sMT, sFT = 3, 4, 5, 6, 7
    sXoff, sWoff, sM0, sKb, sDelta, sIt, sT, sT2, sT3, sRd = 28, 29, 30, 31, 32, 33, 34, 35, 36, 37
    sC1 = 38
    sNonce = 56
    sRb, sNb, sDl, sG, sGm, sHcur, sCnt, sOst, sNx, sNw, sPw, sW = 58, 59, 92, 93, 94, 95, 96, 97, 98, 99, 100, 101
    sCur, sEnd, sBase, sO0, sO1, sO2, sInc, sGw, sKr = 0, 1, 82, 88, 89, 90, 91, 97, 96
    vL, vZ = 1, 2
    vT = 8
    vPl = 4
    vH, vFl, vRw, vCa = 0, 3, 6, 7
    vXd, vWd, vGd, vGr = 16, 20, 24, 56
    RING, A2, B2 = 8, 40, 56
    def w2reg(i): return ("a", 4 * i) if i < 32 else ("v", 64 + 4 * (i - 32))
    vHi, vXr, vWr, vC0, vONE, vHst = 3, 16, 20, 22, 24, 26
    vRr, vOst, vB2 = 6, 7, 28
    ACC, TMP, OUT = 32, 96, 112
    RD = 32
    NSL = o["nsl"]; REDSZ = 17408; SYNC = 9 * REDSZ
    SLO = [REDSZ, 2 * REDSZ, 3 * REDSZ, 0]
    SLOT = 32768; S = 3
    def srd(d, lo, nbytes):
        a("s_mov_b64 s[%d:%d], s[%d:%d]", d, d + 1, lo, lo + 1)
        a("s_mov_b32 s%d, %d", d + 2, nbytes); a("s_mov_b32 s%d, 0x20000", d + 3)
    def mod3(dst, src):
        a("s_mul_i32 s%d, s%d, 86", sT, src); a("s_lshr_b32 s%d, s%d, 8", sT, sT); a("s_mul_i32 s%d, s%d, 3", sT, sT); a("s_sub_u32 s%d, s%d, s%d", dst, src, sT)
    def krot(dst):
        if o["krot"]:
            if o["a2"] == 4: a("s_lshr_b32 s%d, s%d, 1", dst, sXcd); a("s_cmp_eq_u32 s%d, 3", dst); a("s_cselect_b32 s%d, 0, s%d", dst, dst)
            else: mod3(dst, sXcd)
        else: a("s_mov_b32 s%d, 0", dst)

    a("s_load_dwordx16 s[40:55], s[0:1], 0")
    a("s_cmp_ge_u32 s2, 256"); a("s_cbranch_scc1 L_end")
    if PROF:
        a("s_memrealtime s[60:61]"); a("s_memtime s[64:65]")
    a("v_lshrrev_b32 v%d, 6, v0", vT)
    a("v_and_b32 v%d, 63, v0", vL)
    a("v_readfirstlane_b32 s%d, v%d", sWv, vT)
    a("s_and_b32 s%d, s2, 7", sXcd); a("s_lshr_b32 s%d, s2, 3", sI)
    a("v_lshrrev_b32 v%d, 3, v%d", vT, vL)
    a("v_and_b32 v%d, 7, v%d", vT + 1, vL)
    a("v_lshrrev_b32 v%d, 1, v%d", vT + 2, vT)
    a("v_mov_b32 v%d, 0", vZ)
    a("s_and_b32 s%d, s%d, 3", sW, sWv)
    def jitter(lab, sh):
        if "drand" not in o["dbg"]: return
        a("s_memtime s[60:61]"); a("s_waitcnt lgkmcnt(0)"); a("s_lshr_b32 s60, s60, %d", sh); a("s_mul_i32 s61, s2, 7"); a("s_add_u32 s60, s60, s61"); a("s_add_u32 s60, s60, s3")
        a("s_and_b32 s60, s60, 15"); a("s_cmp_lg_u32 s60, 0"); a("s_cbranch_scc1 %s", lab); a("s_sleep 60"); a.label(lab)
    jitter("L_j0", 4)
    if o["rotx"] == 0: a("s_mul_i32 s%d, s%d, 10", sKb, sXcd); a("s_lshr_b32 s%d, s%d, 3", sKb, sKb)
    else:
        tab = {1: [0, 5, 2, 7, 5, 0, 7, 2], 2: [0, 5, 3, 8, 5, 0, 8, 3], 3: [0, 6, 2, 8, 5, 1, 7, 3]}[o["rotx"]]
        a("s_lshl_b32 s%d, s%d, 2", sKb, sXcd); a("s_lshr_b32 s%d, 0x%x, s%d", sKb, sum(v << (4 * i) for i, v in enumerate(tab)), sKb); a("s_and_b32 s%d, s%d, 15", sKb, sKb)
    a("s_mov_b32 s%d, %d", sX + 2, 2048 * 640 * 2); a("s_mov_b32 s%d, 0x20000", sX + 3)
    a("s_mov_b32 s%d, %d", sW1 + 2, 640 * 1536 * 2); a("s_mov_b32 s%d, 0x20000", sW1 + 3)
    a("s_cmp_ge_u32 s%d, 24", sI); a("s_cbranch_scc1 L_helper")
    if o["a1"] == 4:
        a("s_lshr_b32 s%d, s%d, 1", sMT, sXcd); a("s_lshl_b32 s%d, s%d, 2", sMT, sMT)
        a("s_and_b32 s%d, s%d, 3", sT, sI); a("s_add_u32 s%d, s%d, s%d", sMT, sMT, sT)
        a("s_and_b32 s%d, s%d, 1", sFT, sXcd); a("s_mul_i32 s%d, s%d, 6", sFT, sFT)
        a("s_lshr_b32 s%d, s%d, 2", sT2, sI); a("s_add_u32 s%d, s%d, s%d", sFT, sFT, sT2)
    else:
        a("s_lshl_b32 s%d, s%d, 1", sMT, sXcd); a("s_and_b32 s%d, s%d, 1", sT, sI); a("s_add_u32 s%d, s%d, s%d", sMT, sMT, sT)
        a("s_lshr_b32 s%d, s%d, 1", sT2, sI); a("s_mov_b32 s%d, s%d", sFT, sT2)
    a("s_cmp_lt_u32 s%d, 4", sWv); a("s_cbranch_scc1 L_c0")
    a.label("L_ldr")

    sTab = 83; sPol = 63
    HBYTES = 8 << 20
    def hbase(dst, rb, tmp):
        return ["s_lshr_b32 s%d, s%d, 4" % (tmp, rb), "s_lshr_b32 s%d, s%d, s%d" % (tmp, sPol, tmp), "s_and_b32 s%d, s%d, 8192" % (tmp, tmp),
                "s_and_b32 s%d, s%d, 63" % (dst, rb), "s_lshl_b32 s%d, s%d, 17" % (dst, dst), "s_or_b32 s%d, s%d, s%d" % (dst, dst, tmp)]
    def setpol(hi):
        a("s_bfe_u32 s%d, s%d, 0x40018", sPol, hi); a("s_mul_i32 s%d, s%d, 17", sPol, sPol); a("s_xor_b32 s%d, s%d, %d", sPol, sPol, 15 ^ o["polx"]); a("s_lshl_b32 s%d, s%d, 13", sPol, sPol)
    def hptr(d):
        a("s_sub_u32 s%d, 0, s54", d); a("s_and_b32 s%d, s%d, 0x1fffff", d, d); a("s_add_u32 s%d, s54, s%d", d, d); a("s_addc_u32 s%d, s55, 0", d + 1)
    def srdH():
        hptr(sH); a("s_mov_b32 s%d, %d", sH + 2, HBYTES); a("s_mov_b32 s%d, 0x20000", sH + 3)
    def tab_load(lab):
        a("s_getpc_b64 s[%d:%d]", sT, sT + 1)
        a.label(lab)
        a("s_add_u32 s%d, s%d, L_table-%s", sT, sT, lab); a("s_addc_u32 s%d, s%d, 0", sT + 1, sT + 1)
        a("s_lshl_b32 s%d, s2, 2", sTab)
        a("s_load_dword s%d, s[%d:%d], s%d", sTab, sT, sT + 1, sTab)
    def tile_assign():
        a("s_and_b32 s%d, s%d, 15", sDl, sTab); a("s_bfe_u32 s%d, s%d, 0x70004", sRb, sTab); a("s_bfe_u32 s%d, s%d, 0x3000b", sNb, sTab)
        a("s_lshr_b32 s%d, s%d, 14", sTab, sTab)
    def order_init():
        a("s_add_u32 s%d, s%d, s%d", sEnd, sRb, sNb)
        a("s_and_b32 s%d, s%d, 7", sCur, sTab); a("s_add_u32 s%d, s%d, s%d", sCur, sCur, sRb)
    order_next = ["s_lshr_b32 s%d, s%d, 3" % (sTab, sTab), "s_and_b32 s%d, s%d, 7" % (sCur, sTab), "s_add_u32 s%d, s%d, s%d" % (sCur, sCur, sRb), "s_bitcmp1_b32 s%d, 1" % sCur]
    log = []
    def vmcount(tag):
        idx = max(i for i, t in enumerate(log) if t == tag)
        return len(log) - 1 - idx
    def vmwait(tag): return "s_waitcnt vmcnt(%d)" % vmcount(tag)
    nload = "buffer_load_dwordx2 v[%d:%d], v%d, s[%d:%d], 0 offen sc1" % (vPl, vPl + 1, vZ, sO, sO + 3)
    def get_nonce(lab):
        a("s_mov_b32 s%d, 0", sIt)
        a.label(lab)
        a("v_readfirstlane_b32 s%d, v%d", sNonce, vPl); a("v_readfirstlane_b32 s%d, v%d", sNonce + 1, vPl + 1)
        a("s_add_u32 s%d, s%d, 1", sIt, sIt); a("s_nop 1")
        a("s_bitcmp1_b32 s%d, 30", sNonce + 1); a("s_cbranch_scc1 %s_ok", lab)
        a("s_cmp_gt_u32 s%d, %d", sIt, o["spin"]); a("s_cbranch_scc1 %s_ok", lab)
        a(nload); a("s_waitcnt vmcnt(0)"); a("s_branch %s", lab)
        a.label(lab + "_ok")

    def lsetup():
        a("v_lshlrev_b32 v%d, 1, v%d", vT + 3, vT + 2)
        a("v_xor_b32 v%d, v%d, v%d", vT + 3, vT + 1, vT + 3)
        a("v_mul_u32_u24 v%d, 1280, v%d", vGd, vT)
        a("v_lshl_add_u32 v%d, v%d, 4, v%d", vGd, vT + 3, vGd)
        for i in range(1, 4): a("v_add_u32 v%d, %d, v%d", vGd + i, i * (8 * 1280 - 1024), vGd)
        krot(sRd)
        a("s_mul_i32 s%d, s%d, 4352", sGm, sW); a("s_add_u32 s%d, s%d, %d", sGm, sGm, 5 * REDSZ)
        a("v_lshrrev_b32 v%d, 2, v%d", vT + 3, vL)
        a("v_lshlrev_b32 v%d, 7, v%d", vT + 3, vT + 3)
        a("v_bfe_u32 v%d, v%d, 3, 2", vT + 4, vL)
        a("v_lshl_add_u32 v%d, v%d, 5, v%d", vT + 3, vT + 4, vT + 3)
        a("v_and_b32 v%d, 3, v%d", vT + 4, vL)
        a("v_lshl_add_u32 v%d, v%d, 3, v%d", vT + 3, vT + 4, vT + 3)
        a("v_add_u32 v%d, s%d, v%d", vGr, sGm, vT + 3)
        for t in range(1, 4): a("v_xor_b32 v%d, %d, v%d", vGr + t, 32 * t, vGr)
        a("v_lshlrev_b32 v%d, 4, v%d", vH, vL)
        a("s_mul_i32 s%d, s%d, 3", sT3, sW); a("s_add_u32 s%d, s%d, s%d", sO0, sT3, sRd)
        a("s_add_u32 s%d, s%d, 1", sO1, sO0); a("s_cmp_eq_u32 s%d, 2", sRd); a("s_cselect_b32 s%d, s%d, s%d", sO1, sT3, sO1)
        a("s_add_u32 s%d, s%d, 1", sO2, sO1); a("s_cmp_eq_u32 s%d, 1", sRd); a("s_cselect_b32 s%d, s%d, s%d", sO2, sT3, sO2)
        for r in (sO0, sO1, sO2):
            a("s_and_b32 s%d, s%d, 14", sT, r); a("s_add_u32 s%d, s%d, s%d", r, r, sT); a("s_lshl_b32 s%d, s%d, 12", r, r)
        a("v_and_b32 v%d, 15, v%d", vT + 3, vL); a("v_lshrrev_b32 v%d, 4, v%d", vT + 4, vL)
        a("v_mul_u32_u24 v%d, 272, v%d", vRw, vT + 3)
        a("v_lshl_add_u32 v%d, v%d, 4, v%d", vRw, vT + 4, vRw)
        a("s_mul_i32 s%d, s%d, 4352", sT, sW); a("v_add_u32 v%d, s%d, v%d", vRw, sT, vRw)
        a("s_lshl_b32 s%d, s%d, 8", sT, sW); a("s_add_u32 s%d, s%d, %d", sT, sT, SYNC + 256)
        a("v_lshl_add_u32 v%d, v%d, 2, s%d", vCa, vL, sT)
        a("s_waitcnt lgkmcnt(0)")
        tile_assign()
        a("s_mul_i32 s%d, s%d, %d", sGw, sW, 384 * 1280); a("s_lshl_b32 s%d, s%d, 7", sT, sDl); a("s_add_u32 s%d, s%d, s%d", sGw, sGw, sT)
        a("s_mul_i32 s%d, s%d, %d", sT, sRd, 128 * 1280); a("s_add_u32 s%d, s%d, s%d", sG, sGw, sT)
        order_init()
    def lsetup2():
        setpol(sNonce + 1)
        a("s_mul_i32 s%d, s%d, 3", sT3, sW)
        a("s_and_b32 s%d, s%d, 0x78", sInc, sRb)
        for e in hbase(sBase, sInc, sT): a(e)
        a("s_sub_u32 s%d, s%d, 1", sInc, sEnd); a("s_and_b32 s%d, s%d, 0x78", sInc, sInc)
        for e in hbase(sT2, sInc, sT): a(e)
        a("v_mov_b32 v%d, s%d", vT + 3, sBase); a("v_mov_b32 v%d, s%d", vT + 4, sT2); a("v_cmp_lt_u32 vcc, 31, v%d", vL)
        a("v_bfe_u32 v%d, v%d, 3, 2", vFl, vL); a("v_min_u32 v%d, 2, v%d", vFl, vFl); a("v_add_u32 v%d, s%d, v%d", vFl, sT3, vFl)
        a("v_cndmask_b32 v%d, v%d, v%d, vcc", vT + 3, vT + 3, vT + 4)
        a("v_lshl_add_u32 v%d, v%d, 9, v%d", vFl, vFl, vT + 3); a("v_add_u32 v%d, 98304, v%d", vFl, vFl)
        for e in hbase(sBase, sCur, sT): a(e)
        a("s_add_u32 s%d, s%d, s%d", sHcur, sBase, sO0)
        a("s_mov_b32 s%d, 0", sInc); a("s_mov_b32 s%d, %d", sKr, 256 if o["noa2"] else 0)
        a("s_lshl_b32 s%d, s%d, 9", sT, sT3); a("s_add_u32 s%d, s%d, s%d", sT, sT, sBase); a("s_add_u32 s%d, s%d, 114688", sT, sT)
        a("v_min_u32 v62, 5, v%d", vT); a("v_lshl_add_u32 v62, v62, 8, s%d", sT)
    sSa, sSb, sMb = sG, sGm, sC1
    a("s_add_u32 s%d, s%d, s%d", sRd, sT, sT2); a("s_and_b32 s%d, s%d, %d", sRd, sRd, 1 if o["swapx"] else 0)
    a("s_lshl2_add_u32 s%d, s%d, s%d", sXoff, sMT, sW); a("s_mul_i32 s%d, s%d, 320", sXoff, sXoff); a("s_add_u32 s%d, s%d, s%d", sXoff, sXoff, sKb)
    a("s_and_b32 s%d, s%d, 1", sT, sW); a("s_lshl1_add_u32 s%d, s%d, s%d", sT, sKb, sT); a("s_mul_i32 s%d, s%d, 768", sT, sT)
    a("s_lshr_b32 s%d, s%d, 1", sT2, sW); a("s_lshl1_add_u32 s%d, s%d, s%d", sT2, sFT, sT2); a("s_add_u32 s%d, s%d, s%d", sT, sT, sT2)
    a("s_movk_i32 s%d, 1280", sMT); a("s_movk_i32 s%d, 3072", sFT)
    a("s_cmp_eq_u32 s%d, 1", sRd)
    a("s_cselect_b32 s%d, s%d, s%d", sWoff, sXoff, sT); a("s_cselect_b32 s%d, s%d, s%d", sXoff, sT, sXoff)
    a("s_cselect_b32 s%d, s%d, s%d", sT, sFT, sMT); a("s_cselect_b32 s%d, s%d, s%d", sT2, sMT, sFT)
    a("s_cselect_b32 s%d, s%d, s%d", sT3, sW1 + 2, sX + 2); a("s_cselect_b32 s%d, s%d, s%d", sW1 + 2, sX + 2, sW1 + 2); a("s_mov_b32 s%d, s%d", sX + 2, sT3)
    a("s_lshl_b32 s%d, s%d, 7", sXoff, sXoff); a("s_lshl_b32 s%d, s%d, 7", sWoff, sWoff)
    a("s_lshl2_add_u32 s%d, s%d, s%d", sM0, sRd, sW); a("s_lshl_b32 s%d, s%d, 12", sM0, sM0); a("s_mov_b32 m0, s%d", sM0)
    def offs(v, pitch, sh):
        a("v_lshlrev_b32 v%d, s%d, v%d", vT + 3, sh, vT + 2); a("v_and_b32 v%d, 3, v%d", vT + 3, vT + 3); a("v_xor_b32 v%d, v%d, v%d", vT + 3, vT + 1, vT + 3)
        a("v_mul_u32_u24 v%d, s%d, v%d", v, pitch, vT); a("v_lshl_add_u32 v%d, v%d, 4, v%d", v, vT + 3, v)
        a("s_lshl_b32 s%d, s%d, 3", pitch, pitch); a("s_addk_i32 s%d, -1024", pitch)
        a("v_xor_b32 v%d, 64, v%d", v + 1, v); a("v_add_u32 v%d, s%d, v%d", v + 1, pitch, v + 1)
        a("s_lshl_b32 s%d, s%d, 1", pitch, pitch)
        a("v_add_u32 v%d, s%d, v%d", v + 2, pitch, v); a("v_add_u32 v%d, s%d, v%d", v + 3, pitch, v + 1)
    offs(vXd, sT, sRd)
    a("s_xor_b32 s%d, s%d, 1", sT3, sRd)
    offs(vWd, sT2, sT3)
    a("s_movk_i32 s%d, 128", sT); a("s_mov_b32 s%d, %d", sT2, 64 * 3072); a("s_mov_b32 s%d, -1", sIt)
    a("s_cmp_eq_u32 s%d, 1", sRd)
    a("s_cselect_b32 s%d, s%d, s%d", sMT, sT2, sT); a("s_cselect_b32 s%d, s%d, s%d", sFT, sT, sT2)
    sSa, sSb = sMT, sFT
    a("s_mul_i32 s%d, s%d, -9", sNx, sSa); a("s_mul_i32 s%d, s%d, -9", sNw, sSb)
    a("s_waitcnt lgkmcnt(0)")
    a("s_cselect_b64 s[%d:%d], s[42:43], s[40:41]", sX, sX + 1); a("s_cselect_b64 s[%d:%d], s[40:41], s[42:43]", sW1, sW1 + 1)
    def dma(i):
        if "nodma" in o["dbg"]: return "s_nop 0"
        if i < 4: return "buffer_load_dwordx4 v%d, s[%d:%d], s%d offen offset:%d lds" % (vXd + i, sX, sX + 3, sXoff, 1024 * i)
        return "buffer_load_dwordx4 v%d, s[%d:%d], s%d offen offset:%d lds" % (vWd + i - 4, sW1, sW1 + 3, sWoff, 1024 * (i - 4))
    if o["l1prio"]: a("s_setprio %d", o["l1prio"])
    stamp()
    def ldloop(lab, first, last_it):
        a.label(lab)
        thr = (not first) and o["lwait"] < 8
        for i in range(4):
            if thr: a("s_waitcnt vmcnt(%d)", o["lwait"] - 1)
            a(dma(i))
        a("s_xor_b32 m0, s%d, 16384", sM0)
        if first and o["mid"]:
            a("s_cmp_lt_i32 s%d, 0", sIt); a("s_cbranch_scc1 L_ldn"); a("s_waitcnt vmcnt(4)"); a("s_barrier"); a.label("L_ldn")
        a("s_add_u32 s%d, s%d, 1", sKb, sKb); a("s_cmp_eq_u32 s%d, 10", sKb)
        a("s_cselect_b32 s%d, s%d, s%d", sDelta, sNx, sSa); a("s_cselect_b32 s%d, s%d, s%d", sPw, sNw, sSb); a("s_cselect_b32 s%d, 0, s%d", sKb, sKb)
        for i in range(4, 8):
            if thr: a("s_waitcnt vmcnt(%d)", o["lwait"] - 1)
            a(dma(i))
        a("s_add_u32 s%d, s%d, s%d", sXoff, sXoff, sDelta); a("s_add_u32 s%d, s%d, s%d", sWoff, sWoff, sPw)
        a("s_add_u32 s%d, s%d, %d", sM0, sM0, SLOT); a("s_cmp_ge_u32 s%d, %d", sM0, S * SLOT)
        a("s_cselect_b32 s%d, %d, 0", sT, S * SLOT); a("s_sub_u32 s%d, s%d, s%d", sM0, sM0, sT); a("s_mov_b32 m0, s%d", sM0)
        a("s_add_u32 s%d, s%d, 1", sIt, sIt)
        if first and o["mid"]:
            a("s_cmp_lt_u32 s%d, %d", sIt, last_it - 1); a("s_cbranch_scc1 %s", lab)
            a("s_branch L_su")
        elif first:
            a("s_cbranch_scc1 %s", lab)
            a("s_cmp_eq_u32 s%d, %d", sIt, last_it); a("s_cbranch_scc1 L_su")
            a("s_waitcnt vmcnt(8)"); a("s_barrier")
            a("s_branch %s", lab)
        else:
            a("s_cmp_lg_u32 s%d, s%d", sIt, sNonce); a("s_cbranch_scc1 %sw", lab); a(nload)
            a.label(lab + "w")
            a("s_cmp_lt_u32 s%d, %d", sIt, last_it)
            a("s_waitcnt vmcnt(8)"); a("s_barrier")
            a("s_cbranch_scc1 %s", lab)
    ldloop("L_ld", True, o["sup"])
    a.label("L_c0")
    a("v_and_b32 v%d, 15, v%d", vT + 3, vL)
    a("v_lshlrev_b32 v%d, 1, v%d", vT + 5, vL if o["b1"] else vT + 3)
    a("s_bfe_u32 s%d, s%d, 0x10000", sT, sW); a("s_lshl1_add_u32 s%d, s%d, s%d", sT3, sFT, sT); a("s_lshl_b32 s%d, s%d, 7", sT3, sT3)
    a("s_movk_i32 s%d, %d", sO + 2, 1536 * 2); a("s_mov_b32 s%d, s%d", sO + 3, sX + 3)
    a("s_waitcnt lgkmcnt(0)")
    a("s_mov_b64 s[%d:%d], s[44:45]", sO, sO + 1)
    if o["b1"]: a("buffer_load_ushort v14, v%d, s[%d:%d], s%d offen", vT + 5, sO, sO + 3, sT3)
    else:
        for f in range(4): a("buffer_load_ushort v%d, v%d, s[%d:%d], s%d offen offset:%d", TMP + 4 * f, vT + 5, sO, sO + 3, sT3, 32 * f)
    if o["bt"]:
        a("s_cmp_lg_u32 s%d, 0", sWv); a("s_cbranch_scc1 L_comp")
        a("s_cmp_ge_u32 s%d, 20", sI); a("s_cbranch_scc1 L_comp")
        a("s_add_u32 s%d, s%d, %d", sT, sKb, o["bt"]); a("s_cmp_ge_u32 s%d, 10", sT); a("s_cselect_b32 s%d, 10, 0", sT2); a("s_sub_u32 s%d, s%d, s%d", sT, sT, sT2)
        a("s_cmp_ge_u32 s%d, 8", sI); a("s_cbranch_scc1 L_btw")
        a("s_mov_b64 s[%d:%d], s[40:41]", sX, sX + 1)
        a("s_lshr_b32 s%d, s%d, 1", sT2, sXcd); a("s_lshl3_add_u32 s%d, s%d, s%d", sT2, sT2, sI); a("s_mul_i32 s%d, s%d, 640", sT2, sT2); a("s_add_u32 s%d, s%d, s%d", sT, sT, sT2); a("s_lshl_b32 s%d, s%d, 7", sT, sT)
        a("v_mul_u32_u24 v14, 1280, v%d", vL)
        a("buffer_load_dword v15, v14, s[%d:%d], s%d offen", sX, sX + 3, sT)
        a("s_branch L_comp")
        a.label("L_btw")
        a("s_mov_b64 s[%d:%d], s[42:43]", sW1, sW1 + 1)
        a("s_mul_i32 s%d, s%d, 1536", sT, sT); a("s_and_b32 s%d, s%d, 1", sT2, sXcd); a("s_mul_i32 s%d, s%d, 12", sT2, sT2); a("s_add_u32 s%d, s%d, s%d", sT, sT, sT2)
        a("s_add_u32 s%d, s%d, s%d", sT, sT, sI); a("s_sub_u32 s%d, s%d, 8", sT, sT); a("s_lshl_b32 s%d, s%d, 7", sT, sT)
        a("v_mul_u32_u24 v14, 3072, v%d", vL)
        a("buffer_load_dword v15, v14, s[%d:%d], s%d offen", sW1, sW1 + 3, sT)
    a("s_branch L_comp")
    a.L.append("@S")
    a.label("L_su")
    tab_load("L_t0")
    lsetup()
    srd(sO, 52, 256)
    a("s_cmp_eq_u32 s%d, 0", sW); a("s_cselect_b32 s%d, %d, -1", sNonce, o["np"])
    a("s_cmp_lt_u32 s5, 24"); a("s_cbranch_scc1 L_ld2w")
    a("s_barrier")
    a(nload)
    nst[0] = 1; stamp()
    a("s_branch L_lw")
    a.L.append("@T")
    ldloop("L_ld2", False, 9)
    a("s_branch L_lw")
    nst[0] = 1
    a.L.append("@H")
    a.label("L_helper")
    a("s_cmp_lt_u32 s%d, 4", sWv); a("s_cbranch_scc0 L_hl")
    a("v_mul_u32_u24 v%d, 1280, v%d", vXd, vL); a("v_mul_u32_u24 v%d, 3072, v%d", vWd, vL)
    sCl = sNx
    k0, k1 = o["pf"]
    a("s_bfe_u32 s%d, s%d, 0x20001", sM0, sI)
    a("s_and_b32 s%d, s%d, 1", sCl, sI); a("s_lshl_b32 s%d, s%d, 13", sCl, sCl)
    a("s_add_u32 s%d, s%d, %d", sKb, sKb, k0); a("s_cmp_ge_u32 s%d, 10", sKb); a("s_cselect_b32 s%d, 10, 0", sT); a("s_sub_u32 s%d, s%d, s%d", sKb, sKb, sT)
    a("s_lshr_b32 s%d, s%d, 1", sT, sXcd); a("s_lshl2_add_u32 s%d, s%d, s%d", sXoff, sT, sM0); a("s_mul_i32 s%d, s%d, %d", sXoff, sXoff, 128 * 1280)
    a("s_and_b32 s%d, s%d, 1", sT, sXcd); a("s_lshl2_add_u32 s%d, s%d, s%d", sWoff, sT, sM0); a("s_mul_i32 s%d, s%d, 384", sWoff, sWoff)
    def touch(v, srdn, off):
        a("v_add3_u32 v%d, s%d, v%d, %s", TMP + 1, sT, v, "0") if off == 0 else a("v_add_u32 v%d, %d, v%d", TMP + 1, off, TMP + 1)
        a("v_and_b32 v%d, 8192, v%d", TMP + 2, TMP + 1)
        a("v_cmpx_eq_u32 vcc, s%d, v%d", sCl, TMP + 2)
        a("buffer_load_dword v%d, v%d, s[%d:%d], 0 offen", TMP, TMP + 1, srdn, srdn + 3)
        a("s_mov_b64 exec, -1")
    def wstep(kb):
        a("s_mul_i32 s%d, s%d, %d", sT, kb, 64 * 3072); a("s_add_u32 s%d, s%d, s%d", sT, sT, sWoff)
        for q in range(3): touch(vWd, sW1, 128 if q else 0)
    def xstep(kb):
        a("s_lshl_b32 s%d, s%d, 7", sT, kb); a("s_add_u32 s%d, s%d, s%d", sT, sT, sXoff)
        for q in range(2): touch(vXd, sX, 64 * 1280 if q else 0)
    def knext(d, sr): a("s_add_u32 s%d, s%d, 1", d, sr); a("s_cmp_eq_u32 s%d, 10", d); a("s_cselect_b32 s%d, 0, s%d", d, d)
    flip = lambda: a("s_xor_b32 s%d, s%d, 8192", sCl, sCl)
    a("s_mov_b32 s%d, %d", sIt, k0)
    a("s_waitcnt lgkmcnt(0)")
    a("s_mov_b64 s[%d:%d], s[40:41]", sX, sX + 1); a("s_mov_b64 s[%d:%d], s[42:43]", sW1, sW1 + 1)
    a("s_cmp_ge_u32 s%d, 1", sWv); a("s_cbranch_scc1 L_pfb" if o["b2e"] else "s_cbranch_scc1 L_pfe")
    if o["hw"]: a("s_sleep %d", o["hw"])
    if o["dbl"]:
        assert (k1 - k0) % 2 == 1
        a("s_mov_b32 s%d, s%d", sRd, sKb); a("s_sub_u32 s%d, s%d, 1", sIt, sIt)
        a("s_branch L_pfm")
        a.label("L_pf")
        wstep(sKb); knext(sRd, sKb)
        a.label("L_pfm")
        wstep(sRd); flip()
        a("s_cmp_eq_u32 s%d, s%d", sRd, sKb); a("s_cbranch_scc1 L_pfx")
        xstep(sKb)
        a.label("L_pfx")
        xstep(sRd); knext(sKb, sRd)
        a("s_add_u32 s%d, s%d, 2", sIt, sIt)
    else:
        a.label("L_pf")
        if o["xf"]: wstep(sKb); flip(); xstep(sKb); knext(sKb, sKb)
        else: wstep(sKb); xstep(sKb); flip(); knext(sKb, sKb)
        a("s_add_u32 s%d, s%d, 1", sIt, sIt)
        if o["bt"] > k0:
            a("s_cmp_lg_u32 s%d, %d", sIt, o["bt"]); a("s_cbranch_scc1 L_pfs"); knext(sKb, sKb); a("s_add_u32 s%d, s%d, 1", sIt, sIt); a.label("L_pfs")
    a("s_cmp_lt_u32 s%d, %d", sIt, k1); a("s_cbranch_scc1 L_pf")
    a.label("L_pfe")
    stamp()
    a("s_branch L_hc2")
    if o["b2e"]:
        a.L.append("@B")
        a.label("L_pfb")
        a("s_cmp_lg_u32 s%d, 1", sWv); a("s_cbranch_scc1 L_pfe")
        a("s_cmp_lg_u32 s%d, 25", sI); a("s_cbranch_scc1 L_pfe")
        srd(sO, 48, 640 * 2)
        a("v_lshlrev_b32 v%d, 7, v%d", TMP + 1, vL)
        a("buffer_load_dword v%d, v%d, s[%d:%d], 0 offen", TMP, TMP + 1, sO, sO + 3)
        a("s_branch L_pfe")
    a.L.append("@G")
    a.label("L_hl")
    if o["codepf"]:
        a("s_getpc_b64 s[%d:%d]", sT, sT + 1)
        a("s_sub_u32 s%d, s%d, L_hl-%s_kernel+4", sT, sT, NAME); a("s_subb_u32 s%d, s%d, 0", sT + 1, sT + 1)
        a("v_and_b32 v%d, 255, v0", vT + 3)
        a("v_lshlrev_b32 v%d, 7, v%d", vT + 3, vT + 3)
        a("v_cmp_gt_u32 vcc, L_codeend-%s_kernel, v%d", NAME, vT + 3)
        a("s_and_saveexec_b64 s[%d:%d], vcc", sC1, sC1 + 1)
        a("s_cbranch_execz L_nocode")
        a("s_cmp_lg_u32 s%d, 24", sI); a("s_cbranch_scc1 L_nocode")
        a("global_load_dword v%d, v%d, s[%d:%d]", A2, vT + 3, sT, sT + 1)
        a.label("L_nocode")
        a("s_mov_b64 exec, -1")
    a("s_branch L_hl2")
    a.L.append("@P")
    a.label("L_hl2")
    a("s_memrealtime s[%d:%d]", sNonce, sNonce + 1)
    a("v_lshlrev_b32 v%d, 2, v%d", vT + 4, vL)
    a("v_add_u32 v%d, %d, v%d", vT + 4, SYNC, vT + 4)
    for r in range(5): a("ds_write_b32 v%d, v%d offset:%d", vT + 4, vZ, 256 * r)
    a("s_waitcnt lgkmcnt(0)")
    a("s_mov_b64 s[%d:%d], s[40:41]", sX, sX + 1); a("s_mov_b64 s[%d:%d], s[42:43]", sW1, sW1 + 1)
    for r in range(8): a("v_mov_b32 v%d, 0", vXd + r)
    a("s_cmp_lg_u32 s2, 255"); a("s_cbranch_scc1 L_nolead")
    if "dlead" in o["dbg"]:
        for _ in range(4): a("s_sleep 100")
    hptr(20)
    a("s_lshl_b32 s%d, s%d, 2", sT, sW); a("s_add_u32 s%d, s%d, %d", sT, sT, SYNC + 1280); a("v_mov_b32 v%d, s%d", vT + 3, sT)
    a("ds_write_b32 v%d, v%d", vT + 3, vZ)
    a("s_mov_b64 s[22:23], 0")
    a("s_cmp_lg_u32 s%d, 0", sW); a("s_cbranch_scc1 L_noclr"); a("s_atomic_swap_x2 s[22:23], s[52:53], 0"); a.label("L_noclr")
    a("s_lshl_b32 s%d, s%d, 21", sT, sW); a("s_add_u32 s%d, s%d, %d", sT, sT, 98304 + 7168); a("s_add_u32 s%d, s%d, 8192", sT2, sT)
    a("s_load_dword s24, s[20:21], s%d glc", sT); a("s_load_dword s25, s[20:21], s%d glc", sT2)
    a("s_mov_b32 s26, -1"); a("s_mov_b32 s27, -1"); a("s_mov_b32 s%d, 0", sIt)
    a("s_waitcnt lgkmcnt(0)")
    a.label("L_pr")
    for q in range(2):
        a("s_memtime s[16:17]"); a("s_load_dword s24, s[20:21], s%d glc", sT + q); a("s_waitcnt lgkmcnt(0)")
        a("s_memtime s[18:19]"); a("s_waitcnt lgkmcnt(0)"); a("s_sub_u32 s25, s18, s16"); a("s_min_u32 s%d, s%d, s25", 26 + q, 26 + q)
    a("s_add_u32 s%d, s%d, 1", sIt, sIt); a("s_cmp_lt_u32 s%d, %d", sIt, o["pr"]); a("s_cbranch_scc1 L_pr")
    a("s_cmp_ge_u32 s%d, %d", sIt, o["pmax"]); a("s_cbranch_scc1 L_pre")
    a("s_min_u32 s24, s26, s27"); a("s_max_u32 s25, s26, s27"); a("s_mul_i32 s24, s24, %d", o["pth"]); a("s_lshl_b32 s25, s25, 4")
    a("s_cmp_lt_u32 s25, s24"); a("s_cbranch_scc1 L_pr")
    a.label("L_pre")
    a("s_cmp_lt_u32 s27, s26"); a("s_cselect_b32 s%d, 2, 1", sT); a("v_mov_b32 v%d, s%d", vT + 4, sT)
    a("ds_write_b32 v%d, v%d", vT + 3, vT + 4)
    a("s_cmp_lg_u32 s%d, 0", sW); a("s_cbranch_scc1 L_nolead")
    a("v_and_b32 v%d, 3, v%d", vT + 4, vL); a("v_lshl_add_u32 v%d, v%d, 2, v%d", vT + 3, vT + 4, vT + 3)
    a.label("L_pc")
    a("ds_read_b32 v%d, v%d", vT + 4, vT + 3)
    a("s_add_u32 s%d, s%d, 1", sIt, sIt); a("s_cmp_gt_u32 s%d, 1000", sIt)
    a("s_waitcnt lgkmcnt(0)")
    a("s_cbranch_scc1 L_pc_x")
    a("v_cmp_eq_u32 vcc, 0, v%d", vT + 4)
    a("s_cbranch_vccnz L_pc")
    a.label("L_pc_x")
    a("v_cmp_eq_u32 vcc, 2, v%d", vT + 4)
    a("s_and_b32 s%d, s%d, 0xffffff", sNonce + 1, sNonce + 1); a("s_bitset1_b32 s%d, 30", sNonce + 1); a("s_nop 1")
    a("s_getreg_b32 s%d, hwreg(HW_REG_XCC_ID)", sT2); a("s_bitcmp1_b32 s%d, 1", sT2); a("s_cselect_b32 s%d, 0, 3", sT2)
    a("s_and_b32 s%d, vcc_lo, 15", sT); a("s_xor_b32 s%d, s%d, s%d", sT, sT, sT2); a("s_lshl_b32 s%d, s%d, 24", sT, sT); a("s_or_b32 s%d, s%d, s%d", sNonce + 1, sNonce + 1, sT)
    a("s_atomic_swap_x2 s[%d:%d], s[52:53], 0", sNonce, sNonce + 1)
    a.label("L_nolead")
    a("s_branch L_su")

    a.L.append("@C")
    nst[0] = 1
    a.label("L_comp")
    FR = 0
    tab_load("L_t1")
    vXr, vWr = 16, 18
    for f in range(4):
        for r in range(1, 4): a("v_mov_b32 v%d, 0", TMP + 4 * f + r)
    for r in range(1, 4): a("v_mov_b32 v%d, 0", vB2 + r)
    a("v_lshrrev_b32 v%d, 4, v%d", vHi, vL)
    a("v_mov_b32 v%d, 0x3f80", vT + 5)
    a("v_cmp_eq_u32 vcc, 0, v%d", vHi)
    a("s_lshr_b32 s%d, s%d, 1", sT, sW); a("s_lshl_b32 s%d, s%d, 6", sT, sT)
    a("v_add_u32 v%d, s%d, v%d", vT + 3, sT, vT + 3)
    a("v_lshlrev_b32 v%d, 7, v%d", vT + 3, vT + 3)
    a("v_bfe_u32 v%d, v%d, 1, 3", vT + 4, vL)
    a("v_xor_b32 v%d, v%d, v%d", vT + 4, vT + 4, vHi)
    a("v_lshl_add_u32 v%d, v%d, 4, v%d", vXr, vT + 4, vT + 3)
    a("v_xor_b32 v%d, 64, v%d", vXr + 1, vXr)
    a("v_bfe_u32 v%d, v%d, 2, 2", vT + 3, vL)
    a("v_lshl_add_u32 v%d, v%d, 3, v%d", vT + 3, vHi, vT + 3)
    a("v_lshlrev_b32 v%d, 7, v%d", vT + 3, vT + 3)
    a("v_bfe_u32 v%d, v%d, 3, 2", vT + 4, vL)
    a("v_lshl_add_u32 v%d, v%d, 5, v%d", vT + 3, vT + 4, vT + 3)
    a("v_and_b32 v%d, 3, v%d", vT + 4, vL)
    a("v_lshl_add_u32 v%d, v%d, 3, v%d", vT + 3, vT + 4, vT + 3)
    a("s_and_b32 s%d, s%d, 1", sT, sW); a("s_lshl_b32 s%d, s%d, 13", sT, sT); a("s_add_u32 s%d, s%d, 16384", sT, sT)
    a("v_add_u32 v%d, s%d, v%d", vWr, sT, vT + 3)
    for f in range(1, 4): a("v_xor_b32 v%d, %d, v%d", vWr + f, 32 * f, vWr)
    a("v_lshlrev_b32 v%d, 2, v%d", vT + 4, vL)
    a("v_add_u32 v%d, %d, v%d", vT + 4, SYNC, vT + 4)
    for r in range(5): a("ds_write_b32 v%d, v%d offset:%d", vT + 4, vZ, 256 * r)
    if o["b1"]:
        a("v_mov_b32 v%d, 0x3f80", vB2)
        for f in range(4): a("v_cmp_eq_u32 s[%d:%d], %d, v%d", 8 + 2 * f, 9 + 2 * f, f, vHi)
    else: a("v_cndmask_b32 v%d, 0, v%d, vcc", vB2, vT + 5)
    a("v_mov_b32 v%d, 0x%x", vC0, f2u(C0)); a("v_mov_b32 v%d, v%d", vC0 + 1, vC0)
    a("v_mov_b32 v%d, 1.0", vONE); a("v_mov_b32 v%d, 1.0", vONE + 1)
    a("s_mov_b32 s%d, 0x%x", sC1, f2u(C1)); a("s_mov_b32 s%d, s%d", sC1 + 1, sC1)
    srdH()
    a("s_and_b32 s%d, s%d, 7", sG, sMT); a("s_lshl_b32 s%d, s%d, 20", sG, sG)
    a("s_and_b32 s%d, s%d, 2", sT, sW); a("s_lshl_b32 s%d, s%d, 18", sT, sT); a("s_add_u32 s%d, s%d, s%d", sXoff, sG, sT)
    a("s_lshl_b32 s%d, s%d, 1", sT, sT3); a("s_add_u32 s%d, s%d, s%d", sWoff, sXoff, sT); a("s_add_u32 s%d, s%d, 114688", sWoff, sWoff)
    a("s_lshl_b32 s%d, s%d, 4", sT3, sT3); a("s_and_b32 s%d, s%d, 0xe000", sT, sT3); a("s_add_u32 s%d, s%d, s%d", sT3, sT3, sT); a("s_add_u32 s%d, s%d, s%d", sXoff, sXoff, sT3)
    a("s_lshl_b32 s%d, s%d, 9", sT, sFT); a("s_add_u32 s%d, s%d, s%d", sG, sG, sT); a("s_add_u32 s%d, s%d, 98304", sG, sG)
    a("v_lshlrev_b32 v%d, 4, v%d", vHst, vL)
    if o["tlb"]:
        a("v_lshlrev_b32 v%d, 17, v%d", vT + 4, vL)
        a("s_mov_b64 exec, 15")
        if o["tlb"] == 1:
            a("s_and_b32 s%d, s%d, 0xfffe0000", sT, sXoff); a("s_add_u32 s%d, s%d, %d", sT, sT, 98304 + 7424)
            a("buffer_load_dword v14, v%d, s[%d:%d], s%d offen", vT + 4, sH, sH + 3, sT)
        else:
            a("buffer_load_dword v14, v%d, s[%d:%d], s%d offen sc1", vT + 4, sH, sH + 3, sXoff)
            a("s_add_u32 s%d, s%d, 8192", sT, sXoff)
            a("buffer_load_dword v15, v%d, s[%d:%d], s%d offen sc1", vT + 4, sH, sH + 3, sT)
        a("s_mov_b64 exec, -1")
    a("v_mov_b32 v%d, 1", vT); a("v_mov_b32 v%d, %d", vT + 1, SYNC); a("v_lshlrev_b32 v%d, 3, v%d", vT + 2, vL)
    a("s_mov_b32 s%d, 0", sRd); a("s_mov_b32 s%d, 0", sIt)
    a("s_mov_b32 s%d, %d", sPw, (-(S - 1) * SLOT) & 0xffffffff)
    if o["prio"]: a("s_setprio %d", o["prio"])
    a("s_waitcnt vmcnt(%d) lgkmcnt(0)", o["tlb"])
    for f in range(4):
        if o["b1"]: a("v_cndmask_b32 v%d, 0, v14, s[%d:%d]", TMP + 4 * f, 8 + 2 * f, 9 + 2 * f)
        else: a("v_cndmask_b32 v%d, 0, v%d, vcc", TMP + 4 * f, TMP + 4 * f)
    for m in range(4):
        for f in range(4):
            r = ACC + (m * 4 + f) * 4
            a("v_mfma_f32_16x16x32_bf16 v[%d:%d], v[%d:%d], v[%d:%d], 0", r, r + 3, TMP + 4 * f, TMP + 4 * f + 3, vB2, vB2 + 3)
    a("s_branch L_c2")
    a.L.append("@D")
    a.label("L_c2")
    stamp()
    a("s_barrier")
    stamp()
    Wr = lambda b, k, f: 32 * b + 16 * k + 4 * f
    Xr = lambda k, m: 64 + 16 * (m >> 1) + 8 * k + 4 * (m & 1)
    rw = lambda b, k, f: ["ds_read_b64_tr_b16 a[%d:%d], v%d offset:%d" % (Wr(b, k, f) + 2 * u, Wr(b, k, f) + 2 * u + 1, vWr + f, k * 4096 + u * 512) for u in range(2)]
    rx = lambda k, m: ["ds_read_b128 a[%d:%d], v%d offset:%d" % (Xr(k, m), Xr(k, m) + 3, vXr + k, m * 2048)]
    set1 = lambda b: [rw(b, 0, 0), rx(0, 0), rw(b, 1, 0), rx(1, 0), rx(1, 1), rx(0, 1), rw(b, 0, 1), rw(b, 1, 1), rw(b, 0, 2), rw(b, 1, 2)]
    set2 = lambda b: [rw(b, 0, 3), rw(b, 1, 3), rx(0, 2), rx(1, 2), rx(1, 3), rx(0, 3)]
    def group(b, m0):
        L = []
        for f in range(4):
            ma, mb = (m0, m0 + 1) if f % 2 == 0 else (m0 + 1, m0)
            for m, k in ((ma, 0), (ma, 1), (mb, 1), (mb, 0)):
                r = ACC + (m * 4 + f) * 4
                L.append("v_mfma_f32_16x16x32_bf16 v[%d:%d], a[%d:%d], a[%d:%d], v[%d:%d]" % (r, r + 3, Wr(b, k, f), Wr(b, k, f) + 3, Xr(k, m), Xr(k, m) + 3, r, r + 3))
        return L
    def spread(S):
        return S if o["fl"] else [[e] for g in S for e in g]
    upd = lambda r: "v_add_u32 v%d, s%d, v%d" % (r, sDelta, r)
    slot = ["s_add_u32 s%d, s%d, %d" % (sRd, sRd, SLOT), "s_cmp_ge_u32 s%d, %d" % (sRd, S * SLOT), "s_cselect_b32 s%d, s%d, %d" % (sDelta, sPw, SLOT), "s_cselect_b32 s%d, 0, s%d" % (sRd, sRd)]
    def half_b(b):
        R = spread(set1(b))
        for n, m in enumerate(group(1 - b, 2)):
            a(m)
            if n < len(R):
                for e in R[n]: a(e)
            if o["al"] and n == 13: a("s_nop 0")
    def half_a(b, last):
        R = spread(set2(b)); nr = len(R)
        rest = slot + [upd(vWr + f) for f in range(4)] + [upd(vXr), upd(vXr + 1)] + (["s_add_u32 s%d, s%d, 1" % (sIt, sIt), "s_cmp_lt_u32 s%d, 5" % sIt] if last else [])
        need = dict(zip((0, 4, 8), o["wn"])); need[12] = 20
        issued = 16; done = 0
        for n, m in enumerate(group(b, 0)):
            if n in need and need[n] > done: a("s_waitcnt lgkmcnt(%d)", min(15, issued - need[n])); done = need[n]
            a(m)
            if n < nr:
                for e in R[n]: a(e); issued += 1
            else:
                for _ in range(1 if (n + 1) in need else 2):
                    if rest and n < 15: a(rest.pop(0))
            if o["al"] and n == 13 and not last: a(".p2align 3")
        assert not rest
        a("s_waitcnt lgkmcnt(0)")
    for g in set1(0):
        for e in g: a(e)
    a("s_branch L_p1m")
    a(".p2align 3")
    a("s_nop 0")
    a.label("L_p1b")
    a("s_barrier")
    half_b(0)
    a.label("L_p1m")
    half_a(0, False)
    a("s_barrier")
    half_b(1)
    half_a(1, True)
    a("s_cbranch_scc1 L_p1b")
    pre = []
    if o["ov"]:
        pre = ["v_mul_f32 v%d, v%d, v%d" % (TMP + i, ACC + i, ACC + i) for i in range(8)] + ["v_fma_f32 v%d, v%d, s%d, v%d" % (TMP + i, TMP + i, sC1, vC0) for i in range(8)] + \
              ["v_mul_f32 v%d, v%d, v%d" % (TMP + i, TMP + i, ACC + i) for i in range(8)]
    BP = 0
    for n, m in enumerate(group(1, 2)):
        a(m)
        if n == 0: a("ds_read_b64 v[%d:%d], v%d offset:8", vPl, vPl + 1, vT + 1)
        if 1 <= n <= 12:
            for _ in range(2):
                if pre: a(pre.pop(0))
        if n == 13: a("s_waitcnt lgkmcnt(0)"); a("v_readfirstlane_b32 s%d, v%d", sNonce + 1, vPl + 1)
        if n == 14: a("s_lshr_b32 s%d, s%d, 1", sT, sMT)
    post = []
    sv = a.L; a.L = post
    setpol(sNonce + 1)
    a("s_lshr_b32 s%d, s%d, s%d", sT, sPol, sT); a("s_and_b32 s%d, s%d, 8192", sT, sT)
    a("s_add_u32 s%d, s%d, s%d", sXoff, sXoff, sT); a("s_add_u32 s%d, s%d, s%d", sWoff, sWoff, sT); a("s_add_u32 s%d, s%d, s%d", sG, sG, sT)
    a.L = sv
    jitter("L_j1", 5)
    log[:] = []
    assert BP == 0
    stamp()
    def gelu_list(acc, tmp, outr, n):
        L = []; P = range(n // 2)
        pk = lambda op, d, x, y: "%s v[%d:%d], v[%d:%d], v[%d:%d]" % (op, d, d + 1, x, x + 1, y, y + 1)
        for p in P: L.append(pk("v_pk_mul_f32", tmp + 2 * p, acc + 2 * p, acc + 2 * p))
        for p in P: L.append("v_pk_fma_f32 v[%d:%d], v[%d:%d], s[%d:%d], v[%d:%d]" % (tmp + 2 * p, tmp + 2 * p + 1, tmp + 2 * p, tmp + 2 * p + 1, sC1, sC1 + 1, vC0, vC0 + 1))
        for p in P: L.append(pk("v_pk_mul_f32", tmp + 2 * p, tmp + 2 * p, acc + 2 * p))
        for i in range(n): L.append("v_exp_f32 v%d, v%d" % (tmp + i, tmp + i))
        for p in P: L.append(pk("v_pk_add_f32", tmp + 2 * p, tmp + 2 * p, vONE))
        for i in range(n): L.append("v_rcp_f32 v%d, v%d" % (tmp + i, tmp + i))
        for p in P: L.append(pk("v_pk_mul_f32", tmp + 2 * p, tmp + 2 * p, acc + 2 * p))
        for p in P: L.append("v_cvt_pk_bf16_f32 v%d, v%d, v%d" % (outr + p, tmp + 2 * p, tmp + 2 * p + 1))
        return L
    def publish(part):
        a(vmwait("st%d" % part))
        a("s_mov_b64 exec, 1")
        a("ds_add_rtn_u32 v%d, v%d, v%d offset:%d", vT + 5, vT + 1, vT, 4 * part)
        a("s_waitcnt lgkmcnt(0)")
        a("v_readfirstlane_b32 s%d, v%d", sT2, vT + 5)
        a("s_mov_b64 exec, 0xffff")
        a("s_nop 0")
        a("s_cmp_lg_u32 s%d, 3", sT2); a("s_cbranch_scc1 L_nopub%d", part)
        if o["spub"]: a("s_atomic_swap_x2 s[%d:%d], s[%d:%d], %d", sNonce, sNonce + 1, 80 if not PROF else 84, 81 if not PROF else 85, 256 * part)
        else: a("buffer_store_dwordx2 v[%d:%d], v%d, s[%d:%d], s%d offen offset:%d sc1", vPl, vPl + 1, vT + 2, sH, sH + 3, sG, 256 * part)
        a.label("L_nopub%d" % part)
        a("s_mov_b64 exec, -1")
    a(".p2align 3")
    for hh in range(8):
        ob = OUT + 4 * (hh & 3)
        G = gelu_list(ACC + 8 * hh, TMP, ob, 8)
        if hh == 0 and o["ov"]: G = G[12:]
        for e in G:
            a(e)
            if hh == 0 and post and ("v_exp" in e or "v_rcp" in e): a.L.append(post.pop(0))
        assert not post
        if hh == 0: a(".p2align 3")
        mt = hh >> 2
        if "nohst" in o["dbg"]: a("s_mov_b64 exec, 1")
        a("buffer_store_dwordx4 v[%d:%d], v%d, s[%d:%d], s%d offen offset:%d %s", ob, ob + 3, vHst, sH, sH + 3, sXoff, (hh & 1) * 1024, o["hst"])
        if hh & 1: a("s_add_u32 s%d, s%d, %d", sXoff, sXoff, 1 << 17)
        if "nohst" in o["dbg"]: a("s_mov_b64 exec, -1")
        log.append("st%d" % mt if hh != 1 else "s1")
        if hh + 1 == o["a1at"]:
            a(vmwait("s1"))
            a("s_mov_b64 exec, 0xffff")
            a("buffer_store_dwordx2 v[%d:%d], v%d, s[%d:%d], s%d offen sc1", vPl, vPl + 1, vT + 2, sH, sH + 3, sWoff); log.append("f1")
            a("s_mov_b64 exec, -1")
            a(".p2align 3")
        if hh + 1 == o["puba"]:
            if hh == 7: stamp(); a("s_setprio 0")
            jitter("L_j3", 6)
            if not o["noa2"]: publish(0)
            jitter("L_j4", 4)
            if hh == 7: stamp()
            else: a(".p2align 3")
    if o["puba"] < 8: stamp(); a("s_setprio 0"); stamp()
    if o["puba"] == 8 and not o["spub"] and not o["noa2"]:
        a("s_cmp_lg_u32 s%d, 3", sT2); a("s_cbranch_scc1 L_pw0"); a("s_waitcnt vmcnt(1)"); a("s_branch L_pw1"); a.label("L_pw0"); a("s_waitcnt vmcnt(0)"); a.label("L_pw1")
        log.extend(["x"] * 60)
    publish(1)
    stamp()
    a.label("L_red")
    a("s_waitcnt lgkmcnt(0)")
    tile_assign(); order_init()
    srd(sO, 48, 640 * 2)
    a("v_and_b32 v%d, 15, v%d", vT + 3, vL); a("v_lshrrev_b32 v%d, 4, v%d", vT + 4, vL)
    a("v_lshlrev_b32 v%d, 3, v%d", vT + 5, vT + 3); a("s_lshl_b32 s%d, s%d, 7", sDl, sDl)
    a("buffer_load_dwordx2 v[%d:%d], v%d, s[%d:%d], s%d offen", vB2 + 2, vB2 + 3, vT + 5, sO, sO + 3, sDl)
    a("s_lshl_b32 s%d, s%d, 2", sT, sW); a("v_add_u32 v%d, s%d, v%d", vT + 4, sT, vT + 4)
    a("v_mul_u32_u24 v%d, 272, v%d", vRr, vT + 4)
    a("v_lshl_add_u32 v%d, v%d, 4, v%d", vRr, vT + 3, vRr)
    a("v_mul_u32_u24 v%d, 1280, v%d", vOst, vT + 4)
    a("v_add3_u32 v%d, v%d, v%d, s%d", vOst, vOst, vT + 5, sDl)
    a("v_and_b32 v%d, 3, v%d", vT + 2, vL); a("v_lshlrev_b32 v%d, 8, v%d", vT + 2, vT + 2); a("v_lshl_add_u32 v%d, v%d, 2, v%d", vT + 2, vL, vT + 2)
    a("v_add_u32 v%d, %d, v%d", vT + 2, SYNC + 256, vT + 2)
    a("s_mov_b32 s%d, %d", sCnt, REDSZ); a("s_mul_i32 s%d, s%d, %d", sNb, sNb, REDSZ); a("s_mov_b32 s%d, 0", sIt)
    a("s_waitcnt vmcnt(0)")
    srd(sO, 50, 2048 * 640 * 2)
    a("v_lshlrev_b32 v%d, 16, v%d", vB2, vB2 + 2); a("v_and_b32 v%d, 0xffff0000, v%d", vB2 + 1, vB2 + 2)
    a("v_lshlrev_b32 v%d, 16, v%d", vB2 + 2, vB2 + 3); a("v_and_b32 v%d, 0xffff0000, v%d", vB2 + 3, vB2 + 3)
    if o["rprio"]: a("s_setprio %d", o["rprio"])
    a.label("L_rw")
    a("ds_read_b32 v%d, v%d", vT + 3, vT + 2)
    if o["spec"]:
        for p in range(4): a("ds_read_b128 v[%d:%d], v%d offset:%d", RD + 4 * p, RD + 4 * p + 3, vRr, 4352 * p)
    a("s_add_u32 s%d, s%d, 1", sIt, sIt); a("s_cmp_gt_u32 s%d, %d", sIt, o["spin"] * 8)
    a("s_waitcnt lgkmcnt(%d)", 4 if o["spec"] else 0)
    a("s_cbranch_scc1 L_rgo")
    a("v_cmp_gt_u32 vcc, s%d, v%d", sCnt, vT + 3)
    a("s_cbranch_vccz L_rgo")
    if o["rlast"]: a("s_cmp_eq_u32 s%d, s%d", sCnt, sNb); a("s_cbranch_scc1 L_rw")
    if o["rsleep"]: a("s_sleep %d", o["rsleep"])
    a("s_branch L_rw")
    a.label("L_rgo")
    jitter("L_j6", 4)
    if not o["spec"]:
        for p in range(4): a("ds_read_b128 v[%d:%d], v%d offset:%d", RD + 4 * p, RD + 4 * p + 3, vRr, 4352 * p)
    a("v_add_u32 v%d, %d, v%d", vRr, REDSZ, vRr)
    a("s_mul_i32 s%d, s%d, %d", sOst, sCur, 16 * 1280)
    for e in order_next: a(e)
    a("s_add_u32 s%d, s%d, %d", sCnt, sCnt, REDSZ)
    def pk(d, x, y):
        a("v_add_f32 v%d, v%d, v%d", d, x, y); a("v_add_f32 v%d, v%d, v%d", d + 1, x + 1, y + 1)
    a("s_waitcnt lgkmcnt(3)")
    pk(RD, RD, vB2); pk(RD + 2, RD + 2, vB2 + 2)
    a("s_waitcnt lgkmcnt(1)")
    pk(RD + 4, RD + 4, RD + 8); pk(RD + 6, RD + 6, RD + 10)
    a("s_waitcnt lgkmcnt(0)")
    pk(RD, RD, RD + 12); pk(RD + 2, RD + 2, RD + 14)
    pk(RD, RD, RD + 4); pk(RD + 2, RD + 2, RD + 6)
    a("v_cvt_pk_bf16_f32 v%d, v%d, v%d", vPl, RD, RD + 1); a("v_cvt_pk_bf16_f32 v%d, v%d, v%d", vPl + 1, RD + 2, RD + 3)
    a("s_cmp_le_u32 s%d, s%d", sCnt, sNb)
    a("buffer_store_dwordx2 v[%d:%d], v%d, s[%d:%d], s%d offen %s", vPl, vPl + 1, vOst, sO, sO + 3, sOst, o["ost"])
    a("s_cbranch_scc1 L_rw")
    pad_to(NSTAMP)
    if PROF: a("s_branch L_fin")
    else: a("s_endpgm")

    a.L.append("@R")
    nst[0] = 2
    a.label("L_hc2")
    tab_load("L_t2")
    if o["w2pf"]:
        srd(sW2, 46, 1536 * 640 * 2)
        a("s_cmp_ge_u32 s%d, 1", sWv); a("s_cbranch_scc1 L_pf2e")
        a("s_and_b32 s%d, s%d, 1", sWoff, sXcd); a("s_mul_i32 s%d, s%d, 640", sWoff, sWoff)
        a("s_mul_i32 s%d, s%d, %d", sT, sM0, 384 * 1280); a("s_add_u32 s%d, s%d, s%d", sWoff, sWoff, sT)
        krot(sRd); a("s_lshl_b32 s%d, s%d, 1", sRd, sRd)
        NKK = len(o["kks"]); MV = o["mv"]
        lst = list(o["kks"]) + list(o["kks"])[NKK - MV:]
        assert len(lst) <= 8
        a("s_mov_b32 s%d, 0x%x", sKb, sum(v << (4 * i) for i, v in enumerate(lst))); a("s_mov_b32 s%d, 0", sIt)
        a("s_cmp_eq_u32 s%d, 0", sM0); a("s_cselect_b32 s%d, %d, %d", sXoff, NKK + MV, NKK)
        a("s_cmp_eq_u32 s%d, 3", sM0); a("s_cselect_b32 s%d, %d, s%d", sXoff, NKK - MV, sXoff)
        a.label("L_pf2")
        a("s_and_b32 s%d, s%d, 15", sT, sKb); a("s_lshr_b32 s%d, s%d, 4", sKb, sKb)
        a("s_add_u32 s%d, s%d, s%d", sT, sT, sRd); a("s_cmp_ge_u32 s%d, 6", sT); a("s_cselect_b32 s%d, 6, 0", sT3); a("s_sub_u32 s%d, s%d, s%d", sT, sT, sT3)
        a("s_mul_i32 s%d, s%d, %d", sT, sT, 64 * 1280); a("s_add_u32 s%d, s%d, s%d", sT, sT, sWoff)
        for q in range(5): touch(vXd, sW2, 128 if q else 0)
        a("s_add_u32 s%d, s%d, 1", sIt, sIt)
        if o["tog2"] == 1: flip()
        else: a("s_lshl_b32 s%d, s%d, 13", sT, sIt); a("s_and_b32 s%d, s%d, 8192", sT, sT); a("s_xor_b32 s%d, s%d, s%d", sCl, sCl, sT)
        a("s_cmp_eq_u32 s%d, %d", sIt, NKK); a("s_cselect_b32 s%d, %d, 0", sT, 3 * 384 * 1280); a("s_add_u32 s%d, s%d, s%d", sWoff, sWoff, sT)
        a("s_cmp_lt_u32 s%d, s%d", sIt, sXoff); a("s_cbranch_scc1 L_pf2")
        a.label("L_pf2e")
    a("s_barrier")
    stamp()
    if PROF: a("s_waitcnt vmcnt(0)")
    pad_to(7)
    a("s_branch L_red")

    a.L.append("@W")
    nst[0] = 2
    a.label("L_lw")
    def gissue(g):
        a("s_add_u32 m0, s%d, %d", sGm, SLO[g % NSL]); a("s_nop 0")
        for i in range(4):
            if o["slide"] and o["gpb"] <= g < o["gpend"]: a("s_waitcnt vmcnt(%d)", o["slide"] - 1)
            a("buffer_load_dwordx4 v%d, s[%d:%d], s%d offen offset:%d lds", vGd + i, sW2, sW2 + 3, sG, 1024 * i); log.append("g%d" % g)
        a("s_add_u32 s%d, s%d, %d", sG, sG, 32 * 1280 if "w2same" not in o["dbg"] else (32 * 1280 if g % 2 == 0 else (-32 * 1280) & 0xffffffff))
        if g in (3, 7):
            a("s_cmp_eq_u32 s%d, %d", sRd, 2 if g == 3 else 1); a("s_cselect_b32 s%d, s%d, s%d", sG, sGw, sG)
    def greads(g):
        L = []
        for t in range(4):
            k, r = w2reg(g * 4 + t)
            for u in range(2): L.append("ds_read_b64_tr_b16 %s[%d:%d], v%d offset:%d" % (k, r + 2 * u, r + 2 * u + 1, vGr + t, SLO[g % NSL] + u * 2048))
        return L
    log[:] = ["p1"]
    srd(sW2, 46, 1536 * 640 * 2)
    gissue(0)
    a("v_mov_b32 v%d, %d", vT + 5, SYNC + 8)
    a("s_cmp_ge_u32 s5, 24"); a("s_cbranch_scc1 L_cb0")
    a("s_cmp_lg_u32 s%d, 0", sW); a("s_cbranch_scc1 L_cb0")
    get_nonce("L_n0")
    a("ds_write_b64 v%d, v[%d:%d]", vT + 5, vPl, vPl + 1)
    a.label("L_cb0")
    for g in range(1, o["pre9"]): gissue(g)
    srdH()
    a("s_waitcnt vmcnt(%d) lgkmcnt(0)", vmcount("p1"))
    a("s_cmp_ge_u32 s5, 24"); a("s_cbranch_scc1 L_cb1")
    a("s_barrier")
    a("ds_read_b64 v[%d:%d], v%d", vPl, vPl + 1, vT + 5)
    a.label("L_cb1")
    stamp()
    a("s_setprio %d", o["lprio"])
    jitter("L_j2", 3)
    pollA = "buffer_load_dwordx2 v[%d:%d], v62, s[%d:%d], 0 offen sc1" % (vPl, vPl + 1, sH, sH + 3)
    pollB = "buffer_load_dwordx2 v[%d:%d], v%d, s[%d:%d], s%d offen sc1" % (vPl, vPl + 1, vFl, sH, sH + 3, sKr)
    chk = "v_cmp_ne_u64 vcc, s[%d:%d], v[%d:%d]" % (sNonce, sNonce + 1, vPl, vPl + 1)
    LAG = NSL - 1
    assert NSL == 3
    for g in range(o["pre9"], LAG): gissue(g)
    for g in range(LAG, 12):
        a(vmwait("g%d" % (g - LAG)))
        a("s_waitcnt lgkmcnt(0)")
        for r in greads(g - LAG): a(r)
        if not o["slide"] and o["gpace"] < 4 * (LAG - 1) and o["gpb"] <= g < o["gpend"]:
            a("s_cmp_ge_u32 s5, 24"); a("s_cbranch_scc1 L_gp%d", g); a("s_waitcnt vmcnt(%d)", o["gpace"]); a.label("L_gp%d" % g)
        gissue(g)
        if g == o["ng"]: get_nonce("L_n1"); lsetup2()
        if g == o["poll0"]: a(pollA.replace("v[%d:%d]" % (vPl, vPl + 1), "v[60:61]")); log.append("p0")
        if o["pgb"] and g == o["pgb"]:
            a("s_cmp_ge_u32 s5, 24"); a("s_cbranch_scc1 L_pg1"); a(pollA); a.label("L_pg1"); pos_b = len(log)
        if o["pgb"] and g == o["pollg"]:
            a("s_cmp_lt_u32 s5, 24"); a("s_cbranch_scc1 L_pg2"); a(pollA); a.label("L_pg2"); pos_h = len(log)
        if not o["pgb"] and g == o["pollg"]: a(pollA); log.append("pa")
        if g == 11 and o["poll0"]:
            a(vmwait("p0")); a(chk.replace("v[%d:%d]" % (vPl, vPl + 1), "v[60:61]")); a("s_cbranch_vccz L_spa_x")
        if PROF and "gall" in o["dbg"] and g in (3, 5, 6, 7, 8, 9, 10): a("s_memtime s[%d:%d]", 8 + 2 * (3, 5, 6, 7, 8, 9, 10).index(g) + (18 if g > 7 else 0), 9 + 2 * (3, 5, 6, 7, 8, 9, 10).index(g) + (18 if g > 7 else 0)) if False else a("s_memtime s[%d:%d]", {3: 8, 5: 10, 6: 12, 7: 14, 8: 28, 9: 30, 10: 40}[g], {3: 9, 5: 11, 6: 13, 7: 15, 8: 29, 9: 31, 10: 41}[g])
        if PROF and "gst" in o["dbg"] and g in (4, 8): a("s_memtime s[%d:%d]", 82 + g // 2, 83 + g // 2)
    stamp()
    def spin(lab, poll):
        a("s_mov_b32 s%d, 0", sT3)
        a.label(lab)
        if o["psleep"]: a("s_sleep %d", o["psleep"])
        a(poll)
        a("s_add_u32 s%d, s%d, 1", sT3, sT3); a("s_cmp_gt_u32 s%d, %d", sT3, o["spin"])
        a("s_waitcnt vmcnt(0)")
        a("s_cbranch_scc1 %s_x", lab)
        a(chk)
        a("s_cbranch_vccnz %s", lab)
        a.label(lab + "_x")
    if o["pgb"]:
        a("s_waitcnt vmcnt(%d)", len(log) - pos_b)
        a("s_cmp_lt_u32 s5, 24"); a("s_cbranch_scc1 L_pg3"); a("s_waitcnt vmcnt(%d)", len(log) - pos_h); a.label("L_pg3")
    else: a(vmwait("pa"))
    a(chk)
    a("s_cbranch_vccz L_spa_x")
    spin("L_spa", pollA)
    stamp()
    D = o["dist"]; NK = 12; NR = 8; PK = 8
    D = 6; PK = 9
    def hload(k, ph):
        r = RING + 4 * ((k + ph) % NR)
        return "buffer_load_dwordx4 v[%d:%d], v%d, s[%d:%d], s%d offen offset:%d %s" % (r, r + 3, vH, sH, sH + 3, sHcur, (k & 3) * 1024, o["hld"])
    def hstep(k): return ["s_add_u32 s%d, s%d, s%d" % (sHcur, sBase, sO1 if k % NK == 3 else sO2)] if k % NK in (3, 7) else []
    for k in range(D):
        a(hload(k, 0)); log.append("h")
        for e in hstep(k): a(e)
        if k == ((PK + D) % NK if not o["noa2"] else o["pbk"]):
            if o["pm"]: a("s_mov_b64 exec, 0xff")
            a(pollB); log.append("pb")
            if o["pm"]: a("s_mov_b64 exec, -1")
    for g in range(12 - LAG, 12):
        a(vmwait("g%d" % g))
        for r in greads(g): a(r)
    a("s_cmp_ge_u32 s5, 24"); a("s_cbranch_scc1 L_cd_x")
    a("v_mov_b32 v62, %d", SYNC + (4 if o["noa2"] else 0)); a("s_mov_b32 s%d, 0", sIt)
    a.label("L_cd")
    a("ds_read_b32 v63, v62")
    a("s_add_u32 s%d, s%d, 1", sIt, sIt); a("s_cmp_gt_u32 s%d, %d", sIt, o["spin"] * 8)
    a("s_waitcnt lgkmcnt(0)")
    a("s_cbranch_scc1 L_cd_x")
    a("v_cmp_gt_u32 vcc, 4, v63")
    a("s_cbranch_vccnz L_cd")
    a.label("L_cd_x")
    a("s_mov_b32 s%d, 1", sIt)
    a("s_setprio %d", o["p2prio"])
    a("s_waitcnt lgkmcnt(0)")
    src = lambda t: (A2 + 4 * t) if t < 2 else (B2 + 4 * (t - 2))
    W = ["ds_write_b128 v%d, v[%d:%d] offset:%d" % (vRw, src(t), src(t) + 3, 64 * t) for t in range(4)]
    sig = ["v_add_u32 v%d, s%d, v%d" % (vRw, sInc, vRw), "ds_write_b32 v%d, v%d" % (vCa, vRw)]
    def mm(t, k, ph, prev=False):
        c = "0" if k == 0 else "v[%d:%d]" % (A2 + 4 * t, A2 + 4 * t + 3)
        d = src(t) if k == NK - 1 else A2 + 4 * t
        kind, w = w2reg(k * 4 + t); h = RING + 4 * ((k - (NK if prev else 0) + ph) % NR)
        return "v_mfma_f32_16x16x32_bf16 v[%d:%d], %s[%d:%d], v[%d:%d], %s" % (d, d + 3, kind, w, w + 3, h, h + 3, c)
    def trip(ph):
        X = {}
        add = lambda ks, g, *e: X.setdefault((ks, g), []).extend(e)
        add(0, 1, W[0]); add(0, 3, W[1]); add(3, 0, W[2]); add(4, 0, W[3]); add(4, 2, sig[0]); add(4, 3, sig[1])
        HB = hbase(sBase, sCur, sT2)
        add(1, 0, order_next[0], order_next[1]); add(1, 2, order_next[2], HB[0]); add(1, 3, HB[1])
        add(2, 0, HB[2], HB[3]); add(2, 1, HB[4]); add(2, 2, HB[5], "s_lshl_b32 s%d, s%d, 7" % (sT, sCur)); add(2, 3, "s_cmp_ge_u32 s%d, s%d" % (sIt, sNb))
        add(3, 1, "s_cselect_b32 s%d, s%d, s%d" % (sBase, sNx, sBase))
        add(5, 0, chk, "s_andn2_b32 s%d, s%d, s%d" % (sT, sKr, sT))
        add(5, 1, "s_cselect_b64 s[%d:%d], 0, -1" % (sT, sT + 1))
        add(5, 2, "s_and_b64 s[%d:%d], s[%d:%d], vcc" % (sT, sT + 1, sT, sT + 1), "s_cbranch_scc1 L_spb%d" % ph, "L_spb%d_r:" % ph)
        add(5, 3, "s_add_u32 s%d, s%d, s%d" % (sHcur, sBase, sO0))
        add(6, 0, "s_movk_i32 s%d, 256" % sKr, "s_mov_b32 s%d, %d" % (sInc, REDSZ))
        add(6, 2, "s_or_b64 vcc, vcc, s[%d:%d]" % (sC1, sC1 + 1), "s_mov_b64 s[%d:%d], 0" % (sC1, sC1 + 1))
        add(PK, 2, "s_mov_b64 exec, vcc", pollB, "s_mov_b64 exec, -1")
        add(NK - 1, 2, "s_add_u32 s%d, s%d, 1" % (sIt, sIt), "s_cmp_le_u32 s%d, s%d" % (sIt, sNb))
        for ks in range(NK):
            between = any(((ks - D + d) % NK) == PK for d in range(D))
            wt = "s_waitcnt vmcnt(%d)" % (D - 1 + (1 if between else 0))
            t0 = 0 if ks & 1 else 2
            if ks == 0: M = [mm(2, NK - 1, ph, True), mm(3, NK - 1, ph, True), mm(2, 0, ph), mm(3, 0, ph)]
            elif o["sn2"] and ks not in (1, NK - 1): M = [mm(t0, ks - 1, ph), mm(t0, ks, ph), mm(t0 + 1, ks, ph), mm(t0 + 1, ks - 1, ph)]
            else: M = [mm(t0, ks - 1, ph), mm(t0, ks, ph), mm(t0 + 1, ks - 1, ph), mm(t0 + 1, ks, ph)]
            ex = {g: list(X.get((ks, g), [])) for g in range(4)}
            if ks == 0: ex[0] = [wt] + ex[0]
            else: a(wt)
            hg = 2 if ks == 0 else 1
            ex[hg] = [hload(ks + D, ph)] + hstep(ks + D) + ex[hg]
            weave(a, M, ex)
        if PROF and "p2st" in o["dbg"]:
            a("s_cselect_b32 s%d, 1, 0", sT)
            for b in ((1, 3, 5) if ph == 0 else (2, 4)):
                r = {1: 66, 2: 68, 3: 70, 4: 84, 5: 86}[b]
                a("s_cmp_lg_u32 s%d, %d", sIt, b + 1); a("s_cbranch_scc1 L_ps%d", b); a("s_memtime s[%d:%d]", r, r + 1); a.label("L_ps%d" % b)
            a("s_cmp_eq_u32 s%d, 1", sT)
    jitter("L_j5", 5)
    a("s_mov_b32 s%d, 0x%x", sNx, OOB); a("s_mov_b64 s[%d:%d], -1", sC1, sC1 + 1)
    a(".p2align 3")
    a.label("L_p2")
    trip(0)
    a("s_cbranch_scc0 L_p2f")
    a(".p2align 3")
    trip(4)
    a("s_cbranch_scc1 L_p2")
    a(mm(2, NK - 1, 4)); a(mm(3, NK - 1, 4)); a("s_branch L_p2e")
    a.label("L_p2f")
    a(mm(2, NK - 1, 0)); a(mm(3, NK - 1, 0)); a("s_nop 0")
    a.label("L_p2e")
    a("s_nop 2"); a(W[0]); a("s_nop 0"); a(W[1]); a("s_nop 0"); a(W[2]); a(W[3])
    for e in sig: a(e)
    stamp()
    if PROF and "p1st" in o["dbg"]:
        a("s_mov_b32 s70, s84"); a("s_mov_b32 s72, s86")
    pad_to(NSTAMP)
    if PROF and "gall" in o["dbg"]:
        for i, r in enumerate((8, 10, 12, 14, 28, 30, 40)): a("s_mov_b32 s%d, s%d", 66 + 2 * i, r)
    if PROF and ("gst" in o["dbg"] or "p2st" in o["dbg"]):
        a("s_mov_b32 s76, s84"); a("s_mov_b32 s78, s86")
    if PROF: a("s_branch L_fin")
    else: a("s_endpgm")
    for ph in (0, 4):
        a.label("L_spb%d" % ph)
        if o["pm"]: a("s_mov_b64 exec, 0xff")
        spin("L_spb%dl" % ph, pollB)
        if o["pm"]: a("s_mov_b64 exec, -1")
        a("s_branch L_spb%d_r", ph)
    a.L.append("@F")
    a.label("L_fin")
    if PROF:
        n = NSTAMP
        a("s_waitcnt vmcnt(0)")
        a("s_memtime s[%d:%d]", 64 + 2 * n, 65 + 2 * n); a("s_memrealtime s[62:63]"); a("s_waitcnt lgkmcnt(0)")
        a("s_add_u32 s8, s54, %d", 128 << 20); a("s_addc_u32 s9, s55, 0"); a("s_mov_b32 s10, 0x100000"); a("s_mov_b32 s11, 0x20000")
        a("s_lshl_b32 s28, s2, 3"); a("s_add_u32 s28, s28, s%d", sWv); a("s_lshl_b32 s28, s28, 6")
        a("v_mov_b32 v0, s28")
        a("s_getreg_b32 s29, hwreg(HW_REG_XCC_ID)")
        vals = ["s60", "s62", "s29"] + ["s%d" % (64 + 2 * i) for i in range(n + 1)]
        vals += ["0"] * (16 - len(vals))
        for i, v in enumerate(vals): a("v_mov_b32 v%d, %s", 4 + i, v)
        a("s_mov_b64 exec, 1")
        for i in range(4): a("buffer_store_dwordx4 v[%d:%d], v0, s[8:11], 0 offen offset:%d", 4 + 4 * i, 7 + 4 * i, 16 * i)
    if PROF and o.get("probe") is not None:
        pw, pv, pi = o["probe"]
        a("s_cmp_lg_u32 s2, %d", pw); a("s_cbranch_scc1 L_end")
        a("s_cmp_lg_u32 s%d, %d", sWv, pv); a("s_cbranch_scc1 L_end")
        if pi == "start": a("s_sub_u32 s30, s60, s%d", sNonce); a("s_add_u32 s30, s30, 200"); a("s_lshl_b32 s30, s30, 2")
        else: a("s_sub_u32 s30, s%d, s64", 64 + 2 * pi); a("s_lshl_b32 s30, s30, 2"); a("s_add_u32 s30, s30, 300")
        a("s_min_u32 s30, s30, 20000")
        a.label("L_spin")
        a("s_memrealtime s[32:33]"); a("s_waitcnt lgkmcnt(0)")
        a("s_sub_u32 s32, s32, s62"); a("s_cmp_lt_u32 s32, s30"); a("s_cbranch_scc1 L_spin")
    a.label("L_end")
    a("s_endpgm")
    a(".p2align 6")
    a(".type L_table,@object")
    a.label("L_table")
    W = make_table(o)
    for k in range(0, 256, 8): a(".long " + ", ".join("0x%x" % w for w in W[k:k + 8]))
    a.label("L_codeend")
    sec = {"E": []}; cur = "E"
    for l in a.L:
        if l.startswith("@"): cur = l[1]; sec[cur] = []
        else: sec[cur].append(l)
    a.L = []
    for c in o["lay"] + "F":
        if c == "|": a.L.append("    .p2align 12")
        if c in sec: a.L += sec[c]
    a.L = [l for i, l in enumerate(a.L) if not (l.startswith("    s_branch ") and i + 1 < len(a.L) and a.L[i + 1] == l.split()[1] + ":")]
    if o["dfl"]: a.L = [l[:-4] + " " + o["dfl"] + " lds" if l.endswith(" lds") else l for l in a.L]
    if "rt" in o["dbg"].split(): a.L = [l.replace("s_memtime", "s_memrealtime") if "s[1" not in l else l for l in a.L]
    s = HEAD + DOC + "; @launch grid=(256,1,1) block=(512,1,1) lds=163840\n"
    s += '.amdgcn_target "amdgcn-amd-amdhsa--gfx950"\n.text\n'
    n = NAME + "_kernel"
    if o["pad"] is not None: s += ".p2align 12\n.fill %d, 4, 0xbf800000\n" % (o["pad"] // 4)
    s += ".globl %s\n.p2align 8\n.type %s,@function\n%s:\n%s" % (n, n, n, a.text())
    s += '''.section .rodata,"a"
.p2align 6
.amdhsa_kernel %s
  .amdhsa_next_free_vgpr 256
  .amdhsa_next_free_sgpr 102
  .amdhsa_accum_offset 128
  .amdhsa_group_segment_fixed_size 0
  .amdhsa_kernarg_size 64
  .amdhsa_user_sgpr_count 2
  .amdhsa_user_sgpr_kernarg_segment_ptr 1
  .amdhsa_system_sgpr_workgroup_id_x 1
  .amdhsa_float_denorm_mode_32 3
  .amdhsa_float_denorm_mode_16_64 3
.end_amdhsa_kernel
''' % n
    return s
if __name__ == "__main__":
    kw = json.loads(sys.argv[2]) if len(sys.argv) > 2 else {}
    open(sys.argv[1], "w").write(gen(**kw))
```

```python
import struct, sys, json
def f2u(x): return struct.unpack("<I", struct.pack("<f", x))[0]
C0 = -2.0 * 0.7978845608028654 * 1.4426950408889634
C1 = C0 * 0.044715
NAME = "standalone__dense_activation_gelu__prompt"
HEAD = open("cdna_kernels/%s.s.ref" % NAME).read().split("; Override launch geometry")[0]
FLAGOFF = 8 << 20
OOB = 0x7f000000
DEF = dict(prof=False, a1=4, a2=4, rot1="x", pf=(1, 10), w2pf=True, hst="sc1", ost="nt", dist=7, spin=1000000, codepf=True,
           out=8, prio=1, hsame=False, psleep=12, dbg="", gpace=1, gpend=9, rsleep=3, p2prio=1, swap46=False, krot=True, hdelay=0,
           pollg=10, puba=8, nsl=3, hs=49152, lprio=0, ng=4, swapx=True, rotx=0, hbal=False, pad=0xD00, lay="EGHRBPSTC|W|D", tmap="half", alt=0, light=0, snake=True, barpos=16, nw=2, bp=0, fl=1, poll0=0, spub=False, rprio=0, l1prio=0, lwait=8, spec=False, lfrom=2, lstep=1, gpb=4, pre9=1, sup=3, np=8, dbl=0, tog2=1, mv=1, xf=0, b2e=0, tlb=0, sn2=1, pgb=0, noa2=0, pbk=3, slide=0, w64=0, pex=1, nocls=False, a1at=6, pm=0, mid=False, hwait=0, pr=2, pmax=5, pth=22, bt=0, b1=1, ov=1, cov=2, hs1=1, tv=0, hb=0, hbn=6, sp2=0, olast=None, wn=(12, 12, 16), al=0, hw=0, cw=0, polx=0, pskip=True, rlast=True, wpos=(2, 3), hld="sc1", tfl="", dfl="", kks=(0, 1))

DOC = """; Fused MLP, one launch, 256 workgroups of 8 waves (one per CU; generated by a script of my own).
;           four ways) and stream h, waves 0-3 sum the four partial tiles, add b2 and store.
;  h is laid out in the 8 KB chunks of d_ws that are close to the dies using it (found anew in every launch; this
"""
class A:
    def __init__(self): self.L = []
    def __call__(self, s, *args): self.L.append("    " + (s % args if args else s))
    def label(self, s): self.L.append(s + ":")
    def text(self): return "\n".join(self.L) + "\n"

def weave(a, main, extra):
    for i, m in enumerate(main):
        a(m)
        for e in extra.get(i, []): a(e)

def make_table(o):
    T = {}
    for x in range(8):
        par, q = x & 1, x >> 1
        tiles = []
        if o["a2"] == 8:
            par = 0
            if o["tmap"] == "cur":
                for i in range(32):
                    dl, rb, n = i >> 1, 6 + 5 * (i & 1), 5
                    if i >= 16: dl, rb, n = (i >> 2) + 4, 4 * (i & 3), 4
                    if i >= 24: dl, rb, n = i - 24, 0, 6
                    tiles.append((dl, rb + 16 * x, n))
            else:
                four = {0: (0, 4), 1: (1, 5), 2: (2, 6), 3: (3, 7), 4: (0, 4), 5: (2, 6), 6: (1,), 7: (3,), 8: (5,), 9: (7,)}
                six = {6: (3, 5, 7), 7: (0, 5, 7), 8: (1, 2, 6), 9: (1, 3, 4)}
                for dl in range(10):
                    c = lambda k: 4 if k in four[dl] else 3
                    d = lambda k: (-1 if (dl < 6 and k in four[dl]) else (1 if k in six.get(dl, ()) else 0))
                    rb = sum(5 * c(k) + d(k) for k in range(x))
                    for k in range(c(x)):
                        n = 5 + (d(x) if k == 0 else 0)
                        tiles.append((dl, rb, n)); rb += n
                t6 = [t for t in tiles if t[2] == 6]; t4 = [t for t in tiles if t[2] == 4]; t5 = [t for t in tiles if t[2] == 5]
                nh = 8 - len(t6) - len(t4)
                tiles = t5[nh:] + t4 + t5[:nh] + t6
        elif o["tmap"] == "cur":
            for i in range(32):
                dl, rb, n = i >> 2, 12 + 5 * (i & 3), 5
                if i >= 20: dl, rb, n = 3 + (i & 1), ((i - 20) >> 1) * 4, 4
                if i >= 26: dl, rb, n = (i - 26) >> 1, 6 * (i & 1), 6
                tiles.append((dl, rb + 32 * q, n))
        else:
            cnt = [[7, 6, 7, 6], [6, 7, 6, 7], [7, 6, 6, 7], [6, 7, 6, 6], [6, 6, 7, 6]]
            odd = [[-1, 0, -1, 0], [0, -1, 0, -1], [-1, 0, 0, -1], [1, 0, 1, 1], [1, 1, 0, 1]]
            if o["tmap"] == "half":
                cnt = [[7, 6, 7, 6], [6, 7, 6, 7], [7, 6, 7, 6], [6, 7, 6, 7], [6, 6, 6, 6]]
                odd = [[-1, 0, -1, 0], [0, -1, 0, -1], [-1, 0, -1, 0], [0, -1, 0, -1], [2, 2, 2, 2]]
            for dl in range(5):
                rb = sum(5 * cnt[dl][k] + odd[dl][k] for k in range(q))
                for k in range(cnt[dl][q]):
                    n = 5 + (odd[dl][q] if k == 0 else 0)
                    if odd[dl][q] == 2: n = 6 if k in (0, 2) else 5
                    tiles.append((dl, rb, n)); rb += n
            t6 = [t for t in tiles if t[2] == 6]; t4 = [t for t in tiles if t[2] == 4]; t5 = [t for t in tiles if t[2] == 5]
            nh = 8 - len(t6) - len(t4)
            if o.get("cov"):
                miss = [l for l in range(5) if l not in [t[0] for t in t4 + t6]]
                want = (miss + miss) if o["cov"] == 1 else (miss + [t[0] for t in t4])
                pick = []
                for l in want: pick.append(next(t for t in t5 if t[0] == l and t not in pick))
                t5 = pick + [t for t in t5 if t not in pick]
            tiles = t5[nh:] + t4 + t5[:nh] + t6
        if o.get("tv"):
            if o["tv"] == 1: spec = [("6h", "5h", 5, 5, 5, "6h")] * 0
            S = {2: [["6h", "6h", 5, 5, 5, 5], ["6h", "6h", 5, 5, 5, 5], ["6h", "6h", 5, 5, 5, 5], ["5h", 4, 4, 4, 5, 5, 5], ["5h", 4, 4, 4, 5, 5, 5]],
                 3: [["6h", "6h", 5, 5, 5, 5], ["6h", "6h", 5, 5, 5, 5], ["6h", "6h", 5, 5, 5, 5], ["6h", 4, 4, 4, 4, 5, 5], ["6h", 4, 4, 4, 4, 5, 5]]}.get(o["tv"])
            if S:
                B = []; Hh = []
                for dl, row in enumerate(S):
                    rb = 32 * q
                    for e in row:
                        n = int(str(e)[0]); (Hh if isinstance(e, str) else B).append((dl, rb, n)); rb += n
                    assert rb == 32 * q + 32
                B.sort(key=lambda t: -t[2]); Hh.sort(key=lambda t: t[2])
                tiles = B + Hh
            else:
                for k in range(2):
                    j = next(j for j in range(24) if tiles[j][0] == tiles[24 + k][0] and tiles[j][2] == 5)
                    tiles[j], tiles[24 + k] = tiles[24 + k], tiles[j]
                t = tiles[:24]; t.sort(key=lambda e: -e[2]); tiles = t + tiles[24:]
        assert len(tiles) == 32
        for i, (dl, rb, n) in enumerate(tiles):
            E = [b for b in range(rb, rb + n) if not b & 2]; Lt = [b for b in range(rb, rb + n) if b & 2]
            if o["alt"] == 1 and dl & 1: E.reverse(); Lt.reverse()
            if o["alt"] == 2:
                r = dl % len(E); E = E[r:] + E[:r]; r = dl % len(Lt); Lt = Lt[r:] + Lt[:r]
            k = next(k for k, b in enumerate(E) if b % 4 == 0)
            E = [E[k]] + E[:k] + E[k + 1:]
            assert len(E) >= 2
            T[x + 8 * i] = (dl + 5 * par, rb, E + Lt)
    cov = set()
    W = []
    for wg in range(256):
        dl, rb, seq = T[wg]
        for b in seq:
            assert (dl, b) not in cov; cov.add((dl, b))
        w = dl | (rb << 4) | (len(seq) << 11)
        for k, b in enumerate(seq): w |= (b - rb) << (14 + 3 * k)
        W.append(w)
    assert len(cov) == 1280
    return W

def gen(**kw):
    o = dict(DEF); o.update(kw)
    a = A()
    PROF = o["prof"]
    nst = [1]
    def stamp():
        if not PROF: return
        a("s_memtime s[%d:%d]", 64 + 2 * nst[0], 65 + 2 * nst[0]); nst[0] += 1
        a("s_waitcnt lgkmcnt(0)")
    def pad_to(n):
        assert nst[0] <= n, nst[0]
        while PROF and nst[0] < n: stamp()
    NSTAMP = 8
    sX, sW1, sW2, sH, sO = 8, 12, 16, 20, 24
    sWv, sXcd, sI, sMT, sFT = 3, 4, 5, 6, 7
    sXoff, sWoff, sM0, sKb, sDelta, sIt, sT, sT2, sT3, sRd = 28, 29, 30, 31, 32, 33, 34, 35, 36, 37
    sC1 = 38
    sNonce = 56
    sRb, sNb, sDl, sG, sGm, sHcur, sCnt, sOst, sNx, sNw, sPw, sW = 58, 59, 92, 93, 94, 95, 96, 97, 98, 99, 100, 101
    sCur, sEnd, sBase, sO0, sO1, sO2, sInc, sGw, sKr = 0, 1, 82, 88, 89, 90, 91, 97, 96
    vL, vZ = 1, 2
    vT = 8
    vPl = 4
    vH, vFl, vRw, vCa = 0, 3, 6, 7
    vXd, vWd, vGd, vGr = 16, 20, 24, 56
    RING, A2, B2 = 8, 40, 56
    def w2reg(i): return ("a", 4 * i) if i < 32 else ("v", 64 + 4 * (i - 32))
    vHi, vXr, vWr, vC0, vONE, vHst = 3, 16, 20, 22, 24, 26
    vRr, vOst, vB2 = 6, 7, 28
    ACC, TMP, OUT = 32, 96, 112
    RD = 32
    NSL = o["nsl"]; REDSZ = 17408; SYNC = 9 * REDSZ
    SLO = [REDSZ, 2 * REDSZ, 3 * REDSZ, 0]
    SLOT = 32768; S = 3
    def srd(d, lo, nbytes):
        a("s_mov_b64 s[%d:%d], s[%d:%d]", d, d + 1, lo, lo + 1)
        a("s_mov_b32 s%d, %d", d + 2, nbytes); a("s_mov_b32 s%d, 0x20000", d + 3)
    def mod3(dst, src):
        a("s_mul_i32 s%d, s%d, 86", sT, src); a("s_lshr_b32 s%d, s%d, 8", sT, sT); a("s_mul_i32 s%d, s%d, 3", sT, sT); a("s_sub_u32 s%d, s%d, s%d", dst, src, sT)
    def krot(dst):
        if o["krot"]:
            if o["a2"] == 4: a("s_lshr_b32 s%d, s%d, 1", dst, sXcd); a("s_cmp_eq_u32 s%d, 3", dst); a("s_cselect_b32 s%d, 0, s%d", dst, dst)
            else: mod3(dst, sXcd)
        else: a("s_mov_b32 s%d, 0", dst)

    a("s_load_dwordx16 s[40:55], s[0:1], 0")
    a("s_cmp_ge_u32 s2, 256"); a("s_cbranch_scc1 L_end")
    if PROF:
        a("s_memrealtime s[60:61]"); a("s_memtime s[64:65]")
    a("v_lshrrev_b32 v%d, 6, v0", vT)
    a("v_and_b32 v%d, 63, v0", vL)
    a("v_readfirstlane_b32 s%d, v%d", sWv, vT)
    a("s_and_b32 s%d, s2, 7", sXcd); a("s_lshr_b32 s%d, s2, 3", sI)
    a("v_lshrrev_b32 v%d, 3, v%d", vT, vL)
    a("v_and_b32 v%d, 7, v%d", vT + 1, vL)
    a("v_lshrrev_b32 v%d, 1, v%d", vT + 2, vT)
    a("v_mov_b32 v%d, 0", vZ)
    a("s_and_b32 s%d, s%d, 3", sW, sWv)
    def jitter(lab, sh):
        if "drand" not in o["dbg"]: return
        a("s_memtime s[60:61]"); a("s_waitcnt lgkmcnt(0)"); a("s_lshr_b32 s60, s60, %d", sh); a("s_mul_i32 s61, s2, 7"); a("s_add_u32 s60, s60, s61"); a("s_add_u32 s60, s60, s3")
        a("s_and_b32 s60, s60, 15"); a("s_cmp_lg_u32 s60, 0"); a("s_cbranch_scc1 %s", lab); a("s_sleep 60"); a.label(lab)
    jitter("L_j0", 4)
    if o["rotx"] == 0: a("s_mul_i32 s%d, s%d, 10", sKb, sXcd); a("s_lshr_b32 s%d, s%d, 3", sKb, sKb)
    else:
        tab = {1: [0, 5, 2, 7, 5, 0, 7, 2], 2: [0, 5, 3, 8, 5, 0, 8, 3], 3: [0, 6, 2, 8, 5, 1, 7, 3], 4: [0, 0, 2, 2, 5, 5, 7, 7], 5: [1, 0, 3, 2, 6, 5, 8, 7], 6: [0, 2, 2, 4, 5, 7, 7, 9], 7: [0, 1, 5, 6, 2, 3, 7, 8], 8: [0, 1, 3, 4, 5, 6, 8, 9], 9: [0, 3, 2, 5, 5, 8, 7, 0]}[o["rotx"]]
        a("s_lshl_b32 s%d, s%d, 2", sKb, sXcd); a("s_lshr_b32 s%d, 0x%x, s%d", sKb, sum(v << (4 * i) for i, v in enumerate(tab)), sKb); a("s_and_b32 s%d, s%d, 15", sKb, sKb)
    a("s_mov_b32 s%d, %d", sX + 2, 2048 * 640 * 2); a("s_mov_b32 s%d, 0x20000", sX + 3)
    a("s_mov_b32 s%d, %d", sW1 + 2, 640 * 1536 * 2); a("s_mov_b32 s%d, 0x20000", sW1 + 3)
    a("s_cmp_ge_u32 s%d, 24", sI); a("s_cbranch_scc1 L_helper")
    if o["a1"] == 4:
        a("s_lshr_b32 s%d, s%d, 1", sMT, sXcd); a("s_lshl_b32 s%d, s%d, 2", sMT, sMT)
        a("s_and_b32 s%d, s%d, 3", sT, sI); a("s_add_u32 s%d, s%d, s%d", sMT, sMT, sT)
        a("s_and_b32 s%d, s%d, 1", sFT, sXcd); a("s_mul_i32 s%d, s%d, 6", sFT, sFT)
        a("s_lshr_b32 s%d, s%d, 2", sT2, sI); a("s_add_u32 s%d, s%d, s%d", sFT, sFT, sT2)
    else:
        a("s_lshl_b32 s%d, s%d, 1", sMT, sXcd); a("s_and_b32 s%d, s%d, 1", sT, sI); a("s_add_u32 s%d, s%d, s%d", sMT, sMT, sT)
        a("s_lshr_b32 s%d, s%d, 1", sT2, sI); a("s_mov_b32 s%d, s%d", sFT, sT2)
    a("s_cmp_lt_u32 s%d, 4", sWv); a("s_cbranch_scc1 L_c0")
    a.label("L_ldr")

    sTab = 83; sPol = 63
    HBYTES = 8 << 20
    def hbase(dst, rb, tmp):
        return ["s_lshr_b32 s%d, s%d, 4" % (tmp, rb), "s_lshr_b32 s%d, s%d, s%d" % (tmp, sPol, tmp), "s_and_b32 s%d, s%d, 8192" % (tmp, tmp),
                "s_and_b32 s%d, s%d, 63" % (dst, rb), "s_lshl_b32 s%d, s%d, 17" % (dst, dst), "s_or_b32 s%d, s%d, s%d" % (dst, dst, tmp)]
    def setpol(hi):
        a("s_bfe_u32 s%d, s%d, 0x40018", sPol, hi); a("s_mul_i32 s%d, s%d, 17", sPol, sPol); a("s_xor_b32 s%d, s%d, %d", sPol, sPol, 15 ^ o["polx"]); a("s_lshl_b32 s%d, s%d, 13", sPol, sPol)
    def hptr(d):
        a("s_sub_u32 s%d, 0, s54", d); a("s_and_b32 s%d, s%d, 0x1fffff", d, d); a("s_add_u32 s%d, s54, s%d", d, d); a("s_addc_u32 s%d, s55, 0", d + 1)
    def srdH():
        hptr(sH); a("s_mov_b32 s%d, %d", sH + 2, HBYTES); a("s_mov_b32 s%d, 0x20000", sH + 3)
    def tab_load(lab):
        a("s_getpc_b64 s[%d:%d]", sT, sT + 1)
        a.label(lab)
        a("s_add_u32 s%d, s%d, L_table-%s", sT, sT, lab); a("s_addc_u32 s%d, s%d, 0", sT + 1, sT + 1)
        a("s_lshl_b32 s%d, s2, 2", sTab)
        a("s_load_dword s%d, s[%d:%d], s%d", sTab, sT, sT + 1, sTab)
    def tile_assign():
        a("s_and_b32 s%d, s%d, 15", sDl, sTab); a("s_bfe_u32 s%d, s%d, 0x70004", sRb, sTab); a("s_bfe_u32 s%d, s%d, 0x3000b", sNb, sTab)
        a("s_lshr_b32 s%d, s%d, 14", sTab, sTab)
    def order_init():
        a("s_add_u32 s%d, s%d, s%d", sEnd, sRb, sNb)
        a("s_and_b32 s%d, s%d, 7", sCur, sTab); a("s_add_u32 s%d, s%d, s%d", sCur, sCur, sRb)
    order_next = ["s_lshr_b32 s%d, s%d, 3" % (sTab, sTab), "s_and_b32 s%d, s%d, 7" % (sCur, sTab), "s_add_u32 s%d, s%d, s%d" % (sCur, sCur, sRb), "s_bitcmp1_b32 s%d, 1" % sCur]
    log = []
    def vmcount(tag):
        idx = max(i for i, t in enumerate(log) if t == tag)
        return len(log) - 1 - idx
    def vmwait(tag): return "s_waitcnt vmcnt(%d)" % vmcount(tag)
    nload = "buffer_load_dwordx2 v[%d:%d], v%d, s[%d:%d], 0 offen sc1" % (vPl, vPl + 1, vZ, sO, sO + 3)
    def get_nonce(lab):
        a("s_mov_b32 s%d, 0", sIt)
        a.label(lab)
        a("v_readfirstlane_b32 s%d, v%d", sNonce, vPl); a("v_readfirstlane_b32 s%d, v%d", sNonce + 1, vPl + 1)
        a("s_add_u32 s%d, s%d, 1", sIt, sIt); a("s_nop 1")
        a("s_bitcmp1_b32 s%d, 30", sNonce + 1); a("s_cbranch_scc1 %s_ok", lab)
        a("s_cmp_gt_u32 s%d, %d", sIt, o["spin"]); a("s_cbranch_scc1 %s_ok", lab)
        a(nload); a("s_waitcnt vmcnt(0)"); a("s_branch %s", lab)
        a.label(lab + "_ok")

    def lsetup():
        a("v_lshlrev_b32 v%d, 1, v%d", vT + 3, vT + 2)
        a("v_xor_b32 v%d, v%d, v%d", vT + 3, vT + 1, vT + 3)
        a("v_mul_u32_u24 v%d, 1280, v%d", vGd, vT)
        a("v_lshl_add_u32 v%d, v%d, 4, v%d", vGd, vT + 3, vGd)
        for i in range(1, 4): a("v_add_u32 v%d, %d, v%d", vGd + i, i * (8 * 1280 - 1024), vGd)
        krot(sRd)
        a("s_mul_i32 s%d, s%d, 4352", sGm, sW); a("s_add_u32 s%d, s%d, %d", sGm, sGm, 5 * REDSZ)
        a("v_lshrrev_b32 v%d, 2, v%d", vT + 3, vL)
        a("v_lshlrev_b32 v%d, 7, v%d", vT + 3, vT + 3)
        a("v_bfe_u32 v%d, v%d, 3, 2", vT + 4, vL)
        a("v_lshl_add_u32 v%d, v%d, 5, v%d", vT + 3, vT + 4, vT + 3)
        a("v_and_b32 v%d, 3, v%d", vT + 4, vL)
        a("v_lshl_add_u32 v%d, v%d, 3, v%d", vT + 3, vT + 4, vT + 3)
        a("v_add_u32 v%d, s%d, v%d", vGr, sGm, vT + 3)
        for t in range(1, 4): a("v_xor_b32 v%d, %d, v%d", vGr + t, 32 * t, vGr)
        a("v_lshlrev_b32 v%d, 4, v%d", vH, vL)
        a("s_mul_i32 s%d, s%d, 3", sT3, sW); a("s_add_u32 s%d, s%d, s%d", sO0, sT3, sRd)
        a("s_add_u32 s%d, s%d, 1", sO1, sO0); a("s_cmp_eq_u32 s%d, 2", sRd); a("s_cselect_b32 s%d, s%d, s%d", sO1, sT3, sO1)
        a("s_add_u32 s%d, s%d, 1", sO2, sO1); a("s_cmp_eq_u32 s%d, 1", sRd); a("s_cselect_b32 s%d, s%d, s%d", sO2, sT3, sO2)
        for r in (sO0, sO1, sO2):
            a("s_and_b32 s%d, s%d, 14", sT, r); a("s_add_u32 s%d, s%d, s%d", r, r, sT); a("s_lshl_b32 s%d, s%d, 12", r, r)
        a("v_and_b32 v%d, 15, v%d", vT + 3, vL); a("v_lshrrev_b32 v%d, 4, v%d", vT + 4, vL)
        a("v_mul_u32_u24 v%d, 272, v%d", vRw, vT + 3)
        a("v_lshl_add_u32 v%d, v%d, 4, v%d", vRw, vT + 4, vRw)
        a("s_mul_i32 s%d, s%d, 4352", sT, sW); a("v_add_u32 v%d, s%d, v%d", vRw, sT, vRw)
        a("s_lshl_b32 s%d, s%d, 8", sT, sW); a("s_add_u32 s%d, s%d, %d", sT, sT, SYNC + 256)
        a("v_lshl_add_u32 v%d, v%d, 2, s%d", vCa, vL, sT)
        a("s_waitcnt lgkmcnt(0)")
        tile_assign()
        a("s_mul_i32 s%d, s%d, %d", sGw, sW, 384 * 1280); a("s_lshl_b32 s%d, s%d, 7", sT, sDl); a("s_add_u32 s%d, s%d, s%d", sGw, sGw, sT)
        a("s_mul_i32 s%d, s%d, %d", sT, sRd, 128 * 1280); a("s_add_u32 s%d, s%d, s%d", sG, sGw, sT)
        order_init()
    def lsetup2():
        setpol(sNonce + 1)
        a("s_mul_i32 s%d, s%d, 3", sT3, sW)
        a("s_and_b32 s%d, s%d, 0x78", sInc, sRb)
        for e in hbase(sBase, sInc, sT): a(e)
        a("s_sub_u32 s%d, s%d, 1", sInc, sEnd); a("s_and_b32 s%d, s%d, 0x78", sInc, sInc)
        for e in hbase(sT2, sInc, sT): a(e)
        a("v_mov_b32 v%d, s%d", vT + 3, sBase); a("v_mov_b32 v%d, s%d", vT + 4, sT2); a("v_cmp_lt_u32 vcc, 31, v%d", vL)
        a("v_bfe_u32 v%d, v%d, 3, 2", vFl, vL); a("v_min_u32 v%d, 2, v%d", vFl, vFl); a("v_add_u32 v%d, s%d, v%d", vFl, sT3, vFl)
        a("v_cndmask_b32 v%d, v%d, v%d, vcc", vT + 3, vT + 3, vT + 4)
        a("v_lshl_add_u32 v%d, v%d, 9, v%d", vFl, vFl, vT + 3); a("v_add_u32 v%d, 98304, v%d", vFl, vFl)
        for e in hbase(sBase, sCur, sT): a(e)
        a("s_add_u32 s%d, s%d, s%d", sHcur, sBase, sO0)
        a("s_mov_b32 s%d, 0", sInc); a("s_mov_b32 s%d, %d", sKr, 256 if o["noa2"] else 0)
        a("s_lshl_b32 s%d, s%d, 9", sT, sT3); a("s_add_u32 s%d, s%d, s%d", sT, sT, sBase); a("s_add_u32 s%d, s%d, 114688", sT, sT)
        a("v_min_u32 v62, 5, v%d", vT); a("v_lshl_add_u32 v62, v62, 8, s%d", sT)
        if o["hs1"]: a("s_mov_b32 s28, s%d", sT)
    sSa, sSb, sMb = sG, sGm, sC1
    a("s_add_u32 s%d, s%d, s%d", sRd, sT, sT2); a("s_and_b32 s%d, s%d, %d", sRd, sRd, 1 if o["swapx"] else 0)
    a("s_lshl2_add_u32 s%d, s%d, s%d", sXoff, sMT, sW); a("s_mul_i32 s%d, s%d, 320", sXoff, sXoff); a("s_add_u32 s%d, s%d, s%d", sXoff, sXoff, sKb)
    a("s_and_b32 s%d, s%d, 1", sT, sW); a("s_lshl1_add_u32 s%d, s%d, s%d", sT, sKb, sT); a("s_mul_i32 s%d, s%d, 768", sT, sT)
    a("s_lshr_b32 s%d, s%d, 1", sT2, sW); a("s_lshl1_add_u32 s%d, s%d, s%d", sT2, sFT, sT2); a("s_add_u32 s%d, s%d, s%d", sT, sT, sT2)
    a("s_movk_i32 s%d, 1280", sMT); a("s_movk_i32 s%d, 3072", sFT)
    a("s_cmp_eq_u32 s%d, 1", sRd)
    a("s_cselect_b32 s%d, s%d, s%d", sWoff, sXoff, sT); a("s_cselect_b32 s%d, s%d, s%d", sXoff, sT, sXoff)
    a("s_cselect_b32 s%d, s%d, s%d", sT, sFT, sMT); a("s_cselect_b32 s%d, s%d, s%d", sT2, sMT, sFT)
    a("s_cselect_b32 s%d, s%d, s%d", sT3, sW1 + 2, sX + 2); a("s_cselect_b32 s%d, s%d, s%d", sW1 + 2, sX + 2, sW1 + 2); a("s_mov_b32 s%d, s%d", sX + 2, sT3)
    a("s_lshl_b32 s%d, s%d, 7", sXoff, sXoff); a("s_lshl_b32 s%d, s%d, 7", sWoff, sWoff)
    a("s_lshl2_add_u32 s%d, s%d, s%d", sM0, sRd, sW); a("s_lshl_b32 s%d, s%d, 12", sM0, sM0); a("s_mov_b32 m0, s%d", sM0)
    def offs(v, pitch, sh):
        a("v_lshlrev_b32 v%d, s%d, v%d", vT + 3, sh, vT + 2); a("v_and_b32 v%d, 3, v%d", vT + 3, vT + 3); a("v_xor_b32 v%d, v%d, v%d", vT + 3, vT + 1, vT + 3)
        a("v_mul_u32_u24 v%d, s%d, v%d", v, pitch, vT); a("v_lshl_add_u32 v%d, v%d, 4, v%d", v, vT + 3, v)
        a("s_lshl_b32 s%d, s%d, 3", pitch, pitch); a("s_addk_i32 s%d, -1024", pitch)
        a("v_xor_b32 v%d, 64, v%d", v + 1, v); a("v_add_u32 v%d, s%d, v%d", v + 1, pitch, v + 1)
        a("s_lshl_b32 s%d, s%d, 1", pitch, pitch)
        a("v_add_u32 v%d, s%d, v%d", v + 2, pitch, v); a("v_add_u32 v%d, s%d, v%d", v + 3, pitch, v + 1)
    offs(vXd, sT, sRd)
    a("s_xor_b32 s%d, s%d, 1", sT3, sRd)
    offs(vWd, sT2, sT3)
    a("s_movk_i32 s%d, 128", sT); a("s_mov_b32 s%d, %d", sT2, 64 * 3072); a("s_mov_b32 s%d, -1", sIt)
    a("s_cmp_eq_u32 s%d, 1", sRd)
    a("s_cselect_b32 s%d, s%d, s%d", sMT, sT2, sT); a("s_cselect_b32 s%d, s%d, s%d", sFT, sT, sT2)
    sSa, sSb = sMT, sFT
    a("s_mul_i32 s%d, s%d, -9", sNx, sSa); a("s_mul_i32 s%d, s%d, -9", sNw, sSb)
    a("s_waitcnt lgkmcnt(0)")
    a("s_cselect_b64 s[%d:%d], s[42:43], s[40:41]", sX, sX + 1); a("s_cselect_b64 s[%d:%d], s[40:41], s[42:43]", sW1, sW1 + 1)
    def dma(i):
        if "nodma" in o["dbg"]: return "s_nop 0"
        if i < 4: return "buffer_load_dwordx4 v%d, s[%d:%d], s%d offen offset:%d lds" % (vXd + i, sX, sX + 3, sXoff, 1024 * i)
        return "buffer_load_dwordx4 v%d, s[%d:%d], s%d offen offset:%d lds" % (vWd + i - 4, sW1, sW1 + 3, sWoff, 1024 * (i - 4))
    if o["l1prio"]: a("s_setprio %d", o["l1prio"])
    stamp()
    def ldloop(lab, first, last_it):
        a.label(lab)
        thr = (not first) and o["lwait"] < 8
        for i in range(4):
            if thr: a("s_waitcnt vmcnt(%d)", o["lwait"] - 1)
            a(dma(i))
        a("s_xor_b32 m0, s%d, 16384", sM0)
        if first and o["mid"]:
            a("s_cmp_lt_i32 s%d, 0", sIt); a("s_cbranch_scc1 L_ldn"); a("s_waitcnt vmcnt(4)"); a("s_barrier"); a.label("L_ldn")
        a("s_add_u32 s%d, s%d, 1", sKb, sKb); a("s_cmp_eq_u32 s%d, 10", sKb)
        a("s_cselect_b32 s%d, s%d, s%d", sDelta, sNx, sSa); a("s_cselect_b32 s%d, s%d, s%d", sPw, sNw, sSb); a("s_cselect_b32 s%d, 0, s%d", sKb, sKb)
        for i in range(4, 8):
            if thr: a("s_waitcnt vmcnt(%d)", o["lwait"] - 1)
            a(dma(i))
        a("s_add_u32 s%d, s%d, s%d", sXoff, sXoff, sDelta); a("s_add_u32 s%d, s%d, s%d", sWoff, sWoff, sPw)
        a("s_add_u32 s%d, s%d, %d", sM0, sM0, SLOT); a("s_cmp_ge_u32 s%d, %d", sM0, S * SLOT)
        a("s_cselect_b32 s%d, %d, 0", sT, S * SLOT); a("s_sub_u32 s%d, s%d, s%d", sM0, sM0, sT); a("s_mov_b32 m0, s%d", sM0)
        a("s_add_u32 s%d, s%d, 1", sIt, sIt)
        if first and o["mid"]:
            a("s_cmp_lt_u32 s%d, %d", sIt, last_it - 1); a("s_cbranch_scc1 %s", lab)
            a("s_branch L_su")
        elif first:
            a("s_cbranch_scc1 %s", lab)
            a("s_cmp_eq_u32 s%d, %d", sIt, last_it); a("s_cbranch_scc1 L_su")
            a("s_waitcnt vmcnt(8)"); a("s_barrier")
            a("s_branch %s", lab)
        else:
            a("s_cmp_lg_u32 s%d, s%d", sIt, sNonce); a("s_cbranch_scc1 %sw", lab); a(nload)
            a.label(lab + "w")
            a("s_cmp_lt_u32 s%d, %d", sIt, last_it)
            a("s_waitcnt vmcnt(8)"); a("s_barrier")
            a("s_cbranch_scc1 %s", lab)
    ldloop("L_ld", True, o["sup"])
    a.label("L_c0")
    a("v_and_b32 v%d, 15, v%d", vT + 3, vL)
    a("v_lshlrev_b32 v%d, 1, v%d", vT + 5, vL if o["b1"] else vT + 3)
    a("s_bfe_u32 s%d, s%d, 0x10000", sT, sW); a("s_lshl1_add_u32 s%d, s%d, s%d", sT3, sFT, sT); a("s_lshl_b32 s%d, s%d, 7", sT3, sT3)
    a("s_movk_i32 s%d, %d", sO + 2, 1536 * 2); a("s_mov_b32 s%d, s%d", sO + 3, sX + 3)
    a("s_waitcnt lgkmcnt(0)")
    a("s_mov_b64 s[%d:%d], s[44:45]", sO, sO + 1)
    if o["b1"]: a("buffer_load_ushort v14, v%d, s[%d:%d], s%d offen", vT + 5, sO, sO + 3, sT3)
    else:
        for f in range(4): a("buffer_load_ushort v%d, v%d, s[%d:%d], s%d offen offset:%d", TMP + 4 * f, vT + 5, sO, sO + 3, sT3, 32 * f)
    if o["bt"]:
        a("s_cmp_lg_u32 s%d, 0", sWv); a("s_cbranch_scc1 L_comp")
        a("s_cmp_ge_u32 s%d, 20", sI); a("s_cbranch_scc1 L_comp")
        a("s_add_u32 s%d, s%d, %d", sT, sKb, o["bt"]); a("s_cmp_ge_u32 s%d, 10", sT); a("s_cselect_b32 s%d, 10, 0", sT2); a("s_sub_u32 s%d, s%d, s%d", sT, sT, sT2)
        a("s_cmp_ge_u32 s%d, 8", sI); a("s_cbranch_scc1 L_btw")
        a("s_mov_b64 s[%d:%d], s[40:41]", sX, sX + 1)
        a("s_lshr_b32 s%d, s%d, 1", sT2, sXcd); a("s_lshl3_add_u32 s%d, s%d, s%d", sT2, sT2, sI); a("s_mul_i32 s%d, s%d, 640", sT2, sT2); a("s_add_u32 s%d, s%d, s%d", sT, sT, sT2); a("s_lshl_b32 s%d, s%d, 7", sT, sT)
        a("v_mul_u32_u24 v14, 1280, v%d", vL)
        a("buffer_load_dword v15, v14, s[%d:%d], s%d offen", sX, sX + 3, sT)
        a("s_branch L_comp")
        a.label("L_btw")
        a("s_mov_b64 s[%d:%d], s[42:43]", sW1, sW1 + 1)
        a("s_mul_i32 s%d, s%d, 1536", sT, sT); a("s_and_b32 s%d, s%d, 1", sT2, sXcd); a("s_mul_i32 s%d, s%d, 12", sT2, sT2); a("s_add_u32 s%d, s%d, s%d", sT, sT, sT2)
        a("s_add_u32 s%d, s%d, s%d", sT, sT, sI); a("s_sub_u32 s%d, s%d, 8", sT, sT); a("s_lshl_b32 s%d, s%d, 7", sT, sT)
        a("v_mul_u32_u24 v14, 3072, v%d", vL)
        a("buffer_load_dword v15, v14, s[%d:%d], s%d offen", sW1, sW1 + 3, sT)
    a("s_branch L_comp")
    a.L.append("@S")
    a.label("L_su")
    tab_load("L_t0")
    lsetup()
    srd(sO, 52, 256)
    a("s_cmp_eq_u32 s%d, 0", sW); a("s_cselect_b32 s%d, %d, -1", sNonce, o["np"])
    a("s_cmp_lt_u32 s5, 24"); a("s_cbranch_scc1 L_ld2w")
    a("s_barrier")
    a(nload)
    nst[0] = 1; stamp()
    a("s_branch L_lw")
    a.L.append("@T")
    ldloop("L_ld2", False, 9)
    a("s_branch L_lw")
    nst[0] = 1
    a.L.append("@H")
    a.label("L_helper")
    a("s_cmp_lt_u32 s%d, 4", sWv); a("s_cbranch_scc0 L_hl")
    a("v_mul_u32_u24 v%d, 1280, v%d", vXd, vL); a("v_mul_u32_u24 v%d, 3072, v%d", vWd, vL)
    sCl = sNx
    k0, k1 = o["pf"]
    a("s_bfe_u32 s%d, s%d, 0x20001", sM0, sI)
    a("s_and_b32 s%d, s%d, 1", sCl, sI); a("s_lshl_b32 s%d, s%d, 13", sCl, sCl)
    a("s_add_u32 s%d, s%d, %d", sKb, sKb, k0); a("s_cmp_ge_u32 s%d, 10", sKb); a("s_cselect_b32 s%d, 10, 0", sT); a("s_sub_u32 s%d, s%d, s%d", sKb, sKb, sT)
    a("s_lshr_b32 s%d, s%d, 1", sT, sXcd); a("s_lshl2_add_u32 s%d, s%d, s%d", sXoff, sT, sM0); a("s_mul_i32 s%d, s%d, %d", sXoff, sXoff, 128 * 1280)
    a("s_and_b32 s%d, s%d, 1", sT, sXcd); a("s_lshl2_add_u32 s%d, s%d, s%d", sWoff, sT, sM0); a("s_mul_i32 s%d, s%d, 384", sWoff, sWoff)
    def touch(v, srdn, off):
        a("v_add3_u32 v%d, s%d, v%d, %s", TMP + 1, sT, v, "0") if off == 0 else a("v_add_u32 v%d, %d, v%d", TMP + 1, off, TMP + 1)
        a("v_and_b32 v%d, 8192, v%d", TMP + 2, TMP + 1)
        a("v_cmpx_eq_u32 vcc, s%d, v%d", sCl, TMP + 2)
        a("buffer_load_dword v%d, v%d, s[%d:%d], 0 offen", TMP, TMP + 1, srdn, srdn + 3)
        a("s_mov_b64 exec, -1")
    def wstep(kb):
        a("s_mul_i32 s%d, s%d, %d", sT, kb, 64 * 3072); a("s_add_u32 s%d, s%d, s%d", sT, sT, sWoff)
        for q in range(3): touch(vWd, sW1, 128 if q else 0)
    def xstep(kb):
        a("s_lshl_b32 s%d, s%d, 7", sT, kb); a("s_add_u32 s%d, s%d, s%d", sT, sT, sXoff)
        for q in range(2): touch(vXd, sX, 64 * 1280 if q else 0)
    def knext(d, sr): a("s_add_u32 s%d, s%d, 1", d, sr); a("s_cmp_eq_u32 s%d, 10", d); a("s_cselect_b32 s%d, 0, s%d", d, d)
    flip = lambda: a("s_xor_b32 s%d, s%d, 8192", sCl, sCl)
    a("s_mov_b32 s%d, %d", sIt, k0)
    a("s_waitcnt lgkmcnt(0)")
    a("s_mov_b64 s[%d:%d], s[40:41]", sX, sX + 1); a("s_mov_b64 s[%d:%d], s[42:43]", sW1, sW1 + 1)
    a("s_cmp_ge_u32 s%d, 1", sWv); a("s_cbranch_scc1 L_pfb" if o["b2e"] else "s_cbranch_scc1 L_pfe")
    if o["hw"]: a("s_sleep %d", o["hw"])
    if o["dbl"]:
        assert (k1 - k0) % 2 == 1
        a("s_mov_b32 s%d, s%d", sRd, sKb); a("s_sub_u32 s%d, s%d, 1", sIt, sIt)
        a("s_branch L_pfm")
        a.label("L_pf")
        wstep(sKb); knext(sRd, sKb)
        a.label("L_pfm")
        wstep(sRd); flip()
        a("s_cmp_eq_u32 s%d, s%d", sRd, sKb); a("s_cbranch_scc1 L_pfx")
        xstep(sKb)
        a.label("L_pfx")
        xstep(sRd); knext(sKb, sRd)
        a("s_add_u32 s%d, s%d, 2", sIt, sIt)
    else:
        a.label("L_pf")
        if o["xf"]: wstep(sKb); flip(); xstep(sKb); knext(sKb, sKb)
        else: wstep(sKb); xstep(sKb); flip(); knext(sKb, sKb)
        a("s_add_u32 s%d, s%d, 1", sIt, sIt)
        if o["bt"] > k0:
            a("s_cmp_lg_u32 s%d, %d", sIt, o["bt"]); a("s_cbranch_scc1 L_pfs"); knext(sKb, sKb); a("s_add_u32 s%d, s%d, 1", sIt, sIt); a.label("L_pfs")
    a("s_cmp_lt_u32 s%d, %d", sIt, k1); a("s_cbranch_scc1 L_pf")
    a.label("L_pfe")
    stamp()
    a("s_branch L_hc2")
    if o["b2e"]:
        a.L.append("@B")
        a.label("L_pfb")
        a("s_cmp_lg_u32 s%d, 1", sWv); a("s_cbranch_scc1 L_pfe")
        a("s_cmp_lg_u32 s%d, 25", sI); a("s_cbranch_scc1 L_pfe")
        srd(sO, 48, 640 * 2)
        a("v_lshlrev_b32 v%d, 7, v%d", TMP + 1, vL)
        a("buffer_load_dword v%d, v%d, s[%d:%d], 0 offen", TMP, TMP + 1, sO, sO + 3)
        a("s_branch L_pfe")
    a.L.append("@G")
    a.label("L_hl")
    if o["codepf"]:
        a("s_getpc_b64 s[%d:%d]", sT, sT + 1)
        a("s_sub_u32 s%d, s%d, L_hl-%s_kernel+4", sT, sT, NAME); a("s_subb_u32 s%d, s%d, 0", sT + 1, sT + 1)
        a("v_and_b32 v%d, 255, v0", vT + 3)
        a("v_lshlrev_b32 v%d, 7, v%d", vT + 3, vT + 3)
        a("v_cmp_gt_u32 vcc, L_codeend-%s_kernel, v%d", NAME, vT + 3)
        a("s_and_saveexec_b64 s[%d:%d], vcc", sC1, sC1 + 1)
        a("s_cbranch_execz L_nocode")
        a("s_cmp_lg_u32 s%d, 24", sI); a("s_cbranch_scc1 L_nocode")
        a("global_load_dword v%d, v%d, s[%d:%d]", A2, vT + 3, sT, sT + 1)
        a.label("L_nocode")
        a("s_mov_b64 exec, -1")
    a("s_branch L_hl2")
    a.L.append("@P")
    a.label("L_hl2")
    a("s_memrealtime s[%d:%d]", sNonce, sNonce + 1)
    a("v_lshlrev_b32 v%d, 2, v%d", vT + 4, vL)
    a("v_add_u32 v%d, %d, v%d", vT + 4, SYNC, vT + 4)
    for r in range(5): a("ds_write_b32 v%d, v%d offset:%d", vT + 4, vZ, 256 * r)
    a("s_waitcnt lgkmcnt(0)")
    a("s_mov_b64 s[%d:%d], s[40:41]", sX, sX + 1); a("s_mov_b64 s[%d:%d], s[42:43]", sW1, sW1 + 1)
    for r in range(8): a("v_mov_b32 v%d, 0", vXd + r)
    a("s_cmp_lg_u32 s2, 255"); a("s_cbranch_scc1 L_nolead")
    if "dlead" in o["dbg"]:
        for _ in range(4): a("s_sleep 100")
    hptr(20)
    a("s_lshl_b32 s%d, s%d, 2", sT, sW); a("s_add_u32 s%d, s%d, %d", sT, sT, SYNC + 1280); a("v_mov_b32 v%d, s%d", vT + 3, sT)
    a("ds_write_b32 v%d, v%d", vT + 3, vZ)
    a("s_mov_b64 s[22:23], 0")
    a("s_cmp_lg_u32 s%d, 0", sW); a("s_cbranch_scc1 L_noclr"); a("s_atomic_swap_x2 s[22:23], s[52:53], 0"); a.label("L_noclr")
    a("s_lshl_b32 s%d, s%d, 21", sT, sW); a("s_add_u32 s%d, s%d, %d", sT, sT, 98304 + 7168); a("s_add_u32 s%d, s%d, 8192", sT2, sT)
    a("s_load_dword s24, s[20:21], s%d glc", sT); a("s_load_dword s25, s[20:21], s%d glc", sT2)
    a("s_mov_b32 s26, -1"); a("s_mov_b32 s27, -1"); a("s_mov_b32 s%d, 0", sIt)
    a("s_waitcnt lgkmcnt(0)")
    a.label("L_pr")
    for q in range(2):
        a("s_memtime s[16:17]"); a("s_load_dword s24, s[20:21], s%d glc", sT + q); a("s_waitcnt lgkmcnt(0)")
        a("s_memtime s[18:19]"); a("s_waitcnt lgkmcnt(0)"); a("s_sub_u32 s25, s18, s16"); a("s_min_u32 s%d, s%d, s25", 26 + q, 26 + q)
    a("s_add_u32 s%d, s%d, 1", sIt, sIt); a("s_cmp_lt_u32 s%d, %d", sIt, o["pr"]); a("s_cbranch_scc1 L_pr")
    a("s_cmp_ge_u32 s%d, %d", sIt, o["pmax"]); a("s_cbranch_scc1 L_pre")
    a("s_min_u32 s24, s26, s27"); a("s_max_u32 s25, s26, s27"); a("s_mul_i32 s24, s24, %d", o["pth"]); a("s_lshl_b32 s25, s25, 4")
    a("s_cmp_lt_u32 s25, s24"); a("s_cbranch_scc1 L_pr")
    a.label("L_pre")
    a("s_cmp_lt_u32 s27, s26"); a("s_cselect_b32 s%d, 2, 1", sT); a("v_mov_b32 v%d, s%d", vT + 4, sT)
    a("ds_write_b32 v%d, v%d", vT + 3, vT + 4)
    a("s_cmp_lg_u32 s%d, 0", sW); a("s_cbranch_scc1 L_nolead")
    a("v_and_b32 v%d, 3, v%d", vT + 4, vL); a("v_lshl_add_u32 v%d, v%d, 2, v%d", vT + 3, vT + 4, vT + 3)
    a.label("L_pc")
    a("ds_read_b32 v%d, v%d", vT + 4, vT + 3)
    a("s_add_u32 s%d, s%d, 1", sIt, sIt); a("s_cmp_gt_u32 s%d, 1000", sIt)
    a("s_waitcnt lgkmcnt(0)")
    a("s_cbranch_scc1 L_pc_x")
    a("v_cmp_eq_u32 vcc, 0, v%d", vT + 4)
    a("s_cbranch_vccnz L_pc")
    a.label("L_pc_x")
    a("v_cmp_eq_u32 vcc, 2, v%d", vT + 4)
    a("s_and_b32 s%d, s%d, 0xffffff", sNonce + 1, sNonce + 1); a("s_bitset1_b32 s%d, 30", sNonce + 1); a("s_nop 1")
    a("s_getreg_b32 s%d, hwreg(HW_REG_XCC_ID)", sT2); a("s_bitcmp1_b32 s%d, 1", sT2); a("s_cselect_b32 s%d, 0, 3", sT2)
    a("s_and_b32 s%d, vcc_lo, 15", sT); a("s_xor_b32 s%d, s%d, s%d", sT, sT, sT2); a("s_lshl_b32 s%d, s%d, 24", sT, sT); a("s_or_b32 s%d, s%d, s%d", sNonce + 1, sNonce + 1, sT)
    a("s_atomic_swap_x2 s[%d:%d], s[52:53], 0", sNonce, sNonce + 1)
    a.label("L_nolead")
    a("s_branch L_su")

    a.L.append("@C")
    nst[0] = 1
    a.label("L_comp")
    FR = 0
    tab_load("L_t1")
    vXr, vWr = 16, 18
    for f in range(4):
        for r in range(1, 4): a("v_mov_b32 v%d, 0", TMP + 4 * f + r)
    for r in range(1, 4): a("v_mov_b32 v%d, 0", vB2 + r)
    a("v_lshrrev_b32 v%d, 4, v%d", vHi, vL)
    a("v_mov_b32 v%d, 0x3f80", vT + 5)
    a("v_cmp_eq_u32 vcc, 0, v%d", vHi)
    a("s_lshr_b32 s%d, s%d, 1", sT, sW); a("s_lshl_b32 s%d, s%d, 6", sT, sT)
    a("v_add_u32 v%d, s%d, v%d", vT + 3, sT, vT + 3)
    a("v_lshlrev_b32 v%d, 7, v%d", vT + 3, vT + 3)
    a("v_bfe_u32 v%d, v%d, 1, 3", vT + 4, vL)
    a("v_xor_b32 v%d, v%d, v%d", vT + 4, vT + 4, vHi)
    a("v_lshl_add_u32 v%d, v%d, 4, v%d", vXr, vT + 4, vT + 3)
    a("v_xor_b32 v%d, 64, v%d", vXr + 1, vXr)
    a("v_bfe_u32 v%d, v%d, 2, 2", vT + 3, vL)
    a("v_lshl_add_u32 v%d, v%d, 3, v%d", vT + 3, vHi, vT + 3)
    a("v_lshlrev_b32 v%d, 7, v%d", vT + 3, vT + 3)
    a("v_bfe_u32 v%d, v%d, 3, 2", vT + 4, vL)
    a("v_lshl_add_u32 v%d, v%d, 5, v%d", vT + 3, vT + 4, vT + 3)
    a("v_and_b32 v%d, 3, v%d", vT + 4, vL)
    a("v_lshl_add_u32 v%d, v%d, 3, v%d", vT + 3, vT + 4, vT + 3)
    a("s_and_b32 s%d, s%d, 1", sT, sW); a("s_lshl_b32 s%d, s%d, 13", sT, sT); a("s_add_u32 s%d, s%d, 16384", sT, sT)
    a("v_add_u32 v%d, s%d, v%d", vWr, sT, vT + 3)
    for f in range(1, 4): a("v_xor_b32 v%d, %d, v%d", vWr + f, 32 * f, vWr)
    a("v_lshlrev_b32 v%d, 2, v%d", vT + 4, vL)
    a("v_add_u32 v%d, %d, v%d", vT + 4, SYNC, vT + 4)
    for r in range(5): a("ds_write_b32 v%d, v%d offset:%d", vT + 4, vZ, 256 * r)
    if o["b1"]:
        a("v_mov_b32 v%d, 0x3f80", vB2)
        for f in range(4): a("v_cmp_eq_u32 s[%d:%d], %d, v%d", 8 + 2 * f, 9 + 2 * f, f, vHi)
    else: a("v_cndmask_b32 v%d, 0, v%d, vcc", vB2, vT + 5)
    a("v_mov_b32 v%d, 0x%x", vC0, f2u(C0)); a("v_mov_b32 v%d, v%d", vC0 + 1, vC0)
    a("v_mov_b32 v%d, 1.0", vONE); a("v_mov_b32 v%d, 1.0", vONE + 1)
    a("s_mov_b32 s%d, 0x%x", sC1, f2u(C1)); a("s_mov_b32 s%d, s%d", sC1 + 1, sC1)
    srdH()
    a("s_and_b32 s%d, s%d, 7", sG, sMT); a("s_lshl_b32 s%d, s%d, 20", sG, sG)
    a("s_and_b32 s%d, s%d, 2", sT, sW); a("s_lshl_b32 s%d, s%d, 18", sT, sT); a("s_add_u32 s%d, s%d, s%d", sXoff, sG, sT)
    a("s_lshl_b32 s%d, s%d, 1", sT, sT3); a("s_add_u32 s%d, s%d, s%d", sWoff, sXoff, sT); a("s_add_u32 s%d, s%d, 114688", sWoff, sWoff)
    a("s_lshl_b32 s%d, s%d, 4", sT3, sT3); a("s_and_b32 s%d, s%d, 0xe000", sT, sT3); a("s_add_u32 s%d, s%d, s%d", sT3, sT3, sT); a("s_add_u32 s%d, s%d, s%d", sXoff, sXoff, sT3)
    a("s_lshl_b32 s%d, s%d, 9", sT, sFT); a("s_add_u32 s%d, s%d, s%d", sG, sG, sT); a("s_add_u32 s%d, s%d, 98304", sG, sG)
    a("v_lshlrev_b32 v%d, 4, v%d", vHst, vL)
    if o["tlb"]:
        a("v_lshlrev_b32 v%d, 17, v%d", vT + 4, vL)
        a("s_mov_b64 exec, 15")
        if o["tlb"] == 1:
            a("s_and_b32 s%d, s%d, 0xfffe0000", sT, sXoff); a("s_add_u32 s%d, s%d, %d", sT, sT, 98304 + 7424)
            a("buffer_load_dword v14, v%d, s[%d:%d], s%d offen", vT + 4, sH, sH + 3, sT)
        else:
            a("buffer_load_dword v14, v%d, s[%d:%d], s%d offen sc1", vT + 4, sH, sH + 3, sXoff)
            a("s_add_u32 s%d, s%d, 8192", sT, sXoff)
            a("buffer_load_dword v15, v%d, s[%d:%d], s%d offen sc1", vT + 4, sH, sH + 3, sT)
        a("s_mov_b64 exec, -1")
    a("v_mov_b32 v%d, 1", vT); a("v_mov_b32 v%d, %d", vT + 1, SYNC); a("v_lshlrev_b32 v%d, 3, v%d", vT + 2, vL)
    a("s_mov_b32 s%d, 0", sRd); a("s_mov_b32 s%d, 0", sIt)
    a("s_mov_b32 s%d, %d", sPw, (-(S - 1) * SLOT) & 0xffffffff)
    if o["prio"]: a("s_setprio %d", o["prio"])
    a("s_waitcnt vmcnt(%d) lgkmcnt(0)", o["tlb"])
    for f in range(4):
        if o["b1"]: a("v_cndmask_b32 v%d, 0, v14, s[%d:%d]", TMP + 4 * f, 8 + 2 * f, 9 + 2 * f)
        else: a("v_cndmask_b32 v%d, 0, v%d, vcc", TMP + 4 * f, TMP + 4 * f)
    for m in range(4):
        for f in range(4):
            r = ACC + (m * 4 + f) * 4
            a("v_mfma_f32_16x16x32_bf16 v[%d:%d], v[%d:%d], v[%d:%d], 0", r, r + 3, TMP + 4 * f, TMP + 4 * f + 3, vB2, vB2 + 3)
    a("s_branch L_c2")
    a.L.append("@D")
    a.label("L_c2")
    stamp()
    a("s_barrier")
    stamp()
    Wr = lambda b, k, f: 32 * b + 16 * k + 4 * f
    Xr = lambda k, m: 64 + 16 * (m >> 1) + 8 * k + 4 * (m & 1)
    rw = lambda b, k, f: ["ds_read_b64_tr_b16 a[%d:%d], v%d offset:%d" % (Wr(b, k, f) + 2 * u, Wr(b, k, f) + 2 * u + 1, vWr + f, k * 4096 + u * 512) for u in range(2)]
    rx = lambda k, m: ["ds_read_b128 a[%d:%d], v%d offset:%d" % (Xr(k, m), Xr(k, m) + 3, vXr + k, m * 2048)]
    set1 = lambda b: [rw(b, 0, 0), rx(0, 0), rw(b, 1, 0), rx(1, 0), rx(1, 1), rx(0, 1), rw(b, 0, 1), rw(b, 1, 1), rw(b, 0, 2), rw(b, 1, 2)]
    set2 = lambda b: [rw(b, 0, 3), rw(b, 1, 3), rx(0, 2), rx(1, 2), rx(1, 3), rx(0, 3)]
    def group(b, m0):
        L = []
        for f in range(4):
            ma, mb = (m0, m0 + 1) if f % 2 == 0 else (m0 + 1, m0)
            for m, k in ((ma, 0), (ma, 1), (mb, 1), (mb, 0)):
                r = ACC + (m * 4 + f) * 4
                L.append("v_mfma_f32_16x16x32_bf16 v[%d:%d], a[%d:%d], a[%d:%d], v[%d:%d]" % (r, r + 3, Wr(b, k, f), Wr(b, k, f) + 3, Xr(k, m), Xr(k, m) + 3, r, r + 3))
        return L
    def spread(S):
        return S if o["fl"] else [[e] for g in S for e in g]
    upd = lambda r: "v_add_u32 v%d, s%d, v%d" % (r, sDelta, r)
    slot = ["s_add_u32 s%d, s%d, %d" % (sRd, sRd, SLOT), "s_cmp_ge_u32 s%d, %d" % (sRd, S * SLOT), "s_cselect_b32 s%d, s%d, %d" % (sDelta, sPw, SLOT), "s_cselect_b32 s%d, 0, s%d" % (sRd, sRd)]
    def half_b(b):
        R = spread(set1(b))
        for n, m in enumerate(group(1 - b, 2)):
            a(m)
            if n < len(R):
                for e in R[n]: a(e)
            if o["al"] and n == 13: a("s_nop 0")
    def half_a(b, last):
        R = spread(set2(b)); nr = len(R)
        rest = slot + [upd(vWr + f) for f in range(4)] + [upd(vXr), upd(vXr + 1)] + (["s_add_u32 s%d, s%d, 1" % (sIt, sIt), "s_cmp_lt_u32 s%d, 5" % sIt] if last else [])
        need = dict(zip((0, 4, 8), o["wn"])); need[12] = 20
        issued = 16; done = 0
        for n, m in enumerate(group(b, 0)):
            if n in need and need[n] > done: a("s_waitcnt lgkmcnt(%d)", min(15, issued - need[n])); done = need[n]
            a(m)
            if n < nr:
                for e in R[n]: a(e); issued += 1
            else:
                for _ in range(1 if (n + 1) in need else 2):
                    if rest and n < 15: a(rest.pop(0))
            if o["al"] and n == 13 and not last: a(".p2align 3")
        assert not rest
        a("s_waitcnt lgkmcnt(0)")
    for g in set1(0):
        for e in g: a(e)
    a("s_branch L_p1m")
    a(".p2align 3")
    a("s_nop 0")
    a.label("L_p1b")
    a("s_barrier")
    half_b(0)
    a.label("L_p1m")
    half_a(0, False)
    a("s_barrier")
    half_b(1)
    half_a(1, True)
    a("s_cbranch_scc1 L_p1b")
    pre = []
    if o["ov"]:
        pre = ["v_mul_f32 v%d, v%d, v%d" % (TMP + i, ACC + i, ACC + i) for i in range(8)] + ["v_fma_f32 v%d, v%d, s%d, v%d" % (TMP + i, TMP + i, sC1, vC0) for i in range(8)] + \
              ["v_mul_f32 v%d, v%d, v%d" % (TMP + i, TMP + i, ACC + i) for i in range(8)]
    BP = 0
    for n, m in enumerate(group(1, 2)):
        a(m)
        if n == 0: a("ds_read_b64 v[%d:%d], v%d offset:8", vPl, vPl + 1, vT + 1)
        if 1 <= n <= 12:
            for _ in range(2):
                if pre: a(pre.pop(0))
        if n == 13: a("s_waitcnt lgkmcnt(0)"); a("v_readfirstlane_b32 s%d, v%d", sNonce + 1, vPl + 1)
        if n == 14: a("s_lshr_b32 s%d, s%d, 1", sT, sMT)
    post = []
    sv = a.L; a.L = post
    setpol(sNonce + 1)
    a("s_lshr_b32 s%d, s%d, s%d", sT, sPol, sT); a("s_and_b32 s%d, s%d, 8192", sT, sT)
    a("s_add_u32 s%d, s%d, s%d", sXoff, sXoff, sT); a("s_add_u32 s%d, s%d, s%d", sWoff, sWoff, sT); a("s_add_u32 s%d, s%d, s%d", sG, sG, sT)
    a.L = sv
    jitter("L_j1", 5)
    log[:] = []
    assert BP == 0
    stamp()
    def gelu_list(acc, tmp, outr, n):
        L = []; P = range(n // 2)
        pk = lambda op, d, x, y: "%s v[%d:%d], v[%d:%d], v[%d:%d]" % (op, d, d + 1, x, x + 1, y, y + 1)
        for p in P: L.append(pk("v_pk_mul_f32", tmp + 2 * p, acc + 2 * p, acc + 2 * p))
        for p in P: L.append("v_pk_fma_f32 v[%d:%d], v[%d:%d], s[%d:%d], v[%d:%d]" % (tmp + 2 * p, tmp + 2 * p + 1, tmp + 2 * p, tmp + 2 * p + 1, sC1, sC1 + 1, vC0, vC0 + 1))
        for p in P: L.append(pk("v_pk_mul_f32", tmp + 2 * p, tmp + 2 * p, acc + 2 * p))
        for i in range(n): L.append("v_exp_f32 v%d, v%d" % (tmp + i, tmp + i))
        for p in P: L.append(pk("v_pk_add_f32", tmp + 2 * p, tmp + 2 * p, vONE))
        for i in range(n): L.append("v_rcp_f32 v%d, v%d" % (tmp + i, tmp + i))
        for p in P: L.append(pk("v_pk_mul_f32", tmp + 2 * p, tmp + 2 * p, acc + 2 * p))
        for p in P: L.append("v_cvt_pk_bf16_f32 v%d, v%d, v%d" % (outr + p, tmp + 2 * p, tmp + 2 * p + 1))
        return L
    def publish(part):
        a(vmwait("st%d" % part))
        a("s_mov_b64 exec, 1")
        a("ds_add_rtn_u32 v%d, v%d, v%d offset:%d", vT + 5, vT + 1, vT, 4 * part)
        a("s_waitcnt lgkmcnt(0)")
        a("v_readfirstlane_b32 s%d, v%d", sT2, vT + 5)
        a("s_mov_b64 exec, 0xffff")
        a("s_nop 0")
        a("s_cmp_lg_u32 s%d, 3", sT2); a("s_cbranch_scc1 L_nopub%d", part)
        if o["spub"]: a("s_atomic_swap_x2 s[%d:%d], s[%d:%d], %d", sNonce, sNonce + 1, 80 if not PROF else 84, 81 if not PROF else 85, 256 * part)
        else: a("buffer_store_dwordx2 v[%d:%d], v%d, s[%d:%d], s%d offen offset:%d sc1", vPl, vPl + 1, vT + 2, sH, sH + 3, sG, 256 * part)
        a.label("L_nopub%d" % part)
        a("s_mov_b64 exec, -1")
    a(".p2align 3")
    for hh in range(8):
        ob = OUT + 4 * (hh & 3)
        G = gelu_list(ACC + 8 * hh, TMP, ob, 8)
        if hh == 0 and o["ov"]: G = G[12:]
        for e in G:
            a(e)
            if hh == 0 and post and ("v_exp" in e or "v_rcp" in e): a.L.append(post.pop(0))
        assert not post
        if hh == 0: a(".p2align 3")
        mt = hh >> 2
        if "nohst" in o["dbg"]: a("s_mov_b64 exec, 1")
        a("buffer_store_dwordx4 v[%d:%d], v%d, s[%d:%d], s%d offen offset:%d %s", ob, ob + 3, vHst, sH, sH + 3, sXoff, (hh & 1) * 1024, o["hst"])
        if hh & 1: a("s_add_u32 s%d, s%d, %d", sXoff, sXoff, 1 << 17)
        if "nohst" in o["dbg"]: a("s_mov_b64 exec, -1")
        log.append("st%d" % mt if hh != 1 else "s1")
        if hh + 1 == o["a1at"]:
            a(vmwait("s1"))
            a("s_mov_b64 exec, 0xffff")
            a("buffer_store_dwordx2 v[%d:%d], v%d, s[%d:%d], s%d offen sc1", vPl, vPl + 1, vT + 2, sH, sH + 3, sWoff); log.append("f1")
            a("s_mov_b64 exec, -1")
            a(".p2align 3")
        if hh + 1 == o["puba"]:
            if hh == 7: stamp(); a("s_setprio 0")
            jitter("L_j3", 6)
            if not o["noa2"]: publish(0)
            jitter("L_j4", 4)
            if hh == 7: stamp()
            else: a(".p2align 3")
    if o["puba"] < 8: stamp(); a("s_setprio 0"); stamp()
    if o["puba"] == 8 and not o["spub"] and not o["noa2"]:
        a("s_cmp_lg_u32 s%d, 3", sT2); a("s_cbranch_scc1 L_pw0"); a("s_waitcnt vmcnt(1)"); a("s_branch L_pw1"); a.label("L_pw0"); a("s_waitcnt vmcnt(0)"); a.label("L_pw1")
        log.extend(["x"] * 60)
    publish(1)
    stamp()
    a.label("L_red")
    a("s_waitcnt lgkmcnt(0)")
    tile_assign(); order_init()
    srd(sO, 48, 640 * 2)
    a("v_and_b32 v%d, 15, v%d", vT + 3, vL); a("v_lshrrev_b32 v%d, 4, v%d", vT + 4, vL)
    a("v_lshlrev_b32 v%d, 3, v%d", vT + 5, vT + 3); a("s_lshl_b32 s%d, s%d, 7", sDl, sDl)
    a("buffer_load_dwordx2 v[%d:%d], v%d, s[%d:%d], s%d offen", vB2 + 2, vB2 + 3, vT + 5, sO, sO + 3, sDl)
    a("s_lshl_b32 s%d, s%d, 2", sT, sW); a("v_add_u32 v%d, s%d, v%d", vT + 4, sT, vT + 4)
    a("v_mul_u32_u24 v%d, 272, v%d", vRr, vT + 4)
    a("v_lshl_add_u32 v%d, v%d, 4, v%d", vRr, vT + 3, vRr)
    a("v_mul_u32_u24 v%d, 1280, v%d", vOst, vT + 4)
    a("v_add3_u32 v%d, v%d, v%d, s%d", vOst, vOst, vT + 5, sDl)
    a("v_and_b32 v%d, 3, v%d", vT + 2, vL); a("v_lshlrev_b32 v%d, 8, v%d", vT + 2, vT + 2); a("v_lshl_add_u32 v%d, v%d, 2, v%d", vT + 2, vL, vT + 2)
    a("v_add_u32 v%d, %d, v%d", vT + 2, SYNC + 256, vT + 2)
    a("s_mov_b32 s%d, %d", sCnt, REDSZ); a("s_mul_i32 s%d, s%d, %d", sNb, sNb, REDSZ); a("s_mov_b32 s%d, 0", sIt)
    a("s_waitcnt vmcnt(0)")
    srd(sO, 50, 2048 * 640 * 2)
    a("v_lshlrev_b32 v%d, 16, v%d", vB2, vB2 + 2); a("v_and_b32 v%d, 0xffff0000, v%d", vB2 + 1, vB2 + 2)
    a("v_lshlrev_b32 v%d, 16, v%d", vB2 + 2, vB2 + 3); a("v_and_b32 v%d, 0xffff0000, v%d", vB2 + 3, vB2 + 3)
    if o["rprio"]: a("s_setprio %d", o["rprio"])
    a.label("L_rw")
    a("ds_read_b32 v%d, v%d", vT + 3, vT + 2)
    if o["spec"]:
        for p in range(4): a("ds_read_b128 v[%d:%d], v%d offset:%d", RD + 4 * p, RD + 4 * p + 3, vRr, 4352 * p)
    a("s_add_u32 s%d, s%d, 1", sIt, sIt); a("s_cmp_gt_u32 s%d, %d", sIt, o["spin"] * 8)
    a("s_waitcnt lgkmcnt(%d)", 4 if o["spec"] else 0)
    a("s_cbranch_scc1 L_rgo")
    a("v_cmp_gt_u32 vcc, s%d, v%d", sCnt, vT + 3)
    a("s_cbranch_vccz L_rgo")
    if o["rlast"]: a("s_cmp_eq_u32 s%d, s%d", sCnt, sNb); a("s_cbranch_scc1 L_rw")
    if o["rsleep"]: a("s_sleep %d", o["rsleep"])
    a("s_branch L_rw")
    a.label("L_rgo")
    jitter("L_j6", 4)
    if not o["spec"]:
        for p in range(4): a("ds_read_b128 v[%d:%d], v%d offset:%d", RD + 4 * p, RD + 4 * p + 3, vRr, 4352 * p)
    a("v_add_u32 v%d, %d, v%d", vRr, REDSZ, vRr)
    a("s_mul_i32 s%d, s%d, %d", sOst, sCur, 16 * 1280)
    for e in order_next: a(e)
    a("s_add_u32 s%d, s%d, %d", sCnt, sCnt, REDSZ)
    def pk(d, x, y):
        a("v_add_f32 v%d, v%d, v%d", d, x, y); a("v_add_f32 v%d, v%d, v%d", d + 1, x + 1, y + 1)
    a("s_waitcnt lgkmcnt(3)")
    pk(RD, RD, vB2); pk(RD + 2, RD + 2, vB2 + 2)
    a("s_waitcnt lgkmcnt(1)")
    pk(RD + 4, RD + 4, RD + 8); pk(RD + 6, RD + 6, RD + 10)
    a("s_waitcnt lgkmcnt(0)")
    pk(RD, RD, RD + 12); pk(RD + 2, RD + 2, RD + 14)
    pk(RD, RD, RD + 4); pk(RD + 2, RD + 2, RD + 6)
    a("v_cvt_pk_bf16_f32 v%d, v%d, v%d", vPl, RD, RD + 1); a("v_cvt_pk_bf16_f32 v%d, v%d, v%d", vPl + 1, RD + 2, RD + 3)
    a("s_cmp_le_u32 s%d, s%d", sCnt, sNb)
    if o["olast"] is None:
        a("buffer_store_dwordx2 v[%d:%d], v%d, s[%d:%d], s%d offen %s", vPl, vPl + 1, vOst, sO, sO + 3, sOst, o["ost"])
        a("s_cbranch_scc1 L_rw")
    else:
        a("s_cbranch_scc1 L_rst")
        a("buffer_store_dwordx2 v[%d:%d], v%d, s[%d:%d], s%d offen %s", vPl, vPl + 1, vOst, sO, sO + 3, sOst, o["olast"])
    pad_to(NSTAMP)
    if PROF: a("s_branch L_fin")
    else: a("s_endpgm")

    if o["olast"] is not None:
        a.label("L_rst")
        a("buffer_store_dwordx2 v[%d:%d], v%d, s[%d:%d], s%d offen %s", vPl, vPl + 1, vOst, sO, sO + 3, sOst, o["ost"])
        a("s_branch L_rw")
    a.L.append("@R")
    nst[0] = 2
    a.label("L_hc2")
    tab_load("L_t2")
    if o["w2pf"]:
        srd(sW2, 46, 1536 * 640 * 2)
        a("s_cmp_ge_u32 s%d, 1", sWv); a("s_cbranch_scc1 L_pf2e")
        a("s_and_b32 s%d, s%d, 1", sWoff, sXcd); a("s_mul_i32 s%d, s%d, 640", sWoff, sWoff)
        a("s_mul_i32 s%d, s%d, %d", sT, sM0, 384 * 1280); a("s_add_u32 s%d, s%d, s%d", sWoff, sWoff, sT)
        krot(sRd); a("s_lshl_b32 s%d, s%d, 1", sRd, sRd)
        NKK = len(o["kks"]); MV = o["mv"]
        lst = list(o["kks"]) + list(o["kks"])[NKK - MV:]
        assert len(lst) <= 8
        a("s_mov_b32 s%d, 0x%x", sKb, sum(v << (4 * i) for i, v in enumerate(lst))); a("s_mov_b32 s%d, 0", sIt)
        a("s_cmp_eq_u32 s%d, 0", sM0); a("s_cselect_b32 s%d, %d, %d", sXoff, NKK + MV, NKK)
        a("s_cmp_eq_u32 s%d, 3", sM0); a("s_cselect_b32 s%d, %d, s%d", sXoff, NKK - MV, sXoff)
        a.label("L_pf2")
        a("s_and_b32 s%d, s%d, 15", sT, sKb); a("s_lshr_b32 s%d, s%d, 4", sKb, sKb)
        a("s_add_u32 s%d, s%d, s%d", sT, sT, sRd); a("s_cmp_ge_u32 s%d, 6", sT); a("s_cselect_b32 s%d, 6, 0", sT3); a("s_sub_u32 s%d, s%d, s%d", sT, sT, sT3)
        a("s_mul_i32 s%d, s%d, %d", sT, sT, 64 * 1280); a("s_add_u32 s%d, s%d, s%d", sT, sT, sWoff)
        for q in range(5): touch(vXd, sW2, 128 if q else 0)
        a("s_add_u32 s%d, s%d, 1", sIt, sIt)
        if o["tog2"] == 1: flip()
        else: a("s_lshl_b32 s%d, s%d, 13", sT, sIt); a("s_and_b32 s%d, s%d, 8192", sT, sT); a("s_xor_b32 s%d, s%d, s%d", sCl, sCl, sT)
        a("s_cmp_eq_u32 s%d, %d", sIt, NKK); a("s_cselect_b32 s%d, %d, 0", sT, 3 * 384 * 1280); a("s_add_u32 s%d, s%d, s%d", sWoff, sWoff, sT)
        a("s_cmp_lt_u32 s%d, s%d", sIt, sXoff); a("s_cbranch_scc1 L_pf2")
        a.label("L_pf2e")
    a("s_barrier")
    stamp()
    if PROF: a("s_waitcnt vmcnt(0)")
    pad_to(7)
    a("s_branch L_red")

    a.L.append("@W")
    nst[0] = 2
    a.label("L_lw")
    def gissue(g):
        a("s_add_u32 m0, s%d, %d", sGm, SLO[g % NSL]); a("s_nop 0")
        for i in range(4):
            if o["slide"] and o["gpb"] <= g < o["gpend"]: a("s_waitcnt vmcnt(%d)", o["slide"] - 1)
            a("buffer_load_dwordx4 v%d, s[%d:%d], s%d offen offset:%d lds", vGd + i, sW2, sW2 + 3, sG, 1024 * i); log.append("g%d" % g)
        a("s_add_u32 s%d, s%d, %d", sG, sG, 32 * 1280 if "w2same" not in o["dbg"] else (32 * 1280 if g % 2 == 0 else (-32 * 1280) & 0xffffffff))
        if g in (3, 7):
            a("s_cmp_eq_u32 s%d, %d", sRd, 2 if g == 3 else 1); a("s_cselect_b32 s%d, s%d, s%d", sG, sGw, sG)
    def greads(g):
        L = []
        for t in range(4):
            k, r = w2reg(g * 4 + t)
            for u in range(2): L.append("ds_read_b64_tr_b16 %s[%d:%d], v%d offset:%d" % (k, r + 2 * u, r + 2 * u + 1, vGr + t, SLO[g % NSL] + u * 2048))
        return L
    log[:] = ["p1"]
    srd(sW2, 46, 1536 * 640 * 2)
    gissue(0)
    a("v_mov_b32 v%d, %d", vT + 5, SYNC + 8)
    a("s_cmp_ge_u32 s5, 24"); a("s_cbranch_scc1 L_cb0")
    a("s_cmp_lg_u32 s%d, 0", sW); a("s_cbranch_scc1 L_cb0")
    get_nonce("L_n0")
    a("ds_write_b64 v%d, v[%d:%d]", vT + 5, vPl, vPl + 1)
    a.label("L_cb0")
    for g in range(1, o["pre9"]): gissue(g)
    srdH()
    a("s_waitcnt vmcnt(%d) lgkmcnt(0)", vmcount("p1"))
    a("s_cmp_ge_u32 s5, 24"); a("s_cbranch_scc1 L_cb1")
    a("s_barrier")
    a("ds_read_b64 v[%d:%d], v%d", vPl, vPl + 1, vT + 5)
    a.label("L_cb1")
    stamp()
    a("s_setprio %d", o["lprio"])
    jitter("L_j2", 3)
    pollA = "buffer_load_dwordx2 v[%d:%d], v62, s[%d:%d], 0 offen sc1" % (vPl, vPl + 1, sH, sH + 3)
    pollB = "buffer_load_dwordx2 v[%d:%d], v%d, s[%d:%d], s%d offen sc1" % (vPl, vPl + 1, vFl, sH, sH + 3, sKr)
    chk = "v_cmp_ne_u64 vcc, s[%d:%d], v[%d:%d]" % (sNonce, sNonce + 1, vPl, vPl + 1)
    LAG = NSL - 1
    assert NSL == 3
    for g in range(o["pre9"], LAG): gissue(g)
    for g in range(LAG, 12):
        a(vmwait("g%d" % (g - LAG)))
        a("s_waitcnt lgkmcnt(0)")
        for r in greads(g - LAG): a(r)
        if not o["slide"] and o["gpace"] < 4 * (LAG - 1) and o["gpb"] <= g < o["gpend"]:
            a("s_cmp_ge_u32 s5, 24"); a("s_cbranch_scc1 L_gp%d", g); a("s_waitcnt vmcnt(%d)", o["gpace"]); a.label("L_gp%d" % g)
        gissue(g)
        if g == o["ng"]:
            if o["sp2"]: a("s_setprio 3")
            get_nonce("L_n1"); lsetup2()
            if o["sp2"]: a("s_setprio %d", o["lprio"])
        if g == o["poll0"]: a(pollA.replace("v[%d:%d]" % (vPl, vPl + 1), "v[60:61]")); log.append("p0")
        if o["pgb"] and g == o["pgb"]:
            a("s_cmp_ge_u32 s5, 24"); a("s_cbranch_scc1 L_pg1"); a(pollA); a.label("L_pg1"); pos_b = len(log)
        if o["pgb"] and g == o["pollg"]:
            a("s_cmp_lt_u32 s5, 24"); a("s_cbranch_scc1 L_pg2"); a(pollA); a.label("L_pg2"); pos_h = len(log)
        if o["hs1"] and g == o["pollg"]:
            a("s_cmp_ge_u32 s5, 24"); a("s_cbranch_scc1 L_pg1"); a(pollA); a.label("L_pg1"); pos_b = len(log)
        elif not o["pgb"] and g == o["pollg"]: a(pollA); log.append("pa")
        if g == 11 and o["poll0"]:
            a(vmwait("p0")); a(chk.replace("v[%d:%d]" % (vPl, vPl + 1), "v[60:61]")); a("s_cbranch_vccz L_spa_x")
        if PROF and "gall" in o["dbg"] and g in (3, 5, 6, 7, 8, 9, 10): a("s_memtime s[%d:%d]", 8 + 2 * (3, 5, 6, 7, 8, 9, 10).index(g) + (18 if g > 7 else 0), 9 + 2 * (3, 5, 6, 7, 8, 9, 10).index(g) + (18 if g > 7 else 0)) if False else a("s_memtime s[%d:%d]", {3: 8, 5: 10, 6: 12, 7: 14, 8: 28, 9: 30, 10: 40}[g], {3: 9, 5: 11, 6: 13, 7: 15, 8: 29, 9: 31, 10: 41}[g])
        if PROF and "gst" in o["dbg"] and g in (4, 8): a("s_memtime s[%d:%d]", 82 + g // 2, 83 + g // 2)
    stamp()
    def spin(lab, poll):
        a("s_mov_b32 s%d, 0", sT3)
        a.label(lab)
        if o["psleep"]: a("s_sleep %d", o["psleep"])
        a(poll)
        a("s_add_u32 s%d, s%d, 1", sT3, sT3); a("s_cmp_gt_u32 s%d, %d", sT3, o["spin"])
        a("s_waitcnt vmcnt(0)")
        a("s_cbranch_scc1 %s_x", lab)
        a(chk)
        a("s_cbranch_vccnz %s", lab)
        a.label(lab + "_x")
    if o["pgb"]:
        a("s_waitcnt vmcnt(%d)", len(log) - pos_b)
        a("s_cmp_lt_u32 s5, 24"); a("s_cbranch_scc1 L_pg3"); a("s_waitcnt vmcnt(%d)", len(log) - pos_h); a.label("L_pg3")
    elif o["hs1"]:
        a("s_cmp_lt_u32 s5, 24"); a("s_cbranch_scc1 L_vp")
        a("s_add_u32 s30, s28, 256")
        if o["hb"]:
            a("v_readlane_b32 s%d, v%d, 0", sT, vFl); a("v_readlane_b32 s%d, v%d, 32", sT2, vFl)
            a("s_cmp_lt_u32 s%d, %d", sNb, o["hbn"]); a("s_cbranch_scc0 L_hb")
            a("s_add_u32 s28, s%d, %d", sT, 256 * (o["hb"] - 1)); a("s_add_u32 s30, s%d, %d", sT2, 256 * (o["hb"] - 1))
            a.label("L_hb")
        a("s_add_u32 s28, s%d, s28", sH); a("s_addc_u32 s29, s%d, 0", sH + 1); a("s_add_u32 s30, s%d, s30", sH); a("s_addc_u32 s31, s%d, 0", sH + 1)
        a("s_mov_b32 s%d, 0", sT3)
        a.label("L_sp")
        for j in range(6): a("s_load_dwordx2 s[%d:%d], s[%d:%d], %d glc", (8, 10, 12, 14, 40, 42)[j], (8, 10, 12, 14, 40, 42)[j] + 1, 28 + 2 * (j // 3), 29 + 2 * (j // 3), 512 * (j % 3))
        a("s_add_u32 s%d, s%d, 1", sT3, sT3); a("s_cmp_gt_u32 s%d, %d", sT3, o["spin"])
        a("s_waitcnt lgkmcnt(0)")
        a("s_cbranch_scc1 L_spa_x")
        for j in range(6): a("s_cmp_eq_u64 s[%d:%d], s[%d:%d]", (8, 10, 12, 14, 40, 42)[j], (8, 10, 12, 14, 40, 42)[j] + 1, sNonce, sNonce + 1); a("s_cbranch_scc0 L_sp")
        a("s_branch L_spa_x")
        a.label("L_vp")
        a("s_waitcnt vmcnt(%d)", len(log) - pos_b)
    else: a(vmwait("pa"))
    a(chk)
    a("s_cbranch_vccz L_spa_x")
    spin("L_spa", pollA)
    stamp()
    D = o["dist"]; NK = 12; NR = 8; PK = 8
    D = 6; PK = 9
    def hload(k, ph):
        r = RING + 4 * ((k + ph) % NR)
        return "buffer_load_dwordx4 v[%d:%d], v%d, s[%d:%d], s%d offen offset:%d %s" % (r, r + 3, vH, sH, sH + 3, sHcur, (k & 3) * 1024, o["hld"])
    def hstep(k): return ["s_add_u32 s%d, s%d, s%d" % (sHcur, sBase, sO1 if k % NK == 3 else sO2)] if k % NK in (3, 7) else []
    for k in range(D):
        a(hload(k, 0)); log.append("h")
        for e in hstep(k): a(e)
        if k == ((PK + D) % NK if not o["noa2"] else o["pbk"]):
            if o["pm"]: a("s_mov_b64 exec, 0xff")
            a(pollB); log.append("pb")
            if o["pm"]: a("s_mov_b64 exec, -1")
    for g in range(12 - LAG, 12):
        a(vmwait("g%d" % g))
        for r in greads(g): a(r)
    a("s_cmp_ge_u32 s5, 24"); a("s_cbranch_scc1 L_cd_x")
    a("v_mov_b32 v62, %d", SYNC + (4 if o["noa2"] else 0)); a("s_mov_b32 s%d, 0", sIt)
    a.label("L_cd")
    a("ds_read_b32 v63, v62")
    a("s_add_u32 s%d, s%d, 1", sIt, sIt); a("s_cmp_gt_u32 s%d, %d", sIt, o["spin"] * 8)
    a("s_waitcnt lgkmcnt(0)")
    a("s_cbranch_scc1 L_cd_x")
    a("v_cmp_gt_u32 vcc, 4, v63")
    a("s_cbranch_vccnz L_cd")
    a.label("L_cd_x")
    a("s_mov_b32 s%d, 1", sIt)
    a("s_setprio %d", o["p2prio"])
    a("s_waitcnt lgkmcnt(0)")
    src = lambda t: (A2 + 4 * t) if t < 2 else (B2 + 4 * (t - 2))
    W = ["ds_write_b128 v%d, v[%d:%d] offset:%d" % (vRw, src(t), src(t) + 3, 64 * t) for t in range(4)]
    sig = ["v_add_u32 v%d, s%d, v%d" % (vRw, sInc, vRw), "ds_write_b32 v%d, v%d" % (vCa, vRw)]
    def mm(t, k, ph, prev=False):
        c = "0" if k == 0 else "v[%d:%d]" % (A2 + 4 * t, A2 + 4 * t + 3)
        d = src(t) if k == NK - 1 else A2 + 4 * t
        kind, w = w2reg(k * 4 + t); h = RING + 4 * ((k - (NK if prev else 0) + ph) % NR)
        return "v_mfma_f32_16x16x32_bf16 v[%d:%d], %s[%d:%d], v[%d:%d], %s" % (d, d + 3, kind, w, w + 3, h, h + 3, c)
    def trip(ph):
        X = {}
        add = lambda ks, g, *e: X.setdefault((ks, g), []).extend(e)
        add(0, 1, W[0]); add(0, 3, W[1]); add(3, 0, W[2]); add(4, 0, W[3]); add(4, 2, sig[0]); add(4, 3, sig[1])
        HB = hbase(sBase, sCur, sT2)
        add(1, 0, order_next[0], order_next[1]); add(1, 2, order_next[2], HB[0]); add(1, 3, HB[1])
        add(2, 0, HB[2], HB[3]); add(2, 1, HB[4]); add(2, 2, HB[5], "s_lshl_b32 s%d, s%d, 7" % (sT, sCur)); add(2, 3, "s_cmp_ge_u32 s%d, s%d" % (sIt, sNb))
        add(3, 1, "s_cselect_b32 s%d, s%d, s%d" % (sBase, sNx, sBase))
        add(5, 0, chk, "s_andn2_b32 s%d, s%d, s%d" % (sT, sKr, sT))
        add(5, 1, "s_cselect_b64 s[%d:%d], 0, -1" % (sT, sT + 1))
        add(5, 2, "s_and_b64 s[%d:%d], s[%d:%d], vcc" % (sT, sT + 1, sT, sT + 1), "s_cbranch_scc1 L_spb%d" % ph, "L_spb%d_r:" % ph)
        add(5, 3, "s_add_u32 s%d, s%d, s%d" % (sHcur, sBase, sO0))
        add(6, 0, "s_movk_i32 s%d, 256" % sKr, "s_mov_b32 s%d, %d" % (sInc, REDSZ))
        add(6, 2, "s_or_b64 vcc, vcc, s[%d:%d]" % (sC1, sC1 + 1), "s_mov_b64 s[%d:%d], 0" % (sC1, sC1 + 1))
        add(PK, 2, "s_mov_b64 exec, vcc", pollB, "s_mov_b64 exec, -1")
        add(NK - 1, 2, "s_add_u32 s%d, s%d, 1" % (sIt, sIt), "s_cmp_le_u32 s%d, s%d" % (sIt, sNb))
        for ks in range(NK):
            between = any(((ks - D + d) % NK) == PK for d in range(D))
            wt = "s_waitcnt vmcnt(%d)" % (D - 1 + (1 if between else 0))
            t0 = 0 if ks & 1 else 2
            if ks == 0: M = [mm(2, NK - 1, ph, True), mm(3, NK - 1, ph, True), mm(2, 0, ph), mm(3, 0, ph)]
            elif o["sn2"] and ks not in (1, NK - 1): M = [mm(t0, ks - 1, ph), mm(t0, ks, ph), mm(t0 + 1, ks, ph), mm(t0 + 1, ks - 1, ph)]
            else: M = [mm(t0, ks - 1, ph), mm(t0, ks, ph), mm(t0 + 1, ks - 1, ph), mm(t0 + 1, ks, ph)]
            ex = {g: list(X.get((ks, g), [])) for g in range(4)}
            if ks == 0: ex[0] = [wt] + ex[0]
            else: a(wt)
            hg = 2 if ks == 0 else 1
            ex[hg] = [hload(ks + D, ph)] + hstep(ks + D) + ex[hg]
            weave(a, M, ex)
        if PROF and "p2st" in o["dbg"]:
            a("s_cselect_b32 s%d, 1, 0", sT)
            for b in ((1, 3, 5) if ph == 0 else (2, 4)):
                r = {1: 66, 2: 68, 3: 70, 4: 84, 5: 86}[b]
                a("s_cmp_lg_u32 s%d, %d", sIt, b + 1); a("s_cbranch_scc1 L_ps%d", b); a("s_memtime s[%d:%d]", r, r + 1); a.label("L_ps%d" % b)
            a("s_cmp_eq_u32 s%d, 1", sT)
    jitter("L_j5", 5)
    a("s_mov_b32 s%d, 0x%x", sNx, OOB); a("s_mov_b64 s[%d:%d], -1", sC1, sC1 + 1)
    a(".p2align 3")
    a.label("L_p2")
    trip(0)
    a("s_cbranch_scc0 L_p2f")
    a(".p2align 3")
    trip(4)
    a("s_cbranch_scc1 L_p2")
    a(mm(2, NK - 1, 4)); a(mm(3, NK - 1, 4)); a("s_branch L_p2e")
    a.label("L_p2f")
    a(mm(2, NK - 1, 0)); a(mm(3, NK - 1, 0)); a("s_nop 0")
    a.label("L_p2e")
    a("s_nop 2"); a(W[0]); a("s_nop 0"); a(W[1]); a("s_nop 0"); a(W[2]); a(W[3])
    for e in sig: a(e)
    stamp()
    if PROF and "p1st" in o["dbg"]:
        a("s_mov_b32 s70, s84"); a("s_mov_b32 s72, s86")
    pad_to(NSTAMP)
    if PROF and "gall" in o["dbg"]:
        for i, r in enumerate((8, 10, 12, 14, 28, 30, 40)): a("s_mov_b32 s%d, s%d", 66 + 2 * i, r)
    if PROF and ("gst" in o["dbg"] or "p2st" in o["dbg"]):
        a("s_mov_b32 s76, s84"); a("s_mov_b32 s78, s86")
    if PROF: a("s_branch L_fin")
    else: a("s_endpgm")
    for ph in (0, 4):
        a.label("L_spb%d" % ph)
        if o["pm"]: a("s_mov_b64 exec, 0xff")
        spin("L_spb%dl" % ph, pollB)
        if o["pm"]: a("s_mov_b64 exec, -1")
        a("s_branch L_spb%d_r", ph)
    a.L.append("@F")
    a.label("L_fin")
    if PROF:
        n = NSTAMP
        a("s_waitcnt vmcnt(0)")
        a("s_memtime s[%d:%d]", 64 + 2 * n, 65 + 2 * n); a("s_memrealtime s[62:63]"); a("s_waitcnt lgkmcnt(0)")
        a("s_add_u32 s8, s54, %d", 128 << 20); a("s_addc_u32 s9, s55, 0"); a("s_mov_b32 s10, 0x100000"); a("s_mov_b32 s11, 0x20000")
        a("s_lshl_b32 s28, s2, 3"); a("s_add_u32 s28, s28, s%d", sWv); a("s_lshl_b32 s28, s28, 6")
        a("v_mov_b32 v0, s28")
        a("s_getreg_b32 s29, hwreg(HW_REG_XCC_ID)")
        vals = ["s60", "s62", "s29"] + ["s%d" % (64 + 2 * i) for i in range(n + 1)]
        vals += ["0"] * (16 - len(vals))
        for i, v in enumerate(vals): a("v_mov_b32 v%d, %s", 4 + i, v)
        a("s_mov_b64 exec, 1")
        for i in range(4): a("buffer_store_dwordx4 v[%d:%d], v0, s[8:11], 0 offen offset:%d", 4 + 4 * i, 7 + 4 * i, 16 * i)
    if PROF and o.get("probe") is not None:
        pw, pv, pi = o["probe"]
        a("s_cmp_lg_u32 s2, %d", pw); a("s_cbranch_scc1 L_end")
        a("s_cmp_lg_u32 s%d, %d", sWv, pv); a("s_cbranch_scc1 L_end")
        if pi == "start": a("s_sub_u32 s30, s60, s%d", sNonce); a("s_add_u32 s30, s30, 200"); a("s_lshl_b32 s30, s30, 2")
        else: a("s_sub_u32 s30, s%d, s64", 64 + 2 * pi); a("s_lshl_b32 s30, s30, 2"); a("s_add_u32 s30, s30, 300")
        a("s_min_u32 s30, s30, 20000")
        a.label("L_spin")
        a("s_memrealtime s[32:33]"); a("s_waitcnt lgkmcnt(0)")
        a("s_sub_u32 s32, s32, s62"); a("s_cmp_lt_u32 s32, s30"); a("s_cbranch_scc1 L_spin")
    a.label("L_end")
    a("s_endpgm")
    a(".p2align 6")
    a(".type L_table,@object")
    a.label("L_table")
    W = make_table(o)
    for k in range(0, 256, 8): a(".long " + ", ".join("0x%x" % w for w in W[k:k + 8]))
    a.label("L_codeend")
    sec = {"E": []}; cur = "E"
    for l in a.L:
        if l.startswith("@"): cur = l[1]; sec[cur] = []
        else: sec[cur].append(l)
    a.L = []
    for c in o["lay"] + "F":
        if c == "|": a.L.append("    .p2align 12")
        if c in sec: a.L += sec[c]
    a.L = [l for i, l in enumerate(a.L) if not (l.startswith("    s_branch ") and i + 1 < len(a.L) and a.L[i + 1] == l.split()[1] + ":")]
    if "noflag" in o["dbg"]: a.L = [l.replace(" sc1", "") if "buffer_store_dwordx2 v[4:5], v10" in l else l for l in a.L]
    if "plainh" in o["dbg"]: a.L = [l.replace(" sc1", "") if "buffer_store_dwordx4" in l else l for l in a.L]
    if "hlate" in o["dbg"]:
        i = a.L.index("L_lw:"); a.L[i + 1:i + 1] = ["    s_cmp_lt_u32 s5, 24", "    s_cbranch_scc1 L_hl8", "    s_sleep 100", "L_hl8:"]
    if o["dfl"]: a.L = [l[:-4] + " " + o["dfl"] + " lds" if l.endswith(" lds") else l for l in a.L]
    if "rt" in o["dbg"].split(): a.L = [l.replace("s_memtime", "s_memrealtime") if "s[1" not in l else l for l in a.L]
    s = HEAD + DOC + "; @launch grid=(256,1,1) block=(512,1,1) lds=163840\n"
    s += '.amdgcn_target "amdgcn-amd-amdhsa--gfx950"\n.text\n'
    n = NAME + "_kernel"
    if o["pad"] is not None: s += ".p2align 12\n.fill %d, 4, 0xbf800000\n" % (o["pad"] // 4)
    s += ".globl %s\n.p2align 8\n.type %s,@function\n%s:\n%s" % (n, n, n, a.text())
    s += '''.section .rodata,"a"
.p2align 6
.amdhsa_kernel %s
  .amdhsa_next_free_vgpr 256
  .amdhsa_next_free_sgpr 102
  .amdhsa_accum_offset 128
  .amdhsa_group_segment_fixed_size 0
  .amdhsa_kernarg_size 64
  .amdhsa_user_sgpr_count 2
  .amdhsa_user_sgpr_kernarg_segment_ptr 1
  .amdhsa_system_sgpr_workgroup_id_x 1
  .amdhsa_float_denorm_mode_32 3
  .amdhsa_float_denorm_mode_16_64 3
.end_amdhsa_kernel
''' % n
    return s
if __name__ == "__main__":
    kw = json.loads(sys.argv[2]) if len(sys.argv) > 2 else {}
    open(sys.argv[1], "w").write(gen(**kw))
```
